```python
import torch

def _softmax(x, axis=-1):
    return torch.softmax(x, dim=axis)
def _gelu(x):
    return torch.nn.functional.gelu(x, approximate="tanh")
def _silu(x):
    return torch.nn.functional.silu(x)
def _sigmoid(x):
    return torch.sigmoid(x)
def _layernorm(x, axis=-1, eps=1e-5):
    m = x.mean(dim=axis, keepdim=True)
    v = x.var(dim=axis, keepdim=True, unbiased=False)
    return (x - m) / torch.sqrt(v + eps)
def _scatter_add(tgt, idx, src, axis=0):
    return tgt.clone().index_add_(axis, idx, src)
def _segment_sum(src, seg, n):
    out = torch.zeros((n,) + src.shape[1:], dtype=src.dtype)
    return out.index_add_(0, seg, src)
def _pad(x, pw):
    flat = tuple(v for pair in reversed(pw) for v in pair)
    return torch.nn.functional.pad(x, flat)

kernel_name = 'sequential_preLN__mha_block_cached__glu_gated_bilinear__decode'

def setup_inputs():

    _w = (lambda a: (lambda t: t.to(torch.bfloat16) if t.is_floating_point() else t)(torch.as_tensor(a)))
    def _A_setup():
        B, Sq, D = 4, 1, 448
        H, Sk, Dh = 16, 8192, 256
        return {
            "x": _w((lambda *s: torch.randn(*s, dtype=torch.bfloat16) * 0.05)(B, Sq, D)),
            "k_cache": _w((lambda *s: torch.randn(*s, dtype=torch.bfloat16) * 1.6)(B, H, Sk, Dh)),
            "v_cache": _w((lambda *s: torch.randn(*s, dtype=torch.bfloat16) * 0.8)(B, H, Sk, Dh)),
            "wq": _w((lambda *s: torch.randn(*s, dtype=torch.bfloat16) * 1.6)(D, H * Dh) * (D ** -0.5)),
            "wo": _w((lambda *s: torch.randn(*s, dtype=torch.bfloat16) * 0.8)(H * Dh, D) * ((H * Dh) ** -0.5)),
        }
    _A_in = _A_setup()

    def _B_setup():
        B, S, D, F = 4, 1, 448, 1792
        return {
            "x": _w((lambda *s: torch.randn(*s, dtype=torch.bfloat16) * 0.05)(B, S, D)),
            "w_gate": _w((lambda *s: torch.randn(*s, dtype=torch.bfloat16) * 0.4)(D, F) * (D ** -0.5)),
            "w_up": _w((lambda *s: torch.randn(*s, dtype=torch.bfloat16) * 0.4)(D, F) * (D ** -0.5)),
            "w_down": _w((lambda *s: torch.randn(*s, dtype=torch.bfloat16) * 0.4)(F, D) * (F ** -0.5)),
        }
    _B_in = _B_setup()

    return {
        "A_x": _A_in["x"],
        "A_k_cache": _A_in["k_cache"],
        "A_v_cache": _A_in["v_cache"],
        "A_wq": _A_in["wq"],
        "A_wo": _A_in["wo"],
        "B_x": _B_in["x"],
        "B_w_gate": _B_in["w_gate"],
        "B_w_up": _B_in["w_up"],
        "B_w_down": _B_in["w_down"],
    }

def reference(A_x, A_k_cache, A_v_cache, A_wq, A_wo, B_x, B_w_gate, B_w_up, B_w_down):
    def _A_ref(x, k_cache, v_cache, wq, wo):
        B, Sq, D = x.shape
        H, Dh = 16, 256
        q = (lambda x, *d: x.permute(*d))((x @ wq).reshape(B, Sq, H, Dh), 0, 2, 1, 3)
        scores = torch.einsum("bhqd,bhkd->bhqk", q, k_cache) * (Dh ** -0.5)
        p = _softmax(scores, axis=-1)
        o = torch.einsum("bhqk,bhkd->bhqd", p, v_cache)
        return (lambda x, *d: x.permute(*d))(o, 0, 2, 1, 3).reshape(B, Sq, H * Dh) @ wo

    def _B_ref(x, w_gate, w_up, w_down):
        g = torch.einsum("bsd,df->bsf", x, w_gate)
        u = torch.einsum("bsd,df->bsf", x, w_up)
        h = g * u
        return torch.einsum("bsf,fd->bsd", h, w_down)

    x = A_x
    h = x + _A_ref(_layernorm(x, axis=-1), A_k_cache, A_v_cache, A_wq, A_wo)
    h2 = h + _B_ref(_layernorm(h, axis=-1), B_w_gate, B_w_up, B_w_down)
    return h2
```

```python
import sys
KNAME = "sequential_preLN__mha_block_cached__glu_gated_bilinear__decode_kernel"

HEADER = """; Kernarg layout for this problem (96 bytes, ptrs only, base s[0:1]):
;   offset  88: d_ws      1073741824 bytes workspace"""

RING = 0
M0_ = 131072
F_FILL, F_CONS, F_QCNT, F_MLCNT, F_FOK = M0_, M0_ + 4, M0_ + 12, M0_ + 16, M0_ + 20
L_ML, L_F = M0_ + 32, M0_ + 48
L_XN = M0_ + 128
L_QP = M0_ + 1024
L_QB = M0_ + 8192
L_PB = M0_ + 9216
L_OB = M0_ + 13312
L_XN2 = M0_ + 14592
L_GU = M0_ + 18432
LDS_BYTES = M0_ + 19456
W_YP = 0
W_ML = 0x80000
W_HB = 0x90000
W_OP = 0xC0000
W_ST = 0x200000
WS_BYTES = 0x400000
SEL, ABUF, ACC, YA, QA, FX, T, WO = 16, 24, 32, 36, 52, 84, 96, 128
T2 = WO + 96
LOG2E_16 = 0x3db8aa3b
INV448 = 0x3b124925
EPS = 0x3727c5ac


def gen(depth=20, diag=False, nrep=8, xl=2, spin_bound=True, poll_sleep=2, dump=False):
    L = []
    a = L.append
    uid = [0]

    def lab(p):
        uid[0] += 1
        return f"L_{p}{uid[0]}"

    def q(r, n=4):
        return f"v[{r}:{r+n-1}]"

    def srd(r, p, nbytes):
        a(f"s_mov_b32 s{r}, s{p}")
        a(f"s_and_b32 s{r+1}, s{p+1}, 0xffff")
        a(f"s_mov_b32 s{r+2}, {nbytes}")
        a(f"s_mov_b32 s{r+3}, 0x20000")

    def stamp(k):
        if diag:
            a(f"s_memrealtime s[{64+2*k}:{65+2*k}]")
            a("s_waitcnt lgkmcnt(0)")

    def finish():
        if diag:
            a("s_branch L_stamps")
        else:
            a("s_endpgm")

    def bound_init(n=1 << 20):
        if spin_bound:
            a(f"s_mov_b32 s63, {n}")

    def bound_loop(target):
        if spin_bound:
            a("s_sub_u32 s63, s63, 1")
            a(f"s_cbranch_scc0 {target}")
        else:
            a(f"s_branch {target}")

    def lds_wait_ge(vaddr, off, sdst, cmp_operand, vt, sleep=1, precheck=False):
        p, go = lab("poll"), lab("go")
        if precheck:
            a(f"s_cmp_ge_u32 {sdst}, {cmp_operand}")
            a(f"s_cbranch_scc1 {go}")
        bound_init()
        a(f"{p}:")
        a(f"ds_read_b32 v{vt}, v{vaddr} offset:{off}")
        a("s_waitcnt lgkmcnt(0)")
        a(f"v_readfirstlane_b32 {sdst}, v{vt}")
        a(f"s_cmp_ge_u32 {sdst}, {cmp_operand}")
        a(f"s_cbranch_scc1 {go}")
        a(f"s_sleep {sleep}")
        bound_loop(p)
        a(f"{go}:")

    def wave_red(op, v, sdst):
        for d in ("row_ror:8", "row_ror:4", "row_ror:2", "row_ror:1"):
            a("s_nop 1")
            a(f"{op}_dpp v{v}, v{v}, v{v} {d} row_mask:0xf bank_mask:0xf")
        a("s_nop 1")
        a(f"{op}_dpp v{v}, v{v}, v{v} row_bcast:15 row_mask:0xa bank_mask:0xf")
        a("s_nop 1")
        a(f"{op}_dpp v{v}, v{v}, v{v} row_bcast:31 row_mask:0xc bank_mask:0xf")
        a("s_nop 0")
        a(f"v_readlane_b32 {sdst}, v{v}, 63")
        a("s_nop 1")

    def bf16r(dst, src):
        a(f"v_cvt_pk_bf16_f32 v{dst}, v{src}, v{src}")
        a(f"v_and_b32 v{dst}, 0xffff0000, v{dst}")

    def layernorm(X, t):
        a(f"v_add_f32 v{t}, v{X}, v{X+1}"); a(f"v_add_f32 v{t+1}, v{X+2}, v{X+3}")
        a(f"v_add_f32 v{t+2}, v{X+4}, v{X+5}"); a(f"v_add_f32 v{t+3}, v{X+6}, v{X+7}")
        a(f"v_add_f32 v{t}, v{t}, v{t+1}"); a(f"v_add_f32 v{t+2}, v{t+2}, v{t+3}")
        a(f"v_add_f32 v{t}, v{t}, v{t+2}")
        wave_red("v_add_f32", t, "s48")
        a(f"v_mov_b32 v{t+1}, {INV448:#x}")
        a(f"v_mul_f32 v{t+1}, s48, v{t+1}")
        a(f"v_mov_b32 v{t}, 0")
        a("s_mov_b32 exec_hi, 0x00ffffff")
        for e in range(8):
            a(f"v_sub_f32 v{t+4+e}, v{X+e}, v{t+1}")
        for e in range(8):
            a(f"v_fmac_f32 v{t}, v{t+4+e}, v{t+4+e}")
        a("s_mov_b32 exec_hi, -1")
        bf16r(t + 1, t + 1)
        wave_red("v_add_f32", t, "s48")
        a(f"v_mov_b32 v{t+2}, {INV448:#x}")
        a(f"v_mul_f32 v{t+2}, s48, v{t+2}")
        for e in range(8):
            a(f"v_sub_f32 v{X+e}, v{X+e}, v{t+1}")
        bf16r(t + 2, t + 2)
        a(f"v_add_f32 v{t+2}, {EPS:#x}, v{t+2}")
        bf16r(t + 2, t + 2)
        a(f"v_sqrt_f32 v{t+2}, v{t+2}")
        for e in range(0, 8, 2):
            a(f"v_cvt_pk_bf16_f32 v{t+4+e}, v{X+e}, v{X+e+1}")
        bf16r(t + 2, t + 2)
        a(f"v_rcp_f32 v{t+3}, v{t+2}")
        for e in range(0, 8, 2):
            a(f"v_lshlrev_b32 v{X+e}, 16, v{t+4+e}")
            a(f"v_and_b32 v{X+e+1}, 0xffff0000, v{t+4+e}")
        for e in range(8):
            a(f"v_mul_f32 v{t+4+e}, v{X+e}, v{t+3}")
        for e in range(8):
            a(f"v_fma_f32 v{X+e}, -v{t+4+e}, v{t+2}, v{X+e}")
        for e in range(8):
            a(f"v_fma_f32 v{X+e}, v{X+e}, v{t+3}, v{t+4+e}")

    def build_a(dst, psrc, n):
        for w in range(4):
            a(f"v_perm_b32 v{dst+w}, v{psrc + (n >> 1)}, v{psrc + (n >> 1)}, v{SEL + (n & 1)*4 + w}")

    def xreduce(V):
        a("s_nop 1")
        a(f"v_permlane16_swap_b32 v{V}, v{V+1}")
        a(f"v_permlane16_swap_b32 v{V+2}, v{V+3}")
        a(f"v_add_f32 v{V}, v{V}, v{V+1}")
        a(f"v_add_f32 v{V+2}, v{V+2}, v{V+3}")
        a("s_nop 1")
        a(f"v_permlane32_swap_b32 v{V}, v{V+2}")
        a(f"v_add_f32 v{V}, v{V}, v{V+2}")
        a("s_nop 1")
        a(f"v_add_f32_dpp v{V}, v{V}, v{V} row_ror:8 row_mask:0xf bank_mask:0xf")
        a("s_nop 1")
        a(f"v_add_f32_dpp v{V}, v{V}, v{V} row_ror:4 row_mask:0xf bank_mask:0xf")

    def poll_quads(n, R, voff, soffs, srdreg, vt):
        for g in range(n):
            a(f"buffer_load_dwordx4 {q(R+4*g)}, v{voff}, s[{srdreg}:{srdreg+3}], {soffs[g]} offen sc1")
        bound_init(1 << 17)
        p, go = lab("gp"), lab("gg")
        a(f"{p}:")
        a("s_mov_b64 s[50:51], 0")
        masks = []
        for g in range(n):
            a(f"s_waitcnt vmcnt({n-1-g})") if True else None
            a(f"v_max3_u32 v{vt}, v{R+4*g}, v{R+4*g+1}, v{R+4*g+2}")
            a(f"v_max_u32 v{vt}, v{vt}, v{R+4*g+3}")
            a(f"v_cmp_eq_u32 s[{80+2*g}:{81+2*g}], -1, v{vt}")
        for g in range(n):
            a(f"s_or_b64 s[50:51], s[50:51], s[{80+2*g}:{81+2*g}]")
        a(f"s_cbranch_scc0 {go}")
        if poll_sleep:
            a(f"s_sleep {poll_sleep}")
        a("s_mov_b64 s[52:53], exec")
        for g in range(n):
            sk = lab("sk")
            a(f"s_mov_b64 exec, s[{80+2*g}:{81+2*g}]")
            a(f"s_cbranch_execz {sk}")
            a(f"buffer_load_dwordx4 {q(R+4*g)}, v{voff}, s[{srdreg}:{srdreg+3}], {soffs[g]} offen sc1")
            a(f"{sk}:")
        a("s_mov_b64 exec, s[52:53]")
        a("s_waitcnt vmcnt(0)")
        bound_loop(p)
        a(f"{go}:")

    a(HEADER)
    a(f"; @launch grid=(256,1,1) block=(512,1,1) lds={LDS_BYTES}")
    a('.amdgcn_target "amdgcn-amd-amdhsa--gfx950"')
    a(".text")
    a(f".globl {KNAME}")
    a(".p2align 8")
    a(f".type {KNAME},@function")
    a(f"{KNAME}:")
    a("s_cmp_ge_u32 s2, 256")
    a("s_cbranch_scc1 L_exit")
    a("s_load_dwordx16 s[4:19], s[0:1], 0")
    a("s_load_dwordx8 s[20:27], s[0:1], 64")
    if diag:
        for k in range(16):
            a(f"s_mov_b32 s{64+k}, 0")
        a("s_memrealtime s[64:65]")
    a("v_lshrrev_b32 v1, 6, v0")
    a("v_and_b32 v0, 63, v0")
    a("v_readfirstlane_b32 s3, v1")
    if xl == 2:
        a("s_and_b32 s28, s2, 7"); a("s_lshr_b32 s48, s2, 3"); a("s_and_b32 s49, s48, 1"); a("s_lshl_b32 s49, s49, 3")
        a("s_add_u32 s28, s28, s49")
        a("s_lshr_b32 s29, s48, 1"); a("s_and_b32 s29, s29, 3"); a("s_lshr_b32 s30, s48, 3")
    else:
        a("s_and_b32 s29, s2, 3"); a("s_lshr_b32 s28, s2, 2"); a("s_and_b32 s28, s28, 15"); a("s_lshr_b32 s30, s2, 6")
    a("s_lshl_b32 s31, s30, 4"); a("s_add_u32 s31, s31, s28")
    a("v_and_b32 v1, 15, v0")
    a("v_lshrrev_b32 v2, 4, v0")
    a("v_lshrrev_b32 v3, 5, v0")
    a("s_cmp_eq_u32 s3, 0")
    a("s_cbranch_scc1 L_loader")

    a("s_sub_u32 s60, s3, 1")
    a("v_lshlrev_b32 v5, 4, v0")
    a("s_mul_i32 s48, s30, 896")
    a("v_add_u32 v5, s48, v5")
    a("v_mov_b32 v6, 0x7fffff00")
    a("v_cmp_gt_u32 vcc, 56, v0")
    a("v_and_b32 v4, 31, v0")
    a("v_lshlrev_b32 v4, 4, v4")
    a("v_cndmask_b32 v5, v6, v5, vcc")
    a("v_lshl_add_u32 v4, v3, 13, v4")
    a("s_lshl_b32 s48, s60, 19"); a("s_lshl_b32 s49, s28, 9"); a("s_add_u32 s48, s48, s49")
    a("v_add_u32 v4, s48, v4")
    a("s_waitcnt lgkmcnt(0)")
    srd(32, 4, 3584)
    srd(36, 10, 3670016)
    a(f"buffer_load_dwordx4 {q(YA)}, v5, s[32:35], 0 offen")
    a("s_mov_b32 s48, 0")
    for n in range(32):
        a(f"buffer_load_dwordx4 {q(WO+4*n)}, v4, s[36:39], s48 offen")
        if n < 31:
            a("s_add_u32 s48, s48, 16384")
    srd(40, 26, WS_BYTES)
    a("v_and_b32 v6, 1, v1"); a("v_cmp_eq_u32 vcc, 1, v6")
    a("v_mov_b32 v7, 0x0c0c0100"); a("v_mov_b32 v8, 0x01000c0c"); a("v_mov_b32 v9, 0x0c0c0302"); a("v_mov_b32 v10, 0x03020c0c")
    a("v_cndmask_b32 v7, v7, v8, vcc"); a("v_cndmask_b32 v9, v9, v10, vcc")
    a("v_and_b32 v6, 1, v2"); a("v_lshrrev_b32 v8, 3, v1"); a("v_cmp_eq_u32 vcc, v6, v8")
    a("v_bfe_u32 v6, v1, 1, 2"); a("v_mov_b32 v8, 7"); a("v_mov_b32 v10, 0x0c0c0c0c")
    a("v_cndmask_b32 v6, v8, v6, vcc")
    for w in range(4):
        a(f"v_cmp_eq_u32 vcc, {w}, v6"); a("s_nop 1")
        a(f"v_cndmask_b32 v{SEL+w}, v10, v7, vcc"); a(f"v_cndmask_b32 v{SEL+4+w}, v10, v9, vcc")
    a("v_mov_b32 v15, 0")
    a("s_barrier")
    a("s_waitcnt vmcnt(32)")
    X = T
    for d in range(4):
        a(f"v_lshlrev_b32 v{X+2*d}, 16, v{YA+d}"); a(f"v_and_b32 v{X+2*d+1}, 0xffff0000, v{YA+d}")
    layernorm(X, T + 8)
    a(f"v_cvt_pk_bf16_f32 v{YA}, v{X}, v{X+2}"); a(f"v_cvt_pk_bf16_f32 v{YA+1}, v{X+4}, v{X+6}")
    a(f"v_cvt_pk_bf16_f32 v{YA+2}, v{X+1}, v{X+3}"); a(f"v_cvt_pk_bf16_f32 v{YA+3}, v{X+5}, v{X+7}")
    a("v_lshrrev_b32 v6, 1, v0"); a("v_lshlrev_b32 v6, 5, v6"); a("v_and_b32 v7, 1, v0"); a("v_lshl_add_u32 v6, v7, 3, v6")
    a(f"v_add_u32 v6, {L_XN}, v6")
    a("s_mov_b32 exec_hi, 0x00ffffff")
    a(f"ds_write_b64 v6, {q(YA,2)}"); a(f"ds_write_b64 v6, {q(YA+2,2)} offset:16")
    a("s_mov_b32 exec_hi, -1")
    a("s_lshl_b32 s48, s60, 7"); a(f"s_add_u32 s48, s48, {L_XN}")
    a("v_lshl_add_u32 v6, v3, 4, s48")
    a("s_waitcnt lgkmcnt(0)")
    for gq in range(4):
        a(f"ds_read_b128 {q(T+4*gq)}, v6 offset:{gq*32}")
    stamp(1)
    a("s_waitcnt lgkmcnt(0)")
    build_a(ABUF, T, 0)
    for n in range(32):
        if n + 1 < 32:
            build_a(ABUF + 4*((n+1) & 1), T + 4*((n+1) >> 3), (n+1) & 7)
        else:
            a("s_nop 1")
        a(f"s_waitcnt vmcnt({31-n})")
        a(f"v_mfma_f32_16x16x32_bf16 {q(ACC)}, {q(ABUF+4*(n&1))}, {q(WO+4*n)}, {q(ACC) if n else 0}")
    a("v_lshrrev_b32 v6, 1, v2"); a("v_lshl_add_u32 v6, v6, 4, v1"); a("v_lshlrev_b32 v6, 5, v6")
    a("v_and_b32 v7, 1, v2"); a("v_lshl_add_u32 v6, v7, 4, v6")
    a("s_lshl_b32 s48, s60, 10"); a(f"s_add_u32 s48, s48, {L_QP}")
    a("v_add_u32 v6, s48, v6")
    a(f"v_mov_b32 v14, {M0_}"); a("v_mov_b32 v7, 1")
    a("s_nop 1")
    a(f"ds_write_b128 v6, {q(ACC)}")
    a("s_waitcnt lgkmcnt(0)")
    a("s_mov_b64 exec, 1")
    a(f"ds_add_u32 v14, v7 offset:{F_QCNT-M0_}")
    a("s_mov_b64 exec, -1")
    stamp(2)
    srd(36, 12, 3670016)
    a("v_lshrrev_b32 v6, 3, v1"); a("v_lshlrev_b32 v6, 4, v6"); a("v_add_u32 v6, v6, v2"); a("v_mul_u32_u24 v4, 7168, v6")
    a("v_and_b32 v6, 7, v1"); a("v_lshl_add_u32 v4, v6, 4, v4")
    a("s_mul_i32 s48, s28, 229376"); a("s_lshl_b32 s49, s60, 7"); a("s_add_u32 s48, s48, s49")
    a("v_add_u32 v4, s48, v4")
    a("s_cmp_gt_u32 s3, 2")
    a("s_cbranch_scc1 L_helper")

    def wo_loads():
        for ks in range(4):
            for eh in range(2):
                a(f"s_mov_b32 s48, {(ks*32 + eh*4)*896}")
                for e in range(4):
                    a(f"buffer_load_dwordx4 {q(WO+ks*32+(eh*4+e)*4)}, v4, s[36:39], s48 offen offset:{e*896}")

    def wo_perms():
        a("s_mov_b32 s48, 0x05040100"); a("s_mov_b32 s49, 0x07060302")
        for ks in range(4):
            src = WO + ks*32
            dst = T if ks == 0 else WO + (ks-1)*32
            for t in range(8):
                for d in range(4):
                    a(f"v_perm_b32 v{dst+4*t+d}, v{src+(2*d+1)*4+(t>>1)}, v{src+(2*d)*4+(t>>1)}, s{48+(t&1)}")

    def wfrag(ks, t):
        return (T if ks == 0 else WO + (ks-1)*32) + 4*t

    lds_wait_ge(14, F_QCNT - M0_, "s48", 7, 6)
    a(f"v_lshlrev_b32 v6, 4, v0"); a(f"v_add_u32 v6, {L_QP}, v6")
    for p in range(7):
        a(f"ds_read_b128 {q(T+4*p)}, v6 offset:{p*1024}")
    a("s_lshl_b32 s48, s60, 9"); a(f"s_add_u32 s48, s48, {L_QB}")
    a("v_lshl_add_u32 v7, v0, 3, s48")
    a("v_lshl_add_u32 v8, v2, 4, s48")
    for p in range(1, 7):
        a(f"s_waitcnt lgkmcnt({6-p})")
        for r in range(4):
            a(f"v_add_f32 v{T+r}, v{T+r}, v{T+4*p+r}")
    a(f"v_cvt_pk_bf16_f32 v{T}, v{T}, v{T+1}"); a(f"v_cvt_pk_bf16_f32 v{T+1}, v{T+2}, v{T+3}")
    a(f"ds_write_b64 v7, {q(T,2)}")
    a("s_waitcnt lgkmcnt(0)")
    for ks in range(8):
        a(f"ds_read_b128 {q(QA+4*ks)}, v8 offset:{ks*64}")
    wo_loads()
    a("v_and_b32 v6, 3, v1"); a("v_xor_b32 v6, v6, v2"); a("v_and_b32 v7, 12, v1"); a("v_or_b32 v6, v6, v7")
    for m in range(4):
        a(f"v_xor_b32 v7, {m*4}, v6"); a("v_lshlrev_b32 v7, 4, v7"); a(f"v_lshl_add_u32 v{8+m}, v1, 9, v7")
    a("v_and_b32 v6, 1, v1"); a("v_lshlrev_b32 v6, 4, v6"); a("v_and_b32 v7, 14, v1"); a("v_add_u32 v12, v6, v7")
    a("s_lshl_b32 s48, s60, 5"); a(f"s_add_u32 s61, s48, {L_PB}")
    a("v_add_u32 v12, s61, v12")
    a("s_lshl_b32 s48, s60, 2"); a(f"s_add_u32 s48, s48, {F_CONS}"); a("v_mov_b32 v13, s48")
    a("s_lshl_b32 s56, s60, 13")
    a("s_add_u32 s57, s60, 1")
    a("s_mov_b32 s58, 0")
    a("v_mov_b32 v5, 0")
    stamp(3)
    a("L_kloop:")
    for m in range(4):
        a(f"v_add_u32 v{ABUF+m}, s56, v{8+m}")
    a("v_add_u32 v5, 1, v5")
    lds_wait_ge(14, F_FILL - M0_, "s58", "s57", 6, precheck=True)
    for ks in range(8):
        a(f"ds_read_b128 {q(T+4*ks)}, v{ABUF+(ks&3)} offset:{(ks>>2)*256}")
    for ks in range(8):
        a(f"s_waitcnt lgkmcnt({7-ks})")
        a(f"v_mfma_f32_16x16x32_bf16 {q(ACC)}, {q(QA+4*ks)}, {q(T+4*ks)}, {q(ACC) if ks else 0}")
    a("ds_write_b32 v13, v5")
    a("s_add_u32 s56, s56, 16384"); a("s_and_b32 s56, s56, 0x1ffff")
    a("s_add_u32 s57, s57, 2")
    a("s_nop 4")
    a(f"v_cvt_pk_bf16_f32 v6, v{ACC}, v{ACC}")
    a("ds_write_b16 v12, v6")
    a("v_add_u32 v12, 64, v12")
    a("s_cmp_lt_u32 s57, 129")
    a("s_cbranch_scc1 L_kloop")
    stamp(4)
    a("v_lshl_add_u32 v12, v0, 6, s61")
    a("s_waitcnt lgkmcnt(0)")
    a(f"ds_read_b128 {q(YA)}, v12"); a(f"ds_read_b128 {q(YA+4)}, v12 offset:16")
    a("s_waitcnt lgkmcnt(0)")
    if dump:
        a("v_lshlrev_b32 v6, 6, v0"); a("s_lshl_b32 s48, s31, 2"); a("s_add_u32 s48, s48, s29"); a("s_lshl_b32 s48, s48, 12")
        a("s_lshl_b32 s49, s60, 5"); a("s_add_u32 s48, s48, s49"); a("s_add_u32 s48, s48, 0x280000 - 0x80000")
        a("s_add_u32 s48, s48, 0x100000")
        a(f"buffer_store_dwordx4 {q(YA)}, v6, s[40:43], s48 offen"); a(f"buffer_store_dwordx4 {q(YA+4)}, v6, s[40:43], s48 offen offset:16")
    for d in range(8):
        a(f"v_lshlrev_b32 v{T+2*d}, 16, v{YA+d}"); a(f"v_and_b32 v{T+2*d+1}, 0xffff0000, v{YA+d}")
    a(f"v_max3_f32 v6, v{T}, v{T+1}, v{T+2}")
    for d in range(3, 15, 2):
        a(f"v_max3_f32 v6, v6, v{T+d}, v{T+d+1}")
    a(f"v_max_f32 v6, v6, v{T+15}")
    wave_red("v_max_f32", 6, "s48")
    a(f"s_mov_b32 s49, {LOG2E_16:#x}")
    for d in range(16):
        a(f"v_subrev_f32 v{T+d}, s48, v{T+d}")
    for d in range(16):
        a(f"v_mul_f32 v{T+d}, s49, v{T+d}")
    for d in range(16):
        a(f"v_exp_f32 v{T+d}, v{T+d}")
    a("s_nop 0")
    for d in range(8):
        a(f"v_cvt_pk_bf16_f32 v{YA+d}, v{T+2*d}, v{T+2*d+1}")
    a(f"ds_write_b128 v12, {q(YA)}"); a(f"ds_write_b128 v12, {q(YA+4)} offset:16")
    for st in (8, 4, 2, 1):
        for d in range(st):
            a(f"v_add_f32 v{T+d}, v{T+d}, v{T+d+st}")
    wave_red("v_add_f32", T, "s49")
    a("v_mov_b32 v6, s48"); a("v_mov_b32 v7, s49")
    a("s_lshl_b32 s48, s60, 3"); a(f"s_add_u32 s48, s48, {L_ML}"); a("v_mov_b32 v8, s48"); a("v_mov_b32 v9, 1")
    a("s_mov_b64 exec, 1")
    a("ds_write_b64 v8, v[6:7]")
    a("s_waitcnt lgkmcnt(0)")
    a(f"ds_add_u32 v14, v9 offset:{F_MLCNT-M0_}")
    a("s_mov_b64 exec, -1")
    a("s_waitcnt vmcnt(0)")
    a("s_getpc_b64 s[54:55]")
    a("L_cret0:")
    a("s_add_u32 s54, s54, L_cret1-L_cret0"); a("s_addc_u32 s55, s55, 0")
    a("s_branch L_woperm")
    a("L_cret1:")
    a("v_lshlrev_b32 v8, 4, v0")
    a("v_lshl_add_u32 v12, v3, 4, s61")
    for r in range(4):
        a(f"v_mov_b32 v{ACC+r}, 0")
    stamp(5)
    a("L_vloop:")
    a(f"ds_read_b128 {q(YA)}, v12")
    a("v_add_u32 v9, s56, v8")
    a("v_add_u32 v12, 64, v12")
    a("v_add_u32 v5, 1, v5")
    a("s_waitcnt lgkmcnt(0)")
    for n in range(8):
        build_a(QA + 4*n, YA, n)
    lds_wait_ge(14, F_FILL - M0_, "s58", "s57", 6, precheck=True)
    for n in range(8):
        a(f"ds_read_b128 {q(T2+4*n)}, v9 offset:{n*1024}")
    for n in range(8):
        a(f"s_waitcnt lgkmcnt({7-n})")
        a(f"v_mfma_f32_16x16x32_bf16 {q(ACC)}, {q(QA+4*n)}, {q(T2+4*n)}, {q(ACC)}")
    a("ds_write_b32 v13, v5")
    a("s_add_u32 s56, s56, 16384"); a("s_and_b32 s56, s56, 0x1ffff")
    a("s_add_u32 s57, s57, 2")
    a("s_cmp_lt_u32 s57, 257")
    a("s_cbranch_scc1 L_vloop")
    stamp(6)
    lds_wait_ge(14, F_FOK - M0_, "s48", 1, 6)
    a("s_lshl_b32 s48, s60, 2"); a(f"s_add_u32 s48, s48, {L_F}"); a("v_mov_b32 v6, s48")
    a("ds_read_b32 v6, v6")
    a("v_lshrrev_b32 v7, 1, v2"); a("s_lshl_b32 s48, s60, 1"); a("v_add_u32 v7, s48, v7"); a("v_mul_u32_u24 v7, 288, v7")
    a("v_and_b32 v8, 1, v2"); a("v_lshlrev_b32 v8, 3, v8"); a("v_lshl_add_u32 v8, v1, 4, v8")
    a(f"v_add_u32 v7, v7, v8"); a(f"v_add_u32 v7, {L_OB}, v7")
    a("s_waitcnt lgkmcnt(0)")
    for r in range(4):
        a(f"v_mul_f32 v{ACC+r}, v6, v{ACC+r}")
    a(f"v_cvt_pk_bf16_f32 v{ACC}, v{ACC}, v{ACC+1}"); a(f"v_cvt_pk_bf16_f32 v{ACC+1}, v{ACC+2}, v{ACC+3}")
    a(f"ds_write_b64 v7, {q(ACC,2)}")
    a("s_branch L_ystage")

    a("L_woperm:")
    wo_perms()
    a("s_setpc_b64 s[54:55]")

    a("L_helper:")
    wo_loads()
    a("s_cmp_eq_u32 s3, 3")
    a("s_cbranch_scc1 L_h4")
    a("s_waitcnt vmcnt(0)")
    a("s_getpc_b64 s[54:55]")
    a("L_hret0:")
    a("s_add_u32 s54, s54, L_hret1-L_hret0"); a("s_addc_u32 s55, s55, 0")
    a("s_branch L_woperm")
    a("L_hret1:")
    a("s_cmp_ge_u32 s2, 112")
    a("s_cbranch_scc1 L_ystage")
    a("s_and_b32 s48, s2, 7"); a("s_mul_i32 s48, s48, 14"); a("s_lshr_b32 s49, s2, 3"); a("s_add_u32 s59, s48, s49")
    a("s_sub_u32 s62, s3, 4")
    a("s_cmp_ge_u32 s62, 2")
    a("s_cselect_b32 s44, s18, s16"); a("s_cselect_b32 s45, s19, s17")
    a("s_and_b32 s45, s45, 0xffff"); a("s_mov_b32 s46, 1605632"); a("s_mov_b32 s47, 0x20000")
    a("v_lshrrev_b32 v6, 1, v2"); a("v_lshlrev_b32 v6, 4, v6"); a("v_and_b32 v7, 1, v2"); a("v_lshl_add_u32 v6, v7, 1, v6")
    a("v_mul_u32_u24 v6, 3584, v6"); a("v_lshl_add_u32 v6, v1, 1, v6")
    a("s_and_b32 s48, s62, 1"); a(f"s_mul_i32 s48, s48, {7*32*3584}"); a("s_lshl_b32 s49, s59, 5"); a("s_add_u32 s48, s48, s49")
    a("v_add_u32 v6, s48, v6")
    for f0, f1 in ((0, 4), (4, 7)):
        for f in range(f0, f1):
            for e in range(8):
                a(f"s_mov_b32 s48, {(f*32 + 4*(e&3) + (e>>2))*3584}")
                a(f"buffer_load_ushort v{T2+(f-f0)*8+e}, v6, s[44:47], s48 offen")
        a("s_waitcnt vmcnt(0)")
        for f in range(f0, f1):
            for d in range(4):
                a(f"v_lshl_or_b32 v{QA+4*f+d}, v{T2+(f-f0)*8+2*d+1}, 16, v{T2+(f-f0)*8+2*d}")
    srd(44, 20, 1605632)
    a("v_mul_u32_u24 v6, 3584, v2"); a("v_lshl_add_u32 v6, v1, 1, v6")
    a("s_mul_i32 s48, s59, 14336"); a("s_mul_i32 s49, s62, 224"); a("s_add_u32 s48, s48, s49")
    DN = QA + 28
    for u in range(7):
        for e in range(4):
            a(f"buffer_load_ushort v{T2+u*4+e}, v6, s[44:47], s48 offen offset:{e*896+u*32}")
    a("s_waitcnt vmcnt(0)")
    for u in range(7):
        for d in range(2):
            a(f"v_lshl_or_b32 v{DN+2*u+d}, v{T2+u*4+2*d+1}, 16, v{T2+u*4+2*d}")
    a("s_branch L_ystage")

    a("L_h4:")
    for r in range(4):
        a(f"v_mov_b32 v{YA+r}, -1")
    a("v_lshlrev_b32 v5, 4, v0")
    a("s_lshl_b32 s48, s31, 2"); a("s_add_u32 s48, s48, s29"); a("s_mul_i32 s48, s48, 1792")
    a(f"buffer_store_dwordx4 {q(YA)}, v5, s[40:43], s48 offen sc1")
    a("s_mov_b32 exec_hi, 0x0000ffff")
    a(f"buffer_store_dwordx4 {q(YA)}, v5, s[40:43], s48 offen offset:1024 sc1")
    a("s_mov_b64 exec, 1")
    a("s_lshl_b32 s61, s31, 6"); a("s_lshl_b32 s48, s29, 4"); a("s_add_u32 s48, s48, s61"); a(f"s_add_u32 s57, s48, {W_ML}")
    a(f"buffer_store_dwordx4 {q(YA)}, v15, s[40:43], s57 offen sc1")
    a("s_mov_b64 exec, -1")
    a("s_cmp_ge_u32 s2, 112")
    a("s_cbranch_scc1 L_h4_nor2")
    a("s_and_b32 s48, s2, 7"); a("s_mul_i32 s48, s48, 14"); a("s_lshr_b32 s49, s2, 3"); a("s_add_u32 s48, s48, s49")
    a("s_mul_i32 s48, s48, 7168"); a(f"s_add_u32 s48, s48, {W_OP}")
    for k in range(7):
        if k == 4:
            a("s_add_u32 s48, s48, 4096")
        a(f"buffer_store_dwordx4 {q(YA)}, v5, s[40:43], s48 offen offset:{(k&3)*1024} sc1")
    a("L_h4_nor2:")
    a("s_sub_u32 s48, s2, 112"); a("s_mul_i32 s58, s48, 2341"); a("s_lshr_b32 s58, s58, 16"); a("s_mul_i32 s49, s58, 28"); a("s_sub_u32 s59, s48, s49")
    a("v_and_b32 v6, 3, v0"); a("v_bfe_u32 v7, v0, 2, 2")
    a("v_mul_u32_u24 v13, 7168, v7"); a("v_lshl_add_u32 v13, v2, 4, v13"); a("v_lshl_add_u32 v13, v6, 2, v13")
    a("v_lshl_add_u32 v12, v6, 2, v2"); a("v_lshlrev_b32 v12, 1, v12")
    a("s_mul_i32 s56, s58, 1792"); a("s_lshl_b32 s49, s59, 6"); a("s_add_u32 s56, s56, s49")
    a("s_cmp_lt_u32 s48, 112")
    a("s_cbranch_scc0 L_h4_nor1")
    a(f"s_add_u32 s48, s56, {W_HB}")
    for k in range(nrep // 4):
        a(f"buffer_store_dword v{YA}, v13, s[40:43], s48 offen sc1")
        a(f"s_add_u32 s48, s48, {4*7168}")
    a("s_lshr_b32 s48, s56, 1")
    a(f"buffer_load_ushort v11, v12, s[32:35], s48 offen")
    a("L_h4_nor1:")
    srd(44, 24, 256)
    a("s_waitcnt vmcnt(0)")
    a("v_mov_b32 v6, 1")
    a("s_mov_b64 exec, 1")
    a("buffer_atomic_add v6, v15, s[44:47], 0 offen sc1")
    a("s_mov_b64 exec, -1")
    a("s_getpc_b64 s[54:55]")
    a("L_gret0:")
    a("s_add_u32 s54, s54, L_gret1-L_gret0"); a("s_addc_u32 s55, s55, 0")
    a("s_branch L_woperm")
    a("L_gret1:")
    bound_init(1 << 17)
    a("L_cntpoll:")
    a("buffer_load_dword v6, v15, s[44:47], 0 offen sc1")
    a("s_waitcnt vmcnt(0)")
    a("v_readfirstlane_b32 s48, v6")
    a("s_cmp_ge_u32 s48, 256")
    a("s_cbranch_scc1 L_cntok")
    a("s_sleep 32")
    bound_loop("L_cntpoll")
    a("L_cntok:")
    lds_wait_ge(14, F_MLCNT - M0_, "s48", 2, 6, sleep=16)
    a(f"ds_read_b128 {q(YA)}, v14 offset:{L_ML-M0_}")
    a("s_waitcnt lgkmcnt(0)")
    a("s_mov_b64 exec, 1")
    a(f"buffer_store_dwordx4 {q(YA)}, v15, s[40:43], s57 offen sc1")
    a("s_mov_b64 exec, -1")
    a("v_and_b32 v8, 7, v0"); a("v_lshlrev_b32 v9, 3, v8")
    a(f"s_add_u32 s61, s61, {W_ML}")
    bound_init(1 << 17)
    a("L_mlpoll:")
    a("buffer_load_dwordx2 v[6:7], v9, s[40:43], s61 offen sc1")
    a("s_waitcnt vmcnt(0)")
    a("v_max_u32 v10, v6, v7")
    a("v_cmp_eq_u32 vcc, -1, v10")
    a("s_cbranch_vccz L_mlok")
    a("s_sleep 16")
    bound_loop("L_mlpoll")
    a("L_mlok:")
    a("v_mov_b32 v10, v6")
    for d in ("row_ror:4", "row_ror:2", "row_ror:1"):
        a("s_nop 1")
        a(f"v_max_f32_dpp v10, v10, v10 {d} row_mask:0xf bank_mask:0xf")
    a("v_sub_f32 v6, v6, v10"); a(f"v_mul_f32 v6, {LOG2E_16:#x}, v6"); a("v_exp_f32 v6, v6"); a("s_nop 0")
    a("v_mul_f32 v7, v6, v7")
    for d in ("row_ror:4", "row_ror:2", "row_ror:1"):
        a("s_nop 1")
        a(f"v_add_f32_dpp v7, v7, v7 {d} row_mask:0xf bank_mask:0xf")
    a("v_rcp_f32 v7, v7"); a("v_lshrrev_b32 v9, 1, v0"); a("v_and_b32 v8, 1, v0")
    a("v_mul_f32 v6, v6, v7")
    a(f"v_lshlrev_b32 v8, 2, v8"); a(f"v_add_u32 v8, {L_F}, v8")
    a("v_cmp_eq_u32 vcc, s29, v9")
    a("s_mov_b64 exec, vcc")
    a("ds_write_b32 v8, v6")
    a("s_mov_b64 exec, 1")
    a("v_mov_b32 v6, 1")
    a("s_waitcnt lgkmcnt(0)")
    a(f"ds_write_b32 v14, v6 offset:{F_FOK-M0_}")
    a("s_mov_b64 exec, -1")

    a("L_ystage:")
    a("v_and_b32 v6, 1, v1"); a("v_bfe_u32 v7, v1, 2, 1"); a("v_lshl_add_u32 v6, v6, 1, v7"); a("v_mul_u32_u24 v6, 288, v6")
    a(f"v_lshl_add_u32 v6, v2, 4, v6"); a(f"v_add_u32 v6, {L_OB}, v6")
    a("v_lshlrev_b32 v7, 5, v1"); a("v_lshl_add_u32 v7, v2, 4, v7")
    a("s_lshl_b32 s48, s31, 2"); a("s_add_u32 s48, s48, s29"); a("s_mul_i32 s48, s48, 1792"); a("s_lshl_b32 s49, s60, 8"); a("s_add_u32 s49, s48, s49")
    a("s_waitcnt lgkmcnt(0)")
    a("s_barrier")
    stamp(7) if False else None
    for ks in range(4):
        a(f"ds_read_b128 {q(YA+4*ks)}, v6 offset:{ks*64}")
    S = ABUF
    for t in range(8):
        for ks in range(4):
            if t == 0:
                a(f"s_waitcnt lgkmcnt({3-ks})")
            a(f"v_mfma_f32_16x16x32_bf16 {q(T2+4*t)}, {q(YA+4*ks)}, {q(wfrag(ks,t))}, {q(T2+4*t) if ks else 0}")
        if t >= 2:
            a(f"v_add_f32 v{S+t-2}, v{T2+4*(t-2)}, v{T2+4*(t-2)+1}")
    a("s_nop 2")
    a(f"v_add_f32 v{S+6}, v{T2+24}, v{T2+25}")
    a("s_nop 2")
    a(f"v_add_f32 v{S+7}, v{T2+28}, v{T2+29}")
    for t in range(4):
        if t == 3:
            a("s_nop 0")
        a(f"v_permlane16_swap_b32 v{S+t}, v{S+t+4}")
    a("s_nop 0")
    for t in range(4):
        a(f"v_add_f32_dpp v{S+t}, v{S+t+4}, v{S+t} row_shl:8 row_mask:0xf bank_mask:0xf")
    a("s_mov_b64 exec, 0x00ff00ff")
    a(f"buffer_store_dwordx4 {q(S)}, v7, s[40:43], s49 offen sc1")
    a("s_mov_b64 exec, -1")
    stamp(7)
    a("s_cmp_lt_u32 s3, 3")
    a("s_cbranch_scc1 L_done")
    a("s_cmp_eq_u32 s3, 3")
    a("s_cbranch_scc1 L_r1")
    a("s_cmp_ge_u32 s2, 112")
    a("s_cbranch_scc1 L_done")

    a("v_lshlrev_b32 v5, 5, v0")
    a(f"s_and_b32 s48, s2, {nrep-1}"); a("s_mul_i32 s48, s48, 7168"); a("s_mul_i32 s49, s62, 1792"); a("s_add_u32 s48, s48, s49")
    a(f"s_add_u32 s56, s48, {W_HB}"); a("s_add_u32 s57, s56, 16")
    X = T2
    for e in range(8):
        a(f"v_mov_b32 v{X+e}, 0")
    a("v_lshlrev_b32 v8, 4, v0"); a("s_mul_i32 s48, s62, 960"); a(f"s_add_u32 s48, s48, {L_XN2}"); a("v_add_u32 v8, s48, v8")
    a("v_and_b32 v9, 3, v1"); a("v_mul_u32_u24 v10, 960, v9"); a("v_lshl_add_u32 v10, v2, 4, v10")
    a("s_and_b32 s48, s62, 1"); a("s_mul_i32 s48, s48, 448"); a(f"s_add_u32 s48, s48, {L_XN2}"); a("v_add_u32 v10, s48, v10")
    a("v_lshlrev_b32 v11, 6, v9"); a("v_lshl_add_u32 v11, v2, 4, v11"); a(f"v_add_u32 v11, {L_GU}, v11")
    a("s_lshl_b32 s48, s62, 8"); a("v_add_u32 v12, s48, v11")
    a("v_mul_u32_u24 v13, 1792, v1"); a("v_lshl_add_u32 v13, v2, 4, v13")
    a("s_mul_i32 s58, s59, 7168"); a("s_mul_i32 s48, s62, 448"); a("s_add_u32 s58, s58, s48"); a(f"s_add_u32 s58, s58, {W_OP}")
    a("s_mov_b32 exec_hi, 0x00ffffff")
    poll_quads(2, X, 5, ["s56", "s57"], 40, 6)
    a("s_mov_b32 exec_hi, -1")
    stamp(3)
    layernorm(X, T2 + 8)
    for d in range(4):
        a(f"v_cvt_pk_bf16_f32 v{YA+d}, v{X+2*d}, v{X+2*d+1}")
    a("s_mov_b32 exec_hi, 0x00ffffff")
    a(f"ds_write_b128 v8, {q(YA)}")
    a("s_mov_b32 exec_hi, -1")
    a("s_waitcnt lgkmcnt(0)")
    a("s_barrier")
    for f in range(7):
        a(f"ds_read_b128 {q(T2+4*f)}, v10 offset:{f*64}")
    for f in range(7):
        a(f"s_waitcnt lgkmcnt({6-f})")
        a(f"v_mfma_f32_16x16x32_bf16 {q(ACC)}, {q(QA+4*f)}, {q(T2+4*f)}, {q(ACC) if f else 0}")
    a("s_nop 7")
    a(f"ds_write_b128 v12, {q(ACC)}")
    a("s_waitcnt lgkmcnt(0)")
    a("s_barrier")
    for p in range(4):
        a(f"ds_read_b128 {q(YA+4*p)}, v11 offset:{p*256}")
    a("s_waitcnt lgkmcnt(2)")
    for r in range(4):
        a(f"v_add_f32 v{YA+r}, v{YA+r}, v{YA+4+r}")
    a("s_waitcnt lgkmcnt(0)")
    for r in range(4):
        a(f"v_add_f32 v{YA+8+r}, v{YA+8+r}, v{YA+12+r}")
    for r in range(4):
        a(f"v_cvt_pk_bf16_f32 v{YA+4+r}, v{YA+r}, v{YA+8+r}")
    for r in range(4):
        a(f"v_lshlrev_b32 v{YA+r}, 16, v{YA+4+r}"); a(f"v_and_b32 v{YA+4+r}, 0xffff0000, v{YA+4+r}")
    for r in range(4):
        a(f"v_mul_f32 v{YA+r}, v{YA+r}, v{YA+4+r}")
    a(f"v_cvt_pk_bf16_f32 v{YA+8}, v{YA}, v{YA+1}"); a(f"v_cvt_pk_bf16_f32 v{YA+9}, v{YA+2}, v{YA+3}")
    a("s_nop 1")
    for u in range(7):
        a(f"v_mfma_f32_16x16x16_bf16 {q(T2+4*u)}, {q(DN+2*u,2)}, {q(YA+8,2)}, 0")
    a("s_mov_b32 exec_lo, 0x000f000f"); a("s_mov_b32 exec_hi, 0x000f000f")
    for u in range(7):
        if u == 0:
            a("s_nop 0")
        a(f"buffer_store_dwordx4 {q(T2+4*u)}, v13, s[40:43], s58 offen offset:{u*64} sc1")
        if u < 6:
            a("s_nop 0")
    a("s_mov_b64 exec, -1")
    stamp(4)
    a("s_branch L_done")

    a("L_r1:")
    a("s_sub_u32 s48, s2, 112")
    a("s_cmp_lt_u32 s48, 112")
    a("s_cbranch_scc0 L_done")
    a("v_lshrrev_b32 v5, 2, v0"); a("v_and_b32 v6, 3, v0"); a("v_lshlrev_b32 v6, 4, v6")
    a("v_mul_u32_u24 v7, 1792, v5"); a("v_add_u32 v7, v7, v6")
    a("v_mul_u32_u24 v8, 7168, v5"); a("v_add_u32 v8, v8, v6")
    a(f"s_mul_i32 s44, s58, {64*1792}"); a("s_lshl_b32 s48, s59, 6"); a("s_add_u32 s44, s44, s48")
    for g in range(1, 4):
        a(f"s_add_u32 s{44+g}, s{43+g}, {16*1792}")
    a("v_lshlrev_b32 v11, 16, v11")
    poll_quads(4, T2, 7, ["s44", "s45", "s46", "s47"], 40, 6)
    stamp(3)
    for r in range(4):
        a(f"v_add_f32 v{T2+r}, v{T2+r}, v{T2+4+r}"); a(f"v_add_f32 v{T2+8+r}, v{T2+8+r}, v{T2+12+r}")
    for r in range(4):
        a(f"v_add_f32 v{T2+r}, v{T2+r}, v{T2+8+r}")
    xreduce(T2)
    bf16r(T2, T2)
    a(f"v_add_f32 v11, v11, v{T2}")
    bf16r(11, 11)
    a(f"s_add_u32 s48, s56, {W_HB}")
    for k in range(nrep // 4):
        a("buffer_store_dword v11, v13, s[40:43], s48 offen sc1")
        if k + 1 < nrep // 4:
            a(f"s_add_u32 s48, s48, {4*7168}")
    stamp(4)
    so = ["s32", "s33", "s34", "s35", "s36", "s37", "s38"]
    a(f"s_add_u32 s32, s56, {W_OP}")
    for g in range(1, 7):
        a(f"s_add_u32 {so[g]}, {so[g-1]}, {16*7168}")
    srd(44, 22, 3584)
    a("s_waitcnt vmcnt(0)")
    poll_quads(7, T2, 8, so, 40, 6)
    stamp(5)
    for r in range(4):
        a(f"v_add_f32 v{T2+r}, v{T2+r}, v{T2+4+r}"); a(f"v_add_f32 v{T2+8+r}, v{T2+8+r}, v{T2+12+r}")
        a(f"v_add_f32 v{T2+16+r}, v{T2+16+r}, v{T2+20+r}")
    for r in range(4):
        a(f"v_add_f32 v{T2+r}, v{T2+r}, v{T2+8+r}"); a(f"v_add_f32 v{T2+16+r}, v{T2+16+r}, v{T2+24+r}")
    for r in range(4):
        a(f"v_add_f32 v{T2+r}, v{T2+r}, v{T2+16+r}")
    xreduce(T2)
    bf16r(T2, T2)
    a(f"v_add_f32 v11, v11, v{T2}")
    a("v_cvt_pk_bf16_f32 v11, v11, v11")
    a("s_lshr_b32 s48, s56, 1")
    a("s_mov_b32 exec_lo, 0x000f000f"); a("s_mov_b32 exec_hi, 0x000f000f")
    a("buffer_store_short v11, v12, s[44:47], s48 offen")
    a("s_mov_b64 exec, -1")
    stamp(6)
    a("L_done:")
    finish()

    a("L_loader:")
    a("s_setprio 3")
    a("v_and_b32 v4, 31, v0")
    for k in range(8):
        a(f"v_add_u32 v5, {2*k}, v3"); a("v_xor_b32 v5, v5, v4"); a("v_lshlrev_b32 v5, 4, v5"); a(f"v_lshl_add_u32 v{8+k}, v3, 9, v5")
    a("v_lshlrev_b32 v16, 4, v0")
    a(f"v_mov_b32 v24, {M0_}"); a(f"v_mov_b32 v17, {F_CONS}")
    for r in range(4):
        a(f"v_mov_b32 v{20+r}, 0")
    a("ds_write_b128 v24, v[20:23]"); a("ds_write_b128 v24, v[20:23] offset:16")
    a("s_lshl_b32 s48, s31, 22"); a("s_lshl_b32 s49, s29, 20"); a("s_add_u32 s48, s48, s49")
    a("s_waitcnt lgkmcnt(0)")
    for r, p in ((32, 6), (36, 8)):
        a(f"s_add_u32 s{r}, s{p}, s48"); a(f"s_addc_u32 s{r+1}, s{p+1}, 0"); a(f"s_and_b32 s{r+1}, s{r+1}, 0xffff")
        a(f"s_mov_b32 s{r+2}, 0x100000"); a(f"s_mov_b32 s{r+3}, 0x20000")
    if diag:
        srd(40, 26, WS_BYTES)
    kpub, lag = (depth - 1) % 8, (depth - 1) // 8
    a("s_mov_b32 s56, 0")
    a("s_mov_b32 s57, 0")
    a("s_mov_b32 s58, 0")
    a("v_mov_b32 v18, 0")

    def tile_loop(name, srdreg, is_k, tend, first):
        a(f"{name}:")
        a("s_lshr_b32 s49, s58, 1"); a("s_sub_u32 s49, s49, 7")
        p, go = lab("fp"), lab("fg")
        a("s_waitcnt lgkmcnt(0)")
        a("v_readfirstlane_b32 s48, v18")
        a("s_cmp_ge_i32 s48, s49")
        a(f"s_cbranch_scc1 {go}")
        bound_init()
        a(f"{p}:")
        a("ds_read_b32 v18, v17"); a("s_waitcnt lgkmcnt(0)"); a("v_readfirstlane_b32 s48, v18")
        a("s_cmp_ge_i32 s48, s49")
        a(f"s_cbranch_scc1 {go}")
        a("s_sleep 1")
        bound_loop(p)
        a(f"{go}:")
        a("v_xor_b32 v17, 12, v17")
        for k in range(8):
            if k == 0:
                a("s_mov_b32 m0, s56")
            if k == 4:
                a("s_add_u32 m0, s56, 4096"); a("s_add_u32 s57, s57, 4096")
            if k == kpub:
                a(f"s_sub_u32 s49, s58, {lag}"); a("s_max_i32 s49, s49, 0"); a("v_mov_b32 v19, s49")
            a(f"s_waitcnt vmcnt({depth-1})")
            a(f"buffer_load_dwordx4 v{8+k if is_k else 16}, s[{srdreg}:{srdreg+3}], s57 offen offset:{(k&3)*1024} nt lds")
            if k == kpub:
                a("ds_write_b32 v24, v19")
            if k == 6:
                a("ds_read_b32 v18, v17")
            if first and k == 7:
                sk = lab("nb")
                a("s_cmp_lg_u32 s58, 0"); a(f"s_cbranch_scc1 {sk}"); a("s_barrier"); a(f"{sk}:")
        a("s_add_u32 s57, s57, 4096")
        a("s_add_u32 s56, s56, 8192"); a("s_and_b32 s56, s56, 0x1ffff")
        a("s_add_u32 s58, s58, 1")
        a(f"s_cmp_lt_u32 s58, {tend}")
        a(f"s_cbranch_scc1 {name}")

    tile_loop("L_ldk", 32, True, 128, True)
    stamp(1)
    a("s_mov_b32 s57, 0")
    tile_loop("L_ldv", 36, False, 256, False)
    stamp(2)
    for c in range(256 - lag, 257):
        a(f"v_mov_b32 v19, {c}")
        a(f"s_waitcnt vmcnt({8*(256-c)})")
        a("ds_write_b32 v24, v19")
    a("s_waitcnt lgkmcnt(0)")
    stamp(3)
    finish()

    if diag:
        a("L_stamps:")
        a("v_mov_b32 v4, 0")
        for k in range(8):
            a(f"v_writelane_b32 v4, s{64+2*k}, {k}")
        a("s_getreg_b32 s48, hwreg(HW_REG_XCC_ID, 0, 4)")
        a("v_writelane_b32 v4, s48, 8")
        a("v_writelane_b32 v4, s63, 9")
        a("v_lshlrev_b32 v5, 2, v0")
        a("s_lshl_b32 s48, s2, 3"); a("s_add_u32 s48, s48, s3"); a("s_lshl_b32 s48, s48, 6"); a(f"s_add_u32 s48, s48, {W_ST}")
        a("s_mov_b64 exec, 0xffff")
        a("buffer_store_dword v4, v5, s[40:43], s48 offen")
    a("L_exit:")
    a("s_endpgm")
    a('.section .rodata,"a"')
    a(".p2align 6")
    a(f".amdhsa_kernel {KNAME}")
    a("  .amdhsa_next_free_vgpr 256")
    a("  .amdhsa_next_free_sgpr 96")
    a("  .amdhsa_accum_offset 256")
    a("  .amdhsa_group_segment_fixed_size 0")
    a("  .amdhsa_kernarg_size 96")
    a("  .amdhsa_user_sgpr_count 2")
    a("  .amdhsa_user_sgpr_kernarg_segment_ptr 1")
    a("  .amdhsa_system_sgpr_workgroup_id_x 1")
    a("  .amdhsa_float_denorm_mode_32 3")
    a(".end_amdhsa_kernel")
    out = []
    for x in L:
        if x is None:
            continue
        if x.endswith(":") or x.startswith((";", ".")) or x.startswith("  ."):
            out.append(x)
        else:
            out.append("    " + x)
    return "\n".join(out) + "\n"


if __name__ == "__main__":
    kw = eval("dict(%s)" % (sys.argv[2] if len(sys.argv) > 2 else ""))
    open(sys.argv[1], "w").write(gen(**kw))
```

```python
import sys
KNAME = "sequential_preLN__mha_block_cached__glu_gated_bilinear__decode_kernel"

HEADER = """; Kernarg layout for this problem (96 bytes, ptrs only, base s[0:1]):
;   offset  88: d_ws      1073741824 bytes workspace"""

RING = 0
M0_ = 131072
F_FILL, F_CONS, F_QCNT, F_MLCNT, F_FOK, F_QOK = M0_, M0_ + 4, M0_ + 12, M0_ + 16, M0_ + 20, M0_ + 24
L_ML, L_F = M0_ + 32, M0_ + 48
L_XN = M0_ + 128
L_QP = M0_ + 1024
L_QB = M0_ + 8192
L_PB = M0_ + 9216
L_OB = M0_ + 13312
L_XN2 = M0_ + 14592
L_GU = M0_ + 18432
LDS_BYTES = M0_ + 19456
W_YP = 0
W_ML = 0x80000
W_HB = 0x90000
W_OP = 0xC0000
W_QX = 0x1A0000
W_EP = 0x1C0000
W_ST = 0x200000
WS_BYTES = 0x400000
SEL, ABUF, ACC, YA, QA, FX, T, WO = 16, 24, 32, 36, 52, 84, 96, 128
T2 = WO + 96
LOG2E_16 = 0x3db8aa3b
INV448 = 0x3b124925
EPS = 0x3727c5ac


def gen(depth=20, diag=False, nrep=8, xl=2, spin_bound=True, poll_sleep=2, dump=False, noswz=False, nowo=False, noffn=False, noclr=False, qonly=-1, qrot=0, latebar=False, nwq=32, qdelay=0, qsleep=1, barpos=7, qwin=8, wopace=1, wosleep=8, gpace=2, gsleep=4, wstart=40, wflags='nt', gflags='nt', woflags='nt', dk=None):
    L = []
    a = L.append
    uid = [0]

    def lab(p):
        uid[0] += 1
        return f"L_{p}{uid[0]}"

    def q(r, n=4):
        return f"v[{r}:{r+n-1}]"

    def srd(r, p, nbytes):
        a(f"s_mov_b32 s{r}, s{p}")
        a(f"s_and_b32 s{r+1}, s{p+1}, 0xffff")
        a(f"s_mov_b32 s{r+2}, {nbytes}")
        a(f"s_mov_b32 s{r+3}, 0x20000")

    def stamp(k):
        if diag:
            a(f"s_memrealtime s[{64+2*k}:{65+2*k}]")
            a("s_waitcnt lgkmcnt(0)")

    def finish():
        if diag:
            a("s_branch L_stamps")
        else:
            a("s_endpgm")

    def bound_init(n=1 << 20):
        if spin_bound:
            a(f"s_mov_b32 s63, {n}")

    def bound_loop(target):
        if spin_bound:
            a("s_sub_u32 s63, s63, 1")
            a(f"s_cbranch_scc0 {target}")
        else:
            a(f"s_branch {target}")

    def lds_wait_ge(vaddr, off, sdst, cmp_operand, vt, sleep=1, precheck=False):
        p, go = lab("poll"), lab("go")
        if precheck:
            a(f"s_cmp_ge_u32 {sdst}, {cmp_operand}")
            a(f"s_cbranch_scc1 {go}")
        bound_init()
        a(f"{p}:")
        a(f"ds_read_b32 v{vt}, v{vaddr} offset:{off}")
        a("s_waitcnt lgkmcnt(0)")
        a(f"v_readfirstlane_b32 {sdst}, v{vt}")
        a(f"s_cmp_ge_u32 {sdst}, {cmp_operand}")
        a(f"s_cbranch_scc1 {go}")
        if sleep:
            a(f"s_sleep {sleep}")
        bound_loop(p)
        a(f"{go}:")

    def wave_red(op, v, sdst):
        for d in ("row_ror:8", "row_ror:4", "row_ror:2", "row_ror:1"):
            a("s_nop 1")
            a(f"{op}_dpp v{v}, v{v}, v{v} {d} row_mask:0xf bank_mask:0xf")
        a("s_nop 1")
        a(f"{op}_dpp v{v}, v{v}, v{v} row_bcast:15 row_mask:0xa bank_mask:0xf")
        a("s_nop 1")
        a(f"{op}_dpp v{v}, v{v}, v{v} row_bcast:31 row_mask:0xc bank_mask:0xf")
        a("s_nop 0")
        a(f"v_readlane_b32 {sdst}, v{v}, 63")
        a("s_nop 1")

    def bf16r(dst, src):
        a(f"v_cvt_pk_bf16_f32 v{dst}, v{src}, v{src}")
        a(f"v_and_b32 v{dst}, 0xffff0000, v{dst}")

    def layernorm(X, t):
        a(f"v_add_f32 v{t}, v{X}, v{X+1}"); a(f"v_add_f32 v{t+1}, v{X+2}, v{X+3}")
        a(f"v_add_f32 v{t+2}, v{X+4}, v{X+5}"); a(f"v_add_f32 v{t+3}, v{X+6}, v{X+7}")
        a(f"v_add_f32 v{t}, v{t}, v{t+1}"); a(f"v_add_f32 v{t+2}, v{t+2}, v{t+3}")
        a(f"v_add_f32 v{t}, v{t}, v{t+2}")
        wave_red("v_add_f32", t, "s48")
        a(f"v_mov_b32 v{t+1}, {INV448:#x}")
        a(f"v_mul_f32 v{t+1}, s48, v{t+1}")
        a(f"v_mov_b32 v{t}, 0")
        a("s_mov_b32 exec_hi, 0x00ffffff")
        for e in range(8):
            a(f"v_sub_f32 v{t+4+e}, v{X+e}, v{t+1}")
        for e in range(8):
            a(f"v_fmac_f32 v{t}, v{t+4+e}, v{t+4+e}")
        a("s_mov_b32 exec_hi, -1")
        bf16r(t + 1, t + 1)
        wave_red("v_add_f32", t, "s48")
        a(f"v_mov_b32 v{t+2}, {INV448:#x}")
        a(f"v_mul_f32 v{t+2}, s48, v{t+2}")
        for e in range(8):
            a(f"v_sub_f32 v{X+e}, v{X+e}, v{t+1}")
        bf16r(t + 2, t + 2)
        a(f"v_add_f32 v{t+2}, {EPS:#x}, v{t+2}")
        bf16r(t + 2, t + 2)
        a(f"v_sqrt_f32 v{t+2}, v{t+2}")
        for e in range(0, 8, 2):
            a(f"v_cvt_pk_bf16_f32 v{t+4+e}, v{X+e}, v{X+e+1}")
        bf16r(t + 2, t + 2)
        a(f"v_rcp_f32 v{t+3}, v{t+2}")
        for e in range(0, 8, 2):
            a(f"v_lshlrev_b32 v{X+e}, 16, v{t+4+e}")
            a(f"v_and_b32 v{X+e+1}, 0xffff0000, v{t+4+e}")
        for e in range(8):
            a(f"v_mul_f32 v{t+4+e}, v{X+e}, v{t+3}")
        for e in range(8):
            a(f"v_fma_f32 v{X+e}, -v{t+4+e}, v{t+2}, v{X+e}")
        for e in range(8):
            a(f"v_fma_f32 v{X+e}, v{X+e}, v{t+3}, v{t+4+e}")

    def build_a(dst, psrc, n):
        for w in range(4):
            a(f"v_perm_b32 v{dst+w}, v{psrc + (n >> 1)}, v{psrc + (n >> 1)}, v{SEL + (n & 1)*4 + w}")

    def xreduce(V):
        a("s_nop 1")
        a(f"v_permlane16_swap_b32 v{V}, v{V+1}")
        a(f"v_permlane16_swap_b32 v{V+2}, v{V+3}")
        a(f"v_add_f32 v{V}, v{V}, v{V+1}")
        a(f"v_add_f32 v{V+2}, v{V+2}, v{V+3}")
        a("s_nop 1")
        a(f"v_permlane32_swap_b32 v{V}, v{V+2}")
        a(f"v_add_f32 v{V}, v{V}, v{V+2}")
        a("s_nop 1")
        a(f"v_add_f32_dpp v{V}, v{V}, v{V} row_ror:8 row_mask:0xf bank_mask:0xf")
        a("s_nop 1")
        a(f"v_add_f32_dpp v{V}, v{V}, v{V} row_ror:4 row_mask:0xf bank_mask:0xf")

    def poll_quads(n, R, voff, soffs, srdreg, vt):
        for g in range(n):
            a(f"buffer_load_dwordx4 {q(R+4*g)}, v{voff}, s[{srdreg}:{srdreg+3}], {soffs[g]} offen sc1")
        bound_init(1 << 17)
        p, go = lab("gp"), lab("gg")
        a(f"{p}:")
        a("s_mov_b64 s[50:51], 0")
        masks = []
        for g in range(n):
            a(f"s_waitcnt vmcnt({n-1-g})") if True else None
            a(f"v_max3_u32 v{vt}, v{R+4*g}, v{R+4*g+1}, v{R+4*g+2}")
            a(f"v_max_u32 v{vt}, v{vt}, v{R+4*g+3}")
            a(f"v_cmp_eq_u32 s[{80+2*g}:{81+2*g}], -1, v{vt}")
        for g in range(n):
            a(f"s_or_b64 s[50:51], s[50:51], s[{80+2*g}:{81+2*g}]")
        a(f"s_cbranch_scc0 {go}")
        if poll_sleep:
            a(f"s_sleep {poll_sleep}")
        a("s_mov_b64 s[52:53], exec")
        for g in range(n):
            sk = lab("sk")
            a(f"s_mov_b64 exec, s[{80+2*g}:{81+2*g}]")
            a(f"s_cbranch_execz {sk}")
            a(f"buffer_load_dwordx4 {q(R+4*g)}, v{voff}, s[{srdreg}:{srdreg+3}], {soffs[g]} offen sc1")
            a(f"{sk}:")
        a("s_mov_b64 exec, s[52:53]")
        a("s_waitcnt vmcnt(0)")
        bound_loop(p)
        a(f"{go}:")

    a(HEADER)
    a(f"; @launch grid=(256,1,1) block=(512,1,1) lds={LDS_BYTES}")
    a('.amdgcn_target "amdgcn-amd-amdhsa--gfx950"')
    a(".text")
    a(f".globl {KNAME}")
    a(".p2align 8")
    a(f".type {KNAME},@function")
    a(f"{KNAME}:")
    a("s_cmp_ge_u32 s2, 256")
    a("s_cbranch_scc1 L_exit")
    a("s_load_dwordx16 s[4:19], s[0:1], 0")
    a("s_load_dwordx8 s[20:27], s[0:1], 64")
    if diag:
        for k in range(16):
            a(f"s_mov_b32 s{64+k}, 0")
        a("s_memrealtime s[64:65]")
    a("v_lshrrev_b32 v1, 6, v0")
    a("v_and_b32 v0, 63, v0")
    a("v_readfirstlane_b32 s3, v1")
    if xl == 2:
        a("s_and_b32 s28, s2, 7"); a("s_lshr_b32 s48, s2, 3"); a("s_and_b32 s49, s48, 1"); a("s_lshl_b32 s49, s49, 3")
        a("s_add_u32 s28, s28, s49")
        a("s_lshr_b32 s29, s48, 1"); a("s_and_b32 s29, s29, 3"); a("s_lshr_b32 s30, s48, 3")
    else:
        a("s_and_b32 s29, s2, 3"); a("s_lshr_b32 s28, s2, 2"); a("s_and_b32 s28, s28, 15"); a("s_lshr_b32 s30, s2, 6")
    a("s_lshl_b32 s31, s30, 4"); a("s_add_u32 s31, s31, s28")
    a("v_and_b32 v1, 15, v0")
    a("v_lshrrev_b32 v2, 4, v0")
    a("v_lshrrev_b32 v3, 5, v0")
    a("s_cmp_eq_u32 s3, 0")
    a("s_cbranch_scc1 L_loader")

    a("s_sub_u32 s60, s3, 1")
    a("v_lshlrev_b32 v5, 4, v0")
    a("s_mul_i32 s48, s30, 896")
    a("v_add_u32 v5, s48, v5")
    a("v_mov_b32 v6, 0x7fffff00")
    a("v_cmp_gt_u32 vcc, 56, v0")
    a("v_and_b32 v4, 7, v0")
    a("v_lshlrev_b32 v4, 4, v4")
    a("v_cndmask_b32 v5, v6, v5, vcc")
    a("v_lshrrev_b32 v13, 3, v0")
    a("v_lshl_add_u32 v4, v13, 16, v4")
    a("s_lshl_b32 s48, s60, 19"); a("s_lshl_b32 s49, s28, 9"); a("s_add_u32 s48, s48, s49")
    a("s_lshl_b32 s49, s29, 7"); a("s_add_u32 s48, s48, s49")
    a("v_add_u32 v4, s48, v4")
    a("s_waitcnt lgkmcnt(0)")
    srd(32, 4, 3584)
    srd(36, 10, 3670016)
    a(f"buffer_load_dwordx4 {q(YA)}, v5, s[32:35], 0 offen")
    a(f"s_add_u32 s48, s26, {W_EP}"); a("s_addc_u32 s49, s27, 0")
    a("s_load_dword s62, s[48:49], 0")
    a("s_barrier")

    def wq_load(n):
        a(f"buffer_load_dwordx4 {q(QA+4*n)}, v4, s[36:39], s50 offen {wflags}")
        if n < 7:
            a("s_add_u32 s50, s50, 8192")
    a("s_mov_b32 s50, 0")
    for n in range(qwin):
        wq_load(n)
    srd(40, 26, WS_BYTES)
    a("v_and_b32 v6, 1, v1"); a("v_cmp_eq_u32 vcc, 1, v6")
    a("v_mov_b32 v7, 0x0c0c0100"); a("v_mov_b32 v8, 0x01000c0c"); a("v_mov_b32 v9, 0x0c0c0302"); a("v_mov_b32 v10, 0x03020c0c")
    a("v_cndmask_b32 v7, v7, v8, vcc"); a("v_cndmask_b32 v9, v9, v10, vcc")
    a("v_bfe_u32 v6, v1, 1, 2"); a("v_mov_b32 v10, 0x0c0c0c0c")
    for w in range(4):
        a(f"v_cmp_eq_u32 vcc, {w}, v6"); a("s_nop 1")
        a(f"v_cndmask_b32 v{SEL+w}, v10, v7, vcc"); a(f"v_cndmask_b32 v{SEL+4+w}, v10, v9, vcc")
    a("v_mov_b32 v15, 0")
    a(f"v_mov_b32 v14, {M0_}")
    if qonly >= 0:
        stamp(3)
    a(f"s_waitcnt vmcnt({qwin})")
    if qonly >= 0:
        stamp(4)
    X = T
    for d in range(4):
        a(f"v_lshlrev_b32 v{X+2*d}, 16, v{YA+d}"); a(f"v_and_b32 v{X+2*d+1}, 0xffff0000, v{YA+d}")
    layernorm(X, T + 8)
    for d in range(4):
        a(f"v_cvt_pk_bf16_f32 v{YA+d}, v{X+2*d}, v{X+2*d+1}")
    a(f"v_lshlrev_b32 v6, 4, v0"); a(f"v_add_u32 v6, {L_XN}, v6")
    a("s_mov_b32 exec_hi, 0x00ffffff")
    a(f"ds_write_b128 v6, {q(YA)}")
    a("s_mov_b32 exec_hi, -1")
    a("s_lshl_b32 s48, s60, 7"); a(f"s_add_u32 s48, s48, {L_XN}")
    a("v_lshl_add_u32 v6, v13, 4, s48")
    a("s_waitcnt lgkmcnt(0)")
    a(f"ds_read_b128 {q(YA)}, v6")
    a("v_lshrrev_b32 v6, 1, v2"); a("v_lshlrev_b32 v6, 8, v6"); a("v_and_b32 v7, 7, v1"); a("v_lshl_add_u32 v6, v7, 5, v6")
    a("v_and_b32 v7, 1, v2"); a("v_lshl_add_u32 v6, v7, 4, v6")
    a("s_lshl_b32 s48, s60, 9"); a(f"s_add_u32 s48, s48, {L_QP}")
    a("v_add_u32 v6, s48, v6")
    a("v_mov_b32 v7, 1")
    stamp(1)
    a("s_waitcnt lgkmcnt(0)")
    for n in range(8):
        build_a(T + 4*n, YA, n)
    for n in range(8):
        a(f"s_waitcnt vmcnt({min(qwin-1, 7-n)})")
        if n + qwin < 8:
            wq_load(n + qwin)
        a(f"v_mfma_f32_16x16x32_bf16 {q(ACC)}, {q(T+4*n)}, {q(QA+4*n)}, {q(ACC) if n else 0}")
    a("s_mov_b32 exec_lo, 0x00ff00ff"); a("s_mov_b32 exec_hi, 0xff00ff00")
    a("s_nop 5")
    a(f"ds_write_b128 v6, {q(ACC)}")
    a("s_waitcnt lgkmcnt(0)")
    a("s_mov_b64 exec, 1")
    a(f"ds_add_u32 v14, v7 offset:{F_QCNT-M0_}")
    a("s_mov_b64 exec, -1")
    stamp(2)
    srd(36, 12, 3670016)
    a("v_lshrrev_b32 v6, 3, v1"); a("v_lshlrev_b32 v6, 4, v6"); a("v_add_u32 v6, v6, v2"); a("v_mul_u32_u24 v4, 7168, v6")
    a("v_and_b32 v6, 7, v1"); a("v_lshl_add_u32 v4, v6, 4, v4")
    a("s_mul_i32 s48, s28, 229376"); a("s_lshl_b32 s49, s60, 7"); a("s_add_u32 s48, s48, s49")
    a("v_add_u32 v4, s48, v4")
    a("s_cmp_gt_u32 s3, 2")
    a("s_cbranch_scc1 L_helper")

    def wo_group(gidx):
        ks, eh = gidx >> 1, gidx & 1
        if nowo:
            return
        a(f"s_mov_b32 s48, {(ks*32 + eh*4)*896}")
        for e in range(4):
            a(f"buffer_load_dwordx4 {q(WO+ks*32+(eh*4+e)*4)}, v4, s[36:39], s48 offen offset:{e*896} {woflags}")

    def wo_loads():
        a(f"s_sleep {wstart}")
        for ks in range(0 if not nowo else 4, 4):
            for eh in range(2):
                a(f"s_mov_b32 s48, {(ks*32 + eh*4)*896}")
                for e in range(4):
                    a(f"buffer_load_dwordx4 {q(WO+ks*32+(eh*4+e)*4)}, v4, s[36:39], s48 offen offset:{e*896} {woflags}")
                    if (e + 1) % wopace == 0:
                        a("s_waitcnt vmcnt(0)")
                        a(f"s_sleep {wosleep}")

    def wo_perms():
        a("s_mov_b32 s48, 0x05040100"); a("s_mov_b32 s49, 0x07060302")
        for ks in range(4):
            src = WO + ks*32
            dst = T if ks == 0 else WO + (ks-1)*32
            for t in range(8):
                for d in range(4):
                    a(f"v_perm_b32 v{dst+4*t+d}, v{src+(2*d+1)*4+(t>>1)}, v{src+(2*d)*4+(t>>1)}, s{48+(t&1)}")

    def wfrag(ks, t):
        return (T if ks == 0 else WO + (ks-1)*32) + 4*t

    a("v_and_b32 v6, 1, v2"); a("v_lshrrev_b32 v8, 3, v1"); a("v_cmp_eq_u32 vcc, v6, v8"); a("s_nop 1")
    for w in range(8):
        a(f"v_cndmask_b32 v{SEL+w}, v10, v{SEL+w}, vcc")
    a("v_and_b32 v6, 3, v1"); a("v_xor_b32 v6, v6, v2"); a("v_and_b32 v7, 12, v1"); a("v_or_b32 v6, v6, v7")
    for m in range(4):
        a(f"v_xor_b32 v7, {m*4}, v6"); a("v_lshlrev_b32 v7, 4, v7"); a(f"v_lshl_add_u32 v{8+m}, v1, 9, v7")
    a("v_and_b32 v6, 1, v1"); a("v_lshlrev_b32 v6, 4, v6"); a("v_and_b32 v7, 14, v1"); a("v_add_u32 v12, v6, v7")
    a("s_lshl_b32 s48, s60, 5"); a(f"s_add_u32 s61, s48, {L_PB}")
    a("v_add_u32 v12, s61, v12")
    a("s_lshl_b32 s48, s60, 2"); a(f"s_add_u32 s48, s48, {F_CONS}"); a("v_mov_b32 v13, s48")
    a("s_lshl_b32 s56, s60, 13")
    a("s_add_u32 s57, s60, 1")
    a("s_mov_b32 s58, 0")
    a("v_mov_b32 v5, 0")
    a(f"v_lshlrev_b32 v7, 4, v2"); a(f"v_add_u32 v7, {L_QB}, v7")
    lds_wait_ge(14, F_QOK - M0_, "s48", 1, 6)
    for ks in range(8):
        a(f"ds_read_b128 {q(QA+4*ks)}, v7 offset:{ks*64}")
    stamp(3)
    if qonly >= 0:
        finish()
    a("s_getpc_b64 s[52:53]")
    a("L_kc0:")
    a("s_add_u32 s52, s52, L_kloop-L_kc0"); a("s_addc_u32 s53, s53, 0")
    a("s_mov_b32 s59, 17")
    a("s_swappc_b64 s[54:55], s[52:53]")
    for gi in range(7):
        wo_group(gi)
        if gi == 6:
            wo_group(7)
        a("s_add_u32 s59, s59, 16")
        a("s_swappc_b64 s[54:55], s[52:53]")
    a("s_branch L_kdone")
    a("L_kloop:")
    for m in range(4):
        a(f"v_add_u32 v{ABUF+m}, s56, v{8+m}")
    a("v_add_u32 v5, 1, v5")
    lds_wait_ge(14, F_FILL - M0_, "s58", "s57", 6, precheck=True)
    for ks in range(8):
        a(f"ds_read_b128 {q(T+4*ks)}, v{ABUF+(ks&3)} offset:{(ks>>2)*256}")
    for ks in range(8):
        a(f"s_waitcnt lgkmcnt({7-ks})")
        a(f"v_mfma_f32_16x16x32_bf16 {q(ACC)}, {q(QA+4*ks)}, {q(T+4*ks)}, {q(ACC) if ks else 0}")
    a("ds_write_b32 v13, v5")
    a("s_add_u32 s56, s56, 16384"); a("s_and_b32 s56, s56, 0x1ffff")
    a("s_add_u32 s57, s57, 2")
    a("s_nop 4")
    a(f"v_cvt_pk_bf16_f32 v6, v{ACC}, v{ACC}")
    a("ds_write_b16 v12, v6")
    a("v_add_u32 v12, 64, v12")
    a("s_cmp_lt_u32 s57, s59")
    a("s_cbranch_scc1 L_kloop")
    a("s_setpc_b64 s[54:55]")
    a("L_kdone:")
    stamp(4)
    a("v_lshl_add_u32 v12, v0, 6, s61")
    a("s_waitcnt lgkmcnt(0)")
    a(f"ds_read_b128 {q(YA)}, v12"); a(f"ds_read_b128 {q(YA+4)}, v12 offset:16")
    a("s_waitcnt lgkmcnt(0)")
    if dump:
        a("v_lshlrev_b32 v6, 6, v0"); a("s_lshl_b32 s48, s31, 2"); a("s_add_u32 s48, s48, s29"); a("s_lshl_b32 s48, s48, 12")
        a("s_lshl_b32 s49, s60, 5"); a("s_add_u32 s48, s48, s49"); a("s_add_u32 s48, s48, 0x280000 - 0x80000")
        a("s_add_u32 s48, s48, 0x100000")
        a(f"buffer_store_dwordx4 {q(YA)}, v6, s[40:43], s48 offen"); a(f"buffer_store_dwordx4 {q(YA+4)}, v6, s[40:43], s48 offen offset:16")
    for d in range(8):
        a(f"v_lshlrev_b32 v{T+2*d}, 16, v{YA+d}"); a(f"v_and_b32 v{T+2*d+1}, 0xffff0000, v{YA+d}")
    a(f"v_max3_f32 v6, v{T}, v{T+1}, v{T+2}")
    for d in range(3, 15, 2):
        a(f"v_max3_f32 v6, v6, v{T+d}, v{T+d+1}")
    a(f"v_max_f32 v6, v6, v{T+15}")
    wave_red("v_max_f32", 6, "s48")
    a(f"s_mov_b32 s49, {LOG2E_16:#x}")
    for d in range(16):
        a(f"v_subrev_f32 v{T+d}, s48, v{T+d}")
    for d in range(16):
        a(f"v_mul_f32 v{T+d}, s49, v{T+d}")
    for d in range(16):
        a(f"v_exp_f32 v{T+d}, v{T+d}")
    a("s_nop 0")
    for d in range(8):
        a(f"v_cvt_pk_bf16_f32 v{YA+d}, v{T+2*d}, v{T+2*d+1}")
    a(f"ds_write_b128 v12, {q(YA)}"); a(f"ds_write_b128 v12, {q(YA+4)} offset:16")
    for st in (8, 4, 2, 1):
        for d in range(st):
            a(f"v_add_f32 v{T+d}, v{T+d}, v{T+d+st}")
    wave_red("v_add_f32", T, "s49")
    a("v_mov_b32 v6, s48"); a("v_mov_b32 v7, s49")
    a("s_lshl_b32 s48, s60, 3"); a(f"s_add_u32 s48, s48, {L_ML}"); a("v_mov_b32 v8, s48"); a("v_mov_b32 v9, 1")
    a("s_mov_b64 exec, 1")
    a("ds_write_b64 v8, v[6:7]")
    a("s_waitcnt lgkmcnt(0)")
    a(f"ds_add_u32 v14, v9 offset:{F_MLCNT-M0_}")
    a("s_mov_b64 exec, -1")
    a("s_waitcnt vmcnt(0)")
    a("s_getpc_b64 s[54:55]")
    a("L_cret0:")
    a("s_add_u32 s54, s54, L_cret1-L_cret0"); a("s_addc_u32 s55, s55, 0")
    a("s_branch L_woperm")
    a("L_cret1:")
    a("v_lshlrev_b32 v8, 4, v0")
    a("v_lshl_add_u32 v12, v3, 4, s61")
    for r in range(4):
        a(f"v_mov_b32 v{ACC+r}, 0")
    stamp(5)
    a("L_vloop:")
    a(f"ds_read_b128 {q(YA)}, v12")
    a("v_add_u32 v9, s56, v8")
    a("v_add_u32 v12, 64, v12")
    a("v_add_u32 v5, 1, v5")
    a("s_waitcnt lgkmcnt(0)")
    for n in range(8):
        build_a(QA + 4*n, YA, n)
    lds_wait_ge(14, F_FILL - M0_, "s58", "s57", 6, precheck=True)
    for n in range(8):
        a(f"ds_read_b128 {q(T2+4*n)}, v9 offset:{n*1024}")
    for n in range(8):
        a(f"s_waitcnt lgkmcnt({7-n})")
        a(f"v_mfma_f32_16x16x32_bf16 {q(ACC)}, {q(QA+4*n)}, {q(T2+4*n)}, {q(ACC)}")
    a("ds_write_b32 v13, v5")
    a("s_add_u32 s56, s56, 16384"); a("s_and_b32 s56, s56, 0x1ffff")
    a("s_add_u32 s57, s57, 2")
    a("s_cmp_lt_u32 s57, 257")
    a("s_cbranch_scc1 L_vloop")
    stamp(6)
    lds_wait_ge(14, F_FOK - M0_, "s48", 1, 6)
    a("s_lshl_b32 s48, s60, 2"); a(f"s_add_u32 s48, s48, {L_F}"); a("v_mov_b32 v6, s48")
    a("ds_read_b32 v6, v6")
    a("v_lshrrev_b32 v7, 1, v2"); a("s_lshl_b32 s48, s60, 1"); a("v_add_u32 v7, s48, v7"); a("v_mul_u32_u24 v7, 288, v7")
    a("v_and_b32 v8, 1, v2"); a("v_lshlrev_b32 v8, 3, v8"); a("v_lshl_add_u32 v8, v1, 4, v8")
    a(f"v_add_u32 v7, v7, v8"); a(f"v_add_u32 v7, {L_OB}, v7")
    a("s_waitcnt lgkmcnt(0)")
    for r in range(4):
        a(f"v_mul_f32 v{ACC+r}, v6, v{ACC+r}")
    a(f"v_cvt_pk_bf16_f32 v{ACC}, v{ACC}, v{ACC+1}"); a(f"v_cvt_pk_bf16_f32 v{ACC+1}, v{ACC+2}, v{ACC+3}")
    a(f"ds_write_b64 v7, {q(ACC,2)}")
    a("s_branch L_ystage")

    a("L_woperm:")
    wo_perms()
    a("s_setpc_b64 s[54:55]")

    a("L_helper:")
    a("s_cmp_eq_u32 s3, 3")
    a("s_cbranch_scc1 L_h4")
    if qonly >= 0:
        finish()
    wo_loads()
    a("s_waitcnt vmcnt(0)")
    a("s_getpc_b64 s[54:55]")
    a("L_hret0:")
    a("s_add_u32 s54, s54, L_hret1-L_hret0"); a("s_addc_u32 s55, s55, 0")
    a("s_branch L_woperm")
    a("L_hret1:")
    a("s_cmp_ge_u32 s2, 112")
    a("s_cbranch_scc1 L_ystage")
    if noffn:
        a("s_and_b32 s48, s2, 7"); a("s_mul_i32 s48, s48, 14"); a("s_lshr_b32 s49, s2, 3"); a("s_add_u32 s59, s48, s49"); a("s_sub_u32 s62, s3, 4"); a("s_branch L_ystage")
    a("s_and_b32 s48, s2, 7"); a("s_mul_i32 s48, s48, 14"); a("s_lshr_b32 s49, s2, 3"); a("s_add_u32 s59, s48, s49")
    a("s_sub_u32 s62, s3, 4")
    a("s_cmp_ge_u32 s62, 2")
    a("s_cselect_b32 s44, s18, s16"); a("s_cselect_b32 s45, s19, s17")
    a("s_and_b32 s45, s45, 0xffff"); a("s_mov_b32 s46, 1605632"); a("s_mov_b32 s47, 0x20000")
    a("v_lshrrev_b32 v7, 1, v0"); a("v_and_b32 v6, 16, v7"); a("v_and_b32 v8, 3, v7"); a("v_lshl_add_u32 v6, v8, 2, v6")
    a("v_bfe_u32 v8, v7, 2, 2"); a("v_add_u32 v6, v6, v8"); a("v_mul_u32_u24 v6, 3584, v6")
    a("v_and_b32 v8, 1, v0"); a("v_lshl_add_u32 v6, v8, 4, v6")
    a("s_and_b32 s48, s62, 1"); a(f"s_mul_i32 s50, s48, {7*32*3584}"); a("s_lshl_b32 s49, s59, 5"); a("s_add_u32 s50, s50, s49")
    a(f"s_lshl_b32 s51, s62, 10"); a(f"s_add_u32 s51, s51, {L_QP}")
    a("v_lshrrev_b32 v9, 2, v1"); a("v_lshl_add_u32 v10, v2, 3, v9"); a("v_lshlrev_b32 v10, 5, v10")
    a("v_and_b32 v11, 3, v1"); a("v_lshl_add_u32 v10, v11, 3, v10"); a("v_add_u32 v10, s51, v10")
    a("s_mov_b32 m0, s51")
    lds_wait_ge(14, F_QOK - M0_, "s48", 1, 12)
    for f in range(7):
        a(f"buffer_load_dwordx4 v6, s[44:47], s50 offen {gflags} lds")
        a(f"s_add_u32 s50, s50, {32*3584}")
        a("s_waitcnt vmcnt(0)")
        a(f"ds_read_b64_tr_b16 {q(QA+4*f,2)}, v10")
        a(f"ds_read_b64_tr_b16 {q(QA+4*f+2,2)}, v10 offset:128")
        a("s_waitcnt lgkmcnt(0)")
        a(f"s_sleep {gsleep}")
    srd(44, 20, 1605632)
    a("v_and_b32 v6, 15, v7"); a("v_mul_u32_u24 v6, 896, v6"); a("v_lshl_add_u32 v6, v3, 5, v6"); a("v_lshl_add_u32 v6, v8, 4, v6")
    a("s_mul_i32 s50, s59, 14336"); a("s_mul_i32 s49, s62, 224"); a("s_add_u32 s50, s50, s49")
    a("v_lshl_add_u32 v10, v2, 2, v9"); a("v_lshlrev_b32 v10, 5, v10"); a("v_lshl_add_u32 v10, v11, 3, v10"); a("v_add_u32 v10, s51, v10")
    DN = QA + 28
    for u in range(0, 7, 2):
        if u == 6:
            a("s_mov_b32 exec_hi, 0")
        a(f"buffer_load_dwordx4 v6, s[44:47], s50 offen {gflags} lds")
        if u == 6:
            a("s_mov_b32 exec_hi, -1")
        a("s_add_u32 s50, s50, 64")
        a("s_waitcnt vmcnt(0)")
        a(f"ds_read_b64_tr_b16 {q(DN+2*u,2)}, v10")
        if u < 6:
            a(f"ds_read_b64_tr_b16 {q(DN+2*u+2,2)}, v10 offset:512")
        a("s_waitcnt lgkmcnt(0)")
        a(f"s_sleep {gsleep}")
    a("s_branch L_ystage")

    a("L_h4:")
    a("v_and_b32 v8, 31, v0"); a("v_lshlrev_b32 v8, 3, v8")
    a("v_mul_u32_u24 v9, 1792, v3"); a("v_add_u32 v9, v9, v8"); a(f"v_add_u32 v9, {L_QP}, v9")
    a("s_lshl_b32 s56, s31, 10"); a(f"s_add_u32 s56, s56, {W_QX}"); a("s_lshl_b32 s57, s29, 8"); a("s_add_u32 s57, s57, s56")
    a("s_add_u32 s62, s62, 1")
    a("v_lshlrev_b32 v5, 4, v0")
    a(f"v_lshlrev_b32 v11, 3, v0"); a(f"v_add_u32 v11, {L_QB}, v11")
    lds_wait_ge(14, F_QCNT - M0_, "s48", 7, 6, sleep=0)
    for p in range(7):
        a(f"ds_read_b64 {q(T+2*p,2)}, v9 offset:{p*256}")
    for p in range(1, 7):
        a(f"s_waitcnt lgkmcnt({6-p})")
        a(f"v_add_f32 v{T}, v{T}, v{T+2*p}"); a(f"v_add_f32 v{T+1}, v{T+1}, v{T+2*p+1}")
    a(f"v_mov_b32 v{T+2}, v{T}"); a(f"v_mov_b32 v{T+3}, v{T+1}"); a("s_nop 1")
    a(f"v_permlane32_swap_b32 v{T}, v{T+2}"); a(f"v_permlane32_swap_b32 v{T+1}, v{T+3}")
    a(f"v_add_f32 v{T}, v{T}, v{T+2}"); a(f"v_add_f32 v{T+1}, v{T+1}, v{T+3}")
    a(f"v_cvt_pk_bf16_f32 v6, v{T}, v{T+1}"); a("v_mov_b32 v7, s62")
    a("s_mov_b32 exec_hi, 0")
    a("buffer_store_dwordx2 v[6:7], v8, s[40:43], s57 offen sc1")
    a("s_mov_b32 exec_hi, -1")
    stamp(3) if qonly >= 0 else None
    bound_init(1 << 17)
    a("L_qpoll:")
    a(f"buffer_load_dwordx4 {q(T)}, v5, s[40:43], s56 offen sc1")
    a("s_waitcnt vmcnt(0)")
    a(f"v_cmp_ne_u32 vcc, s62, v{T+1}"); a(f"v_cmp_ne_u32 s[48:49], s62, v{T+3}")
    a("s_or_b64 vcc, vcc, s[48:49]")
    a("s_cbranch_scc0 L_qok")
    if qsleep:
        a(f"s_sleep {qsleep}")
    bound_loop("L_qpoll")
    a("L_qok:")
    a(f"v_mov_b32 v{T+1}, v{T+2}")
    a(f"ds_write_b64 v11, {q(T,2)}")
    a("v_mov_b32 v6, 1")
    a("s_waitcnt lgkmcnt(0)")
    a(f"ds_write_b32 v14, v6 offset:{F_QOK-M0_}")
    if qonly >= 0:
        stamp(4)
        finish()
    for r in range(4):
        a(f"v_mov_b32 v{YA+r}, -1")
    a("v_lshlrev_b32 v5, 4, v0")
    a("s_lshl_b32 s48, s31, 2"); a("s_add_u32 s48, s48, s29"); a("s_mul_i32 s48, s48, 1792")
    a(f"buffer_store_dwordx4 {q(YA)}, v5, s[40:43], s48 offen sc1")
    a("s_mov_b32 exec_hi, 0x0000ffff")
    a(f"buffer_store_dwordx4 {q(YA)}, v5, s[40:43], s48 offen offset:1024 sc1")
    a("s_mov_b64 exec, 1")
    a("s_lshl_b32 s61, s31, 6"); a("s_lshl_b32 s48, s29, 4"); a("s_add_u32 s48, s48, s61"); a(f"s_add_u32 s57, s48, {W_ML}")
    a(f"buffer_store_dwordx4 {q(YA)}, v15, s[40:43], s57 offen sc1")
    a("s_mov_b64 exec, -1")
    a("s_cmp_ge_u32 s2, 112")
    a("s_cbranch_scc1 L_h4_nor2")
    a("s_and_b32 s48, s2, 7"); a("s_mul_i32 s48, s48, 14"); a("s_lshr_b32 s49, s2, 3"); a("s_add_u32 s48, s48, s49")
    a("s_mul_i32 s48, s48, 7168"); a(f"s_add_u32 s48, s48, {W_OP}")
    for k in range(7):
        if k == 4:
            a("s_add_u32 s48, s48, 4096")
        a(f"buffer_store_dwordx4 {q(YA)}, v5, s[40:43], s48 offen offset:{(k&3)*1024} sc1")
    a("L_h4_nor2:")
    a("s_sub_u32 s48, s2, 112"); a("s_mul_i32 s58, s48, 2341"); a("s_lshr_b32 s58, s58, 16"); a("s_mul_i32 s49, s58, 28"); a("s_sub_u32 s59, s48, s49")
    a("v_and_b32 v6, 3, v0"); a("v_bfe_u32 v7, v0, 2, 2")
    a("v_mul_u32_u24 v13, 7168, v7"); a("v_lshl_add_u32 v13, v2, 4, v13"); a("v_lshl_add_u32 v13, v6, 2, v13")
    a("v_lshl_add_u32 v12, v6, 2, v2"); a("v_lshlrev_b32 v12, 1, v12")
    a("s_mul_i32 s56, s58, 1792"); a("s_lshl_b32 s49, s59, 6"); a("s_add_u32 s56, s56, s49")
    a("s_cmp_lt_u32 s48, 112")
    a("s_cbranch_scc0 L_h4_nor1")
    a(f"s_add_u32 s48, s56, {W_HB}")
    for k in range(nrep // 4):
        a(f"buffer_store_dword v{YA}, v13, s[40:43], s48 offen sc1")
        a(f"s_add_u32 s48, s48, {4*7168}")
    a("s_lshr_b32 s48, s56, 1")
    a(f"buffer_load_ushort v11, v12, s[32:35], s48 offen")
    a("L_h4_nor1:")
    srd(44, 24, 256)
    a("s_waitcnt vmcnt(0)")
    a("v_mov_b32 v6, 1")
    a("s_mov_b64 exec, 1")
    a("buffer_atomic_add v6, v15, s[44:47], 0 offen sc1")
    a("s_mov_b64 exec, -1")
    wo_loads()
    a("s_waitcnt vmcnt(0)")
    a("s_getpc_b64 s[54:55]")
    a("L_gret0:")
    a("s_add_u32 s54, s54, L_gret1-L_gret0"); a("s_addc_u32 s55, s55, 0")
    a("s_branch L_woperm")
    a("L_gret1:")
    lds_wait_ge(14, F_MLCNT - M0_, "s48", 2, 6, sleep=16)
    bound_init(1 << 17)
    a("L_cntpoll:")
    a("buffer_load_dword v6, v15, s[44:47], 0 offen sc1")
    a("s_waitcnt vmcnt(0)")
    a("v_readfirstlane_b32 s48, v6")
    a("s_cmp_ge_u32 s48, 256")
    a("s_cbranch_scc1 L_cntok")
    a("s_sleep 32")
    bound_loop("L_cntpoll")
    a("L_cntok:")
    a("s_cmp_lg_u32 s2, 0")
    a("s_cbranch_scc1 L_noep")
    a("v_mov_b32 v6, s62"); a(f"s_mov_b32 s48, {W_EP}")
    a("s_mov_b64 exec, 1")
    a("buffer_store_dword v6, v15, s[40:43], s48 offen sc1")
    a("s_mov_b64 exec, -1")
    a("L_noep:")
    a(f"ds_read_b128 {q(YA)}, v14 offset:{L_ML-M0_}")
    a("s_waitcnt lgkmcnt(0)")
    a("s_mov_b64 exec, 1")
    a(f"buffer_store_dwordx4 {q(YA)}, v15, s[40:43], s57 offen sc1")
    a("s_mov_b64 exec, -1")
    a("v_and_b32 v8, 7, v0"); a("v_lshlrev_b32 v9, 3, v8")
    a(f"s_add_u32 s61, s61, {W_ML}")
    bound_init(1 << 17)
    a("L_mlpoll:")
    a("buffer_load_dwordx2 v[6:7], v9, s[40:43], s61 offen sc1")
    a("s_waitcnt vmcnt(0)")
    a("v_max_u32 v10, v6, v7")
    a("v_cmp_eq_u32 vcc, -1, v10")
    a("s_cbranch_vccz L_mlok")
    a("s_sleep 16")
    bound_loop("L_mlpoll")
    a("L_mlok:")
    a("v_mov_b32 v10, v6")
    for d in ("row_ror:4", "row_ror:2", "row_ror:1"):
        a("s_nop 1")
        a(f"v_max_f32_dpp v10, v10, v10 {d} row_mask:0xf bank_mask:0xf")
    a("v_sub_f32 v6, v6, v10"); a(f"v_mul_f32 v6, {LOG2E_16:#x}, v6"); a("v_exp_f32 v6, v6"); a("s_nop 0")
    a("v_mul_f32 v7, v6, v7")
    for d in ("row_ror:4", "row_ror:2", "row_ror:1"):
        a("s_nop 1")
        a(f"v_add_f32_dpp v7, v7, v7 {d} row_mask:0xf bank_mask:0xf")
    a("v_rcp_f32 v7, v7"); a("v_lshrrev_b32 v9, 1, v0"); a("v_and_b32 v8, 1, v0")
    a("v_mul_f32 v6, v6, v7")
    a(f"v_lshlrev_b32 v8, 2, v8"); a(f"v_add_u32 v8, {L_F}, v8")
    a("v_cmp_eq_u32 vcc, s29, v9")
    a("s_mov_b64 exec, vcc")
    a("ds_write_b32 v8, v6")
    a("s_mov_b64 exec, 1")
    a("v_mov_b32 v6, 1")
    a("s_waitcnt lgkmcnt(0)")
    a(f"ds_write_b32 v14, v6 offset:{F_FOK-M0_}")
    a("s_mov_b64 exec, -1")

    a("L_ystage:")
    a("v_and_b32 v6, 1, v1"); a("v_bfe_u32 v7, v1, 2, 1"); a("v_lshl_add_u32 v6, v6, 1, v7"); a("v_mul_u32_u24 v6, 288, v6")
    a(f"v_lshl_add_u32 v6, v2, 4, v6"); a(f"v_add_u32 v6, {L_OB}, v6")
    a("v_lshlrev_b32 v7, 5, v1"); a("v_lshl_add_u32 v7, v2, 4, v7")
    a("s_lshl_b32 s48, s31, 2"); a("s_add_u32 s48, s48, s29"); a("s_mul_i32 s48, s48, 1792"); a("s_lshl_b32 s49, s60, 8"); a("s_add_u32 s49, s48, s49")
    a("s_waitcnt lgkmcnt(0)")
    a("s_barrier")
    stamp(7) if False else None
    for ks in range(4):
        a(f"ds_read_b128 {q(YA+4*ks)}, v6 offset:{ks*64}")
    S = ABUF
    for t in range(8):
        for ks in range(4):
            if t == 0:
                a(f"s_waitcnt lgkmcnt({3-ks})")
            a(f"v_mfma_f32_16x16x32_bf16 {q(T2+4*t)}, {q(YA+4*ks)}, {q(wfrag(ks,t))}, {q(T2+4*t) if ks else 0}")
        if t >= 2:
            a(f"v_add_f32 v{S+t-2}, v{T2+4*(t-2)}, v{T2+4*(t-2)+1}")
    a("s_nop 2")
    a(f"v_add_f32 v{S+6}, v{T2+24}, v{T2+25}")
    a("s_nop 2")
    a(f"v_add_f32 v{S+7}, v{T2+28}, v{T2+29}")
    for t in range(4):
        if t == 3:
            a("s_nop 0")
        a(f"v_permlane16_swap_b32 v{S+t}, v{S+t+4}")
    a("s_nop 0")
    for t in range(4):
        a(f"v_add_f32_dpp v{S+t}, v{S+t+4}, v{S+t} row_shl:8 row_mask:0xf bank_mask:0xf")
    a("s_mov_b64 exec, 0x00ff00ff")
    a(f"buffer_store_dwordx4 {q(S)}, v7, s[40:43], s49 offen sc1")
    a("s_mov_b64 exec, -1")
    stamp(7)
    a("s_cmp_lt_u32 s3, 3")
    a("s_cbranch_scc1 L_done")
    a("s_cmp_eq_u32 s3, 3")
    a("s_cbranch_scc1 L_r1")
    a("s_cmp_ge_u32 s2, 112")
    a("s_cbranch_scc1 L_done")

    a("v_lshlrev_b32 v5, 5, v0")
    a(f"s_and_b32 s48, s2, {nrep-1}"); a("s_mul_i32 s48, s48, 7168"); a("s_mul_i32 s49, s62, 1792"); a("s_add_u32 s48, s48, s49")
    a(f"s_add_u32 s56, s48, {W_HB}"); a("s_add_u32 s57, s56, 16")
    X = T2
    for e in range(8):
        a(f"v_mov_b32 v{X+e}, 0")
    a("v_lshlrev_b32 v8, 4, v0"); a("s_mul_i32 s48, s62, 960"); a(f"s_add_u32 s48, s48, {L_XN2}"); a("v_add_u32 v8, s48, v8")
    a("v_and_b32 v9, 3, v1"); a("v_mul_u32_u24 v10, 960, v9"); a("v_lshl_add_u32 v10, v2, 4, v10")
    a("s_and_b32 s48, s62, 1"); a("s_mul_i32 s48, s48, 448"); a(f"s_add_u32 s48, s48, {L_XN2}"); a("v_add_u32 v10, s48, v10")
    a("v_lshlrev_b32 v11, 6, v9"); a("v_lshl_add_u32 v11, v2, 4, v11"); a(f"v_add_u32 v11, {L_GU}, v11")
    a("s_lshl_b32 s48, s62, 8"); a("v_add_u32 v12, s48, v11")
    a("v_mul_u32_u24 v13, 1792, v1"); a("v_lshl_add_u32 v13, v2, 4, v13")
    a("s_mul_i32 s58, s59, 7168"); a("s_mul_i32 s48, s62, 448"); a("s_add_u32 s58, s58, s48"); a(f"s_add_u32 s58, s58, {W_OP}")
    a("s_mov_b32 exec_hi, 0x00ffffff")
    poll_quads(2, X, 5, ["s56", "s57"], 40, 6)
    a("s_mov_b32 exec_hi, -1")
    stamp(3)
    layernorm(X, T2 + 8)
    for d in range(4):
        a(f"v_cvt_pk_bf16_f32 v{YA+d}, v{X+2*d}, v{X+2*d+1}")
    a("s_mov_b32 exec_hi, 0x00ffffff")
    a(f"ds_write_b128 v8, {q(YA)}")
    a("s_mov_b32 exec_hi, -1")
    a("s_waitcnt lgkmcnt(0)")
    a("s_barrier")
    for f in range(7):
        a(f"ds_read_b128 {q(T2+4*f)}, v10 offset:{f*64}")
    for f in range(7):
        a(f"s_waitcnt lgkmcnt({6-f})")
        a(f"v_mfma_f32_16x16x32_bf16 {q(ACC)}, {q(QA+4*f)}, {q(T2+4*f)}, {q(ACC) if f else 0}")
    a("s_nop 7")
    a(f"ds_write_b128 v12, {q(ACC)}")
    a("s_waitcnt lgkmcnt(0)")
    a("s_barrier")
    for p in range(4):
        a(f"ds_read_b128 {q(YA+4*p)}, v11 offset:{p*256}")
    a("s_waitcnt lgkmcnt(2)")
    for r in range(4):
        a(f"v_add_f32 v{YA+r}, v{YA+r}, v{YA+4+r}")
    a("s_waitcnt lgkmcnt(0)")
    for r in range(4):
        a(f"v_add_f32 v{YA+8+r}, v{YA+8+r}, v{YA+12+r}")
    for r in range(4):
        a(f"v_cvt_pk_bf16_f32 v{YA+4+r}, v{YA+r}, v{YA+8+r}")
    for r in range(4):
        a(f"v_lshlrev_b32 v{YA+r}, 16, v{YA+4+r}"); a(f"v_and_b32 v{YA+4+r}, 0xffff0000, v{YA+4+r}")
    for r in range(4):
        a(f"v_mul_f32 v{YA+r}, v{YA+r}, v{YA+4+r}")
    a(f"v_cvt_pk_bf16_f32 v{YA+8}, v{YA}, v{YA+1}"); a(f"v_cvt_pk_bf16_f32 v{YA+9}, v{YA+2}, v{YA+3}")
    a("s_nop 1")
    for u in range(7):
        a(f"v_mfma_f32_16x16x16_bf16 {q(T2+4*u)}, {q(DN+2*u,2)}, {q(YA+8,2)}, 0")
    a("s_mov_b32 exec_lo, 0x000f000f"); a("s_mov_b32 exec_hi, 0x000f000f")
    for u in range(7):
        if u == 0:
            a("s_nop 0")
        a(f"buffer_store_dwordx4 {q(T2+4*u)}, v13, s[40:43], s58 offen offset:{u*64} sc1")
        if u < 6:
            a("s_nop 0")
    a("s_mov_b64 exec, -1")
    stamp(4)
    a("s_branch L_done")

    a("L_r1:")
    a("s_sub_u32 s48, s2, 112")
    a("s_cmp_lt_u32 s48, 112")
    a("s_cbranch_scc0 L_done")
    a("v_lshrrev_b32 v5, 2, v0"); a("v_and_b32 v6, 3, v0"); a("v_lshlrev_b32 v6, 4, v6")
    a("v_mul_u32_u24 v7, 1792, v5"); a("v_add_u32 v7, v7, v6")
    a("v_mul_u32_u24 v8, 7168, v5"); a("v_add_u32 v8, v8, v6")
    a(f"s_mul_i32 s44, s58, {64*1792}"); a("s_lshl_b32 s48, s59, 6"); a("s_add_u32 s44, s44, s48")
    for g in range(1, 4):
        a(f"s_add_u32 s{44+g}, s{43+g}, {16*1792}")
    a("v_lshlrev_b32 v11, 16, v11")
    poll_quads(4, T2, 7, ["s44", "s45", "s46", "s47"], 40, 6)
    stamp(3)
    for r in range(4):
        a(f"v_add_f32 v{T2+r}, v{T2+r}, v{T2+4+r}"); a(f"v_add_f32 v{T2+8+r}, v{T2+8+r}, v{T2+12+r}")
    for r in range(4):
        a(f"v_add_f32 v{T2+r}, v{T2+r}, v{T2+8+r}")
    xreduce(T2)
    bf16r(T2, T2)
    a(f"v_add_f32 v11, v11, v{T2}")
    bf16r(11, 11)
    a(f"s_add_u32 s48, s56, {W_HB}")
    for k in range(nrep // 4):
        a("buffer_store_dword v11, v13, s[40:43], s48 offen sc1")
        if k + 1 < nrep // 4:
            a(f"s_add_u32 s48, s48, {4*7168}")
    stamp(4)
    so = ["s32", "s33", "s34", "s35", "s36", "s37", "s38"]
    a(f"s_add_u32 s32, s56, {W_OP}")
    for g in range(1, 7):
        a(f"s_add_u32 {so[g]}, {so[g-1]}, {16*7168}")
    srd(44, 22, 3584)
    a("s_waitcnt vmcnt(0)")
    poll_quads(7, T2, 8, so, 40, 6)
    stamp(5)
    for r in range(4):
        a(f"v_add_f32 v{T2+r}, v{T2+r}, v{T2+4+r}"); a(f"v_add_f32 v{T2+8+r}, v{T2+8+r}, v{T2+12+r}")
        a(f"v_add_f32 v{T2+16+r}, v{T2+16+r}, v{T2+20+r}")
    for r in range(4):
        a(f"v_add_f32 v{T2+r}, v{T2+r}, v{T2+8+r}"); a(f"v_add_f32 v{T2+16+r}, v{T2+16+r}, v{T2+24+r}")
    for r in range(4):
        a(f"v_add_f32 v{T2+r}, v{T2+r}, v{T2+16+r}")
    xreduce(T2)
    bf16r(T2, T2)
    a(f"v_add_f32 v11, v11, v{T2}")
    a("v_cvt_pk_bf16_f32 v11, v11, v11")
    a("s_lshr_b32 s48, s56, 1")
    a("s_mov_b32 exec_lo, 0x000f000f"); a("s_mov_b32 exec_hi, 0x000f000f")
    a("buffer_store_short v11, v12, s[44:47], s48 offen")
    a("s_mov_b64 exec, -1")
    stamp(6)
    a("L_done:")
    finish()

    a("L_loader:")
    a("s_setprio 3")
    a("v_and_b32 v4, 31, v0")
    for k in range(8):
        a(f"v_add_u32 v5, {2*k}, v3"); a("v_xor_b32 v5, v5, v4") if not noswz else a("v_mov_b32 v5, v4"); a("v_lshlrev_b32 v5, 4, v5"); a(f"v_lshl_add_u32 v{8+k}, v3, 9, v5")
    a("v_lshlrev_b32 v16, 4, v0")
    a(f"v_mov_b32 v24, {M0_}"); a(f"v_mov_b32 v17, {F_CONS}")
    for r in range(4):
        a(f"v_mov_b32 v{20+r}, 0")
    a("ds_write_b128 v24, v[20:23]"); a("ds_write_b128 v24, v[20:23] offset:16")
    a("s_lshl_b32 s48, s31, 22"); a("s_lshl_b32 s49, s29, 20"); a("s_add_u32 s48, s48, s49")
    a("s_waitcnt lgkmcnt(0)")
    for r, p in ((32, 6), (36, 8)):
        a(f"s_add_u32 s{r}, s{p}, s48"); a(f"s_addc_u32 s{r+1}, s{p+1}, 0"); a(f"s_and_b32 s{r+1}, s{r+1}, 0xffff")
        a(f"s_mov_b32 s{r+2}, 0x100000"); a(f"s_mov_b32 s{r+3}, 0x20000")
    if diag:
        srd(40, 26, WS_BYTES)
    a("s_mov_b32 s56, 0")
    a("s_mov_b32 s57, 0")
    a("s_mov_b32 s58, 0")
    a("v_mov_b32 v18, 0")

    def tile_loop(name, srdreg, is_k, tend, first):
        dd = (dk or depth) if is_k else depth
        kpub, lag = (dd - 1) % 8, (dd - 1) // 8
        a(f"{name}:")
        a("s_lshr_b32 s49, s58, 1"); a("s_sub_u32 s49, s49, 7")
        p, go = lab("fp"), lab("fg")
        a("s_waitcnt lgkmcnt(0)")
        a("v_readfirstlane_b32 s48, v18")
        a("s_cmp_ge_i32 s48, s49")
        a(f"s_cbranch_scc1 {go}")
        bound_init()
        a(f"{p}:")
        a("ds_read_b32 v18, v17"); a("s_waitcnt lgkmcnt(0)"); a("v_readfirstlane_b32 s48, v18")
        a("s_cmp_ge_i32 s48, s49")
        a(f"s_cbranch_scc1 {go}")
        a("s_sleep 1")
        bound_loop(p)
        a(f"{go}:")
        a("v_xor_b32 v17, 12, v17")
        for k in range(8):
            if k == 0:
                a("s_mov_b32 m0, s56")
            if k == 4:
                a("s_add_u32 m0, s56, 4096"); a("s_add_u32 s57, s57, 4096")
            if k == kpub:
                a(f"s_sub_u32 s49, s58, {lag}"); a("s_max_i32 s49, s49, 0"); a("v_mov_b32 v19, s49")
            a(f"s_waitcnt vmcnt({dd-1})")
            a(f"buffer_load_dwordx4 v{8+k if is_k else 16}, s[{srdreg}:{srdreg+3}], s57 offen offset:{(k&3)*1024} nt lds")
            if k == kpub:
                a("ds_write_b32 v24, v19")
            if k == 6:
                a("ds_read_b32 v18, v17")
            if first and k == barpos:
                sk = lab("nb")
                a("s_cmp_lg_u32 s58, 0"); a(f"s_cbranch_scc1 {sk}"); a("s_barrier"); a(f"{sk}:")
        a("s_add_u32 s57, s57, 4096")
        a("s_add_u32 s56, s56, 8192"); a("s_and_b32 s56, s56, 0x1ffff")
        a("s_add_u32 s58, s58, 1")
        if diag and is_k:
            for kk, tt in (((4, 16), (5, 32), (6, 64), (7, 96)) if qonly < 0 else ((4, 3), (5, 4), (6, 6), (7, 10))):
                sk = lab("st")
                a(f"s_cmp_lg_u32 s58, {tt}"); a(f"s_cbranch_scc1 {sk}"); stamp(kk); a(f"{sk}:")
        a(f"s_cmp_lt_u32 s58, {tend}")
        a(f"s_cbranch_scc1 {name}")

    if qonly == 0:
        a("s_barrier"); finish()
    if qonly > 0:
        tile_loop("L_ldq", 32, True, qonly, True); a("s_waitcnt vmcnt(0)"); stamp(1); finish()
    tile_loop("L_ldk", 32, True, 128, True)
    stamp(1)
    a("s_mov_b32 s57, 0")
    tile_loop("L_ldv", 36, False, 256, False)
    stamp(2)
    for c in range(256 - (depth - 1) // 8, 257):
        a(f"v_mov_b32 v19, {c}")
        a(f"s_waitcnt vmcnt({8*(256-c)})")
        a("ds_write_b32 v24, v19")
    a("s_waitcnt lgkmcnt(0)")
    stamp(3)
    finish()

    if diag:
        a("L_stamps:")
        a("v_mov_b32 v4, 0")
        for k in range(8):
            a(f"v_writelane_b32 v4, s{64+2*k}, {k}")
        a("s_getreg_b32 s48, hwreg(HW_REG_XCC_ID, 0, 4)")
        a("v_writelane_b32 v4, s48, 8")
        a("v_writelane_b32 v4, s63, 9")
        a("v_lshlrev_b32 v5, 2, v0")
        a("s_lshl_b32 s48, s2, 3"); a("s_add_u32 s48, s48, s3"); a("s_lshl_b32 s48, s48, 6"); a(f"s_add_u32 s48, s48, {W_ST}")
        a("s_mov_b64 exec, 0xffff")
        a("buffer_store_dword v4, v5, s[40:43], s48 offen")
    a("L_exit:")
    a("s_endpgm")
    a('.section .rodata,"a"')
    a(".p2align 6")
    a(f".amdhsa_kernel {KNAME}")
    a("  .amdhsa_next_free_vgpr 256")
    a("  .amdhsa_next_free_sgpr 96")
    a("  .amdhsa_accum_offset 256")
    a("  .amdhsa_group_segment_fixed_size 0")
    a("  .amdhsa_kernarg_size 96")
    a("  .amdhsa_user_sgpr_count 2")
    a("  .amdhsa_user_sgpr_kernarg_segment_ptr 1")
    a("  .amdhsa_system_sgpr_workgroup_id_x 1")
    a("  .amdhsa_float_denorm_mode_32 3")
    a(".end_amdhsa_kernel")
    out = []
    for x in L:
        if x is None:
            continue
        if x.endswith(":") or x.startswith((";", ".")) or x.startswith("  ."):
            out.append(x)
        else:
            out.append("    " + x)
    return "\n".join(out) + "\n"


if __name__ == "__main__":
    kw = eval("dict(%s)" % (sys.argv[2] if len(sys.argv) > 2 else ""))
    open(sys.argv[1], "w").write(gen(**kw))
```

```python
import sys
KNAME = "sequential_preLN__mha_block_cached__glu_gated_bilinear__decode_kernel"

HEADER = """; Kernarg layout for this problem (96 bytes, ptrs only, base s[0:1]):
;   offset   0: d_in[0] A_x  shape=(4, 1, 448) dtype=bfloat16 strides=(896, 896, 2) contiguous=True
;   offset   8: d_in[1] A_k_cache  shape=(4, 16, 8192, 256) dtype=bfloat16 strides=(67108864, 4194304, 512, 2) contiguous=True
;   offset  16: d_in[2] A_v_cache  shape=(4, 16, 8192, 256) dtype=bfloat16 strides=(67108864, 4194304, 512, 2) contiguous=True
;   offset  24: d_in[3] A_wq  shape=(448, 4096) dtype=bfloat16 strides=(8192, 2) contiguous=True
;   offset  32: d_in[4] A_wo  shape=(4096, 448) dtype=bfloat16 strides=(896, 2) contiguous=True
;   offset  40: d_in[5] B_x  shape=(4, 1, 448) dtype=bfloat16 strides=(896, 896, 2) contiguous=True
;   offset  48: d_in[6] B_w_gate  shape=(448, 1792) dtype=bfloat16 strides=(3584, 2) contiguous=True
;   offset  56: d_in[7] B_w_up  shape=(448, 1792) dtype=bfloat16 strides=(3584, 2) contiguous=True
;   offset  64: d_in[8] B_w_down  shape=(1792, 448) dtype=bfloat16 strides=(896, 2) contiguous=True
;   offset  88: d_ws      1073741824 bytes workspace"""

RING = 0
M0_ = 131072
F_FILL, F_CONS, F_QCNT, F_MLCNT, F_FOK, F_QOK = M0_, M0_ + 4, M0_ + 12, M0_ + 16, M0_ + 20, M0_ + 24
F_DEP = M0_ + 28
L_ML, L_F = M0_ + 32, M0_ + 48
L_XN = M0_ + 128
L_QP = M0_ + 1024
L_QB = M0_ + 8192
L_PB = M0_ + 9216
L_OB = M0_ + 13312
L_XN2 = M0_ + 14592
L_GU = M0_ + 18432
LDS_BYTES = M0_ + 19456
W_YP = 0
W_ML = 0x80000
W_HB = 0x90000
W_OP = 0xC0000
W_QX = 0x1A0000
W_EP = 0x1C0000
W_FB = 0x1E0000
W_ST = 0x200000
WS_BYTES = 0x400000
SEL, ABUF, ACC, YA, QA, FX, T, WO = 16, 24, 32, 36, 52, 84, 96, 128
T2 = WO + 96
LOG2E_16 = 0x3db8aa3b
INV448 = 0x3b124925
EPS = 0x3727c5ac


def gen(depth=20, diag=False, nrep=8, xl=2, spin_bound=True, poll_sleep=2, dump=False, noswz=False, nowo=False, noffn=False, noclr=False, qonly=-1, qrot=0, latebar=False, nwq=32, qdelay=0, fbd=(17, 19, 21, 23, 26), fbt=(24, 80, 160, 208, 240), fbk=16, fbg=32, r2sleep=40, clrstag=None, fbs=None, fbm='at', krot=0, fbsame=False, fbmix=4, fbfl='sc1', wohit=False, satom=True, clrsleep=0, qsleep=1, barpos=7, qwin=8, wopace=1, wosleep=8, gpace=2, gsleep=4, wstart=40, wflags='nt', gflags='nt', woflags='nt', dk=None):
    L = []
    a = L.append
    uid = [0]

    def lab(p):
        uid[0] += 1
        return f"L_{p}{uid[0]}"

    def q(r, n=4):
        return f"v[{r}:{r+n-1}]"

    def srd(r, p, nbytes):
        a(f"s_mov_b32 s{r}, s{p}")
        a(f"s_and_b32 s{r+1}, s{p+1}, 0xffff")
        a(f"s_mov_b32 s{r+2}, {nbytes}")
        a(f"s_mov_b32 s{r+3}, 0x20000")

    def stamp(k):
        if diag:
            a(f"s_memrealtime s[{64+2*k}:{65+2*k}]")
            a("s_waitcnt lgkmcnt(0)")

    def finish():
        if diag:
            a("s_branch L_stamps")
        else:
            a("s_endpgm")

    def bound_init(n=1 << 20):
        if spin_bound:
            a(f"s_mov_b32 s63, {n}")

    def bound_loop(target):
        if spin_bound:
            a("s_sub_u32 s63, s63, 1")
            a(f"s_cbranch_scc0 {target}")
        else:
            a(f"s_branch {target}")

    def lds_wait_ge(vaddr, off, sdst, cmp_operand, vt, sleep=1, precheck=False):
        p, go = lab("poll"), lab("go")
        if precheck:
            a(f"s_cmp_ge_u32 {sdst}, {cmp_operand}")
            a(f"s_cbranch_scc1 {go}")
        bound_init()
        a(f"{p}:")
        a(f"ds_read_b32 v{vt}, v{vaddr} offset:{off}")
        a("s_waitcnt lgkmcnt(0)")
        a(f"v_readfirstlane_b32 {sdst}, v{vt}")
        a(f"s_cmp_ge_u32 {sdst}, {cmp_operand}")
        a(f"s_cbranch_scc1 {go}")
        if sleep:
            a(f"s_sleep {sleep}")
        bound_loop(p)
        a(f"{go}:")

    def wave_red(op, v, sdst):
        for d in ("row_ror:8", "row_ror:4", "row_ror:2", "row_ror:1"):
            a("s_nop 1")
            a(f"{op}_dpp v{v}, v{v}, v{v} {d} row_mask:0xf bank_mask:0xf")
        a("s_nop 1")
        a(f"{op}_dpp v{v}, v{v}, v{v} row_bcast:15 row_mask:0xa bank_mask:0xf")
        a("s_nop 1")
        a(f"{op}_dpp v{v}, v{v}, v{v} row_bcast:31 row_mask:0xc bank_mask:0xf")
        a("s_nop 0")
        a(f"v_readlane_b32 {sdst}, v{v}, 63")
        a("s_nop 1")

    def bf16r(dst, src):
        a(f"v_cvt_pk_bf16_f32 v{dst}, v{src}, v{src}")
        a(f"v_and_b32 v{dst}, 0xffff0000, v{dst}")

    def layernorm(X, t):
        a(f"v_add_f32 v{t}, v{X}, v{X+1}"); a(f"v_add_f32 v{t+1}, v{X+2}, v{X+3}")
        a(f"v_add_f32 v{t+2}, v{X+4}, v{X+5}"); a(f"v_add_f32 v{t+3}, v{X+6}, v{X+7}")
        a(f"v_add_f32 v{t}, v{t}, v{t+1}"); a(f"v_add_f32 v{t+2}, v{t+2}, v{t+3}")
        a(f"v_add_f32 v{t}, v{t}, v{t+2}")
        wave_red("v_add_f32", t, "s48")
        a(f"v_mov_b32 v{t+1}, {INV448:#x}")
        a(f"v_mul_f32 v{t+1}, s48, v{t+1}")
        a(f"v_mov_b32 v{t}, 0")
        a("s_mov_b32 exec_hi, 0x00ffffff")
        for e in range(8):
            a(f"v_sub_f32 v{t+4+e}, v{X+e}, v{t+1}")
        for e in range(8):
            a(f"v_fmac_f32 v{t}, v{t+4+e}, v{t+4+e}")
        a("s_mov_b32 exec_hi, -1")
        bf16r(t + 1, t + 1)
        wave_red("v_add_f32", t, "s48")
        a(f"v_mov_b32 v{t+2}, {INV448:#x}")
        a(f"v_mul_f32 v{t+2}, s48, v{t+2}")
        for e in range(8):
            a(f"v_sub_f32 v{X+e}, v{X+e}, v{t+1}")
        bf16r(t + 2, t + 2)
        a(f"v_add_f32 v{t+2}, {EPS:#x}, v{t+2}")
        bf16r(t + 2, t + 2)
        a(f"v_sqrt_f32 v{t+2}, v{t+2}")
        for e in range(0, 8, 2):
            a(f"v_cvt_pk_bf16_f32 v{t+4+e}, v{X+e}, v{X+e+1}")
        bf16r(t + 2, t + 2)
        a(f"v_rcp_f32 v{t+3}, v{t+2}")
        for e in range(0, 8, 2):
            a(f"v_lshlrev_b32 v{X+e}, 16, v{t+4+e}")
            a(f"v_and_b32 v{X+e+1}, 0xffff0000, v{t+4+e}")
        for e in range(8):
            a(f"v_mul_f32 v{t+4+e}, v{X+e}, v{t+3}")
        for e in range(8):
            a(f"v_fma_f32 v{X+e}, -v{t+4+e}, v{t+2}, v{X+e}")
        for e in range(8):
            a(f"v_fma_f32 v{X+e}, v{X+e}, v{t+3}, v{t+4+e}")

    def build_a(dst, psrc, n):
        for w in range(4):
            a(f"v_perm_b32 v{dst+w}, v{psrc + (n >> 1)}, v{psrc + (n >> 1)}, v{SEL + (n & 1)*4 + w}")

    def xreduce(V):
        a("s_nop 1")
        a(f"v_permlane16_swap_b32 v{V}, v{V+1}")
        a(f"v_permlane16_swap_b32 v{V+2}, v{V+3}")
        a(f"v_add_f32 v{V}, v{V}, v{V+1}")
        a(f"v_add_f32 v{V+2}, v{V+2}, v{V+3}")
        a("s_nop 1")
        a(f"v_permlane32_swap_b32 v{V}, v{V+2}")
        a(f"v_add_f32 v{V}, v{V}, v{V+2}")
        a("s_nop 1")
        a(f"v_add_f32_dpp v{V}, v{V}, v{V} row_ror:8 row_mask:0xf bank_mask:0xf")
        a("s_nop 1")
        a(f"v_add_f32_dpp v{V}, v{V}, v{V} row_ror:4 row_mask:0xf bank_mask:0xf")

    def poll_quads(n, R, voff, soffs, srdreg, vt):
        for g in range(n):
            a(f"buffer_load_dwordx4 {q(R+4*g)}, v{voff}, s[{srdreg}:{srdreg+3}], {soffs[g]} offen sc1")
        bound_init(1 << 17)
        p, go = lab("gp"), lab("gg")
        a(f"{p}:")
        a("s_mov_b64 s[50:51], 0")
        masks = []
        for g in range(n):
            a(f"s_waitcnt vmcnt({n-1-g})") if True else None
            a(f"v_max3_u32 v{vt}, v{R+4*g}, v{R+4*g+1}, v{R+4*g+2}")
            a(f"v_max_u32 v{vt}, v{vt}, v{R+4*g+3}")
            a(f"v_cmp_eq_u32 s[{80+2*g}:{81+2*g}], -1, v{vt}")
        for g in range(n):
            a(f"s_or_b64 s[50:51], s[50:51], s[{80+2*g}:{81+2*g}]")
        a(f"s_cbranch_scc0 {go}")
        if poll_sleep:
            a(f"s_sleep {poll_sleep}")
        a("s_mov_b64 s[52:53], exec")
        for g in range(n):
            sk = lab("sk")
            a(f"s_mov_b64 exec, s[{80+2*g}:{81+2*g}]")
            a(f"s_cbranch_execz {sk}")
            a(f"buffer_load_dwordx4 {q(R+4*g)}, v{voff}, s[{srdreg}:{srdreg+3}], {soffs[g]} offen sc1")
            a(f"{sk}:")
        a("s_mov_b64 exec, s[52:53]")
        a("s_waitcnt vmcnt(0)")
        bound_loop(p)
        a(f"{go}:")

    a(HEADER)
    a(f"; @launch grid=(256,1,1) block=(512,1,1) lds={LDS_BYTES}")
    a('.amdgcn_target "amdgcn-amd-amdhsa--gfx950"')
    a(".text")
    a(f".globl {KNAME}")
    a(".p2align 8")
    a(f".type {KNAME},@function")
    a(f"{KNAME}:")
    a("s_cmp_ge_u32 s2, 256")
    a("s_cbranch_scc1 L_exit")
    a("s_load_dwordx16 s[4:19], s[0:1], 0")
    a("s_load_dwordx8 s[20:27], s[0:1], 64")
    if diag:
        for k in range(16):
            a(f"s_mov_b32 s{64+k}, 0")
        a("s_memrealtime s[64:65]")
    a("v_lshrrev_b32 v1, 6, v0")
    a("v_and_b32 v0, 63, v0")
    a("v_readfirstlane_b32 s3, v1")
    if xl == 2:
        a("s_and_b32 s28, s2, 7"); a("s_lshr_b32 s48, s2, 3"); a("s_and_b32 s49, s48, 1"); a("s_lshl_b32 s49, s49, 3")
        a("s_add_u32 s28, s28, s49")
        a("s_lshr_b32 s29, s48, 1"); a("s_and_b32 s29, s29, 3"); a("s_lshr_b32 s30, s48, 3")
    else:
        a("s_and_b32 s29, s2, 3"); a("s_lshr_b32 s28, s2, 2"); a("s_and_b32 s28, s28, 15"); a("s_lshr_b32 s30, s2, 6")
    a("s_lshl_b32 s31, s30, 4"); a("s_add_u32 s31, s31, s28")
    a("v_and_b32 v1, 15, v0")
    a("v_lshrrev_b32 v2, 4, v0")
    a("v_lshrrev_b32 v3, 5, v0")
    a("s_cmp_eq_u32 s3, 0")
    a("s_cbranch_scc1 L_loader")

    a("s_sub_u32 s60, s3, 1")
    a("v_lshlrev_b32 v5, 4, v0")
    a("s_mul_i32 s48, s30, 896")
    a("v_add_u32 v5, s48, v5")
    a("v_mov_b32 v6, 0x7fffff00")
    a("v_cmp_gt_u32 vcc, 56, v0")
    a("v_and_b32 v4, 7, v0")
    a("v_lshlrev_b32 v4, 4, v4")
    a("v_cndmask_b32 v5, v6, v5, vcc")
    a("v_lshrrev_b32 v13, 3, v0")
    a("v_lshl_add_u32 v4, v13, 16, v4")
    a("s_lshl_b32 s48, s60, 19"); a("s_lshl_b32 s49, s28, 9"); a("s_add_u32 s48, s48, s49")
    a("s_lshl_b32 s49, s29, 7"); a("s_add_u32 s48, s48, s49")
    a("v_add_u32 v4, s48, v4")
    a("s_waitcnt lgkmcnt(0)")
    srd(32, 4, 3584)
    srd(36, 10, 3670016)
    a(f"buffer_load_dwordx4 {q(YA)}, v5, s[32:35], 0 offen")
    a(f"s_add_u32 s48, s26, {W_EP}"); a("s_addc_u32 s49, s27, 0")
    a("s_load_dword s62, s[48:49], 0")
    a("s_barrier")

    def wq_load(n):
        a(f"buffer_load_dwordx4 {q(QA+4*n)}, v4, s[36:39], s50 offen {wflags}")
        if n < 7:
            a("s_add_u32 s50, s50, 8192")
    a("s_mov_b32 s50, 0")
    for n in range(qwin):
        wq_load(n)
    srd(40, 26, WS_BYTES)
    a("v_and_b32 v6, 1, v1"); a("v_cmp_eq_u32 vcc, 1, v6")
    a("v_mov_b32 v7, 0x0c0c0100"); a("v_mov_b32 v8, 0x01000c0c"); a("v_mov_b32 v9, 0x0c0c0302"); a("v_mov_b32 v10, 0x03020c0c")
    a("v_cndmask_b32 v7, v7, v8, vcc"); a("v_cndmask_b32 v9, v9, v10, vcc")
    a("v_bfe_u32 v6, v1, 1, 2"); a("v_mov_b32 v10, 0x0c0c0c0c")
    for w in range(4):
        a(f"v_cmp_eq_u32 vcc, {w}, v6"); a("s_nop 1")
        a(f"v_cndmask_b32 v{SEL+w}, v10, v7, vcc"); a(f"v_cndmask_b32 v{SEL+4+w}, v10, v9, vcc")
    a("v_mov_b32 v15, 0")
    a(f"v_mov_b32 v14, {M0_}")
    if qonly >= 0:
        stamp(3)
    a(f"s_waitcnt vmcnt({qwin})")
    if qonly >= 0:
        stamp(4)
    X = T
    for d in range(4):
        a(f"v_lshlrev_b32 v{X+2*d}, 16, v{YA+d}"); a(f"v_and_b32 v{X+2*d+1}, 0xffff0000, v{YA+d}")
    layernorm(X, T + 8)
    for d in range(4):
        a(f"v_cvt_pk_bf16_f32 v{YA+d}, v{X+2*d}, v{X+2*d+1}")
    a(f"v_lshlrev_b32 v6, 4, v0"); a(f"v_add_u32 v6, {L_XN}, v6")
    a("s_mov_b32 exec_hi, 0x00ffffff")
    a(f"ds_write_b128 v6, {q(YA)}")
    a("s_mov_b32 exec_hi, -1")
    a("s_lshl_b32 s48, s60, 7"); a(f"s_add_u32 s48, s48, {L_XN}")
    a("v_lshl_add_u32 v6, v13, 4, s48")
    a("s_waitcnt lgkmcnt(0)")
    a(f"ds_read_b128 {q(YA)}, v6")
    a("v_lshrrev_b32 v6, 1, v2"); a("v_lshlrev_b32 v6, 8, v6"); a("v_and_b32 v7, 7, v1"); a("v_lshl_add_u32 v6, v7, 5, v6")
    a("v_and_b32 v7, 1, v2"); a("v_lshl_add_u32 v6, v7, 4, v6")
    a("s_lshl_b32 s48, s60, 9"); a(f"s_add_u32 s48, s48, {L_QP}")
    a("v_add_u32 v6, s48, v6")
    a("v_mov_b32 v7, 1")
    stamp(1)
    a("s_waitcnt lgkmcnt(0)")
    for n in range(8):
        build_a(T + 4*n, YA, n)
    for n in range(8):
        a(f"s_waitcnt vmcnt({min(qwin-1, 7-n)})")
        if n + qwin < 8:
            wq_load(n + qwin)
        a(f"v_mfma_f32_16x16x32_bf16 {q(ACC)}, {q(T+4*n)}, {q(QA+4*n)}, {q(ACC) if n else 0}")
    a("s_mov_b32 exec_lo, 0x00ff00ff"); a("s_mov_b32 exec_hi, 0xff00ff00")
    a("s_nop 5")
    a(f"ds_write_b128 v6, {q(ACC)}")
    a("s_waitcnt lgkmcnt(0)")
    a("s_mov_b64 exec, 1")
    a(f"ds_add_u32 v14, v7 offset:{F_QCNT-M0_}")
    a("s_mov_b64 exec, -1")
    stamp(2)
    srd(36, 12, 3670016)
    a("v_lshrrev_b32 v6, 3, v1"); a("v_lshlrev_b32 v6, 4, v6"); a("v_add_u32 v6, v6, v2"); a("v_mul_u32_u24 v4, 7168, v6")
    a("v_and_b32 v6, 7, v1"); a("v_lshl_add_u32 v4, v6, 4, v4")
    a(f"s_mul_i32 s48, s28, {229376 if not wohit else 0}"); a("s_lshl_b32 s49, s60, 7"); a("s_add_u32 s48, s48, s49")
    a("v_add_u32 v4, s48, v4")
    a("s_cmp_gt_u32 s3, 2")
    a("s_cbranch_scc1 L_helper")

    def wo_group(gidx):
        ks, eh = gidx >> 1, gidx & 1
        if nowo:
            return
        a(f"s_mov_b32 s48, {(ks*32 + eh*4)*896 if not wohit else 0}")
        for e in range(4):
            a(f"buffer_load_dwordx4 {q(WO+ks*32+(eh*4+e)*4)}, v4, s[36:39], s48 offen offset:{e*896} {woflags}")

    def wo_loads():
        a(f"s_sleep {wstart}")
        for ks in range(0 if not nowo else 4, 4):
            for eh in range(2):
                a(f"s_mov_b32 s48, {(ks*32 + eh*4)*896 if not wohit else 0}")
                for e in range(4):
                    a(f"buffer_load_dwordx4 {q(WO+ks*32+(eh*4+e)*4)}, v4, s[36:39], s48 offen offset:{e*896} {woflags}")
                    if (e + 1) % wopace == 0:
                        a("s_waitcnt vmcnt(0)")
                        a(f"s_sleep {wosleep}")

    def wo_perms():
        a("s_mov_b32 s48, 0x05040100"); a("s_mov_b32 s49, 0x07060302")
        for ks in range(4):
            src = WO + ks*32
            dst = T if ks == 0 else WO + (ks-1)*32
            for t in range(8):
                for d in range(4):
                    a(f"v_perm_b32 v{dst+4*t+d}, v{src+(2*d+1)*4+(t>>1)}, v{src+(2*d)*4+(t>>1)}, s{48+(t&1)}")

    def wfrag(ks, t):
        return (T if ks == 0 else WO + (ks-1)*32) + 4*t

    a("v_and_b32 v6, 1, v2"); a("v_lshrrev_b32 v8, 3, v1"); a("v_cmp_eq_u32 vcc, v6, v8"); a("s_nop 1")
    for w in range(8):
        a(f"v_cndmask_b32 v{SEL+w}, v10, v{SEL+w}, vcc")
    a("v_and_b32 v6, 3, v1"); a("v_xor_b32 v6, v6, v2"); a("v_and_b32 v7, 12, v1"); a("v_or_b32 v6, v6, v7")
    for m in range(4):
        a(f"v_xor_b32 v7, {m*4}, v6"); a("v_lshlrev_b32 v7, 4, v7"); a(f"v_lshl_add_u32 v{8+m}, v1, 9, v7")
    a("v_and_b32 v6, 1, v1"); a("v_lshlrev_b32 v6, 4, v6"); a("v_and_b32 v7, 14, v1"); a("v_add_u32 v12, v6, v7")
    a("s_lshl_b32 s48, s60, 5"); a(f"s_add_u32 s61, s48, {L_PB}")
    a("v_add_u32 v12, s61, v12")
    a("s_lshl_b32 s48, s60, 2"); a(f"s_add_u32 s48, s48, {F_CONS}"); a("v_mov_b32 v13, s48")
    a("s_lshl_b32 s56, s60, 13")
    a("s_add_u32 s57, s60, 1")
    a("s_mov_b32 s58, 0")
    a("v_mov_b32 v5, 0")
    a(f"v_lshlrev_b32 v7, 4, v2"); a(f"v_add_u32 v7, {L_QB}, v7")
    lds_wait_ge(14, F_QOK - M0_, "s48", 1, 6)
    for ks in range(8):
        a(f"ds_read_b128 {q(QA+4*ks)}, v7 offset:{ks*64}")
    stamp(3)
    if qonly >= 0:
        finish()
    a("s_getpc_b64 s[52:53]")
    a("L_kc0:")
    a("s_add_u32 s52, s52, L_kloop-L_kc0"); a("s_addc_u32 s53, s53, 0")
    a("s_mov_b32 s59, 17")
    a("s_swappc_b64 s[54:55], s[52:53]")
    for gi in range(7):
        wo_group(gi)
        if gi == 6:
            wo_group(7)
        a("s_add_u32 s59, s59, 16")
        a("s_swappc_b64 s[54:55], s[52:53]")
    a("s_branch L_kdone")
    a("L_kloop:")
    for m in range(4):
        a(f"v_add_u32 v{ABUF+m}, s56, v{8+m}")
    a("v_add_u32 v5, 1, v5")
    lds_wait_ge(14, F_FILL - M0_, "s58", "s57", 6, precheck=True)
    for ks in range(8):
        a(f"ds_read_b128 {q(T+4*ks)}, v{ABUF+(ks&3)} offset:{(ks>>2)*256}")
    for ks in range(8):
        a(f"s_waitcnt lgkmcnt({7-ks})")
        a(f"v_mfma_f32_16x16x32_bf16 {q(ACC)}, {q(QA+4*ks)}, {q(T+4*ks)}, {q(ACC) if ks else 0}")
    a("ds_write_b32 v13, v5")
    a("s_add_u32 s56, s56, 16384"); a("s_and_b32 s56, s56, 0x1ffff")
    a("s_add_u32 s57, s57, 2")
    a("s_nop 4")
    a(f"v_cvt_pk_bf16_f32 v6, v{ACC}, v{ACC}")
    a("ds_write_b16 v12, v6")
    a("v_add_u32 v12, 64, v12")
    a("s_cmp_lt_u32 s57, s59")
    a("s_cbranch_scc1 L_kloop")
    a("s_setpc_b64 s[54:55]")
    a("L_kdone:")
    stamp(4)
    a("v_lshl_add_u32 v12, v0, 6, s61")
    a("s_waitcnt lgkmcnt(0)")
    a(f"ds_read_b128 {q(YA)}, v12"); a(f"ds_read_b128 {q(YA+4)}, v12 offset:16")
    a("s_waitcnt lgkmcnt(0)")
    if dump:
        a("v_lshlrev_b32 v6, 6, v0"); a("s_lshl_b32 s48, s31, 2"); a("s_add_u32 s48, s48, s29"); a("s_lshl_b32 s48, s48, 12")
        a("s_lshl_b32 s49, s60, 5"); a("s_add_u32 s48, s48, s49"); a("s_add_u32 s48, s48, 0x280000 - 0x80000")
        a("s_add_u32 s48, s48, 0x100000")
        a(f"buffer_store_dwordx4 {q(YA)}, v6, s[40:43], s48 offen"); a(f"buffer_store_dwordx4 {q(YA+4)}, v6, s[40:43], s48 offen offset:16")
    for d in range(8):
        a(f"v_lshlrev_b32 v{T+2*d}, 16, v{YA+d}"); a(f"v_and_b32 v{T+2*d+1}, 0xffff0000, v{YA+d}")
    a(f"v_max3_f32 v6, v{T}, v{T+1}, v{T+2}")
    for d in range(3, 15, 2):
        a(f"v_max3_f32 v6, v6, v{T+d}, v{T+d+1}")
    a(f"v_max_f32 v6, v6, v{T+15}")
    wave_red("v_max_f32", 6, "s48")
    a(f"s_mov_b32 s49, {LOG2E_16:#x}")
    for d in range(16):
        a(f"v_subrev_f32 v{T+d}, s48, v{T+d}")
    for d in range(16):
        a(f"v_mul_f32 v{T+d}, s49, v{T+d}")
    for d in range(16):
        a(f"v_exp_f32 v{T+d}, v{T+d}")
    a("s_nop 0")
    for d in range(8):
        a(f"v_cvt_pk_bf16_f32 v{YA+d}, v{T+2*d}, v{T+2*d+1}")
    a(f"ds_write_b128 v12, {q(YA)}"); a(f"ds_write_b128 v12, {q(YA+4)} offset:16")
    for st in (8, 4, 2, 1):
        for d in range(st):
            a(f"v_add_f32 v{T+d}, v{T+d}, v{T+d+st}")
    wave_red("v_add_f32", T, "s49")
    a("v_mov_b32 v6, s48"); a("v_mov_b32 v7, s49")
    a("s_lshl_b32 s48, s60, 3"); a(f"s_add_u32 s48, s48, {L_ML}"); a("v_mov_b32 v8, s48"); a("v_mov_b32 v9, 1")
    a("s_mov_b64 exec, 1")
    a("ds_write_b64 v8, v[6:7]")
    a("s_waitcnt lgkmcnt(0)")
    a(f"ds_add_u32 v14, v9 offset:{F_MLCNT-M0_}")
    a("s_mov_b64 exec, -1")
    a("s_waitcnt vmcnt(0)")
    a("s_getpc_b64 s[54:55]")
    a("L_cret0:")
    a("s_add_u32 s54, s54, L_cret1-L_cret0"); a("s_addc_u32 s55, s55, 0")
    a("s_branch L_woperm")
    a("L_cret1:")
    a("v_lshlrev_b32 v8, 4, v0")
    a("v_lshl_add_u32 v12, v3, 4, s61")
    for r in range(4):
        a(f"v_mov_b32 v{ACC+r}, 0")
    stamp(5)
    a("L_vloop:")
    a(f"ds_read_b128 {q(YA)}, v12")
    a("v_add_u32 v9, s56, v8")
    a("v_add_u32 v12, 64, v12")
    a("v_add_u32 v5, 1, v5")
    a("s_waitcnt lgkmcnt(0)")
    for n in range(8):
        build_a(QA + 4*n, YA, n)
    lds_wait_ge(14, F_FILL - M0_, "s58", "s57", 6, precheck=True)
    for n in range(8):
        a(f"ds_read_b128 {q(T2+4*n)}, v9 offset:{n*1024}")
    for n in range(8):
        a(f"s_waitcnt lgkmcnt({7-n})")
        a(f"v_mfma_f32_16x16x32_bf16 {q(ACC)}, {q(QA+4*n)}, {q(T2+4*n)}, {q(ACC)}")
    a("ds_write_b32 v13, v5")
    a("s_add_u32 s56, s56, 16384"); a("s_and_b32 s56, s56, 0x1ffff")
    a("s_add_u32 s57, s57, 2")
    a("s_cmp_lt_u32 s57, 257")
    a("s_cbranch_scc1 L_vloop")
    stamp(6)
    lds_wait_ge(14, F_FOK - M0_, "s48", 1, 6)
    a("s_lshl_b32 s48, s60, 2"); a(f"s_add_u32 s48, s48, {L_F}"); a("v_mov_b32 v6, s48")
    a("ds_read_b32 v6, v6")
    a("v_lshrrev_b32 v7, 1, v2"); a("s_lshl_b32 s48, s60, 1"); a("v_add_u32 v7, s48, v7"); a("v_mul_u32_u24 v7, 288, v7")
    a("v_and_b32 v8, 1, v2"); a("v_lshlrev_b32 v8, 3, v8"); a("v_lshl_add_u32 v8, v1, 4, v8")
    a(f"v_add_u32 v7, v7, v8"); a(f"v_add_u32 v7, {L_OB}, v7")
    a("s_waitcnt lgkmcnt(0)")
    for r in range(4):
        a(f"v_mul_f32 v{ACC+r}, v6, v{ACC+r}")
    a(f"v_cvt_pk_bf16_f32 v{ACC}, v{ACC}, v{ACC+1}"); a(f"v_cvt_pk_bf16_f32 v{ACC+1}, v{ACC+2}, v{ACC+3}")
    a(f"ds_write_b64 v7, {q(ACC,2)}")
    a("s_branch L_ystage")

    a("L_woperm:")
    wo_perms()
    a("s_setpc_b64 s[54:55]")

    a("L_helper:")
    a("s_cmp_eq_u32 s3, 3")
    a("s_cbranch_scc1 L_h4")
    if qonly >= 0:
        finish()
    wo_loads()
    a("s_waitcnt vmcnt(0)")
    a("s_getpc_b64 s[54:55]")
    a("L_hret0:")
    a("s_add_u32 s54, s54, L_hret1-L_hret0"); a("s_addc_u32 s55, s55, 0")
    a("s_branch L_woperm")
    a("L_hret1:")
    a("s_cmp_ge_u32 s2, 112")
    a("s_cbranch_scc1 L_ystage")
    if noffn:
        a("s_and_b32 s48, s2, 7"); a("s_mul_i32 s48, s48, 14"); a("s_lshr_b32 s49, s2, 3"); a("s_add_u32 s59, s48, s49"); a("s_sub_u32 s62, s3, 4"); a("s_branch L_ystage")
    a("s_and_b32 s48, s2, 7"); a("s_mul_i32 s48, s48, 14"); a("s_lshr_b32 s49, s2, 3"); a("s_add_u32 s59, s48, s49")
    a("s_sub_u32 s62, s3, 4")
    a("s_cmp_ge_u32 s62, 2")
    a("s_cselect_b32 s44, s18, s16"); a("s_cselect_b32 s45, s19, s17")
    a("s_and_b32 s45, s45, 0xffff"); a("s_mov_b32 s46, 1605632"); a("s_mov_b32 s47, 0x20000")
    a("; staging slot row p (32 B) holds matrix row 32*ks + 16*(p>>4) + 4*(p&3) + ((p>>2)&3): the storage order of h")
    a("v_lshrrev_b32 v7, 1, v0"); a("v_and_b32 v6, 16, v7"); a("v_and_b32 v8, 3, v7"); a("v_lshl_add_u32 v6, v8, 2, v6")
    a("v_bfe_u32 v8, v7, 2, 2"); a("v_add_u32 v6, v6, v8"); a("v_mul_u32_u24 v6, 3584, v6")
    a("v_and_b32 v8, 1, v0"); a("v_lshl_add_u32 v6, v8, 4, v6")
    a("s_and_b32 s48, s62, 1"); a(f"s_mul_i32 s50, s48, {7*32*3584}"); a("s_lshl_b32 s49, s59, 5"); a("s_add_u32 s50, s50, s49")
    a(f"s_lshl_b32 s51, s62, 10"); a(f"s_add_u32 s51, s51, {L_QP}")
    a("v_lshrrev_b32 v9, 2, v1"); a("v_lshl_add_u32 v10, v2, 3, v9"); a("v_lshlrev_b32 v10, 5, v10")
    a("v_and_b32 v11, 3, v1"); a("v_lshl_add_u32 v10, v11, 3, v10"); a("v_add_u32 v10, s51, v10")
    a("s_mov_b32 m0, s51")
    lds_wait_ge(14, F_QOK - M0_, "s48", 1, 12)
    for f in range(7):
        a(f"buffer_load_dwordx4 v6, s[44:47], s50 offen {gflags} lds")
        a(f"s_add_u32 s50, s50, {32*3584}")
        a("s_waitcnt vmcnt(0)")
        a(f"ds_read_b64_tr_b16 {q(QA+4*f,2)}, v10")
        a(f"ds_read_b64_tr_b16 {q(QA+4*f+2,2)}, v10 offset:128")
        a("s_waitcnt lgkmcnt(0)")
        a(f"s_sleep {gsleep}")
    srd(44, 20, 1605632)
    a("v_and_b32 v6, 15, v7"); a("v_mul_u32_u24 v6, 896, v6"); a("v_lshl_add_u32 v6, v3, 5, v6"); a("v_lshl_add_u32 v6, v8, 4, v6")
    a("s_mul_i32 s50, s59, 14336"); a("s_mul_i32 s49, s62, 224"); a("s_add_u32 s50, s50, s49")
    a("v_lshl_add_u32 v10, v2, 2, v9"); a("v_lshlrev_b32 v10, 5, v10"); a("v_lshl_add_u32 v10, v11, 3, v10"); a("v_add_u32 v10, s51, v10")
    DN = QA + 28
    for u in range(0, 7, 2):
        if u == 6:
            a("s_mov_b32 exec_hi, 0")
        a(f"buffer_load_dwordx4 v6, s[44:47], s50 offen {gflags} lds")
        if u == 6:
            a("s_mov_b32 exec_hi, -1")
        a("s_add_u32 s50, s50, 64")
        a("s_waitcnt vmcnt(0)")
        a(f"ds_read_b64_tr_b16 {q(DN+2*u,2)}, v10")
        if u < 6:
            a(f"ds_read_b64_tr_b16 {q(DN+2*u+2,2)}, v10 offset:512")
        a("s_waitcnt lgkmcnt(0)")
        a(f"s_sleep {gsleep}")
    a("s_branch L_ystage")

    a("L_h4:")
    a("v_and_b32 v8, 31, v0"); a("v_lshlrev_b32 v8, 3, v8")
    a("v_mul_u32_u24 v9, 1792, v3"); a("v_add_u32 v9, v9, v8"); a(f"v_add_u32 v9, {L_QP}, v9")
    a("s_lshl_b32 s56, s31, 10"); a(f"s_add_u32 s56, s56, {W_QX}"); a("s_lshl_b32 s57, s29, 8"); a("s_add_u32 s57, s57, s56")
    a("s_add_u32 s62, s62, 1")
    a("v_lshlrev_b32 v5, 4, v0")
    a(f"v_lshlrev_b32 v11, 3, v0"); a(f"v_add_u32 v11, {L_QB}, v11")
    if fbd:
        ng = 256 // fbg
        a(f"s_lshr_b32 s48, s2, 3")
        if fbmix:
            a("s_and_b32 s49, s2, 7"); a(f"s_mul_i32 s49, s49, {fbmix}"); a("s_add_u32 s48, s48, s49")
        a(f"s_and_b32 s48, s48, {ng-1}"); a(f"s_lshl_b32 s48, s48, 12"); a(f"s_add_u32 s48, s48, {W_FB}")
        if fbm == 'st':
            a("s_mov_b32 s94, s48"); a("s_mov_b32 s95, 0")
        else:
            a("s_add_u32 s94, s26, s48"); a("s_addc_u32 s95, s27, 0")
        a("s_and_b32 s49, s2, 7"); a(f"s_lshr_b32 s50, s2, 3"); a(f"s_lshr_b32 s50, s50, {ng.bit_length()-1}"); a("s_or_b32 s49, s49, s50")
        a("s_cbranch_scc1 L_nolead") if fbm != 'st' else a("s_branch L_nolead")
        a("v_lshlrev_b32 v6, 8, v0")
        a("s_mov_b64 exec, 0xffff")
        a("buffer_store_dword v15, v6, s[40:43], s48 offen sc1")
        a("s_mov_b64 exec, -1")
        a("L_nolead:")
    lds_wait_ge(14, F_QCNT - M0_, "s48", 7, 6, sleep=0)
    for p in range(7):
        a(f"ds_read_b64 {q(T+2*p,2)}, v9 offset:{p*256}")
    for p in range(1, 7):
        a(f"s_waitcnt lgkmcnt({6-p})")
        a(f"v_add_f32 v{T}, v{T}, v{T+2*p}"); a(f"v_add_f32 v{T+1}, v{T+1}, v{T+2*p+1}")
    a(f"v_mov_b32 v{T+2}, v{T}"); a(f"v_mov_b32 v{T+3}, v{T+1}"); a("s_nop 1")
    a(f"v_permlane32_swap_b32 v{T}, v{T+2}"); a(f"v_permlane32_swap_b32 v{T+1}, v{T+3}")
    a(f"v_add_f32 v{T}, v{T}, v{T+2}"); a(f"v_add_f32 v{T+1}, v{T+1}, v{T+3}")
    a(f"v_cvt_pk_bf16_f32 v6, v{T}, v{T+1}"); a("v_mov_b32 v7, s62")
    a("s_mov_b32 exec_hi, 0")
    a("buffer_store_dwordx2 v[6:7], v8, s[40:43], s57 offen sc1")
    a("s_mov_b32 exec_hi, -1")
    stamp(3) if qonly >= 0 else None
    bound_init(1 << 17)
    a("L_qpoll:")
    a(f"buffer_load_dwordx4 {q(T)}, v5, s[40:43], s56 offen sc1")
    a("s_waitcnt vmcnt(0)")
    a(f"v_cmp_ne_u32 vcc, s62, v{T+1}"); a(f"v_cmp_ne_u32 s[48:49], s62, v{T+3}")
    a("s_or_b64 vcc, vcc, s[48:49]")
    a("s_cbranch_scc0 L_qok")
    if qsleep:
        a(f"s_sleep {qsleep}")
    bound_loop("L_qpoll")
    a("L_qok:")
    a(f"v_mov_b32 v{T+1}, v{T+2}")
    a(f"ds_write_b64 v11, {q(T,2)}")
    a("v_mov_b32 v6, 1")
    a("s_waitcnt lgkmcnt(0)")
    a(f"ds_write_b32 v14, v6 offset:{F_QOK-M0_}")
    if qonly >= 0:
        stamp(4)
        finish()
    if clrsleep:
        a(f"s_sleep {clrsleep}")
    for r in range(4):
        a(f"v_mov_b32 v{YA+r}, -1")
    a("v_lshlrev_b32 v5, 4, v0")
    a("s_lshl_b32 s48, s31, 2"); a("s_add_u32 s48, s48, s29"); a("s_mul_i32 s48, s48, 1792")
    a(f"buffer_store_dwordx4 {q(YA)}, v5, s[40:43], s48 offen sc1")
    a("s_mov_b32 exec_hi, 0x0000ffff")
    a(f"buffer_store_dwordx4 {q(YA)}, v5, s[40:43], s48 offen offset:1024 sc1")
    a("s_mov_b64 exec, -1")
    a("s_lshl_b32 s61, s31, 7"); a("s_lshl_b32 s48, s29, 5"); a("s_add_u32 s48, s48, s61"); a(f"s_add_u32 s57, s48, {W_ML}")
    a("s_cmp_ge_u32 s2, 112")
    a("s_cbranch_scc1 L_h4_nor2")
    a("s_and_b32 s48, s2, 7"); a("s_mul_i32 s48, s48, 14"); a("s_lshr_b32 s49, s2, 3"); a("s_add_u32 s48, s48, s49")
    a("s_mul_i32 s48, s48, 7168"); a(f"s_add_u32 s48, s48, {W_OP}")
    for k in range(7):
        if k == 4:
            a("s_add_u32 s48, s48, 4096")
        a(f"buffer_store_dwordx4 {q(YA)}, v5, s[40:43], s48 offen offset:{(k&3)*1024} sc1")
    a("L_h4_nor2:")
    a("s_sub_u32 s48, s2, 112"); a("s_mul_i32 s58, s48, 2341"); a("s_lshr_b32 s58, s58, 16"); a("s_mul_i32 s49, s58, 28"); a("s_sub_u32 s59, s48, s49")
    a("v_and_b32 v6, 3, v0"); a("v_bfe_u32 v7, v0, 2, 2")
    a("v_mul_u32_u24 v13, 7168, v7"); a("v_lshl_add_u32 v13, v2, 4, v13"); a("v_lshl_add_u32 v13, v6, 2, v13")
    a("v_lshl_add_u32 v12, v6, 2, v2"); a("v_lshlrev_b32 v12, 1, v12")
    a("s_mul_i32 s56, s58, 1792"); a("s_lshl_b32 s49, s59, 6"); a("s_add_u32 s56, s56, s49")
    a("s_cmp_lt_u32 s48, 112")
    a("s_cbranch_scc0 L_h4_nor1")
    a(f"s_add_u32 s48, s56, {W_HB}")
    for k in range(nrep // 4):
        a(f"buffer_store_dword v{YA}, v13, s[40:43], s48 offen sc1")
        a(f"s_add_u32 s48, s48, {4*7168}")
    a("s_lshr_b32 s48, s56, 1")
    a(f"buffer_load_ushort v11, v12, s[32:35], s48 offen")
    a("L_h4_nor1:")
    srd(44, 24, 256)
    a("s_waitcnt vmcnt(0)")
    if clrstag is not None:
        a(f"s_lshr_b32 s49, s2, {clrstag}"); a("s_add_u32 s49, s49, 8")
        lds_wait_ge(14, F_FILL - M0_, "s48", "s49", 6, sleep=4)
    if satom:
        a("s_mov_b32 s48, 1")
        a("s_atomic_add s48, s[24:25], 0")
        a("s_waitcnt lgkmcnt(0)")
    else:
        a("v_mov_b32 v6, 1")
        a("s_mov_b64 exec, 1")
        a("buffer_atomic_add v6, v15, s[44:47], 0 offen sc1")
        a("s_mov_b64 exec, -1")
    if fbd:
        a("s_getpc_b64 s[52:53]")
        a("L_fb0:")
        a("s_add_u32 s52, s52, L_fb-L_fb0"); a("s_addc_u32 s53, s53, 0")
        if fbm == 'st':
            ng = 256 // fbg
            a(f"s_lshr_b32 s48, s2, {3 + ng.bit_length() - 1}"); a("s_lshl_b32 s48, s48, 3"); a("s_and_b32 s49, s2, 7"); a("s_add_u32 s48, s48, s49"); a("s_lshl_b32 s48, s48, 2")
            a(f"v_mov_b32 v{FX}, s48"); a(f"v_lshlrev_b32 v{FX+1}, 2, v0")
        a("s_mov_b32 s51, 0")
        sched = list(fbs) if fbs else list(range(fbk, 256, fbk))
        for gi in range(8):
            lim = 16 * (gi + 1)
            did = False
            for tt in [t for t in sched if lim - 16 < t <= lim]:
                a(f"s_mov_b32 s50, {tt}")
                a("s_swappc_b64 s[54:55], s[52:53]")
                did = True
            if not did:
                lds_wait_ge(14, F_FILL - M0_, "s48", lim, 6, sleep=8)
            if not nowo:
                ks, eh = gi >> 1, gi & 1
                a(f"s_mov_b32 s48, {(ks*32 + eh*4)*896}")
                for e in range(4):
                    a(f"buffer_load_dwordx4 {q(WO+ks*32+(eh*4+e)*4)}, v4, s[36:39], s48 offen offset:{e*896} {woflags}")
                    a("s_waitcnt vmcnt(0)")
    else:
        wo_loads()
    a("s_waitcnt vmcnt(0)")
    a("s_getpc_b64 s[54:55]")
    a("L_gret0:")
    a("s_add_u32 s54, s54, L_gret1-L_gret0"); a("s_addc_u32 s55, s55, 0")
    a("s_branch L_woperm")
    a("L_gret1:")
    lds_wait_ge(14, F_MLCNT - M0_, "s48", 2, 6, sleep=16)
    a("v_lshlrev_b32 v8, 3, v0"); a(f"v_add_u32 v8, {L_ML}, v8")
    a("s_mov_b64 exec, 3")
    a("ds_read_b64 v[6:7], v8")
    a("v_lshlrev_b32 v9, 4, v0")
    a("s_waitcnt lgkmcnt(0)")
    a(f"v_mov_b32 v{YA}, v6"); a(f"v_mov_b32 v{YA+1}, s62"); a(f"v_mov_b32 v{YA+2}, v7"); a(f"v_mov_b32 v{YA+3}, s62")
    a(f"buffer_store_dwordx4 {q(YA)}, v9, s[40:43], s57 offen sc1")
    a("s_mov_b64 exec, -1")
    a("v_and_b32 v8, 7, v0"); a("v_lshlrev_b32 v9, 4, v8")
    a(f"s_add_u32 s61, s61, {W_ML}")
    bound_init(1 << 17)
    a("L_mlpoll:")
    a(f"buffer_load_dwordx4 {q(YA+4)}, v9, s[40:43], s61 offen sc1")
    a("s_waitcnt vmcnt(0)")
    a(f"v_cmp_ne_u32 vcc, s62, v{YA+5}"); a(f"v_cmp_ne_u32 s[48:49], s62, v{YA+7}")
    a("s_or_b64 vcc, vcc, s[48:49]")
    a("s_cbranch_scc0 L_mlgot")
    a("s_sleep 24")
    bound_loop("L_mlpoll")
    a("L_mlgot:")
    a(f"v_mov_b32 v6, v{YA+4}"); a(f"v_mov_b32 v7, v{YA+6}")
    a("L_mlok:")
    a("v_mov_b32 v10, v6")
    for d in ("row_ror:4", "row_ror:2", "row_ror:1"):
        a("s_nop 1")
        a(f"v_max_f32_dpp v10, v10, v10 {d} row_mask:0xf bank_mask:0xf")
    a("v_sub_f32 v6, v6, v10"); a(f"v_mul_f32 v6, {LOG2E_16:#x}, v6"); a("v_exp_f32 v6, v6"); a("s_nop 0")
    a("v_mul_f32 v7, v6, v7")
    for d in ("row_ror:4", "row_ror:2", "row_ror:1"):
        a("s_nop 1")
        a(f"v_add_f32_dpp v7, v7, v7 {d} row_mask:0xf bank_mask:0xf")
    a("v_rcp_f32 v7, v7"); a("v_lshrrev_b32 v9, 1, v0"); a("v_and_b32 v8, 1, v0")
    a("v_mul_f32 v6, v6, v7")
    a(f"v_lshlrev_b32 v8, 2, v8"); a(f"v_add_u32 v8, {L_F}, v8")
    a("v_cmp_eq_u32 vcc, s29, v9")
    a("s_mov_b64 exec, vcc")
    a("ds_write_b32 v8, v6")
    a("s_mov_b64 exec, 1")
    a("v_mov_b32 v6, 1")
    a("s_waitcnt lgkmcnt(0)")
    a(f"ds_write_b32 v14, v6 offset:{F_FOK-M0_}")
    a("s_mov_b64 exec, -1")

    a("s_load_dword s48, s[24:25], 0 glc")
    a("s_waitcnt lgkmcnt(0)")
    bound_init(1 << 17)
    a("L_cntpoll:")
    a("s_cmp_ge_u32 s48, 256")
    a("s_cbranch_scc1 L_cntok")
    a("s_sleep 64")
    a("s_mov_b32 s48, 0")
    a("s_atomic_add s48, s[24:25], 0 glc")
    a("s_waitcnt lgkmcnt(0)")
    bound_loop("L_cntpoll")
    a("L_cntok:")
    a("s_cmp_lg_u32 s2, 0")
    a("s_cbranch_scc1 L_noep")
    a("v_mov_b32 v6, s62"); a(f"s_mov_b32 s48, {W_EP}")
    a("s_mov_b64 exec, 1")
    a("buffer_store_dword v6, v15, s[40:43], s48 offen sc1")
    a("s_mov_b64 exec, -1")
    a("L_noep:")
    if fbd:
        for tt in [t for t in sched if t > 128]:
            a(f"s_mov_b32 s50, {tt}")
            a("s_swappc_b64 s[54:55], s[52:53]")
        a("s_branch L_ystage")
        a("L_fb:")
        lds_wait_ge(14, F_FILL - M0_, "s48", "s50", 6, sleep=4)
        if fbm == 'st':
            a("s_add_u32 s48, s62, s50"); a("v_mov_b32 v6, s48")
            a("s_mov_b64 exec, 1")
            a(f"buffer_store_dword v6, v84, s[40:43], s94 offen {fbfl}")
            a(f"s_mov_b64 exec, {hex((1 << fbg) - 1) if fbg < 64 else -1}")
            a(f"buffer_load_dword v6, v85, s[40:43], s94 offen {fbfl}")
            a("s_waitcnt vmcnt(0)")
            a("v_subrev_u32 v6, s48, v6"); a("v_cmp_gt_u32 vcc, 64, v6")
            a("s_mov_b64 exec, -1")
            a("s_bcnt1_i32_b64 s48, vcc")
        elif fbm == 'none':
            a("s_mov_b32 s48, 12")
        elif fbm == 'noret':
            a("s_mov_b32 s48, 1")
            a("s_atomic_add s48, s[94:95], 0")
            a("s_waitcnt lgkmcnt(0)")
        elif fbm == 'sld':
            a("s_load_dword s48, s[94:95], 0 glc")
            a("s_waitcnt lgkmcnt(0)")
        else:
            a("s_mov_b32 s48, 1")
            a("s_atomic_add s48, s[94:95], 0 glc")
            a("s_waitcnt lgkmcnt(0)")
            if fbsame:
                a("s_sub_u32 s48, s48, s51"); a("s_max_i32 s48, s48, 0"); a(f"s_add_u32 s51, s51, {fbg}")
        order = sorted(range(len(fbd) + 1), key=lambda i: ([depth] + list(fbd))[i])
        a(f"s_mov_b32 s49, {order[0]}")
        for th, idx in zip(fbt, order[1:]):
            a(f"s_cmp_ge_u32 s48, {th*fbg//256}"); a(f"s_cselect_b32 s49, {idx}, s49")
        a("v_mov_b32 v6, s49")
        a(f"ds_write_b32 v14, v6 offset:{F_DEP-M0_}")
        if not fbsame:
            a("s_add_u32 s94, s94, 256"); a("s_addc_u32 s95, s95, 0")
        a("s_setpc_b64 s[54:55]")

    a("L_ystage:")
    a("v_and_b32 v6, 1, v1"); a("v_bfe_u32 v7, v1, 2, 1"); a("v_lshl_add_u32 v6, v6, 1, v7"); a("v_mul_u32_u24 v6, 288, v6")
    a(f"v_lshl_add_u32 v6, v2, 4, v6"); a(f"v_add_u32 v6, {L_OB}, v6")
    a("v_lshlrev_b32 v7, 5, v1"); a("v_lshl_add_u32 v7, v2, 4, v7")
    a("s_lshl_b32 s48, s31, 2"); a("s_add_u32 s48, s48, s29"); a("s_mul_i32 s48, s48, 1792"); a("s_lshl_b32 s49, s60, 8"); a("s_add_u32 s49, s48, s49")
    a("s_waitcnt lgkmcnt(0)")
    a("s_barrier")
    stamp(7) if False else None
    for ks in range(4):
        a(f"ds_read_b128 {q(YA+4*ks)}, v6 offset:{ks*64}")
    S = ABUF
    for t in range(8):
        for ks in range(4):
            if t == 0:
                a(f"s_waitcnt lgkmcnt({3-ks})")
            a(f"v_mfma_f32_16x16x32_bf16 {q(T2+4*t)}, {q(YA+4*ks)}, {q(wfrag(ks,t))}, {q(T2+4*t) if ks else 0}")
        if t >= 2:
            a(f"v_add_f32 v{S+t-2}, v{T2+4*(t-2)}, v{T2+4*(t-2)+1}")
    a("s_nop 2")
    a(f"v_add_f32 v{S+6}, v{T2+24}, v{T2+25}")
    a("s_nop 2")
    a(f"v_add_f32 v{S+7}, v{T2+28}, v{T2+29}")
    for t in range(4):
        if t == 3:
            a("s_nop 0")
        a(f"v_permlane16_swap_b32 v{S+t}, v{S+t+4}")
    a("s_nop 0")
    for t in range(4):
        a(f"v_add_f32_dpp v{S+t}, v{S+t+4}, v{S+t} row_shl:8 row_mask:0xf bank_mask:0xf")
    a("s_mov_b64 exec, 0x00ff00ff")
    a(f"buffer_store_dwordx4 {q(S)}, v7, s[40:43], s49 offen sc1")
    a("s_mov_b64 exec, -1")
    stamp(7)
    a("s_cmp_lt_u32 s3, 3")
    a("s_cbranch_scc1 L_done")
    a("s_cmp_eq_u32 s3, 3")
    a("s_cbranch_scc1 L_r1")
    a("s_cmp_ge_u32 s2, 112")
    a("s_cbranch_scc1 L_done")

    a("v_lshlrev_b32 v5, 5, v0")
    a(f"s_and_b32 s48, s2, {nrep-1}"); a("s_mul_i32 s48, s48, 7168"); a("s_mul_i32 s49, s62, 1792"); a("s_add_u32 s48, s48, s49")
    a(f"s_add_u32 s56, s48, {W_HB}"); a("s_add_u32 s57, s56, 16")
    X = T2
    for e in range(8):
        a(f"v_mov_b32 v{X+e}, 0")
    a("v_lshlrev_b32 v8, 4, v0"); a("s_mul_i32 s48, s62, 960"); a(f"s_add_u32 s48, s48, {L_XN2}"); a("v_add_u32 v8, s48, v8")
    a("v_and_b32 v9, 3, v1"); a("v_mul_u32_u24 v10, 960, v9"); a("v_lshl_add_u32 v10, v2, 4, v10")
    a("s_and_b32 s48, s62, 1"); a("s_mul_i32 s48, s48, 448"); a(f"s_add_u32 s48, s48, {L_XN2}"); a("v_add_u32 v10, s48, v10")
    a("v_lshlrev_b32 v11, 6, v9"); a("v_lshl_add_u32 v11, v2, 4, v11"); a(f"v_add_u32 v11, {L_GU}, v11")
    a("s_lshl_b32 s48, s62, 8"); a("v_add_u32 v12, s48, v11")
    a("v_mul_u32_u24 v13, 1792, v1"); a("v_lshl_add_u32 v13, v2, 4, v13")
    a("s_mul_i32 s58, s59, 7168"); a("s_mul_i32 s48, s62, 448"); a("s_add_u32 s58, s58, s48"); a(f"s_add_u32 s58, s58, {W_OP}")
    if r2sleep:
        a(f"s_sleep {r2sleep}")
    a("s_mov_b32 exec_hi, 0x00ffffff")
    poll_quads(2, X, 5, ["s56", "s57"], 40, 6)
    a("s_mov_b32 exec_hi, -1")
    stamp(3)
    layernorm(X, T2 + 8)
    for d in range(4):
        a(f"v_cvt_pk_bf16_f32 v{YA+d}, v{X+2*d}, v{X+2*d+1}")
    a("s_mov_b32 exec_hi, 0x00ffffff")
    a(f"ds_write_b128 v8, {q(YA)}")
    a("s_mov_b32 exec_hi, -1")
    a("s_waitcnt lgkmcnt(0)")
    a("s_barrier")
    for f in range(7):
        a(f"ds_read_b128 {q(T2+4*f)}, v10 offset:{f*64}")
    for f in range(7):
        a(f"s_waitcnt lgkmcnt({6-f})")
        a(f"v_mfma_f32_16x16x32_bf16 {q(ACC)}, {q(QA+4*f)}, {q(T2+4*f)}, {q(ACC) if f else 0}")
    a("s_nop 7")
    a(f"ds_write_b128 v12, {q(ACC)}")
    a("s_waitcnt lgkmcnt(0)")
    a("s_barrier")
    for p in range(4):
        a(f"ds_read_b128 {q(YA+4*p)}, v11 offset:{p*256}")
    a("s_waitcnt lgkmcnt(2)")
    for r in range(4):
        a(f"v_add_f32 v{YA+r}, v{YA+r}, v{YA+4+r}")
    a("s_waitcnt lgkmcnt(0)")
    for r in range(4):
        a(f"v_add_f32 v{YA+8+r}, v{YA+8+r}, v{YA+12+r}")
    for r in range(4):
        a(f"v_cvt_pk_bf16_f32 v{YA+4+r}, v{YA+r}, v{YA+8+r}")
    for r in range(4):
        a(f"v_lshlrev_b32 v{YA+r}, 16, v{YA+4+r}"); a(f"v_and_b32 v{YA+4+r}, 0xffff0000, v{YA+4+r}")
    for r in range(4):
        a(f"v_mul_f32 v{YA+r}, v{YA+r}, v{YA+4+r}")
    a(f"v_cvt_pk_bf16_f32 v{YA+8}, v{YA}, v{YA+1}"); a(f"v_cvt_pk_bf16_f32 v{YA+9}, v{YA+2}, v{YA+3}")
    a("s_nop 1")
    for u in range(7):
        a(f"v_mfma_f32_16x16x16_bf16 {q(T2+4*u)}, {q(DN+2*u,2)}, {q(YA+8,2)}, 0")
    a("s_mov_b32 exec_lo, 0x000f000f"); a("s_mov_b32 exec_hi, 0x000f000f")
    for u in range(7):
        if u == 0:
            a("s_nop 0")
        a(f"buffer_store_dwordx4 {q(T2+4*u)}, v13, s[40:43], s58 offen offset:{u*64} sc1")
        if u < 6:
            a("s_nop 0")
    a("s_mov_b64 exec, -1")
    stamp(4)
    a("s_branch L_done")

    a("L_r1:")
    a("s_sub_u32 s48, s2, 112")
    a("s_cmp_lt_u32 s48, 112")
    a("s_cbranch_scc0 L_done")
    a("v_lshrrev_b32 v5, 2, v0"); a("v_and_b32 v6, 3, v0"); a("v_lshlrev_b32 v6, 4, v6")
    a("v_mul_u32_u24 v7, 1792, v5"); a("v_add_u32 v7, v7, v6")
    a("v_mul_u32_u24 v8, 7168, v5"); a("v_add_u32 v8, v8, v6")
    a(f"s_mul_i32 s44, s58, {64*1792}"); a("s_lshl_b32 s48, s59, 6"); a("s_add_u32 s44, s44, s48")
    for g in range(1, 4):
        a(f"s_add_u32 s{44+g}, s{43+g}, {16*1792}")
    a("v_lshlrev_b32 v11, 16, v11")
    poll_quads(4, T2, 7, ["s44", "s45", "s46", "s47"], 40, 6)
    stamp(3)
    for r in range(4):
        a(f"v_add_f32 v{T2+r}, v{T2+r}, v{T2+4+r}"); a(f"v_add_f32 v{T2+8+r}, v{T2+8+r}, v{T2+12+r}")
    for r in range(4):
        a(f"v_add_f32 v{T2+r}, v{T2+r}, v{T2+8+r}")
    xreduce(T2)
    bf16r(T2, T2)
    a(f"v_add_f32 v11, v11, v{T2}")
    bf16r(11, 11)
    a(f"s_add_u32 s48, s56, {W_HB}")
    for k in range(nrep // 4):
        a("buffer_store_dword v11, v13, s[40:43], s48 offen sc1")
        if k + 1 < nrep // 4:
            a(f"s_add_u32 s48, s48, {4*7168}")
    stamp(4)
    so = ["s32", "s33", "s34", "s35", "s36", "s37", "s38"]
    a(f"s_add_u32 s32, s56, {W_OP}")
    for g in range(1, 7):
        a(f"s_add_u32 {so[g]}, {so[g-1]}, {16*7168}")
    srd(44, 22, 3584)
    a("s_waitcnt vmcnt(0)")
    poll_quads(7, T2, 8, so, 40, 6)
    stamp(5)
    for r in range(4):
        a(f"v_add_f32 v{T2+r}, v{T2+r}, v{T2+4+r}"); a(f"v_add_f32 v{T2+8+r}, v{T2+8+r}, v{T2+12+r}")
        a(f"v_add_f32 v{T2+16+r}, v{T2+16+r}, v{T2+20+r}")
    for r in range(4):
        a(f"v_add_f32 v{T2+r}, v{T2+r}, v{T2+8+r}"); a(f"v_add_f32 v{T2+16+r}, v{T2+16+r}, v{T2+24+r}")
    for r in range(4):
        a(f"v_add_f32 v{T2+r}, v{T2+r}, v{T2+16+r}")
    xreduce(T2)
    bf16r(T2, T2)
    a(f"v_add_f32 v11, v11, v{T2}")
    a("v_cvt_pk_bf16_f32 v11, v11, v11")
    a("s_lshr_b32 s48, s56, 1")
    a("s_mov_b32 exec_lo, 0x000f000f"); a("s_mov_b32 exec_hi, 0x000f000f")
    a("buffer_store_short v11, v12, s[44:47], s48 offen")
    a("s_mov_b64 exec, -1")
    stamp(6)
    a("L_done:")
    finish()

    a("L_loader:")
    a("; ---- wave 0: streams K then V (1 MiB each) into the LDS ring, DEPTH KiB in flight")
    a("s_setprio 3")
    a("v_and_b32 v4, 31, v0")
    for k in range(8):
        a(f"v_add_u32 v5, {2*k}, v3"); a("v_xor_b32 v5, v5, v4") if not noswz else a("v_mov_b32 v5, v4"); a("v_lshlrev_b32 v5, 4, v5"); a(f"v_lshl_add_u32 v{8+k}, v3, 9, v5")
    a("v_lshlrev_b32 v16, 4, v0")
    a(f"v_mov_b32 v24, {M0_}"); a(f"v_mov_b32 v17, {F_CONS}")
    for r in range(4):
        a(f"v_mov_b32 v{20+r}, 0")
    a("ds_write_b128 v24, v[20:23]"); a("ds_write_b128 v24, v[20:23] offset:16")
    a("s_lshl_b32 s48, s31, 22"); a("s_lshl_b32 s49, s29, 20"); a("s_add_u32 s48, s48, s49")
    a("s_waitcnt lgkmcnt(0)")
    for r, p in ((32, 6), (36, 8)):
        a(f"s_add_u32 s{r}, s{p}, s48"); a(f"s_addc_u32 s{r+1}, s{p+1}, 0"); a(f"s_and_b32 s{r+1}, s{r+1}, 0xffff")
        a(f"s_mov_b32 s{r+2}, 0x100000"); a(f"s_mov_b32 s{r+3}, 0x20000")
    if diag:
        srd(40, 26, WS_BYTES)
    a("s_mov_b32 s56, 0")
    a("s_mov_b32 s57, 0")
    a("s_mov_b32 s58, 0")
    a("v_mov_b32 v18, 0")

    a("v_mov_b32 v25, 0")
    depths = [depth] + list(fbd)
    tend = 256 if qonly < 0 else qonly
    if qonly == 0:
        a("s_barrier"); finish()
    a("L_ltop:")
    a("; slot free? consumer (T&1) must have finished tile T-16")
    a("s_lshr_b32 s49, s58, 1"); a("s_sub_u32 s49, s49, 7")
    p, go = lab("fp"), lab("fg")
    a("s_waitcnt lgkmcnt(0)")
    a("v_readfirstlane_b32 s48, v18")
    a("v_readfirstlane_b32 s50, v25")
    a("s_cmp_ge_i32 s48, s49")
    a(f"s_cbranch_scc1 {go}")
    bound_init()
    a(f"{p}:")
    a("ds_read_b32 v18, v17"); a("s_waitcnt lgkmcnt(0)"); a("v_readfirstlane_b32 s48, v18")
    a("s_cmp_ge_i32 s48, s49")
    a(f"s_cbranch_scc1 {go}")
    a("s_sleep 1")
    bound_loop(p)
    a(f"{go}:")
    a("v_xor_b32 v17, 12, v17")
    a("s_mov_b32 m0, s56")
    for di in range(1, len(depths)):
        a(f"s_cmp_eq_u32 s50, {di}"); a(f"s_cbranch_scc1 L_ld{di}")
    for di, dd in enumerate(depths):
        kpub, lag = (dd - 1) % 8, (dd - 1) // 8
        a(f"L_ld{di}:")
        for k in range(8):
            if k == 4:
                a("s_add_u32 m0, s56, 4096"); a("s_add_u32 s57, s57, 4096")
            if k == kpub:
                a(f"s_sub_u32 s49, s58, {lag}"); a("s_max_i32 s49, s49, 0"); a("v_mov_b32 v19, s49")
            a(f"s_waitcnt vmcnt({dd-1})")
            a(f"buffer_load_dwordx4 v{8+k}, s[32:35], s57 offen offset:{(k&3)*1024} nt lds")
            if k == kpub:
                a("ds_write_b32 v24, v19")
            if k == 6:
                a("ds_read_b32 v18, v17")
                if len(depths) > 1:
                    a(f"ds_read_b32 v25, v24 offset:{F_DEP-M0_}")
            if di == 0 and k == barpos:
                sk = lab("nb")
                a("s_cmp_lg_u32 s58, 0"); a(f"s_cbranch_scc1 {sk}"); a("s_barrier"); a(f"{sk}:")
        if di + 1 < len(depths):
            a("s_branch L_lnext")
    a("L_lnext:")
    a("s_add_u32 s57, s57, 4096")
    a("s_add_u32 s56, s56, 8192"); a("s_and_b32 s56, s56, 0x1ffff")
    a("s_add_u32 s58, s58, 1")
    if diag:
        for kk, tt in (((4, 16), (5, 32), (6, 64), (7, 192)) if qonly < 0 else ((4, 3), (5, 4), (6, 6), (7, 10))):
            sk = lab("st")
            a(f"s_cmp_lg_u32 s58, {tt}"); a(f"s_cbranch_scc1 {sk}"); stamp(kk); a(f"{sk}:")
    a("s_cmp_lg_u32 s58, 128")
    a("s_cbranch_scc1 L_lnosw")
    a("; switch the stream from K to V")
    a("s_mov_b32 s32, s36"); a("s_mov_b32 s33, s37"); a("s_mov_b32 s57, 0")
    for k in range(8):
        a(f"v_mov_b32 v{8+k}, v16")
    stamp(1)
    a("L_lnosw:")
    a(f"s_cmp_lt_u32 s58, {tend}")
    a("s_cbranch_scc1 L_ltop")
    if qonly > 0:
        a("s_waitcnt vmcnt(0)"); stamp(1); finish()
    stamp(2)
    for c in range(256 - (max(depths) - 1) // 8, 257):
        a(f"v_mov_b32 v19, {c}")
        a(f"s_waitcnt vmcnt({8*(256-c)})")
        a("ds_write_b32 v24, v19")
    a("s_waitcnt lgkmcnt(0)")
    stamp(3)
    finish()

    if diag:
        a("L_stamps:")
        a("v_mov_b32 v4, 0")
        for k in range(8):
            a(f"v_writelane_b32 v4, s{64+2*k}, {k}")
        a("s_getreg_b32 s48, hwreg(HW_REG_XCC_ID, 0, 4)")
        a("v_writelane_b32 v4, s48, 8")
        a("v_writelane_b32 v4, s63, 9")
        a("v_lshlrev_b32 v5, 2, v0")
        a("s_lshl_b32 s48, s2, 3"); a("s_add_u32 s48, s48, s3"); a("s_lshl_b32 s48, s48, 6"); a(f"s_add_u32 s48, s48, {W_ST}")
        a("s_mov_b64 exec, 0xffff")
        a("buffer_store_dword v4, v5, s[40:43], s48 offen")
    a("L_exit:")
    a("s_endpgm")
    a('.section .rodata,"a"')
    a(".p2align 6")
    a(f".amdhsa_kernel {KNAME}")
    a("  .amdhsa_next_free_vgpr 256")
    a("  .amdhsa_next_free_sgpr 96")
    a("  .amdhsa_accum_offset 256")
    a("  .amdhsa_group_segment_fixed_size 0")
    a("  .amdhsa_kernarg_size 96")
    a("  .amdhsa_user_sgpr_count 2")
    a("  .amdhsa_user_sgpr_kernarg_segment_ptr 1")
    a("  .amdhsa_system_sgpr_workgroup_id_x 1")
    a("  .amdhsa_float_denorm_mode_32 3")
    a(".end_amdhsa_kernel")
    out = []
    for x in L:
        if x is None:
            continue
        if x.endswith(":") or x.startswith((";", ".")) or x.startswith("  ."):
            out.append(x)
        else:
            out.append("    " + x)
    return "\n".join(out) + "\n"


if __name__ == "__main__":
    kw = eval("dict(%s)" % (sys.argv[2] if len(sys.argv) > 2 else ""))
    open(sys.argv[1], "w").write(gen(**kw))
```

```python
import sys
KNAME = "sequential_preLN__mha_block_cached__glu_gated_bilinear__decode_kernel"

HEADER = """; Kernarg layout for this problem (96 bytes, ptrs only, base s[0:1]):
;   offset   0: d_in[0] A_x  shape=(4, 1, 448) dtype=bfloat16 strides=(896, 896, 2) contiguous=True
;   offset   8: d_in[1] A_k_cache  shape=(4, 16, 8192, 256) dtype=bfloat16 strides=(67108864, 4194304, 512, 2) contiguous=True
;   offset  16: d_in[2] A_v_cache  shape=(4, 16, 8192, 256) dtype=bfloat16 strides=(67108864, 4194304, 512, 2) contiguous=True
;   offset  24: d_in[3] A_wq  shape=(448, 4096) dtype=bfloat16 strides=(8192, 2) contiguous=True
;   offset  32: d_in[4] A_wo  shape=(4096, 448) dtype=bfloat16 strides=(896, 2) contiguous=True
;   offset  40: d_in[5] B_x  shape=(4, 1, 448) dtype=bfloat16 strides=(896, 896, 2) contiguous=True
;   offset  48: d_in[6] B_w_gate  shape=(448, 1792) dtype=bfloat16 strides=(3584, 2) contiguous=True
;   offset  56: d_in[7] B_w_up  shape=(448, 1792) dtype=bfloat16 strides=(3584, 2) contiguous=True
;   offset  64: d_in[8] B_w_down  shape=(1792, 448) dtype=bfloat16 strides=(896, 2) contiguous=True
;   offset  88: d_ws      1073741824 bytes workspace"""

RING = 0
M0_ = 131072
F_FILL, F_CONS, F_QCNT, F_MLCNT, F_FOK, F_QOK = M0_, M0_ + 4, M0_ + 12, M0_ + 16, M0_ + 20, M0_ + 24
F_DEP = M0_ + 28
L_ML, L_F = M0_ + 32, M0_ + 48
L_XN = M0_ + 128
L_QP = M0_ + 1024
L_QB = M0_ + 8192
L_PB = M0_ + 9216
L_OB = M0_ + 13312
L_XN2 = M0_ + 14592
L_GU = M0_ + 18432
LDS_BYTES = M0_ + 19456
W_YP = 0
W_ML = 0x80000
W_HB = 0x90000
W_OP = 0xC0000
W_QX = 0x1A0000
W_EP = 0x1C0000
W_FB = 0x1E0000
W_ST = 0x200000
WS_BYTES = 0x400000
SEL, ABUF, ACC, YA, QA, FX, T, WO = 16, 24, 32, 36, 52, 84, 96, 128
T2 = WO + 96
LOG2E_16 = 0x3db8aa3b
INV448 = 0x3b124925
EPS = 0x3727c5ac


def gen(depth=20, diag=False, nrep=8, xl=2, spin_bound=True, poll_sleep=2, dump=False, noswz=False, nowo=False, noffn=False, noclr=False, qonly=-1, qrot=0, latebar=False, nwq=32, qdelay=0, fbd=(17, 19, 21, 23, 26), fbt=(24, 80, 160, 208, 240), fbk=16, fbg=32, r2sleep=40, clrstag=None, fbs=None, dbgstamps=False, fbm='at', krot=0, fbsame=False, fbmix=4, fbfl='sc1', wohit=False, satom=True, clrsleep=0, qsleep=1, barpos=7, qwin=8, wopace=1, wosleep=8, gpace=2, gsleep=4, wstart=40, wflags='nt', gflags='nt', woflags='nt', dk=None):
    L = []
    a = L.append
    uid = [0]

    def lab(p):
        uid[0] += 1
        return f"L_{p}{uid[0]}"

    def q(r, n=4):
        return f"v[{r}:{r+n-1}]"

    def srd(r, p, nbytes):
        a(f"s_mov_b32 s{r}, s{p}")
        a(f"s_and_b32 s{r+1}, s{p+1}, 0xffff")
        a(f"s_mov_b32 s{r+2}, {nbytes}")
        a(f"s_mov_b32 s{r+3}, 0x20000")

    def stamp(k):
        if diag:
            a(f"s_memrealtime s[{64+2*k}:{65+2*k}]")
            a("s_waitcnt lgkmcnt(0)")

    def finish():
        if diag:
            a("s_branch L_stamps")
        else:
            a("s_endpgm")

    def bound_init(n=1 << 20):
        if spin_bound:
            a(f"s_mov_b32 s63, {n}")

    def bound_loop(target):
        if spin_bound:
            a("s_sub_u32 s63, s63, 1")
            a(f"s_cbranch_scc0 {target}")
        else:
            a(f"s_branch {target}")

    def lds_wait_ge(vaddr, off, sdst, cmp_operand, vt, sleep=1, precheck=False):
        p, go = lab("poll"), lab("go")
        if precheck:
            a(f"s_cmp_ge_u32 {sdst}, {cmp_operand}")
            a(f"s_cbranch_scc1 {go}")
        bound_init()
        a(f"{p}:")
        a(f"ds_read_b32 v{vt}, v{vaddr} offset:{off}")
        a("s_waitcnt lgkmcnt(0)")
        a(f"v_readfirstlane_b32 {sdst}, v{vt}")
        a(f"s_cmp_ge_u32 {sdst}, {cmp_operand}")
        a(f"s_cbranch_scc1 {go}")
        if sleep:
            a(f"s_sleep {sleep}")
        bound_loop(p)
        a(f"{go}:")

    def wave_red(op, v, sdst):
        for d in ("row_ror:8", "row_ror:4", "row_ror:2", "row_ror:1"):
            a("s_nop 1")
            a(f"{op}_dpp v{v}, v{v}, v{v} {d} row_mask:0xf bank_mask:0xf")
        a("s_nop 1")
        a(f"{op}_dpp v{v}, v{v}, v{v} row_bcast:15 row_mask:0xa bank_mask:0xf")
        a("s_nop 1")
        a(f"{op}_dpp v{v}, v{v}, v{v} row_bcast:31 row_mask:0xc bank_mask:0xf")
        a("s_nop 0")
        a(f"v_readlane_b32 {sdst}, v{v}, 63")
        a("s_nop 1")

    def bf16r(dst, src):
        a(f"v_cvt_pk_bf16_f32 v{dst}, v{src}, v{src}")
        a(f"v_and_b32 v{dst}, 0xffff0000, v{dst}")

    def layernorm(X, t):
        a(f"v_add_f32 v{t}, v{X}, v{X+1}"); a(f"v_add_f32 v{t+1}, v{X+2}, v{X+3}")
        a(f"v_add_f32 v{t+2}, v{X+4}, v{X+5}"); a(f"v_add_f32 v{t+3}, v{X+6}, v{X+7}")
        a(f"v_add_f32 v{t}, v{t}, v{t+1}"); a(f"v_add_f32 v{t+2}, v{t+2}, v{t+3}")
        a(f"v_add_f32 v{t}, v{t}, v{t+2}")
        wave_red("v_add_f32", t, "s48")
        a(f"v_mov_b32 v{t+1}, {INV448:#x}")
        a(f"v_mul_f32 v{t+1}, s48, v{t+1}")
        a(f"v_mov_b32 v{t}, 0")
        a("s_mov_b32 exec_hi, 0x00ffffff")
        for e in range(8):
            a(f"v_sub_f32 v{t+4+e}, v{X+e}, v{t+1}")
        for e in range(8):
            a(f"v_fmac_f32 v{t}, v{t+4+e}, v{t+4+e}")
        a("s_mov_b32 exec_hi, -1")
        bf16r(t + 1, t + 1)
        wave_red("v_add_f32", t, "s48")
        a(f"v_mov_b32 v{t+2}, {INV448:#x}")
        a(f"v_mul_f32 v{t+2}, s48, v{t+2}")
        for e in range(8):
            a(f"v_sub_f32 v{X+e}, v{X+e}, v{t+1}")
        bf16r(t + 2, t + 2)
        a(f"v_add_f32 v{t+2}, {EPS:#x}, v{t+2}")
        bf16r(t + 2, t + 2)
        a(f"v_sqrt_f32 v{t+2}, v{t+2}")
        for e in range(0, 8, 2):
            a(f"v_cvt_pk_bf16_f32 v{t+4+e}, v{X+e}, v{X+e+1}")
        bf16r(t + 2, t + 2)
        a(f"v_rcp_f32 v{t+3}, v{t+2}")
        for e in range(0, 8, 2):
            a(f"v_lshlrev_b32 v{X+e}, 16, v{t+4+e}")
            a(f"v_and_b32 v{X+e+1}, 0xffff0000, v{t+4+e}")
        for e in range(8):
            a(f"v_mul_f32 v{t+4+e}, v{X+e}, v{t+3}")
        for e in range(8):
            a(f"v_fma_f32 v{X+e}, -v{t+4+e}, v{t+2}, v{X+e}")
        for e in range(8):
            a(f"v_fma_f32 v{X+e}, v{X+e}, v{t+3}, v{t+4+e}")

    def build_a(dst, psrc, n):
        for w in range(4):
            a(f"v_perm_b32 v{dst+w}, v{psrc + (n >> 1)}, v{psrc + (n >> 1)}, v{SEL + (n & 1)*4 + w}")

    def xreduce(V):
        a("s_nop 1")
        a(f"v_permlane16_swap_b32 v{V}, v{V+1}")
        a(f"v_permlane16_swap_b32 v{V+2}, v{V+3}")
        a(f"v_add_f32 v{V}, v{V}, v{V+1}")
        a(f"v_add_f32 v{V+2}, v{V+2}, v{V+3}")
        a("s_nop 1")
        a(f"v_permlane32_swap_b32 v{V}, v{V+2}")
        a(f"v_add_f32 v{V}, v{V}, v{V+2}")
        a("s_nop 1")
        a(f"v_add_f32_dpp v{V}, v{V}, v{V} row_ror:8 row_mask:0xf bank_mask:0xf")
        a("s_nop 1")
        a(f"v_add_f32_dpp v{V}, v{V}, v{V} row_ror:4 row_mask:0xf bank_mask:0xf")

    def poll_quads(n, R, voff, soffs, srdreg, vt):
        for g in range(n):
            a(f"buffer_load_dwordx4 {q(R+4*g)}, v{voff}, s[{srdreg}:{srdreg+3}], {soffs[g]} offen sc1")
        bound_init(1 << 17)
        p, go = lab("gp"), lab("gg")
        a(f"{p}:")
        a("s_mov_b64 s[50:51], 0")
        masks = []
        for g in range(n):
            a(f"s_waitcnt vmcnt({n-1-g})") if True else None
            a(f"v_max3_u32 v{vt}, v{R+4*g}, v{R+4*g+1}, v{R+4*g+2}")
            a(f"v_max_u32 v{vt}, v{vt}, v{R+4*g+3}")
            a(f"v_cmp_eq_u32 s[{80+2*g}:{81+2*g}], -1, v{vt}")
        for g in range(n):
            a(f"s_or_b64 s[50:51], s[50:51], s[{80+2*g}:{81+2*g}]")
        a(f"s_cbranch_scc0 {go}")
        if poll_sleep:
            a(f"s_sleep {poll_sleep}")
        a("s_mov_b64 s[52:53], exec")
        for g in range(n):
            sk = lab("sk")
            a(f"s_mov_b64 exec, s[{80+2*g}:{81+2*g}]")
            a(f"s_cbranch_execz {sk}")
            a(f"buffer_load_dwordx4 {q(R+4*g)}, v{voff}, s[{srdreg}:{srdreg+3}], {soffs[g]} offen sc1")
            a(f"{sk}:")
        a("s_mov_b64 exec, s[52:53]")
        a("s_waitcnt vmcnt(0)")
        bound_loop(p)
        a(f"{go}:")

    a(HEADER)
    a(f"; @launch grid=(256,1,1) block=(512,1,1) lds={LDS_BYTES}")
    a('.amdgcn_target "amdgcn-amd-amdhsa--gfx950"')
    a(".text")
    a(f".globl {KNAME}")
    a(".p2align 8")
    a(f".type {KNAME},@function")
    a(f"{KNAME}:")
    a("s_cmp_ge_u32 s2, 256")
    a("s_cbranch_scc1 L_exit")
    a("s_load_dwordx16 s[4:19], s[0:1], 0")
    a("s_load_dwordx8 s[20:27], s[0:1], 64")
    if diag:
        for k in range(16):
            a(f"s_mov_b32 s{64+k}, 0")
        a("s_memrealtime s[64:65]")
    a("v_lshrrev_b32 v1, 6, v0")
    a("v_and_b32 v0, 63, v0")
    a("v_readfirstlane_b32 s3, v1")
    if xl == 2:
        a("s_and_b32 s28, s2, 7"); a("s_lshr_b32 s48, s2, 3"); a("s_and_b32 s49, s48, 1"); a("s_lshl_b32 s49, s49, 3")
        a("s_add_u32 s28, s28, s49")
        a("s_lshr_b32 s29, s48, 1"); a("s_and_b32 s29, s29, 3"); a("s_lshr_b32 s30, s48, 3")
    else:
        a("s_and_b32 s29, s2, 3"); a("s_lshr_b32 s28, s2, 2"); a("s_and_b32 s28, s28, 15"); a("s_lshr_b32 s30, s2, 6")
    a("s_lshl_b32 s31, s30, 4"); a("s_add_u32 s31, s31, s28")
    a("v_and_b32 v1, 15, v0")
    a("v_lshrrev_b32 v2, 4, v0")
    a("v_lshrrev_b32 v3, 5, v0")
    a("s_cmp_eq_u32 s3, 0")
    a("s_cbranch_scc1 L_loader")

    a("s_sub_u32 s60, s3, 1")
    a("v_lshlrev_b32 v5, 4, v0")
    a("s_mul_i32 s48, s30, 896")
    a("v_add_u32 v5, s48, v5")
    a("v_mov_b32 v6, 0x7fffff00")
    a("v_cmp_gt_u32 vcc, 56, v0")
    a("v_and_b32 v4, 7, v0")
    a("v_lshlrev_b32 v4, 4, v4")
    a("v_cndmask_b32 v5, v6, v5, vcc")
    a("v_lshrrev_b32 v13, 3, v0")
    a("v_lshl_add_u32 v4, v13, 16, v4")
    a("s_lshl_b32 s48, s60, 19"); a("s_lshl_b32 s49, s28, 9"); a("s_add_u32 s48, s48, s49")
    a("s_lshl_b32 s49, s29, 7"); a("s_add_u32 s48, s48, s49")
    a("v_add_u32 v4, s48, v4")
    a("s_waitcnt lgkmcnt(0)")
    srd(32, 4, 3584)
    srd(36, 10, 3670016)
    a(f"buffer_load_dwordx4 {q(YA)}, v5, s[32:35], 0 offen")
    a(f"s_add_u32 s48, s26, {W_EP}"); a("s_addc_u32 s49, s27, 0")
    a("s_load_dword s62, s[48:49], 0")
    a("s_barrier")

    def wq_load(n):
        a(f"buffer_load_dwordx4 {q(QA+4*n)}, v4, s[36:39], s50 offen {wflags}")
        if n < 7:
            a("s_add_u32 s50, s50, 8192")
    a("s_mov_b32 s50, 0")
    for n in range(qwin):
        wq_load(n)
    srd(40, 26, WS_BYTES)
    a("v_and_b32 v6, 1, v1"); a("v_cmp_eq_u32 vcc, 1, v6")
    a("v_mov_b32 v7, 0x0c0c0100"); a("v_mov_b32 v8, 0x01000c0c"); a("v_mov_b32 v9, 0x0c0c0302"); a("v_mov_b32 v10, 0x03020c0c")
    a("v_cndmask_b32 v7, v7, v8, vcc"); a("v_cndmask_b32 v9, v9, v10, vcc")
    a("v_bfe_u32 v6, v1, 1, 2"); a("v_mov_b32 v10, 0x0c0c0c0c")
    for w in range(4):
        a(f"v_cmp_eq_u32 vcc, {w}, v6"); a("s_nop 1")
        a(f"v_cndmask_b32 v{SEL+w}, v10, v7, vcc"); a(f"v_cndmask_b32 v{SEL+4+w}, v10, v9, vcc")
    a("v_mov_b32 v15, 0")
    a(f"v_mov_b32 v14, {M0_}")
    if qonly >= 0:
        stamp(3)
    a(f"s_waitcnt vmcnt({qwin})")
    if qonly >= 0:
        stamp(4)
    X = T
    for d in range(4):
        a(f"v_lshlrev_b32 v{X+2*d}, 16, v{YA+d}"); a(f"v_and_b32 v{X+2*d+1}, 0xffff0000, v{YA+d}")
    layernorm(X, T + 8)
    for d in range(4):
        a(f"v_cvt_pk_bf16_f32 v{YA+d}, v{X+2*d}, v{X+2*d+1}")
    a(f"v_lshlrev_b32 v6, 4, v0"); a(f"v_add_u32 v6, {L_XN}, v6")
    a("s_mov_b32 exec_hi, 0x00ffffff")
    a(f"ds_write_b128 v6, {q(YA)}")
    a("s_mov_b32 exec_hi, -1")
    a("s_lshl_b32 s48, s60, 7"); a(f"s_add_u32 s48, s48, {L_XN}")
    a("v_lshl_add_u32 v6, v13, 4, s48")
    a("s_waitcnt lgkmcnt(0)")
    a(f"ds_read_b128 {q(YA)}, v6")
    a("v_lshrrev_b32 v6, 1, v2"); a("v_lshlrev_b32 v6, 8, v6"); a("v_and_b32 v7, 7, v1"); a("v_lshl_add_u32 v6, v7, 5, v6")
    a("v_and_b32 v7, 1, v2"); a("v_lshl_add_u32 v6, v7, 4, v6")
    a("s_lshl_b32 s48, s60, 9"); a(f"s_add_u32 s48, s48, {L_QP}")
    a("v_add_u32 v6, s48, v6")
    a("v_mov_b32 v7, 1")
    stamp(1)
    a("s_waitcnt lgkmcnt(0)")
    for n in range(8):
        build_a(T + 4*n, YA, n)
    for n in range(8):
        a(f"s_waitcnt vmcnt({min(qwin-1, 7-n)})")
        if n + qwin < 8:
            wq_load(n + qwin)
        a(f"v_mfma_f32_16x16x32_bf16 {q(ACC)}, {q(T+4*n)}, {q(QA+4*n)}, {q(ACC) if n else 0}")
    a("s_mov_b32 exec_lo, 0x00ff00ff"); a("s_mov_b32 exec_hi, 0xff00ff00")
    a("s_nop 5")
    a(f"ds_write_b128 v6, {q(ACC)}")
    a("s_waitcnt lgkmcnt(0)")
    a("s_mov_b64 exec, 1")
    a(f"ds_add_u32 v14, v7 offset:{F_QCNT-M0_}")
    a("s_mov_b64 exec, -1")
    stamp(2)
    srd(36, 12, 3670016)
    a("v_lshrrev_b32 v6, 3, v1"); a("v_lshlrev_b32 v6, 4, v6"); a("v_add_u32 v6, v6, v2"); a("v_mul_u32_u24 v4, 7168, v6")
    a("v_and_b32 v6, 7, v1"); a("v_lshl_add_u32 v4, v6, 4, v4")
    a(f"s_mul_i32 s48, s28, {229376 if not wohit else 0}"); a("s_lshl_b32 s49, s60, 7"); a("s_add_u32 s48, s48, s49")
    a("v_add_u32 v4, s48, v4")
    a("s_cmp_gt_u32 s3, 2")
    a("s_cbranch_scc1 L_helper")

    def wo_group(gidx):
        ks, eh = gidx >> 1, gidx & 1
        if nowo:
            return
        a(f"s_mov_b32 s48, {(ks*32 + eh*4)*896 if not wohit else 0}")
        for e in range(4):
            a(f"buffer_load_dwordx4 {q(WO+ks*32+(eh*4+e)*4)}, v4, s[36:39], s48 offen offset:{e*896} {woflags}")

    def wo_loads():
        a(f"s_sleep {wstart}")
        for ks in range(0 if not nowo else 4, 4):
            for eh in range(2):
                a(f"s_mov_b32 s48, {(ks*32 + eh*4)*896 if not wohit else 0}")
                for e in range(4):
                    a(f"buffer_load_dwordx4 {q(WO+ks*32+(eh*4+e)*4)}, v4, s[36:39], s48 offen offset:{e*896} {woflags}")
                    if (e + 1) % wopace == 0:
                        a("s_waitcnt vmcnt(0)")
                        a(f"s_sleep {wosleep}")

    def wo_perms():
        a("s_mov_b32 s48, 0x05040100"); a("s_mov_b32 s49, 0x07060302")
        for ks in range(4):
            src = WO + ks*32
            dst = T if ks == 0 else WO + (ks-1)*32
            for t in range(8):
                for d in range(4):
                    a(f"v_perm_b32 v{dst+4*t+d}, v{src+(2*d+1)*4+(t>>1)}, v{src+(2*d)*4+(t>>1)}, s{48+(t&1)}")

    def wfrag(ks, t):
        return (T if ks == 0 else WO + (ks-1)*32) + 4*t

    a("v_and_b32 v6, 1, v2"); a("v_lshrrev_b32 v8, 3, v1"); a("v_cmp_eq_u32 vcc, v6, v8"); a("s_nop 1")
    for w in range(8):
        a(f"v_cndmask_b32 v{SEL+w}, v10, v{SEL+w}, vcc")
    a("v_and_b32 v6, 3, v1"); a("v_xor_b32 v6, v6, v2"); a("v_and_b32 v7, 12, v1"); a("v_or_b32 v6, v6, v7")
    for m in range(4):
        a(f"v_xor_b32 v7, {m*4}, v6"); a("v_lshlrev_b32 v7, 4, v7"); a(f"v_lshl_add_u32 v{8+m}, v1, 9, v7")
    a("v_and_b32 v6, 1, v1"); a("v_lshlrev_b32 v6, 4, v6"); a("v_and_b32 v7, 14, v1"); a("v_add_u32 v12, v6, v7")
    a("s_lshl_b32 s48, s60, 5"); a(f"s_add_u32 s61, s48, {L_PB}")
    a("v_add_u32 v12, s61, v12")
    a("s_lshl_b32 s48, s60, 2"); a(f"s_add_u32 s48, s48, {F_CONS}"); a("v_mov_b32 v13, s48")
    a("s_lshl_b32 s56, s60, 13")
    a("s_add_u32 s57, s60, 1")
    a("s_mov_b32 s58, 0")
    a("v_mov_b32 v5, 0")
    a(f"v_lshlrev_b32 v7, 4, v2"); a(f"v_add_u32 v7, {L_QB}, v7")
    lds_wait_ge(14, F_QOK - M0_, "s48", 1, 6)
    for ks in range(8):
        a(f"ds_read_b128 {q(QA+4*ks)}, v7 offset:{ks*64}")
    stamp(3)
    if qonly >= 0:
        finish()
    a("s_getpc_b64 s[52:53]")
    a("L_kc0:")
    a("s_add_u32 s52, s52, L_kloop-L_kc0"); a("s_addc_u32 s53, s53, 0")
    a("s_mov_b32 s59, 17")
    a("s_swappc_b64 s[54:55], s[52:53]")
    for gi in range(7):
        wo_group(gi)
        if gi == 6:
            wo_group(7)
        a("s_add_u32 s59, s59, 16")
        a("s_swappc_b64 s[54:55], s[52:53]")
    a("s_branch L_kdone")
    a("L_kloop:")
    for m in range(4):
        a(f"v_add_u32 v{ABUF+m}, s56, v{8+m}")
    a("v_add_u32 v5, 1, v5")
    lds_wait_ge(14, F_FILL - M0_, "s58", "s57", 6, precheck=True)
    for ks in range(8):
        a(f"ds_read_b128 {q(T+4*ks)}, v{ABUF+(ks&3)} offset:{(ks>>2)*256}")
    for ks in range(8):
        a(f"s_waitcnt lgkmcnt({7-ks})")
        a(f"v_mfma_f32_16x16x32_bf16 {q(ACC)}, {q(QA+4*ks)}, {q(T+4*ks)}, {q(ACC) if ks else 0}")
    a("ds_write_b32 v13, v5")
    a("s_add_u32 s56, s56, 16384"); a("s_and_b32 s56, s56, 0x1ffff")
    a("s_add_u32 s57, s57, 2")
    a("s_nop 4")
    a(f"v_cvt_pk_bf16_f32 v6, v{ACC}, v{ACC}")
    a("ds_write_b16 v12, v6")
    a("v_add_u32 v12, 64, v12")
    a("s_cmp_lt_u32 s57, s59")
    a("s_cbranch_scc1 L_kloop")
    a("s_setpc_b64 s[54:55]")
    a("L_kdone:")
    stamp(4)
    a("v_lshl_add_u32 v12, v0, 6, s61")
    a("s_waitcnt lgkmcnt(0)")
    a(f"ds_read_b128 {q(YA)}, v12"); a(f"ds_read_b128 {q(YA+4)}, v12 offset:16")
    a("s_waitcnt lgkmcnt(0)")
    if dump:
        a("v_lshlrev_b32 v6, 6, v0"); a("s_lshl_b32 s48, s31, 2"); a("s_add_u32 s48, s48, s29"); a("s_lshl_b32 s48, s48, 12")
        a("s_lshl_b32 s49, s60, 5"); a("s_add_u32 s48, s48, s49"); a("s_add_u32 s48, s48, 0x280000 - 0x80000")
        a("s_add_u32 s48, s48, 0x100000")
        a(f"buffer_store_dwordx4 {q(YA)}, v6, s[40:43], s48 offen"); a(f"buffer_store_dwordx4 {q(YA+4)}, v6, s[40:43], s48 offen offset:16")
    for d in range(8):
        a(f"v_lshlrev_b32 v{T+2*d}, 16, v{YA+d}"); a(f"v_and_b32 v{T+2*d+1}, 0xffff0000, v{YA+d}")
    a(f"v_max3_f32 v6, v{T}, v{T+1}, v{T+2}")
    for d in range(3, 15, 2):
        a(f"v_max3_f32 v6, v6, v{T+d}, v{T+d+1}")
    a(f"v_max_f32 v6, v6, v{T+15}")
    wave_red("v_max_f32", 6, "s48")
    a(f"s_mov_b32 s49, {LOG2E_16:#x}")
    for d in range(16):
        a(f"v_subrev_f32 v{T+d}, s48, v{T+d}")
    for d in range(16):
        a(f"v_mul_f32 v{T+d}, s49, v{T+d}")
    for d in range(16):
        a(f"v_exp_f32 v{T+d}, v{T+d}")
    a("s_nop 0")
    for d in range(8):
        a(f"v_cvt_pk_bf16_f32 v{YA+d}, v{T+2*d}, v{T+2*d+1}")
    a(f"ds_write_b128 v12, {q(YA)}"); a(f"ds_write_b128 v12, {q(YA+4)} offset:16")
    for st in (8, 4, 2, 1):
        for d in range(st):
            a(f"v_add_f32 v{T+d}, v{T+d}, v{T+d+st}")
    wave_red("v_add_f32", T, "s49")
    a("v_mov_b32 v6, s48"); a("v_mov_b32 v7, s49")
    a("s_lshl_b32 s48, s60, 3"); a(f"s_add_u32 s48, s48, {L_ML}"); a("v_mov_b32 v8, s48"); a("v_mov_b32 v9, 1")
    a("s_mov_b64 exec, 1")
    a("ds_write_b64 v8, v[6:7]")
    a("s_waitcnt lgkmcnt(0)")
    a(f"ds_add_u32 v14, v9 offset:{F_MLCNT-M0_}")
    a("s_mov_b64 exec, -1")
    a("s_waitcnt vmcnt(0)")
    a("s_getpc_b64 s[54:55]")
    a("L_cret0:")
    a("s_add_u32 s54, s54, L_cret1-L_cret0"); a("s_addc_u32 s55, s55, 0")
    a("s_branch L_woperm")
    a("L_cret1:")
    a("v_lshlrev_b32 v8, 4, v0")
    a("v_lshl_add_u32 v12, v3, 4, s61")
    for r in range(4):
        a(f"v_mov_b32 v{ACC+r}, 0")
    stamp(5)
    a("L_vloop:")
    a(f"ds_read_b128 {q(YA)}, v12")
    a("v_add_u32 v9, s56, v8")
    a("v_add_u32 v12, 64, v12")
    a("v_add_u32 v5, 1, v5")
    a("s_waitcnt lgkmcnt(0)")
    for n in range(8):
        build_a(QA + 4*n, YA, n)
    lds_wait_ge(14, F_FILL - M0_, "s58", "s57", 6, precheck=True)
    for n in range(8):
        a(f"ds_read_b128 {q(T2+4*n)}, v9 offset:{n*1024}")
    for n in range(8):
        a(f"s_waitcnt lgkmcnt({7-n})")
        a(f"v_mfma_f32_16x16x32_bf16 {q(ACC)}, {q(QA+4*n)}, {q(T2+4*n)}, {q(ACC)}")
    a("ds_write_b32 v13, v5")
    a("s_add_u32 s56, s56, 16384"); a("s_and_b32 s56, s56, 0x1ffff")
    a("s_add_u32 s57, s57, 2")
    a("s_cmp_lt_u32 s57, 257")
    a("s_cbranch_scc1 L_vloop")
    stamp(6)
    lds_wait_ge(14, F_FOK - M0_, "s48", 1, 6)
    a("s_lshl_b32 s48, s60, 2"); a(f"s_add_u32 s48, s48, {L_F}"); a("v_mov_b32 v6, s48")
    a("ds_read_b32 v6, v6")
    a("v_lshrrev_b32 v7, 1, v2"); a("s_lshl_b32 s48, s60, 1"); a("v_add_u32 v7, s48, v7"); a("v_mul_u32_u24 v7, 288, v7")
    a("v_and_b32 v8, 1, v2"); a("v_lshlrev_b32 v8, 3, v8"); a("v_lshl_add_u32 v8, v1, 4, v8")
    a(f"v_add_u32 v7, v7, v8"); a(f"v_add_u32 v7, {L_OB}, v7")
    a("s_waitcnt lgkmcnt(0)")
    for r in range(4):
        a(f"v_mul_f32 v{ACC+r}, v6, v{ACC+r}")
    a(f"v_cvt_pk_bf16_f32 v{ACC}, v{ACC}, v{ACC+1}"); a(f"v_cvt_pk_bf16_f32 v{ACC+1}, v{ACC+2}, v{ACC+3}")
    a(f"ds_write_b64 v7, {q(ACC,2)}")
    a("s_branch L_ystage")

    a("L_woperm:")
    wo_perms()
    a("s_setpc_b64 s[54:55]")

    a("L_helper:")
    a("s_cmp_eq_u32 s3, 3")
    a("s_cbranch_scc1 L_h4")
    if qonly >= 0:
        finish()
    wo_loads()
    a("s_waitcnt vmcnt(0)")
    a("s_getpc_b64 s[54:55]")
    a("L_hret0:")
    a("s_add_u32 s54, s54, L_hret1-L_hret0"); a("s_addc_u32 s55, s55, 0")
    a("s_branch L_woperm")
    a("L_hret1:")
    a("s_cmp_ge_u32 s2, 112")
    a("s_cbranch_scc1 L_ystage")
    if noffn:
        a("s_and_b32 s48, s2, 7"); a("s_mul_i32 s48, s48, 14"); a("s_lshr_b32 s49, s2, 3"); a("s_add_u32 s59, s48, s49"); a("s_sub_u32 s62, s3, 4"); a("s_branch L_ystage")
    a("s_and_b32 s48, s2, 7"); a("s_mul_i32 s48, s48, 14"); a("s_lshr_b32 s49, s2, 3"); a("s_add_u32 s59, s48, s49")
    a("s_sub_u32 s62, s3, 4")
    a("s_cmp_ge_u32 s62, 2")
    a("s_cselect_b32 s44, s18, s16"); a("s_cselect_b32 s45, s19, s17")
    a("s_and_b32 s45, s45, 0xffff"); a("s_mov_b32 s46, 1605632"); a("s_mov_b32 s47, 0x20000")
    a("; staging slot row p (32 B) holds matrix row 32*ks + 16*(p>>4) + 4*(p&3) + ((p>>2)&3): the storage order of h")
    a("v_lshrrev_b32 v7, 1, v0"); a("v_and_b32 v6, 16, v7"); a("v_and_b32 v8, 3, v7"); a("v_lshl_add_u32 v6, v8, 2, v6")
    a("v_bfe_u32 v8, v7, 2, 2"); a("v_add_u32 v6, v6, v8"); a("v_mul_u32_u24 v6, 3584, v6")
    a("v_and_b32 v8, 1, v0"); a("v_lshl_add_u32 v6, v8, 4, v6")
    a("s_and_b32 s48, s62, 1"); a(f"s_mul_i32 s50, s48, {7*32*3584}"); a("s_lshl_b32 s49, s59, 5"); a("s_add_u32 s50, s50, s49")
    a(f"s_lshl_b32 s51, s62, 10"); a(f"s_add_u32 s51, s51, {L_QP}")
    a("v_lshrrev_b32 v9, 2, v1"); a("v_lshl_add_u32 v10, v2, 3, v9"); a("v_lshlrev_b32 v10, 5, v10")
    a("v_and_b32 v11, 3, v1"); a("v_lshl_add_u32 v10, v11, 3, v10"); a("v_add_u32 v10, s51, v10")
    a("s_mov_b32 m0, s51")
    lds_wait_ge(14, F_QOK - M0_, "s48", 1, 12)
    for f in range(7):
        a(f"buffer_load_dwordx4 v6, s[44:47], s50 offen {gflags} lds")
        a(f"s_add_u32 s50, s50, {32*3584}")
        a("s_waitcnt vmcnt(0)")
        a(f"ds_read_b64_tr_b16 {q(QA+4*f,2)}, v10")
        a(f"ds_read_b64_tr_b16 {q(QA+4*f+2,2)}, v10 offset:128")
        a("s_waitcnt lgkmcnt(0)")
        a(f"s_sleep {gsleep}")
    srd(44, 20, 1605632)
    a("v_and_b32 v6, 15, v7"); a("v_mul_u32_u24 v6, 896, v6"); a("v_lshl_add_u32 v6, v3, 5, v6"); a("v_lshl_add_u32 v6, v8, 4, v6")
    a("s_mul_i32 s50, s59, 14336"); a("s_mul_i32 s49, s62, 224"); a("s_add_u32 s50, s50, s49")
    a("v_lshl_add_u32 v10, v2, 2, v9"); a("v_lshlrev_b32 v10, 5, v10"); a("v_lshl_add_u32 v10, v11, 3, v10"); a("v_add_u32 v10, s51, v10")
    DN = QA + 28
    for u in range(0, 7, 2):
        if u == 6:
            a("s_mov_b32 exec_hi, 0")
        a(f"buffer_load_dwordx4 v6, s[44:47], s50 offen {gflags} lds")
        if u == 6:
            a("s_mov_b32 exec_hi, -1")
        a("s_add_u32 s50, s50, 64")
        a("s_waitcnt vmcnt(0)")
        a(f"ds_read_b64_tr_b16 {q(DN+2*u,2)}, v10")
        if u < 6:
            a(f"ds_read_b64_tr_b16 {q(DN+2*u+2,2)}, v10 offset:512")
        a("s_waitcnt lgkmcnt(0)")
        a(f"s_sleep {gsleep}")
    a("s_branch L_ystage")

    a("L_h4:")
    a("v_and_b32 v8, 31, v0"); a("v_lshlrev_b32 v8, 3, v8")
    a("v_mul_u32_u24 v9, 1792, v3"); a("v_add_u32 v9, v9, v8"); a(f"v_add_u32 v9, {L_QP}, v9")
    a("s_lshl_b32 s56, s31, 10"); a(f"s_add_u32 s56, s56, {W_QX}"); a("s_lshl_b32 s57, s29, 8"); a("s_add_u32 s57, s57, s56")
    a("s_add_u32 s62, s62, 1")
    a("v_lshlrev_b32 v5, 4, v0")
    a(f"v_lshlrev_b32 v11, 3, v0"); a(f"v_add_u32 v11, {L_QB}, v11")
    if fbd:
        ng = 256 // fbg
        a(f"s_lshr_b32 s48, s2, 3")
        if fbmix:
            a("s_and_b32 s49, s2, 7"); a(f"s_mul_i32 s49, s49, {fbmix}"); a("s_add_u32 s48, s48, s49")
        a(f"s_and_b32 s48, s48, {ng-1}"); a(f"s_lshl_b32 s48, s48, 12"); a(f"s_add_u32 s48, s48, {W_FB}")
        if fbm == 'st':
            a("s_mov_b32 s94, s48"); a("s_mov_b32 s95, 0")
        else:
            a("s_add_u32 s94, s26, s48"); a("s_addc_u32 s95, s27, 0")
        a("s_and_b32 s49, s2, 7"); a(f"s_lshr_b32 s50, s2, 3"); a(f"s_lshr_b32 s50, s50, {ng.bit_length()-1}"); a("s_or_b32 s49, s49, s50")
        a("s_cbranch_scc1 L_nolead") if fbm != 'st' else a("s_branch L_nolead")
        a("v_lshlrev_b32 v6, 8, v0")
        a("s_mov_b64 exec, 0xffff")
        a("buffer_store_dword v15, v6, s[40:43], s48 offen sc1")
        a("s_mov_b64 exec, -1")
        a("L_nolead:")
    lds_wait_ge(14, F_QCNT - M0_, "s48", 7, 6, sleep=0)
    for p in range(7):
        a(f"ds_read_b64 {q(T+2*p,2)}, v9 offset:{p*256}")
    for p in range(1, 7):
        a(f"s_waitcnt lgkmcnt({6-p})")
        a(f"v_add_f32 v{T}, v{T}, v{T+2*p}"); a(f"v_add_f32 v{T+1}, v{T+1}, v{T+2*p+1}")
    a(f"v_mov_b32 v{T+2}, v{T}"); a(f"v_mov_b32 v{T+3}, v{T+1}"); a("s_nop 1")
    a(f"v_permlane32_swap_b32 v{T}, v{T+2}"); a(f"v_permlane32_swap_b32 v{T+1}, v{T+3}")
    a(f"v_add_f32 v{T}, v{T}, v{T+2}"); a(f"v_add_f32 v{T+1}, v{T+1}, v{T+3}")
    a(f"v_cvt_pk_bf16_f32 v6, v{T}, v{T+1}"); a("v_mov_b32 v7, s62")
    a("s_mov_b32 exec_hi, 0")
    a("buffer_store_dwordx2 v[6:7], v8, s[40:43], s57 offen sc1")
    a("s_mov_b32 exec_hi, -1")
    stamp(3) if qonly >= 0 else None
    bound_init(1 << 17)
    a("L_qpoll:")
    a(f"buffer_load_dwordx4 {q(T)}, v5, s[40:43], s56 offen sc1")
    a("s_waitcnt vmcnt(0)")
    a(f"v_cmp_ne_u32 vcc, s62, v{T+1}"); a(f"v_cmp_ne_u32 s[48:49], s62, v{T+3}")
    a("s_or_b64 vcc, vcc, s[48:49]")
    a("s_cbranch_scc0 L_qok")
    if qsleep:
        a(f"s_sleep {qsleep}")
    bound_loop("L_qpoll")
    a("L_qok:")
    a(f"v_mov_b32 v{T+1}, v{T+2}")
    a(f"ds_write_b64 v11, {q(T,2)}")
    a("v_mov_b32 v6, 1")
    a("s_waitcnt lgkmcnt(0)")
    a(f"ds_write_b32 v14, v6 offset:{F_QOK-M0_}")
    if qonly >= 0:
        stamp(4)
        finish()
    if clrsleep:
        a(f"s_sleep {clrsleep}")
    for r in range(4):
        a(f"v_mov_b32 v{YA+r}, -1")
    a("v_lshlrev_b32 v5, 4, v0")
    a("s_lshl_b32 s48, s31, 2"); a("s_add_u32 s48, s48, s29"); a("s_mul_i32 s48, s48, 1792")
    a(f"buffer_store_dwordx4 {q(YA)}, v5, s[40:43], s48 offen sc1")
    a("s_mov_b32 exec_hi, 0x0000ffff")
    a(f"buffer_store_dwordx4 {q(YA)}, v5, s[40:43], s48 offen offset:1024 sc1")
    a("s_mov_b64 exec, -1")
    a("s_lshl_b32 s61, s31, 7"); a("s_lshl_b32 s48, s29, 5"); a("s_add_u32 s48, s48, s61"); a(f"s_add_u32 s57, s48, {W_ML}")
    a("s_cmp_ge_u32 s2, 112")
    a("s_cbranch_scc1 L_h4_nor2")
    a("s_and_b32 s48, s2, 7"); a("s_mul_i32 s48, s48, 14"); a("s_lshr_b32 s49, s2, 3"); a("s_add_u32 s48, s48, s49")
    a("s_mul_i32 s48, s48, 7168"); a(f"s_add_u32 s48, s48, {W_OP}")
    for k in range(7):
        if k == 4:
            a("s_add_u32 s48, s48, 4096")
        a(f"buffer_store_dwordx4 {q(YA)}, v5, s[40:43], s48 offen offset:{(k&3)*1024} sc1")
    a("L_h4_nor2:")
    a("s_sub_u32 s48, s2, 112"); a("s_mul_i32 s58, s48, 2341"); a("s_lshr_b32 s58, s58, 16"); a("s_mul_i32 s49, s58, 28"); a("s_sub_u32 s59, s48, s49")
    a("v_and_b32 v6, 3, v0"); a("v_bfe_u32 v7, v0, 2, 2")
    a("v_mul_u32_u24 v13, 7168, v7"); a("v_lshl_add_u32 v13, v2, 4, v13"); a("v_lshl_add_u32 v13, v6, 2, v13")
    a("v_lshl_add_u32 v12, v6, 2, v2"); a("v_lshlrev_b32 v12, 1, v12")
    a("s_mul_i32 s56, s58, 1792"); a("s_lshl_b32 s49, s59, 6"); a("s_add_u32 s56, s56, s49")
    a("s_cmp_lt_u32 s48, 112")
    a("s_cbranch_scc0 L_h4_nor1")
    a(f"s_add_u32 s48, s56, {W_HB}")
    for k in range(nrep // 4):
        a(f"buffer_store_dword v{YA}, v13, s[40:43], s48 offen sc1")
        a(f"s_add_u32 s48, s48, {4*7168}")
    a("s_lshr_b32 s48, s56, 1")
    a(f"buffer_load_ushort v11, v12, s[32:35], s48 offen")
    a("L_h4_nor1:")
    srd(44, 24, 256)
    a("s_waitcnt vmcnt(0)")
    if clrstag is not None:
        a(f"s_lshr_b32 s49, s2, {clrstag}"); a("s_add_u32 s49, s49, 8")
        lds_wait_ge(14, F_FILL - M0_, "s48", "s49", 6, sleep=4)
    if satom:
        a("s_mov_b32 s48, 1")
        a("s_atomic_add s48, s[24:25], 0")
        a("s_waitcnt lgkmcnt(0)")
    else:
        a("v_mov_b32 v6, 1")
        a("s_mov_b64 exec, 1")
        a("buffer_atomic_add v6, v15, s[44:47], 0 offen sc1")
        a("s_mov_b64 exec, -1")
    if fbd:
        a("s_getpc_b64 s[52:53]")
        a("L_fb0:")
        a("s_add_u32 s52, s52, L_fb-L_fb0"); a("s_addc_u32 s53, s53, 0")
        if fbm == 'st':
            ng = 256 // fbg
            a(f"s_lshr_b32 s48, s2, {3 + ng.bit_length() - 1}"); a("s_lshl_b32 s48, s48, 3"); a("s_and_b32 s49, s2, 7"); a("s_add_u32 s48, s48, s49"); a("s_lshl_b32 s48, s48, 2")
            a(f"v_mov_b32 v{FX}, s48"); a(f"v_lshlrev_b32 v{FX+1}, 2, v0")
        a("s_mov_b32 s51, 0")
        sched = list(fbs) if fbs else list(range(fbk, 256, fbk))
        for gi in range(8):
            lim = 16 * (gi + 1)
            did = False
            for tt in [t for t in sched if lim - 16 < t <= lim]:
                a(f"s_mov_b32 s50, {tt}")
                a("s_swappc_b64 s[54:55], s[52:53]")
                did = True
            if not did:
                lds_wait_ge(14, F_FILL - M0_, "s48", lim, 6, sleep=8)
            if not nowo:
                ks, eh = gi >> 1, gi & 1
                a(f"s_mov_b32 s48, {(ks*32 + eh*4)*896}")
                for e in range(4):
                    a(f"buffer_load_dwordx4 {q(WO+ks*32+(eh*4+e)*4)}, v4, s[36:39], s48 offen offset:{e*896} {woflags}")
                    a("s_waitcnt vmcnt(0)")
    else:
        wo_loads()
    a("s_waitcnt vmcnt(0)")
    a("s_getpc_b64 s[54:55]")
    a("L_gret0:")
    a("s_add_u32 s54, s54, L_gret1-L_gret0"); a("s_addc_u32 s55, s55, 0")
    a("s_branch L_woperm")
    a("L_gret1:")
    lds_wait_ge(14, F_MLCNT - M0_, "s48", 2, 6, sleep=16)
    a("v_lshlrev_b32 v8, 3, v0"); a(f"v_add_u32 v8, {L_ML}, v8")
    a("s_mov_b64 exec, 3")
    a("ds_read_b64 v[6:7], v8")
    a("v_lshlrev_b32 v9, 4, v0")
    a("s_waitcnt lgkmcnt(0)")
    a(f"v_mov_b32 v{YA}, v6"); a(f"v_mov_b32 v{YA+1}, s62"); a(f"v_mov_b32 v{YA+2}, v7"); a(f"v_mov_b32 v{YA+3}, s62")
    a(f"buffer_store_dwordx4 {q(YA)}, v9, s[40:43], s57 offen sc1")
    a("s_mov_b64 exec, -1")
    a("v_and_b32 v8, 7, v0"); a("v_lshlrev_b32 v9, 4, v8")
    a(f"s_add_u32 s61, s61, {W_ML}")
    bound_init(1 << 17)
    a("L_mlpoll:")
    a(f"buffer_load_dwordx4 {q(YA+4)}, v9, s[40:43], s61 offen sc1")
    a("s_waitcnt vmcnt(0)")
    a(f"v_cmp_ne_u32 vcc, s62, v{YA+5}"); a(f"v_cmp_ne_u32 s[48:49], s62, v{YA+7}")
    a("s_or_b64 vcc, vcc, s[48:49]")
    a("s_cbranch_scc0 L_mlgot")
    a("s_sleep 24")
    bound_loop("L_mlpoll")
    a("L_mlgot:")
    a(f"v_mov_b32 v6, v{YA+4}"); a(f"v_mov_b32 v7, v{YA+6}")
    a("L_mlok:")
    a("v_mov_b32 v10, v6")
    for d in ("row_ror:4", "row_ror:2", "row_ror:1"):
        a("s_nop 1")
        a(f"v_max_f32_dpp v10, v10, v10 {d} row_mask:0xf bank_mask:0xf")
    a("v_sub_f32 v6, v6, v10"); a(f"v_mul_f32 v6, {LOG2E_16:#x}, v6"); a("v_exp_f32 v6, v6"); a("s_nop 0")
    a("v_mul_f32 v7, v6, v7")
    for d in ("row_ror:4", "row_ror:2", "row_ror:1"):
        a("s_nop 1")
        a(f"v_add_f32_dpp v7, v7, v7 {d} row_mask:0xf bank_mask:0xf")
    a("v_rcp_f32 v7, v7"); a("v_lshrrev_b32 v9, 1, v0"); a("v_and_b32 v8, 1, v0")
    a("v_mul_f32 v6, v6, v7")
    a(f"v_lshlrev_b32 v8, 2, v8"); a(f"v_add_u32 v8, {L_F}, v8")
    a("v_cmp_eq_u32 vcc, s29, v9")
    a("s_mov_b64 exec, vcc")
    a("ds_write_b32 v8, v6")
    a("s_mov_b64 exec, 1")
    a("v_mov_b32 v6, 1")
    a("s_waitcnt lgkmcnt(0)")
    a(f"ds_write_b32 v14, v6 offset:{F_FOK-M0_}")
    a("s_mov_b64 exec, -1")

    a("s_load_dword s48, s[24:25], 0 glc")
    a("s_waitcnt lgkmcnt(0)")
    bound_init(1 << 17)
    a("L_cntpoll:")
    a("s_cmp_ge_u32 s48, 256")
    a("s_cbranch_scc1 L_cntok")
    a("s_sleep 64")
    a("s_mov_b32 s48, 0")
    a("s_atomic_add s48, s[24:25], 0 glc")
    a("s_waitcnt lgkmcnt(0)")
    bound_loop("L_cntpoll")
    a("L_cntok:")
    a("s_cmp_lg_u32 s2, 0")
    a("s_cbranch_scc1 L_noep")
    a("v_mov_b32 v6, s62"); a(f"s_mov_b32 s48, {W_EP}")
    a("s_mov_b64 exec, 1")
    a("buffer_store_dword v6, v15, s[40:43], s48 offen sc1")
    a("s_mov_b64 exec, -1")
    a("L_noep:")
    if fbd:
        for tt in [t for t in sched if t > 128]:
            a(f"s_mov_b32 s50, {tt}")
            a("s_swappc_b64 s[54:55], s[52:53]")
        a("s_branch L_ystage")
        a("L_fb:")
        lds_wait_ge(14, F_FILL - M0_, "s48", "s50", 6, sleep=4)
        if fbm == 'st':
            a("s_add_u32 s48, s62, s50"); a("v_mov_b32 v6, s48")
            a("s_mov_b64 exec, 1")
            a(f"buffer_store_dword v6, v84, s[40:43], s94 offen {fbfl}")
            a(f"s_mov_b64 exec, {hex((1 << fbg) - 1) if fbg < 64 else -1}")
            a(f"buffer_load_dword v6, v85, s[40:43], s94 offen {fbfl}")
            a("s_waitcnt vmcnt(0)")
            a("v_subrev_u32 v6, s48, v6"); a("v_cmp_gt_u32 vcc, 64, v6")
            a("s_mov_b64 exec, -1")
            a("s_bcnt1_i32_b64 s48, vcc")
        elif fbm == 'none':
            a("s_mov_b32 s48, 12")
        elif fbm == 'noret':
            a("s_mov_b32 s48, 1")
            a("s_atomic_add s48, s[94:95], 0")
            a("s_waitcnt lgkmcnt(0)")
        elif fbm == 'sld':
            a("s_load_dword s48, s[94:95], 0 glc")
            a("s_waitcnt lgkmcnt(0)")
        else:
            a("s_mov_b32 s48, 1")
            a("s_atomic_add s48, s[94:95], 0 glc")
            a("s_waitcnt lgkmcnt(0)")
            if fbsame:
                a("s_sub_u32 s48, s48, s51"); a("s_max_i32 s48, s48, 0"); a(f"s_add_u32 s51, s51, {fbg}")
        order = sorted(range(len(fbd) + 1), key=lambda i: ([depth] + list(fbd))[i])
        a(f"s_mov_b32 s49, {order[0]}")
        for th, idx in zip(fbt, order[1:]):
            a(f"s_cmp_ge_u32 s48, {th*fbg//256}"); a(f"s_cselect_b32 s49, {idx}, s49")
        a("v_mov_b32 v6, s49")
        a(f"ds_write_b32 v14, v6 offset:{F_DEP-M0_}")
        if not fbsame:
            a("s_add_u32 s94, s94, 256"); a("s_addc_u32 s95, s95, 0")
        a("s_setpc_b64 s[54:55]")

    a("L_ystage:")
    a("v_and_b32 v6, 1, v1"); a("v_bfe_u32 v7, v1, 2, 1"); a("v_lshl_add_u32 v6, v6, 1, v7"); a("v_mul_u32_u24 v6, 288, v6")
    a(f"v_lshl_add_u32 v6, v2, 4, v6"); a(f"v_add_u32 v6, {L_OB}, v6")
    a("v_lshlrev_b32 v7, 5, v1"); a("v_lshl_add_u32 v7, v2, 4, v7")
    a("s_lshl_b32 s48, s31, 2"); a("s_add_u32 s48, s48, s29"); a("s_mul_i32 s48, s48, 1792"); a("s_lshl_b32 s49, s60, 8"); a("s_add_u32 s49, s48, s49")
    a("s_waitcnt lgkmcnt(0)")
    a("s_barrier")
    stamp(7) if False else None
    for ks in range(4):
        a(f"ds_read_b128 {q(YA+4*ks)}, v6 offset:{ks*64}")
    S = ABUF
    for t in range(8):
        for ks in range(4):
            if t == 0:
                a(f"s_waitcnt lgkmcnt({3-ks})")
            a(f"v_mfma_f32_16x16x32_bf16 {q(T2+4*t)}, {q(YA+4*ks)}, {q(wfrag(ks,t))}, {q(T2+4*t) if ks else 0}")
        if t >= 2:
            a(f"v_add_f32 v{S+t-2}, v{T2+4*(t-2)}, v{T2+4*(t-2)+1}")
    a("s_nop 2")
    a(f"v_add_f32 v{S+6}, v{T2+24}, v{T2+25}")
    a("s_nop 2")
    a(f"v_add_f32 v{S+7}, v{T2+28}, v{T2+29}")
    for t in range(4):
        if t == 3:
            a("s_nop 0")
        a(f"v_permlane16_swap_b32 v{S+t}, v{S+t+4}")
    a("s_nop 0")
    for t in range(4):
        a(f"v_add_f32_dpp v{S+t}, v{S+t+4}, v{S+t} row_shl:8 row_mask:0xf bank_mask:0xf")
    a("s_mov_b64 exec, 0x00ff00ff")
    a(f"buffer_store_dwordx4 {q(S)}, v7, s[40:43], s49 offen sc1")
    a("s_mov_b64 exec, -1")
    stamp(7)
    a("s_cmp_lt_u32 s3, 3")
    a("s_cbranch_scc1 L_done")
    a("s_cmp_eq_u32 s3, 3")
    a("s_cbranch_scc1 L_r1")
    a("s_cmp_ge_u32 s2, 112")
    a("s_cbranch_scc1 L_done")

    a("v_lshlrev_b32 v5, 5, v0")
    a(f"s_and_b32 s48, s2, {nrep-1}"); a("s_mul_i32 s48, s48, 7168"); a("s_mul_i32 s49, s62, 1792"); a("s_add_u32 s48, s48, s49")
    a(f"s_add_u32 s56, s48, {W_HB}"); a("s_add_u32 s57, s56, 16")
    X = T2
    for e in range(8):
        a(f"v_mov_b32 v{X+e}, 0")
    a("v_lshlrev_b32 v8, 4, v0"); a("s_mul_i32 s48, s62, 960"); a(f"s_add_u32 s48, s48, {L_XN2}"); a("v_add_u32 v8, s48, v8")
    a("v_and_b32 v9, 3, v1"); a("v_mul_u32_u24 v10, 960, v9"); a("v_lshl_add_u32 v10, v2, 4, v10")
    a("s_and_b32 s48, s62, 1"); a("s_mul_i32 s48, s48, 448"); a(f"s_add_u32 s48, s48, {L_XN2}"); a("v_add_u32 v10, s48, v10")
    a("v_lshlrev_b32 v11, 6, v9"); a("v_lshl_add_u32 v11, v2, 4, v11"); a(f"v_add_u32 v11, {L_GU}, v11")
    a("s_lshl_b32 s48, s62, 8"); a("v_add_u32 v12, s48, v11")
    a("v_mul_u32_u24 v13, 1792, v1"); a("v_lshl_add_u32 v13, v2, 4, v13")
    a("s_mul_i32 s58, s59, 7168"); a("s_mul_i32 s48, s62, 448"); a("s_add_u32 s58, s58, s48"); a(f"s_add_u32 s58, s58, {W_OP}")
    if r2sleep:
        a(f"s_sleep {r2sleep}")
    a("s_mov_b32 exec_hi, 0x00ffffff")
    poll_quads(2, X, 5, ["s56", "s57"], 40, 6)
    a("s_mov_b32 exec_hi, -1")
    stamp(3)
    layernorm(X, T2 + 8)
    for d in range(4):
        a(f"v_cvt_pk_bf16_f32 v{YA+d}, v{X+2*d}, v{X+2*d+1}")
    a("s_mov_b32 exec_hi, 0x00ffffff")
    a(f"ds_write_b128 v8, {q(YA)}")
    a("s_mov_b32 exec_hi, -1")
    a("s_waitcnt lgkmcnt(0)")
    a("s_barrier")
    for f in range(7):
        a(f"ds_read_b128 {q(T2+4*f)}, v10 offset:{f*64}")
    for f in range(7):
        a(f"s_waitcnt lgkmcnt({6-f})")
        a(f"v_mfma_f32_16x16x32_bf16 {q(ACC)}, {q(QA+4*f)}, {q(T2+4*f)}, {q(ACC) if f else 0}")
    a("s_nop 7")
    a(f"ds_write_b128 v12, {q(ACC)}")
    a("s_waitcnt lgkmcnt(0)")
    a("s_barrier")
    for p in range(4):
        a(f"ds_read_b128 {q(YA+4*p)}, v11 offset:{p*256}")
    a("s_waitcnt lgkmcnt(2)")
    for r in range(4):
        a(f"v_add_f32 v{YA+r}, v{YA+r}, v{YA+4+r}")
    a("s_waitcnt lgkmcnt(0)")
    for r in range(4):
        a(f"v_add_f32 v{YA+8+r}, v{YA+8+r}, v{YA+12+r}")
    for r in range(4):
        a(f"v_cvt_pk_bf16_f32 v{YA+4+r}, v{YA+r}, v{YA+8+r}")
    for r in range(4):
        a(f"v_lshlrev_b32 v{YA+r}, 16, v{YA+4+r}"); a(f"v_and_b32 v{YA+4+r}, 0xffff0000, v{YA+4+r}")
    for r in range(4):
        a(f"v_mul_f32 v{YA+r}, v{YA+r}, v{YA+4+r}")
    a(f"v_cvt_pk_bf16_f32 v{YA+8}, v{YA}, v{YA+1}"); a(f"v_cvt_pk_bf16_f32 v{YA+9}, v{YA+2}, v{YA+3}")
    a("s_nop 1")
    for u in range(7):
        a(f"v_mfma_f32_16x16x16_bf16 {q(T2+4*u)}, {q(DN+2*u,2)}, {q(YA+8,2)}, 0")
    a("s_mov_b32 exec_lo, 0x000f000f"); a("s_mov_b32 exec_hi, 0x000f000f")
    for u in range(7):
        if u == 0:
            a("s_nop 0")
        a(f"buffer_store_dwordx4 {q(T2+4*u)}, v13, s[40:43], s58 offen offset:{u*64} sc1")
        if u < 6:
            a("s_nop 0")
    a("s_mov_b64 exec, -1")
    stamp(4)
    a("s_branch L_done")

    a("L_r1:")
    a("s_sub_u32 s48, s2, 112")
    a("s_cmp_lt_u32 s48, 112")
    a("s_cbranch_scc0 L_done")
    a("v_lshrrev_b32 v5, 2, v0"); a("v_and_b32 v6, 3, v0"); a("v_lshlrev_b32 v6, 4, v6")
    a("v_mul_u32_u24 v7, 1792, v5"); a("v_add_u32 v7, v7, v6")
    a("v_mul_u32_u24 v8, 7168, v5"); a("v_add_u32 v8, v8, v6")
    a(f"s_mul_i32 s44, s58, {64*1792}"); a("s_lshl_b32 s48, s59, 6"); a("s_add_u32 s44, s44, s48")
    for g in range(1, 4):
        a(f"s_add_u32 s{44+g}, s{43+g}, {16*1792}")
    a("v_lshlrev_b32 v11, 16, v11")
    poll_quads(4, T2, 7, ["s44", "s45", "s46", "s47"], 40, 6)
    stamp(3)
    for r in range(4):
        a(f"v_add_f32 v{T2+r}, v{T2+r}, v{T2+4+r}"); a(f"v_add_f32 v{T2+8+r}, v{T2+8+r}, v{T2+12+r}")
    for r in range(4):
        a(f"v_add_f32 v{T2+r}, v{T2+r}, v{T2+8+r}")
    xreduce(T2)
    bf16r(T2, T2)
    a(f"v_add_f32 v11, v11, v{T2}")
    bf16r(11, 11)
    a(f"s_add_u32 s48, s56, {W_HB}")
    for k in range(nrep // 4):
        a("buffer_store_dword v11, v13, s[40:43], s48 offen sc1")
        if k + 1 < nrep // 4:
            a(f"s_add_u32 s48, s48, {4*7168}")
    stamp(4)
    so = ["s32", "s33", "s34", "s35", "s36", "s37", "s38"]
    a(f"s_add_u32 s32, s56, {W_OP}")
    for g in range(1, 7):
        a(f"s_add_u32 {so[g]}, {so[g-1]}, {16*7168}")
    srd(44, 22, 3584)
    a("s_waitcnt vmcnt(0)")
    poll_quads(7, T2, 8, so, 40, 6)
    stamp(5)
    for r in range(4):
        a(f"v_add_f32 v{T2+r}, v{T2+r}, v{T2+4+r}"); a(f"v_add_f32 v{T2+8+r}, v{T2+8+r}, v{T2+12+r}")
        a(f"v_add_f32 v{T2+16+r}, v{T2+16+r}, v{T2+20+r}")
    for r in range(4):
        a(f"v_add_f32 v{T2+r}, v{T2+r}, v{T2+8+r}"); a(f"v_add_f32 v{T2+16+r}, v{T2+16+r}, v{T2+24+r}")
    for r in range(4):
        a(f"v_add_f32 v{T2+r}, v{T2+r}, v{T2+16+r}")
    xreduce(T2)
    bf16r(T2, T2)
    a(f"v_add_f32 v11, v11, v{T2}")
    a("v_cvt_pk_bf16_f32 v11, v11, v11")
    a("s_lshr_b32 s48, s56, 1")
    a("s_mov_b32 exec_lo, 0x000f000f"); a("s_mov_b32 exec_hi, 0x000f000f")
    a("buffer_store_short v11, v12, s[44:47], s48 offen")
    a("s_mov_b64 exec, -1")
    stamp(6)
    a("L_done:")
    finish()

    a("L_loader:")
    a("; ---- wave 0: streams K then V (1 MiB each) into the LDS ring, DEPTH KiB in flight")
    a("s_setprio 3")
    a("v_and_b32 v4, 31, v0")
    for k in range(8):
        a(f"v_add_u32 v5, {2*k}, v3"); a("v_xor_b32 v5, v5, v4") if not noswz else a("v_mov_b32 v5, v4"); a("v_lshlrev_b32 v5, 4, v5"); a(f"v_lshl_add_u32 v{8+k}, v3, 9, v5")
    a("v_lshlrev_b32 v16, 4, v0")
    a(f"v_mov_b32 v24, {M0_}"); a(f"v_mov_b32 v17, {F_CONS}")
    for r in range(4):
        a(f"v_mov_b32 v{20+r}, 0")
    a("ds_write_b128 v24, v[20:23]"); a("ds_write_b128 v24, v[20:23] offset:16")
    a("s_lshl_b32 s48, s31, 22"); a("s_lshl_b32 s49, s29, 20"); a("s_add_u32 s48, s48, s49")
    a("s_waitcnt lgkmcnt(0)")
    for r, p in ((32, 6), (36, 8)):
        a(f"s_add_u32 s{r}, s{p}, s48"); a(f"s_addc_u32 s{r+1}, s{p+1}, 0"); a(f"s_and_b32 s{r+1}, s{r+1}, 0xffff")
        a(f"s_mov_b32 s{r+2}, 0x100000"); a(f"s_mov_b32 s{r+3}, 0x20000")
    if diag:
        srd(40, 26, WS_BYTES)
    a("s_mov_b32 s56, 0")
    a("s_mov_b32 s57, 0")
    a("s_mov_b32 s58, 0")
    a("v_mov_b32 v18, 0")

    a("v_mov_b32 v25, 0")
    depths = [depth] + list(fbd)
    tend = 256 if qonly < 0 else qonly
    if qonly == 0:
        a("s_barrier"); finish()
    a("L_ltop:")
    a("; slot free? consumer (T&1) must have finished tile T-16")
    a("s_lshr_b32 s49, s58, 1"); a("s_sub_u32 s49, s49, 7")
    p, go = lab("fp"), lab("fg")
    a("s_waitcnt lgkmcnt(0)")
    a("v_readfirstlane_b32 s48, v18")
    a("v_readfirstlane_b32 s50, v25")
    a("s_cmp_ge_i32 s48, s49")
    a(f"s_cbranch_scc1 {go}")
    bound_init()
    a(f"{p}:")
    a("ds_read_b32 v18, v17"); a("s_waitcnt lgkmcnt(0)"); a("v_readfirstlane_b32 s48, v18")
    a("s_cmp_ge_i32 s48, s49")
    a(f"s_cbranch_scc1 {go}")
    a("s_sleep 1")
    bound_loop(p)
    a(f"{go}:")
    a("v_xor_b32 v17, 12, v17")
    a("s_mov_b32 m0, s56")
    for di in range(1, len(depths)):
        a(f"s_cmp_eq_u32 s50, {di}"); a(f"s_cbranch_scc1 L_ld{di}")
    for di, dd in enumerate(depths):
        kpub, lag = (dd - 1) % 8, (dd - 1) // 8
        a(f"L_ld{di}:")
        for k in range(8):
            if k == 4:
                a("s_add_u32 m0, s56, 4096"); a("s_add_u32 s57, s57, 4096")
            if k == kpub:
                a(f"s_sub_u32 s49, s58, {lag}"); a("s_max_i32 s49, s49, 0"); a("v_mov_b32 v19, s49")
            a(f"s_waitcnt vmcnt({dd-1})")
            a(f"buffer_load_dwordx4 v{8+k}, s[32:35], s57 offen offset:{(k&3)*1024} nt lds")
            if k == kpub:
                a("ds_write_b32 v24, v19")
            if k == 6:
                a("ds_read_b32 v18, v17")
                if len(depths) > 1:
                    a(f"ds_read_b32 v25, v24 offset:{F_DEP-M0_}")
            if di == 0 and k == barpos:
                sk = lab("nb")
                a("s_cmp_lg_u32 s58, 0"); a(f"s_cbranch_scc1 {sk}"); a("s_barrier"); a(f"{sk}:")
        if di + 1 < len(depths):
            a("s_branch L_lnext")
    a("L_lnext:")
    a("s_add_u32 s57, s57, 4096")
    a("s_add_u32 s56, s56, 8192"); a("s_and_b32 s56, s56, 0x1ffff")
    a("s_add_u32 s58, s58, 1")
    if diag:
        for kk, tt in (((4, 16), (5, 32), (6, 64), (7, 192)) if qonly < 0 else ((4, 3), (5, 4), (6, 6), (7, 10))):
            sk = lab("st")
            a(f"s_cmp_lg_u32 s58, {tt}"); a(f"s_cbranch_scc1 {sk}"); stamp(kk); a(f"{sk}:")
    a("s_cmp_lg_u32 s58, 128")
    a("s_cbranch_scc1 L_lnosw")
    a("; switch the stream from K to V")
    a("s_mov_b32 s32, s36"); a("s_mov_b32 s33, s37"); a("s_mov_b32 s57, 0")
    for k in range(8):
        a(f"v_mov_b32 v{8+k}, v16")
    stamp(1)
    a("L_lnosw:")
    a(f"s_cmp_lt_u32 s58, {tend}")
    a("s_cbranch_scc1 L_ltop")
    if qonly > 0:
        a("s_waitcnt vmcnt(0)"); stamp(1); finish()
    stamp(2)
    for c in range(256 - (max(depths) - 1) // 8, 257):
        a(f"v_mov_b32 v19, {c}")
        a(f"s_waitcnt vmcnt({8*(256-c)})")
        a("ds_write_b32 v24, v19")
    a("s_waitcnt lgkmcnt(0)")
    stamp(3)
    finish()

    if diag:
        a("L_stamps:")
        if dbgstamps:
            srd(44, 24, 256)
            a("s_mov_b64 exec, 1")
            def amax(sreg, slot, inv=False):
                a(f"s_not_b32 s48, {sreg}") if inv else a(f"s_mov_b32 s48, {sreg}")
                a("v_mov_b32 v4, s48"); a(f"v_mov_b32 v5, {slot*4}")
                a("buffer_atomic_umax v4, v5, s[44:47], 0 offen sc1")
            a("s_cmp_lg_u32 s3, 0"); a("s_cbranch_scc1 L_ds1")
            amax("s64", 1, True); amax("s64", 2); amax("s72", 3); amax("s66", 4); amax("s70", 5); amax("s70", 6, True)
            a("s_endpgm")
            a("L_ds1:")
            a("s_cmp_lg_u32 s3, 1"); a("s_cbranch_scc1 L_ds2")
            amax("s70", 12); amax("s78", 7)
            a("s_endpgm")
            a("L_ds2:")
            a("s_cmp_lg_u32 s3, 3"); a("s_cbranch_scc1 L_ds3")
            amax("s70", 8); amax("s72", 13); amax("s74", 14); amax("s76", 11)
            a("s_endpgm")
            a("L_ds3:")
            a("s_cmp_lt_u32 s3, 4"); a("s_cbranch_scc1 L_exit")
            amax("s70", 9); amax("s72", 10)
            a("s_endpgm")
        a("v_mov_b32 v4, 0")
        for k in range(8):
            a(f"v_writelane_b32 v4, s{64+2*k}, {k}")
        a("s_getreg_b32 s48, hwreg(HW_REG_XCC_ID, 0, 4)")
        a("v_writelane_b32 v4, s48, 8")
        a("v_writelane_b32 v4, s63, 9")
        a("v_lshlrev_b32 v5, 2, v0")
        a("s_lshl_b32 s48, s2, 3"); a("s_add_u32 s48, s48, s3"); a("s_lshl_b32 s48, s48, 6"); a(f"s_add_u32 s48, s48, {W_ST}")
        a("s_mov_b64 exec, 0xffff")
        a("buffer_store_dword v4, v5, s[40:43], s48 offen")
    a("L_exit:")
    a("s_endpgm")
    a('.section .rodata,"a"')
    a(".p2align 6")
    a(f".amdhsa_kernel {KNAME}")
    a("  .amdhsa_next_free_vgpr 256")
    a("  .amdhsa_next_free_sgpr 96")
    a("  .amdhsa_accum_offset 256")
    a("  .amdhsa_group_segment_fixed_size 0")
    a("  .amdhsa_kernarg_size 96")
    a("  .amdhsa_user_sgpr_count 2")
    a("  .amdhsa_user_sgpr_kernarg_segment_ptr 1")
    a("  .amdhsa_system_sgpr_workgroup_id_x 1")
    a("  .amdhsa_float_denorm_mode_32 3")
    a(".end_amdhsa_kernel")
    out = []
    for x in L:
        if x is None:
            continue
        if x.endswith(":") or x.startswith((";", ".")) or x.startswith("  ."):
            out.append(x)
        else:
            out.append("    " + x)
    return "\n".join(out) + "\n"


if __name__ == "__main__":
    kw = eval("dict(%s)" % (sys.argv[2] if len(sys.argv) > 2 else ""))
    open(sys.argv[1], "w").write(gen(**kw))
```

```python
import sys
KNAME = "sequential_preLN__mha_block_cached__glu_gated_bilinear__decode_kernel"

HEADER = """; Kernarg layout for this problem (96 bytes, ptrs only, base s[0:1]):
;   offset   0: d_in[0] A_x  shape=(4, 1, 448) dtype=bfloat16 strides=(896, 896, 2) contiguous=True
;   offset   8: d_in[1] A_k_cache  shape=(4, 16, 8192, 256) dtype=bfloat16 strides=(67108864, 4194304, 512, 2) contiguous=True
;   offset  16: d_in[2] A_v_cache  shape=(4, 16, 8192, 256) dtype=bfloat16 strides=(67108864, 4194304, 512, 2) contiguous=True
;   offset  24: d_in[3] A_wq  shape=(448, 4096) dtype=bfloat16 strides=(8192, 2) contiguous=True
;   offset  32: d_in[4] A_wo  shape=(4096, 448) dtype=bfloat16 strides=(896, 2) contiguous=True
;   offset  40: d_in[5] B_x  shape=(4, 1, 448) dtype=bfloat16 strides=(896, 896, 2) contiguous=True
;   offset  48: d_in[6] B_w_gate  shape=(448, 1792) dtype=bfloat16 strides=(3584, 2) contiguous=True
;   offset  56: d_in[7] B_w_up  shape=(448, 1792) dtype=bfloat16 strides=(3584, 2) contiguous=True
;   offset  64: d_in[8] B_w_down  shape=(1792, 448) dtype=bfloat16 strides=(896, 2) contiguous=True
;   offset  88: d_ws      1073741824 bytes workspace"""

RING = 0
M0_ = 131072
F_FILL, F_CONS, F_QCNT, F_MLCNT, F_FOK, F_QOK = M0_, M0_ + 4, M0_ + 12, M0_ + 16, M0_ + 20, M0_ + 24
F_DEP = M0_ + 28
L_ML, L_F = M0_ + 32, M0_ + 48
L_XN = M0_ + 128
L_QP = M0_ + 1024
L_QB = M0_ + 8192
L_PB = M0_ + 9216
L_OB = M0_ + 13312
L_XN2 = M0_ + 14592
L_GU = M0_ + 18432
LDS_BYTES = M0_ + 19456
W_YP = 0
W_ML = 0x80000
W_HB = 0x90000
W_OP = 0xC0000
W_QX = 0x1A0000
W_EP = 0x1C0000
W_FB = 0x1E0000
W_ST = 0x200000
WS_BYTES = 0x400000
SEL, ABUF, ACC, YA, QA, FX, T, WO = 16, 24, 32, 36, 52, 84, 96, 128
T2 = WO + 96
LOG2E_16 = 0x3db8aa3b
INV448 = 0x3b124925
EPS = 0x3727c5ac


def gen(depth=22, diag=False, nrep=8, xl=2, spin_bound=True, poll_sleep=2, dump=False, noswz=False, nowo=False, noffn=False, noclr=False, qonly=-1, qrot=0, latebar=False, nwq=32, qdelay=0, fbd=(18, 20, 24, 27, 32), fbt=(24, 80, 160, 208, 240), fbk=16, fbg=8, r2sleep=0, clrstag=None, fbs=(128, 192, 224, 240), dbgstamps=False, r3sleep=0, r1sleep=0, opl=1, sttest=0, spf=False, clrfl='sc1', spt0=8, ffn_first=True, wopf=False, dflags='nt', r2dep=0, fbrot=0, wt0=64, wdt=2, gt0=40, gdt=2, ypl=0, fbm='at', krot=0, fbsame=False, fbmix=4, fbfl='sc1', wohit=False, satom=True, clrsleep=0, qsleep=1, barpos=7, qwin=8, wopace=1, wosleep=8, gpace=2, gsleep=4, wstart=40, wflags='nt', gflags=None, woflags='nt', dk=None):
    if gflags is None:
        gflags = '' if spf else 'nt'
    L = []
    a = L.append
    uid = [0]

    def lab(p):
        uid[0] += 1
        return f"L_{p}{uid[0]}"

    def q(r, n=4):
        return f"v[{r}:{r+n-1}]"

    def srd(r, p, nbytes):
        a(f"s_mov_b32 s{r}, s{p}")
        a(f"s_and_b32 s{r+1}, s{p+1}, 0xffff")
        a(f"s_mov_b32 s{r+2}, {nbytes}")
        a(f"s_mov_b32 s{r+3}, 0x20000")

    def stamp(k):
        if diag:
            a(f"s_memrealtime s[{64+2*k}:{65+2*k}]")
            a("s_waitcnt lgkmcnt(0)")

    def finish():
        if diag:
            a("s_branch L_stamps")
        else:
            a("s_endpgm")

    def bound_init(n=1 << 20):
        if spin_bound:
            a(f"s_mov_b32 s63, {n}")

    def bound_loop(target):
        if spin_bound:
            a("s_sub_u32 s63, s63, 1")
            a(f"s_cbranch_scc0 {target}")
        else:
            a(f"s_branch {target}")

    def lds_wait_ge(vaddr, off, sdst, cmp_operand, vt, sleep=1, precheck=False):
        p, go = lab("poll"), lab("go")
        if precheck:
            a(f"s_cmp_ge_u32 {sdst}, {cmp_operand}")
            a(f"s_cbranch_scc1 {go}")
        bound_init()
        a(f"{p}:")
        a(f"ds_read_b32 v{vt}, v{vaddr} offset:{off}")
        a("s_waitcnt lgkmcnt(0)")
        a(f"v_readfirstlane_b32 {sdst}, v{vt}")
        a(f"s_cmp_ge_u32 {sdst}, {cmp_operand}")
        a(f"s_cbranch_scc1 {go}")
        if sleep:
            a(f"s_sleep {sleep}")
        bound_loop(p)
        a(f"{go}:")

    def wave_red(op, v, sdst):
        for d in ("row_ror:8", "row_ror:4", "row_ror:2", "row_ror:1"):
            a("s_nop 1")
            a(f"{op}_dpp v{v}, v{v}, v{v} {d} row_mask:0xf bank_mask:0xf")
        a("s_nop 1")
        a(f"{op}_dpp v{v}, v{v}, v{v} row_bcast:15 row_mask:0xa bank_mask:0xf")
        a("s_nop 1")
        a(f"{op}_dpp v{v}, v{v}, v{v} row_bcast:31 row_mask:0xc bank_mask:0xf")
        a("s_nop 0")
        a(f"v_readlane_b32 {sdst}, v{v}, 63")
        a("s_nop 1")

    def bf16r(dst, src):
        a(f"v_cvt_pk_bf16_f32 v{dst}, v{src}, v{src}")
        a(f"v_and_b32 v{dst}, 0xffff0000, v{dst}")

    def layernorm(X, t):
        a(f"v_add_f32 v{t}, v{X}, v{X+1}"); a(f"v_add_f32 v{t+1}, v{X+2}, v{X+3}")
        a(f"v_add_f32 v{t+2}, v{X+4}, v{X+5}"); a(f"v_add_f32 v{t+3}, v{X+6}, v{X+7}")
        a(f"v_add_f32 v{t}, v{t}, v{t+1}"); a(f"v_add_f32 v{t+2}, v{t+2}, v{t+3}")
        a(f"v_add_f32 v{t}, v{t}, v{t+2}")
        wave_red("v_add_f32", t, "s48")
        a(f"v_mov_b32 v{t+1}, {INV448:#x}")
        a(f"v_mul_f32 v{t+1}, s48, v{t+1}")
        a(f"v_mov_b32 v{t}, 0")
        a("s_mov_b32 exec_hi, 0x00ffffff")
        for e in range(8):
            a(f"v_sub_f32 v{t+4+e}, v{X+e}, v{t+1}")
        for e in range(8):
            a(f"v_fmac_f32 v{t}, v{t+4+e}, v{t+4+e}")
        a("s_mov_b32 exec_hi, -1")
        bf16r(t + 1, t + 1)
        wave_red("v_add_f32", t, "s48")
        a(f"v_mov_b32 v{t+2}, {INV448:#x}")
        a(f"v_mul_f32 v{t+2}, s48, v{t+2}")
        for e in range(8):
            a(f"v_sub_f32 v{X+e}, v{X+e}, v{t+1}")
        bf16r(t + 2, t + 2)
        a(f"v_add_f32 v{t+2}, {EPS:#x}, v{t+2}")
        bf16r(t + 2, t + 2)
        a(f"v_sqrt_f32 v{t+2}, v{t+2}")
        for e in range(0, 8, 2):
            a(f"v_cvt_pk_bf16_f32 v{t+4+e}, v{X+e}, v{X+e+1}")
        bf16r(t + 2, t + 2)
        a(f"v_rcp_f32 v{t+3}, v{t+2}")
        for e in range(0, 8, 2):
            a(f"v_lshlrev_b32 v{X+e}, 16, v{t+4+e}")
            a(f"v_and_b32 v{X+e+1}, 0xffff0000, v{t+4+e}")
        for e in range(8):
            a(f"v_mul_f32 v{t+4+e}, v{X+e}, v{t+3}")
        for e in range(8):
            a(f"v_fma_f32 v{X+e}, -v{t+4+e}, v{t+2}, v{X+e}")
        for e in range(8):
            a(f"v_fma_f32 v{X+e}, v{X+e}, v{t+3}, v{t+4+e}")

    def build_a(dst, psrc, n):
        for w in range(4):
            a(f"v_perm_b32 v{dst+w}, v{psrc + (n >> 1)}, v{psrc + (n >> 1)}, v{SEL + (n & 1)*4 + w}")

    def xreduce(V):
        a("s_nop 1")
        a(f"v_permlane16_swap_b32 v{V}, v{V+1}")
        a(f"v_permlane16_swap_b32 v{V+2}, v{V+3}")
        a(f"v_add_f32 v{V}, v{V}, v{V+1}")
        a(f"v_add_f32 v{V+2}, v{V+2}, v{V+3}")
        a("s_nop 1")
        a(f"v_permlane32_swap_b32 v{V}, v{V+2}")
        a(f"v_add_f32 v{V}, v{V}, v{V+2}")
        a("s_nop 1")
        a(f"v_add_f32_dpp v{V}, v{V}, v{V} row_ror:8 row_mask:0xf bank_mask:0xf")
        a("s_nop 1")
        a(f"v_add_f32_dpp v{V}, v{V}, v{V} row_ror:4 row_mask:0xf bank_mask:0xf")

    def poll_quads(n, R, voff, soffs, srdreg, vt):
        for g in range(n):
            a(f"buffer_load_dwordx4 {q(R+4*g)}, v{voff}, s[{srdreg}:{srdreg+3}], {soffs[g]} offen sc1")
        bound_init(1 << 17)
        p, go = lab("gp"), lab("gg")
        a(f"{p}:")
        a("s_mov_b64 s[50:51], 0")
        masks = []
        for g in range(n):
            a(f"s_waitcnt vmcnt({n-1-g})") if True else None
            a(f"v_max3_u32 v{vt}, v{R+4*g}, v{R+4*g+1}, v{R+4*g+2}")
            a(f"v_max_u32 v{vt}, v{vt}, v{R+4*g+3}")
            a(f"v_cmp_eq_u32 s[{80+2*g}:{81+2*g}], -1, v{vt}")
        for g in range(n):
            a(f"s_or_b64 s[50:51], s[50:51], s[{80+2*g}:{81+2*g}]")
        a(f"s_cbranch_scc0 {go}")
        if poll_sleep:
            a(f"s_sleep {poll_sleep}")
        a("s_mov_b64 s[52:53], exec")
        for g in range(n):
            sk = lab("sk")
            a(f"s_mov_b64 exec, s[{80+2*g}:{81+2*g}]")
            a(f"s_cbranch_execz {sk}")
            a(f"buffer_load_dwordx4 {q(R+4*g)}, v{voff}, s[{srdreg}:{srdreg+3}], {soffs[g]} offen sc1")
            a(f"{sk}:")
        a("s_mov_b64 exec, s[52:53]")
        a("s_waitcnt vmcnt(0)")
        bound_loop(p)
        a(f"{go}:")

    a(HEADER)
    a(f"; @launch grid=(256,1,1) block=(512,1,1) lds={LDS_BYTES}")
    a('.amdgcn_target "amdgcn-amd-amdhsa--gfx950"')
    a(".text")
    a(f".globl {KNAME}")
    a(".p2align 8")
    a(f".type {KNAME},@function")
    a(f"{KNAME}:")
    a("s_cmp_ge_u32 s2, 256")
    a("s_cbranch_scc1 L_exit")
    a("s_load_dwordx16 s[4:19], s[0:1], 0")
    a("s_load_dwordx8 s[20:27], s[0:1], 64")
    if diag:
        for k in range(16):
            a(f"s_mov_b32 s{64+k}, 0")
        a("s_memrealtime s[64:65]")
    a("v_lshrrev_b32 v1, 6, v0")
    a("v_and_b32 v0, 63, v0")
    a("v_readfirstlane_b32 s3, v1")
    if xl == 2:
        a("s_and_b32 s28, s2, 7"); a("s_lshr_b32 s48, s2, 3"); a("s_and_b32 s49, s48, 1"); a("s_lshl_b32 s49, s49, 3")
        a("s_add_u32 s28, s28, s49")
        a("s_lshr_b32 s29, s48, 1"); a("s_and_b32 s29, s29, 3"); a("s_lshr_b32 s30, s48, 3")
    else:
        a("s_and_b32 s29, s2, 3"); a("s_lshr_b32 s28, s2, 2"); a("s_and_b32 s28, s28, 15"); a("s_lshr_b32 s30, s2, 6")
    a("s_lshl_b32 s31, s30, 4"); a("s_add_u32 s31, s31, s28")
    a("v_and_b32 v1, 15, v0")
    a("v_lshrrev_b32 v2, 4, v0")
    a("v_lshrrev_b32 v3, 5, v0")
    a("s_cmp_eq_u32 s3, 0")
    a("s_cbranch_scc1 L_loader")

    a("s_sub_u32 s60, s3, 1")
    a("v_lshlrev_b32 v5, 4, v0")
    a("s_mul_i32 s48, s30, 896")
    a("v_add_u32 v5, s48, v5")
    a("v_mov_b32 v6, 0x7fffff00")
    a("v_cmp_gt_u32 vcc, 56, v0")
    a("v_and_b32 v4, 7, v0")
    a("v_lshlrev_b32 v4, 4, v4")
    a("v_cndmask_b32 v5, v6, v5, vcc")
    a("v_lshrrev_b32 v13, 3, v0")
    a("v_lshl_add_u32 v4, v13, 16, v4")
    a("s_lshl_b32 s48, s60, 19"); a("s_lshl_b32 s49, s28, 9"); a("s_add_u32 s48, s48, s49")
    a("s_lshl_b32 s49, s29, 7"); a("s_add_u32 s48, s48, s49")
    a("v_add_u32 v4, s48, v4")
    a("s_waitcnt lgkmcnt(0)")
    srd(32, 4, 3584)
    srd(36, 10, 3670016)
    a(f"buffer_load_dwordx4 {q(YA)}, v5, s[32:35], 0 offen")
    a(f"s_add_u32 s48, s26, {W_EP}"); a("s_addc_u32 s49, s27, 0")
    a("s_load_dword s62, s[48:49], 0")
    a("s_barrier")

    def wq_load(n):
        a(f"buffer_load_dwordx4 {q(QA+4*n)}, v4, s[36:39], s50 offen {wflags}")
        if n < 7:
            a("s_add_u32 s50, s50, 8192")
    a("s_mov_b32 s50, 0")
    for n in range(qwin):
        wq_load(n)
    srd(40, 26, WS_BYTES)
    a("v_and_b32 v6, 1, v1"); a("v_cmp_eq_u32 vcc, 1, v6")
    a("v_mov_b32 v7, 0x0c0c0100"); a("v_mov_b32 v8, 0x01000c0c"); a("v_mov_b32 v9, 0x0c0c0302"); a("v_mov_b32 v10, 0x03020c0c")
    a("v_cndmask_b32 v7, v7, v8, vcc"); a("v_cndmask_b32 v9, v9, v10, vcc")
    a("v_bfe_u32 v6, v1, 1, 2"); a("v_mov_b32 v10, 0x0c0c0c0c")
    for w in range(4):
        a(f"v_cmp_eq_u32 vcc, {w}, v6"); a("s_nop 1")
        a(f"v_cndmask_b32 v{SEL+w}, v10, v7, vcc"); a(f"v_cndmask_b32 v{SEL+4+w}, v10, v9, vcc")
    a("v_mov_b32 v15, 0")
    a(f"v_mov_b32 v14, {M0_}")
    if qonly >= 0:
        stamp(3)
    a(f"s_waitcnt vmcnt({qwin})")
    if qonly >= 0:
        stamp(4)
    X = T
    for d in range(4):
        a(f"v_lshlrev_b32 v{X+2*d}, 16, v{YA+d}"); a(f"v_and_b32 v{X+2*d+1}, 0xffff0000, v{YA+d}")
    layernorm(X, T + 8)
    for d in range(4):
        a(f"v_cvt_pk_bf16_f32 v{YA+d}, v{X+2*d}, v{X+2*d+1}")
    a(f"v_lshlrev_b32 v6, 4, v0"); a(f"v_add_u32 v6, {L_XN}, v6")
    a("s_mov_b32 exec_hi, 0x00ffffff")
    a(f"ds_write_b128 v6, {q(YA)}")
    a("s_mov_b32 exec_hi, -1")
    a("s_lshl_b32 s48, s60, 7"); a(f"s_add_u32 s48, s48, {L_XN}")
    a("v_lshl_add_u32 v6, v13, 4, s48")
    a("s_waitcnt lgkmcnt(0)")
    a(f"ds_read_b128 {q(YA)}, v6")
    a("v_lshrrev_b32 v6, 1, v2"); a("v_lshlrev_b32 v6, 8, v6"); a("v_and_b32 v7, 7, v1"); a("v_lshl_add_u32 v6, v7, 5, v6")
    a("v_and_b32 v7, 1, v2"); a("v_lshl_add_u32 v6, v7, 4, v6")
    a("s_lshl_b32 s48, s60, 9"); a(f"s_add_u32 s48, s48, {L_QP}")
    a("v_add_u32 v6, s48, v6")
    a("v_mov_b32 v7, 1")
    stamp(1)
    a("s_waitcnt lgkmcnt(0)")
    for n in range(8):
        build_a(T + 4*n, YA, n)
    for n in range(8):
        a(f"s_waitcnt vmcnt({min(qwin-1, 7-n)})")
        if n + qwin < 8:
            wq_load(n + qwin)
        a(f"v_mfma_f32_16x16x32_bf16 {q(ACC)}, {q(T+4*n)}, {q(QA+4*n)}, {q(ACC) if n else 0}")
    a("s_mov_b32 exec_lo, 0x00ff00ff"); a("s_mov_b32 exec_hi, 0xff00ff00")
    a("s_nop 5")
    a(f"ds_write_b128 v6, {q(ACC)}")
    a("s_waitcnt lgkmcnt(0)")
    a("s_mov_b64 exec, 1")
    a(f"ds_add_u32 v14, v7 offset:{F_QCNT-M0_}")
    a("s_mov_b64 exec, -1")
    stamp(2)
    srd(36, 12, 3670016)
    a("v_lshrrev_b32 v6, 3, v1"); a("v_lshlrev_b32 v6, 4, v6"); a("v_add_u32 v6, v6, v2"); a("v_mul_u32_u24 v4, 7168, v6")
    a("v_and_b32 v6, 7, v1"); a("v_lshl_add_u32 v4, v6, 4, v4")
    a(f"s_mul_i32 s48, s28, {229376 if not wohit else 0}"); a("s_lshl_b32 s49, s60, 7"); a("s_add_u32 s48, s48, s49")
    a("v_add_u32 v4, s48, v4")
    a("s_cmp_gt_u32 s3, 2")
    a("s_cbranch_scc1 L_helper")

    def wo_group(gidx):
        ks, eh = gidx >> 1, gidx & 1
        if nowo:
            return
        a(f"s_mov_b32 s48, {(ks*32 + eh*4)*896 if not wohit else 0}")
        for e in range(4):
            a(f"buffer_load_dwordx4 {q(WO+ks*32+(eh*4+e)*4)}, v4, s[36:39], s48 offen offset:{e*896} {woflags}")

    def pace_setup(t0, dt):
        l0 = lab("pc")
        a("s_getpc_b64 s[52:53]")
        a(f"{l0}:")
        a(f"s_sub_u32 s52, s52, {l0}-L_pace"); a("s_subb_u32 s53, s53, 0")
        a(f"s_mov_b32 s56, {t0}"); a(f"s_mov_b32 s57, {dt}"); a("s_mov_b32 s58, 0")

    def pace():
        a("s_swappc_b64 s[54:55], s[52:53]")

    def wo_loads():
        a(f"s_mov_b32 s56, {wt0}"); a(f"s_mov_b32 s57, {wdt}")
        for ks in range(0 if not nowo else 4, 4):
            for eh in range(2):
                a(f"s_mov_b32 s48, {(ks*32 + eh*4)*896}")
                for e in range(4):
                    pace()
                    a(f"buffer_load_dwordx4 {q(WO+ks*32+(eh*4+e)*4)}, v4, s[36:39], s48 offen offset:{e*896} {woflags}")

    def wo_perms():
        a("s_mov_b32 s48, 0x05040100"); a("s_mov_b32 s49, 0x07060302")
        for ks in range(4):
            src = WO + ks*32
            dst = T if ks == 0 else WO + (ks-1)*32
            for t in range(8):
                for d in range(4):
                    a(f"v_perm_b32 v{dst+4*t+d}, v{src+(2*d+1)*4+(t>>1)}, v{src+(2*d)*4+(t>>1)}, s{48+(t&1)}")

    def wfrag(ks, t):
        return (T if ks == 0 else WO + (ks-1)*32) + 4*t

    a("v_and_b32 v6, 1, v2"); a("v_lshrrev_b32 v8, 3, v1"); a("v_cmp_eq_u32 vcc, v6, v8"); a("s_nop 1")
    for w in range(8):
        a(f"v_cndmask_b32 v{SEL+w}, v10, v{SEL+w}, vcc")
    a("v_and_b32 v6, 3, v1"); a("v_xor_b32 v6, v6, v2"); a("v_and_b32 v7, 12, v1"); a("v_or_b32 v6, v6, v7")
    for m in range(4):
        a(f"v_xor_b32 v7, {m*4}, v6"); a("v_lshlrev_b32 v7, 4, v7"); a(f"v_lshl_add_u32 v{8+m}, v1, 9, v7")
    a("v_and_b32 v6, 1, v1"); a("v_lshlrev_b32 v6, 4, v6"); a("v_and_b32 v7, 14, v1"); a("v_add_u32 v12, v6, v7")
    a("s_lshl_b32 s48, s60, 5"); a(f"s_add_u32 s61, s48, {L_PB}")
    a("v_add_u32 v12, s61, v12")
    a("s_lshl_b32 s48, s60, 2"); a(f"s_add_u32 s48, s48, {F_CONS}"); a("v_mov_b32 v13, s48")
    a("s_lshl_b32 s56, s60, 13")
    a("s_add_u32 s57, s60, 1")
    a("s_mov_b32 s58, 0")
    a("v_mov_b32 v5, 0")
    a(f"v_lshlrev_b32 v7, 4, v2"); a(f"v_add_u32 v7, {L_QB}, v7")
    lds_wait_ge(14, F_QOK - M0_, "s48", 1, 6)
    for ks in range(8):
        a(f"ds_read_b128 {q(QA+4*ks)}, v7 offset:{ks*64}")
    stamp(3)
    if qonly >= 0:
        finish()
    a("s_getpc_b64 s[52:53]")
    a("L_kc0:")
    a("s_add_u32 s52, s52, L_kloop-L_kc0"); a("s_addc_u32 s53, s53, 0")
    a("s_mov_b32 s59, 17")
    a("s_swappc_b64 s[54:55], s[52:53]")
    for gi in range(7):
        wo_group(gi)
        if gi == 6:
            wo_group(7)
        a("s_add_u32 s59, s59, 16")
        a("s_swappc_b64 s[54:55], s[52:53]")
    a("s_branch L_kdone")
    a("L_kloop:")
    for m in range(4):
        a(f"v_add_u32 v{ABUF+m}, s56, v{8+m}")
    a("v_add_u32 v5, 1, v5")
    lds_wait_ge(14, F_FILL - M0_, "s58", "s57", 6, precheck=True)
    for ks in range(8):
        a(f"ds_read_b128 {q(T+4*ks)}, v{ABUF+(ks&3)} offset:{(ks>>2)*256}")
    for ks in range(8):
        a(f"s_waitcnt lgkmcnt({7-ks})")
        a(f"v_mfma_f32_16x16x32_bf16 {q(ACC)}, {q(QA+4*ks)}, {q(T+4*ks)}, {q(ACC) if ks else 0}")
    a("ds_write_b32 v13, v5")
    a("s_add_u32 s56, s56, 16384"); a("s_and_b32 s56, s56, 0x1ffff")
    a("s_add_u32 s57, s57, 2")
    a("s_nop 4")
    a(f"v_cvt_pk_bf16_f32 v6, v{ACC}, v{ACC}")
    a("ds_write_b16 v12, v6")
    a("v_add_u32 v12, 64, v12")
    a("s_cmp_lt_u32 s57, s59")
    a("s_cbranch_scc1 L_kloop")
    a("s_setpc_b64 s[54:55]")
    a("L_kdone:")
    stamp(4)
    a("v_lshl_add_u32 v12, v0, 6, s61")
    a("s_waitcnt lgkmcnt(0)")
    a(f"ds_read_b128 {q(YA)}, v12"); a(f"ds_read_b128 {q(YA+4)}, v12 offset:16")
    a("s_waitcnt lgkmcnt(0)")
    if dump:
        a("v_lshlrev_b32 v6, 6, v0"); a("s_lshl_b32 s48, s31, 2"); a("s_add_u32 s48, s48, s29"); a("s_lshl_b32 s48, s48, 12")
        a("s_lshl_b32 s49, s60, 5"); a("s_add_u32 s48, s48, s49"); a("s_add_u32 s48, s48, 0x280000 - 0x80000")
        a("s_add_u32 s48, s48, 0x100000")
        a(f"buffer_store_dwordx4 {q(YA)}, v6, s[40:43], s48 offen"); a(f"buffer_store_dwordx4 {q(YA+4)}, v6, s[40:43], s48 offen offset:16")
    for d in range(8):
        a(f"v_lshlrev_b32 v{T+2*d}, 16, v{YA+d}"); a(f"v_and_b32 v{T+2*d+1}, 0xffff0000, v{YA+d}")
    a(f"v_max3_f32 v6, v{T}, v{T+1}, v{T+2}")
    for d in range(3, 15, 2):
        a(f"v_max3_f32 v6, v6, v{T+d}, v{T+d+1}")
    a(f"v_max_f32 v6, v6, v{T+15}")
    wave_red("v_max_f32", 6, "s48")
    a(f"s_mov_b32 s49, {LOG2E_16:#x}")
    for d in range(16):
        a(f"v_subrev_f32 v{T+d}, s48, v{T+d}")
    for d in range(16):
        a(f"v_mul_f32 v{T+d}, s49, v{T+d}")
    for d in range(16):
        a(f"v_exp_f32 v{T+d}, v{T+d}")
    a("s_nop 0")
    for d in range(8):
        a(f"v_cvt_pk_bf16_f32 v{YA+d}, v{T+2*d}, v{T+2*d+1}")
    a(f"ds_write_b128 v12, {q(YA)}"); a(f"ds_write_b128 v12, {q(YA+4)} offset:16")
    for st in (8, 4, 2, 1):
        for d in range(st):
            a(f"v_add_f32 v{T+d}, v{T+d}, v{T+d+st}")
    wave_red("v_add_f32", T, "s49")
    a("v_mov_b32 v6, s48"); a("v_mov_b32 v7, s49")
    a("s_lshl_b32 s48, s60, 3"); a(f"s_add_u32 s48, s48, {L_ML}"); a("v_mov_b32 v8, s48"); a("v_mov_b32 v9, 1")
    a("s_mov_b64 exec, 1")
    a("ds_write_b64 v8, v[6:7]")
    a("s_waitcnt lgkmcnt(0)")
    a(f"ds_add_u32 v14, v9 offset:{F_MLCNT-M0_}")
    a("s_mov_b64 exec, -1")
    a("s_waitcnt vmcnt(0)")
    a("s_getpc_b64 s[54:55]")
    a("L_cret0:")
    a("s_add_u32 s54, s54, L_cret1-L_cret0"); a("s_addc_u32 s55, s55, 0")
    a("s_branch L_woperm")
    a("L_cret1:")
    a("v_lshlrev_b32 v8, 4, v0")
    a("v_lshl_add_u32 v12, v3, 4, s61")
    for r in range(4):
        a(f"v_mov_b32 v{ACC+r}, 0")
    stamp(5)
    a("L_vloop:")
    a(f"ds_read_b128 {q(YA)}, v12")
    a("v_add_u32 v9, s56, v8")
    a("v_add_u32 v12, 64, v12")
    a("v_add_u32 v5, 1, v5")
    a("s_waitcnt lgkmcnt(0)")
    for n in range(8):
        build_a(QA + 4*n, YA, n)
    lds_wait_ge(14, F_FILL - M0_, "s58", "s57", 6, precheck=True)
    for n in range(8):
        a(f"ds_read_b128 {q(T2+4*n)}, v9 offset:{n*1024}")
    for n in range(8):
        a(f"s_waitcnt lgkmcnt({7-n})")
        a(f"v_mfma_f32_16x16x32_bf16 {q(ACC)}, {q(QA+4*n)}, {q(T2+4*n)}, {q(ACC)}")
    a("ds_write_b32 v13, v5")
    a("s_add_u32 s56, s56, 16384"); a("s_and_b32 s56, s56, 0x1ffff")
    a("s_add_u32 s57, s57, 2")
    a("s_cmp_lt_u32 s57, 257")
    a("s_cbranch_scc1 L_vloop")
    stamp(6)
    lds_wait_ge(14, F_FOK - M0_, "s48", 1, 6)
    a("s_lshl_b32 s48, s60, 2"); a(f"s_add_u32 s48, s48, {L_F}"); a("v_mov_b32 v6, s48")
    a("ds_read_b32 v6, v6")
    a("v_lshrrev_b32 v7, 1, v2"); a("s_lshl_b32 s48, s60, 1"); a("v_add_u32 v7, s48, v7"); a("v_mul_u32_u24 v7, 288, v7")
    a("v_and_b32 v8, 1, v2"); a("v_lshlrev_b32 v8, 3, v8"); a("v_lshl_add_u32 v8, v1, 4, v8")
    a(f"v_add_u32 v7, v7, v8"); a(f"v_add_u32 v7, {L_OB}, v7")
    a("s_waitcnt lgkmcnt(0)")
    for r in range(4):
        a(f"v_mul_f32 v{ACC+r}, v6, v{ACC+r}")
    a(f"v_cvt_pk_bf16_f32 v{ACC}, v{ACC}, v{ACC+1}"); a(f"v_cvt_pk_bf16_f32 v{ACC+1}, v{ACC+2}, v{ACC+3}")
    a(f"ds_write_b64 v7, {q(ACC,2)}")
    a("s_branch L_ystage")

    a("L_woperm:")
    wo_perms()
    a("s_setpc_b64 s[54:55]")

    DN = QA + 28

    def ffn_frags():
        a("; ---- waves 4..7 of FFN workgroups: gather gate/up/down fragments for 16 hidden columns")
        a("s_and_b32 s48, s2, 7"); a("s_mul_i32 s48, s48, 14"); a("s_lshr_b32 s49, s2, 3"); a("s_add_u32 s59, s48, s49")
        a("s_sub_u32 s62, s3, 4")
        a("s_cmp_ge_u32 s62, 2")
        a("s_cselect_b32 s44, s18, s16"); a("s_cselect_b32 s45, s19, s17")
        a("s_and_b32 s45, s45, 0xffff"); a("s_mov_b32 s46, 1605632"); a("s_mov_b32 s47, 0x20000")

        if spf:
            a("; the four workgroups that share these gate/up lines pull a quarter of them each into L2 through the scalar cache")
            a("s_lshr_b32 s48, s59, 2"); a("s_lshl_b32 s48, s48, 7")
            a("s_and_b32 s49, s59, 3"); a("s_lshl_b32 s49, s49, 1"); a("s_and_b32 s50, s62, 1"); a("s_add_u32 s49, s49, s50")
            a(f"s_mul_i32 s49, s49, {56*3584}"); a("s_add_u32 s48, s48, s49")
            a("s_cmp_ge_u32 s62, 2")
            a("s_cselect_b32 s80, s18, s16"); a("s_cselect_b32 s81, s19, s17")
            a("s_add_u32 s80, s80, s48"); a("s_addc_u32 s81, s81, 0")
            a(f"s_mov_b32 s56, {spt0}"); a("s_mov_b32 s57, 3"); a("s_mov_b32 s82, 8")
            a("L_spf:")
            pace()
            for k in range(7):
                a(f"s_load_dword s83, s[80:81], {k*3584}"); a(f"s_load_dword s84, s[80:81], {k*3584+64}")
            a("s_waitcnt lgkmcnt(0)")
            a(f"s_add_u32 s80, s80, {7*3584}"); a("s_addc_u32 s81, s81, 0")
            a("s_sub_u32 s82, s82, 1"); a("s_cmp_lg_u32 s82, 0"); a("s_cbranch_scc1 L_spf")
        a("; staging slot row p (32 B) holds matrix row 32*ks + 16*(p>>4) + 4*(p&3) + ((p>>2)&3): the storage order of h")
        a("v_lshrrev_b32 v7, 1, v0"); a("v_and_b32 v6, 16, v7"); a("v_and_b32 v8, 3, v7"); a("v_lshl_add_u32 v6, v8, 2, v6")
        a("v_bfe_u32 v8, v7, 2, 2"); a("v_add_u32 v6, v6, v8"); a("v_mul_u32_u24 v6, 3584, v6")
        a("v_and_b32 v8, 1, v0"); a("v_lshl_add_u32 v6, v8, 4, v6")
        a("s_and_b32 s48, s62, 1"); a(f"s_mul_i32 s50, s48, {7*32*3584}"); a("s_lshl_b32 s49, s59, 5"); a("s_add_u32 s50, s50, s49")
        a(f"s_lshl_b32 s51, s62, 10"); a(f"s_add_u32 s51, s51, {L_QP}")
        a("v_lshrrev_b32 v9, 2, v1"); a("v_lshl_add_u32 v10, v2, 3, v9"); a("v_lshlrev_b32 v10, 5, v10")
        a("v_and_b32 v11, 3, v1"); a("v_lshl_add_u32 v10, v11, 3, v10"); a("v_add_u32 v10, s51, v10")
        a("s_mov_b32 m0, s51")
        lds_wait_ge(14, F_QOK - M0_, "s48", 1, 12)
        a(f"s_mov_b32 s56, {gt0}"); a(f"s_mov_b32 s57, {gdt}")
        for f in range(7):
            pace()
            a(f"buffer_load_dwordx4 v6, s[44:47], s50 offen {gflags} lds")
            a(f"s_add_u32 s50, s50, {32*3584}")
            a("s_waitcnt vmcnt(0)")
            a(f"ds_read_b64_tr_b16 {q(QA+4*f,2)}, v10")
            a(f"ds_read_b64_tr_b16 {q(QA+4*f+2,2)}, v10 offset:128")
            a("s_waitcnt lgkmcnt(0)")
        srd(44, 20, 1605632)
        a("v_and_b32 v6, 15, v7"); a("v_mul_u32_u24 v6, 896, v6"); a("v_lshl_add_u32 v6, v3, 5, v6"); a("v_lshl_add_u32 v6, v8, 4, v6")
        a("s_mul_i32 s50, s59, 14336"); a("s_mul_i32 s49, s62, 224"); a("s_add_u32 s50, s50, s49")
        a("v_lshl_add_u32 v10, v2, 2, v9"); a("v_lshlrev_b32 v10, 5, v10"); a("v_lshl_add_u32 v10, v11, 3, v10"); a("v_add_u32 v10, s51, v10")
        for u in range(0, 7, 2):
            pace()
            if u == 6:
                a("s_mov_b32 exec_hi, 0")
            a(f"buffer_load_dwordx4 v6, s[44:47], s50 offen {dflags} lds")
            if u == 6:
                a("s_mov_b32 exec_hi, -1")
            a("s_add_u32 s50, s50, 64")
            a("s_waitcnt vmcnt(0)")
            a(f"ds_read_b64_tr_b16 {q(DN+2*u,2)}, v10")
            if u < 6:
                a(f"ds_read_b64_tr_b16 {q(DN+2*u+2,2)}, v10 offset:512")
            a("s_waitcnt lgkmcnt(0)")

    a("L_pace:")
    lds_wait_ge(14, F_FILL - M0_, "s58", "s56", 12, sleep=8, precheck=True)
    a("s_add_u32 s56, s56, s57")
    a("s_setpc_b64 s[54:55]")

    a("L_helper:")
    a("s_cmp_eq_u32 s3, 3")
    a("s_cbranch_scc1 L_h4")
    if qonly >= 0:
        finish()
    pace_setup(0, 0)
    if ffn_first and not noffn:
        a("s_cmp_ge_u32 s2, 112")
        a("s_cbranch_scc1 L_noffn")
        ffn_frags()
        a("L_noffn:")
    wo_loads()
    a("s_waitcnt vmcnt(0)")
    a("s_getpc_b64 s[54:55]")
    a("L_hret0:")
    a("s_add_u32 s54, s54, L_hret1-L_hret0"); a("s_addc_u32 s55, s55, 0")
    a("s_branch L_woperm")
    a("L_hret1:")
    a("s_cmp_ge_u32 s2, 112")
    a("s_cbranch_scc1 L_ystage")
    if noffn:
        a("s_and_b32 s48, s2, 7"); a("s_mul_i32 s48, s48, 14"); a("s_lshr_b32 s49, s2, 3"); a("s_add_u32 s59, s48, s49"); a("s_sub_u32 s62, s3, 4"); a("s_branch L_ystage")
    if not ffn_first:
        ffn_frags()
    a("s_branch L_ystage")

    a("L_h4:")
    a("v_and_b32 v8, 31, v0"); a("v_lshlrev_b32 v8, 3, v8")
    a("v_mul_u32_u24 v9, 1792, v3"); a("v_add_u32 v9, v9, v8"); a(f"v_add_u32 v9, {L_QP}, v9")
    a("s_lshl_b32 s56, s31, 10"); a(f"s_add_u32 s56, s56, {W_QX}"); a("s_lshl_b32 s57, s29, 8"); a("s_add_u32 s57, s57, s56")
    a("s_add_u32 s62, s62, 1")
    a("v_lshlrev_b32 v5, 4, v0")
    a(f"v_lshlrev_b32 v11, 3, v0"); a(f"v_add_u32 v11, {L_QB}, v11")
    if fbd:
        ng = 256 // fbg
        a(f"s_lshr_b32 s48, s2, 3")
        if fbmix:
            a("s_and_b32 s49, s2, 7"); a(f"s_mul_i32 s49, s49, {fbmix}"); a("s_add_u32 s48, s48, s49")
        a(f"s_and_b32 s48, s48, {ng-1}"); a(f"s_lshl_b32 s48, s48, 12"); a(f"s_add_u32 s48, s48, {W_FB}")
        if fbm == 'st':
            a("s_mov_b32 s94, s48"); a("s_mov_b32 s95, 0")
        else:
            a("s_add_u32 s94, s26, s48"); a("s_addc_u32 s95, s27, 0")
        a("s_and_b32 s49, s2, 7"); a(f"s_lshr_b32 s50, s2, 3"); a(f"s_lshr_b32 s50, s50, {ng.bit_length()-1}"); a("s_or_b32 s49, s49, s50")
        a("s_cbranch_scc1 L_nolead") if fbm != 'st' else a("s_branch L_nolead")
        a("v_lshlrev_b32 v6, 8, v0")
        a("s_mov_b64 exec, 0xffff")
        a("buffer_store_dword v15, v6, s[40:43], s48 offen sc1")
        a("s_mov_b64 exec, -1")
        a("L_nolead:")
    lds_wait_ge(14, F_QCNT - M0_, "s48", 7, 6, sleep=0)
    for p in range(7):
        a(f"ds_read_b64 {q(T+2*p,2)}, v9 offset:{p*256}")
    for p in range(1, 7):
        a(f"s_waitcnt lgkmcnt({6-p})")
        a(f"v_add_f32 v{T}, v{T}, v{T+2*p}"); a(f"v_add_f32 v{T+1}, v{T+1}, v{T+2*p+1}")
    a(f"v_mov_b32 v{T+2}, v{T}"); a(f"v_mov_b32 v{T+3}, v{T+1}"); a("s_nop 1")
    a(f"v_permlane32_swap_b32 v{T}, v{T+2}"); a(f"v_permlane32_swap_b32 v{T+1}, v{T+3}")
    a(f"v_add_f32 v{T}, v{T}, v{T+2}"); a(f"v_add_f32 v{T+1}, v{T+1}, v{T+3}")
    a(f"v_cvt_pk_bf16_f32 v6, v{T}, v{T+1}"); a("v_mov_b32 v7, s62")
    a("s_mov_b32 exec_hi, 0")
    a("buffer_store_dwordx2 v[6:7], v8, s[40:43], s57 offen sc1")
    a("s_mov_b32 exec_hi, -1")
    stamp(3) if qonly >= 0 else None
    bound_init(1 << 17)
    a("L_qpoll:")
    a(f"buffer_load_dwordx4 {q(T)}, v5, s[40:43], s56 offen sc1")
    a("s_waitcnt vmcnt(0)")
    a(f"v_cmp_ne_u32 vcc, s62, v{T+1}"); a(f"v_cmp_ne_u32 s[48:49], s62, v{T+3}")
    a("s_or_b64 vcc, vcc, s[48:49]")
    a("s_cbranch_scc0 L_qok")
    if qsleep:
        a(f"s_sleep {qsleep}")
    bound_loop("L_qpoll")
    a("L_qok:")
    a(f"v_mov_b32 v{T+1}, v{T+2}")
    a(f"ds_write_b64 v11, {q(T,2)}")
    a("v_mov_b32 v6, 1")
    a("s_waitcnt lgkmcnt(0)")
    a(f"ds_write_b32 v14, v6 offset:{F_QOK-M0_}")
    if qonly >= 0:
        stamp(4)
        finish()
    if clrsleep:
        a(f"s_sleep {clrsleep}")
    for r in range(4):
        a(f"v_mov_b32 v{YA+r}, -1")
    a("v_lshlrev_b32 v5, 4, v0")
    a("s_lshl_b32 s48, s31, 2"); a("s_add_u32 s48, s48, s29"); a("s_mul_i32 s48, s48, 1792")
    None if noclr else a(f"buffer_store_dwordx4 {q(YA)}, v5, s[40:43], s48 offen {clrfl}")
    a("s_mov_b32 exec_hi, 0x0000ffff")
    None if noclr else a(f"buffer_store_dwordx4 {q(YA)}, v5, s[40:43], s48 offen offset:1024 {clrfl}")
    a("s_mov_b64 exec, -1")
    a("s_lshl_b32 s61, s31, 7"); a("s_lshl_b32 s48, s29, 5"); a("s_add_u32 s48, s48, s61"); a(f"s_add_u32 s57, s48, {W_ML}")
    a("s_cmp_ge_u32 s2, 112")
    a("s_cbranch_scc1 L_h4_nor2")
    a("s_and_b32 s48, s2, 7"); a("s_mul_i32 s48, s48, 14"); a("s_lshr_b32 s49, s2, 3"); a("s_add_u32 s48, s48, s49")
    a("s_mul_i32 s48, s48, 7168"); a(f"s_add_u32 s48, s48, {W_OP}")
    for k in range(7):
        if k == 4:
            a("s_add_u32 s48, s48, 4096")
        None if noclr else a(f"buffer_store_dwordx4 {q(YA)}, v5, s[40:43], s48 offen offset:{(k&3)*1024} {clrfl}")
    a("L_h4_nor2:")
    a("s_sub_u32 s48, s2, 112"); a("s_mul_i32 s58, s48, 2341"); a("s_lshr_b32 s58, s58, 16"); a("s_mul_i32 s49, s58, 28"); a("s_sub_u32 s59, s48, s49")
    a("v_and_b32 v6, 3, v0"); a("v_bfe_u32 v7, v0, 2, 2")
    a("v_mul_u32_u24 v13, 7168, v7"); a("v_lshl_add_u32 v13, v2, 4, v13"); a("v_lshl_add_u32 v13, v6, 2, v13")
    a("v_lshl_add_u32 v12, v6, 2, v2"); a("v_lshlrev_b32 v12, 1, v12")
    a("s_mul_i32 s56, s58, 1792"); a("s_lshl_b32 s49, s59, 6"); a("s_add_u32 s56, s56, s49")
    a("s_cmp_lt_u32 s48, 112")
    a("s_cbranch_scc0 L_h4_nor1")
    a(f"s_add_u32 s48, s56, {W_HB}")
    for k in range(nrep // 4):
        None if noclr else a(f"buffer_store_dword v{YA}, v13, s[40:43], s48 offen {clrfl}")
        a(f"s_add_u32 s48, s48, {4*7168}")
    a("s_lshr_b32 s48, s56, 1")
    a(f"buffer_load_ushort v11, v12, s[32:35], s48 offen")
    a("L_h4_nor1:")
    srd(44, 24, 256)
    a("s_waitcnt vmcnt(0)")
    if clrstag is not None:
        a(f"s_lshr_b32 s49, s2, {clrstag}"); a("s_add_u32 s49, s49, 8")
        lds_wait_ge(14, F_FILL - M0_, "s48", "s49", 6, sleep=4)
    if satom:
        a("s_mov_b32 s48, 1")
        a("s_atomic_add s48, s[24:25], 0")
        a("s_waitcnt lgkmcnt(0)")
    else:
        a("v_mov_b32 v6, 1")
        a("s_mov_b64 exec, 1")
        a("buffer_atomic_add v6, v15, s[44:47], 0 offen sc1")
        a("s_mov_b64 exec, -1")
    if True:
        if fbd:
            a("s_getpc_b64 s[52:53]")
            a("L_fb0:")
            a("s_add_u32 s52, s52, L_fb-L_fb0"); a("s_addc_u32 s53, s53, 0")
        if fbm == 'st':
            ng = 256 // fbg
            a(f"s_lshr_b32 s48, s2, {3 + ng.bit_length() - 1}"); a("s_lshl_b32 s48, s48, 3"); a("s_and_b32 s49, s2, 7"); a("s_add_u32 s48, s48, s49"); a("s_lshl_b32 s48, s48, 2")
            a(f"v_mov_b32 v{FX}, s48"); a(f"v_lshlrev_b32 v{FX+1}, 2, v0")
        a("s_mov_b32 s51, 0")
        sched = (list(fbs) if fbs else list(range(fbk, 256, fbk))) if fbd else []
        for gi in range(8):
            lim = 16 * (gi + 1)
            did = False
            for tt in [t for t in sched if lim - 16 < t <= lim]:
                a(f"s_mov_b32 s50, {tt}")
                a("s_swappc_b64 s[54:55], s[52:53]")
                did = True
            if not did:
                lds_wait_ge(14, F_FILL - M0_, "s48", lim, 6, sleep=8)
            if not nowo:
                ks, eh = gi >> 1, gi & 1
                a(f"s_mov_b32 s48, {(ks*32 + eh*4)*896}")
                for e in range(4):
                    a(f"buffer_load_dwordx4 {q(WO+ks*32+(eh*4+e)*4)}, v4, s[36:39], s48 offen offset:{e*896} {woflags}")
                    a("s_waitcnt vmcnt(0)")
    a("s_waitcnt vmcnt(0)")
    a("s_getpc_b64 s[54:55]")
    a("L_gret0:")
    a("s_add_u32 s54, s54, L_gret1-L_gret0"); a("s_addc_u32 s55, s55, 0")
    a("s_branch L_woperm")
    a("L_gret1:")
    lds_wait_ge(14, F_MLCNT - M0_, "s48", 2, 6, sleep=16)
    a("v_lshlrev_b32 v8, 3, v0"); a(f"v_add_u32 v8, {L_ML}, v8")
    a("s_mov_b64 exec, 3")
    a("ds_read_b64 v[6:7], v8")
    a("v_lshlrev_b32 v9, 4, v0")
    a("s_waitcnt lgkmcnt(0)")
    a(f"v_mov_b32 v{YA}, v6"); a(f"v_mov_b32 v{YA+1}, s62"); a(f"v_mov_b32 v{YA+2}, v7"); a(f"v_mov_b32 v{YA+3}, s62")
    a(f"buffer_store_dwordx4 {q(YA)}, v9, s[40:43], s57 offen sc1")
    a("s_mov_b64 exec, -1")
    a("v_and_b32 v8, 7, v0"); a("v_lshlrev_b32 v9, 4, v8")
    a(f"s_add_u32 s61, s61, {W_ML}")
    bound_init(1 << 17)
    a("L_mlpoll:")
    a(f"buffer_load_dwordx4 {q(YA+4)}, v9, s[40:43], s61 offen sc1")
    a("s_waitcnt vmcnt(0)")
    a(f"v_cmp_ne_u32 vcc, s62, v{YA+5}"); a(f"v_cmp_ne_u32 s[48:49], s62, v{YA+7}")
    a("s_or_b64 vcc, vcc, s[48:49]")
    a("s_cbranch_scc0 L_mlgot")
    a("s_sleep 24")
    bound_loop("L_mlpoll")
    a("L_mlgot:")
    a(f"v_mov_b32 v6, v{YA+4}"); a(f"v_mov_b32 v7, v{YA+6}")
    a("L_mlok:")
    a("v_mov_b32 v10, v6")
    for d in ("row_ror:4", "row_ror:2", "row_ror:1"):
        a("s_nop 1")
        a(f"v_max_f32_dpp v10, v10, v10 {d} row_mask:0xf bank_mask:0xf")
    a("v_sub_f32 v6, v6, v10"); a(f"v_mul_f32 v6, {LOG2E_16:#x}, v6"); a("v_exp_f32 v6, v6"); a("s_nop 0")
    a("v_mul_f32 v7, v6, v7")
    for d in ("row_ror:4", "row_ror:2", "row_ror:1"):
        a("s_nop 1")
        a(f"v_add_f32_dpp v7, v7, v7 {d} row_mask:0xf bank_mask:0xf")
    a("v_rcp_f32 v7, v7"); a("v_lshrrev_b32 v9, 1, v0"); a("v_and_b32 v8, 1, v0")
    a("v_mul_f32 v6, v6, v7")
    a(f"v_lshlrev_b32 v8, 2, v8"); a(f"v_add_u32 v8, {L_F}, v8")
    a("v_cmp_eq_u32 vcc, s29, v9")
    a("s_mov_b64 exec, vcc")
    a("ds_write_b32 v8, v6")
    a("s_mov_b64 exec, 1")
    a("v_mov_b32 v6, 1")
    a("s_waitcnt lgkmcnt(0)")
    a(f"ds_write_b32 v14, v6 offset:{F_FOK-M0_}")
    a("s_mov_b64 exec, -1")

    a("s_load_dword s48, s[24:25], 0 glc")
    a("s_waitcnt lgkmcnt(0)")
    bound_init(1 << 17)
    a("L_cntpoll:")
    a("s_cmp_ge_u32 s48, 256")
    a("s_cbranch_scc1 L_cntok")
    a("s_sleep 64")
    a("s_mov_b32 s48, 0")
    a("s_atomic_add s48, s[24:25], 0 glc")
    a("s_waitcnt lgkmcnt(0)")
    bound_loop("L_cntpoll")
    a("L_cntok:")
    a("s_cmp_lg_u32 s2, 0")
    a("s_cbranch_scc1 L_noep")
    a("v_mov_b32 v6, s62"); a(f"s_mov_b32 s48, {W_EP}")
    a("s_mov_b64 exec, 1")
    a("buffer_store_dword v6, v15, s[40:43], s48 offen sc1")
    a("s_mov_b64 exec, -1")
    a("L_noep:")
    if fbd:
        for tt in [t for t in sched if t > 128]:
            a(f"s_mov_b32 s50, {tt}")
            a("s_swappc_b64 s[54:55], s[52:53]")
        a("s_branch L_ystage")
        a("L_fb:")
        lds_wait_ge(14, F_FILL - M0_, "s48", "s50", 6, sleep=4)
        if fbm == 'st':
            a("s_add_u32 s48, s62, s50"); a("v_mov_b32 v6, s48")
            a("s_mov_b64 exec, 1")
            a(f"buffer_store_dword v6, v84, s[40:43], s94 offen {fbfl}")
            a(f"s_mov_b64 exec, {hex((1 << fbg) - 1) if fbg < 64 else -1}")
            a(f"buffer_load_dword v6, v85, s[40:43], s94 offen {fbfl}")
            a("s_waitcnt vmcnt(0)")
            a("v_subrev_u32 v6, s48, v6"); a("v_cmp_gt_u32 vcc, 64, v6")
            a("s_mov_b64 exec, -1")
            a("s_bcnt1_i32_b64 s48, vcc")
        elif fbm == 'none':
            a("s_mov_b32 s48, 12")
        elif fbm == 'noret':
            a("s_mov_b32 s48, 1")
            a("s_atomic_add s48, s[94:95], 0")
            a("s_waitcnt lgkmcnt(0)")
        elif fbm == 'sld':
            a("s_load_dword s48, s[94:95], 0 glc")
            a("s_waitcnt lgkmcnt(0)")
        else:
            a("s_mov_b32 s48, 1")
            a("s_atomic_add s48, s[94:95], 0 glc")
            a("s_waitcnt lgkmcnt(0)")
            if fbsame:
                a("s_sub_u32 s48, s48, s51"); a("s_max_i32 s48, s48, 0"); a(f"s_add_u32 s51, s51, {fbg}")
        order = sorted(range(len(fbd) + 1), key=lambda i: ([depth] + list(fbd))[i])
        a(f"s_mov_b32 s49, {order[0]}")
        for th, idx in zip(fbt, order[1:]):
            a(f"s_cmp_ge_u32 s48, {th*fbg//256}"); a(f"s_cselect_b32 s49, {idx}, s49")
        a("v_mov_b32 v6, s49")
        a(f"ds_write_b32 v14, v6 offset:{F_DEP-M0_}")
        if not fbsame:
            a("s_add_u32 s94, s94, 256"); a("s_addc_u32 s95, s95, 0")
        a("s_setpc_b64 s[54:55]")

    a("L_ystage:")
    a("v_and_b32 v6, 1, v1"); a("v_bfe_u32 v7, v1, 2, 1"); a("v_lshl_add_u32 v6, v6, 1, v7"); a("v_mul_u32_u24 v6, 288, v6")
    a(f"v_lshl_add_u32 v6, v2, 4, v6"); a(f"v_add_u32 v6, {L_OB}, v6")
    a("v_lshlrev_b32 v7, 5, v1"); a("v_lshl_add_u32 v7, v2, 4, v7")
    a("s_lshl_b32 s48, s31, 2"); a("s_add_u32 s48, s48, s29"); a("s_mul_i32 s48, s48, 1792"); a("s_lshl_b32 s49, s60, 8"); a("s_add_u32 s49, s48, s49")
    a("s_waitcnt lgkmcnt(0)")
    a("s_barrier")
    stamp(7) if False else None
    for ks in range(4):
        a(f"ds_read_b128 {q(YA+4*ks)}, v6 offset:{ks*64}")
    S = ABUF
    for t in range(8):
        for ks in range(4):
            if t == 0:
                a(f"s_waitcnt lgkmcnt({3-ks})")
            a(f"v_mfma_f32_16x16x32_bf16 {q(T2+4*t)}, {q(YA+4*ks)}, {q(wfrag(ks,t))}, {q(T2+4*t) if ks else 0}")
        if t >= 2:
            a(f"v_add_f32 v{S+t-2}, v{T2+4*(t-2)}, v{T2+4*(t-2)+1}")
    a("s_nop 2")
    a(f"v_add_f32 v{S+6}, v{T2+24}, v{T2+25}")
    a("s_nop 2")
    a(f"v_add_f32 v{S+7}, v{T2+28}, v{T2+29}")
    for t in range(4):
        if t == 3:
            a("s_nop 0")
        a(f"v_permlane16_swap_b32 v{S+t}, v{S+t+4}")
    a("s_nop 0")
    for t in range(4):
        a(f"v_add_f32_dpp v{S+t}, v{S+t+4}, v{S+t} row_shl:8 row_mask:0xf bank_mask:0xf")
    a("s_mov_b64 exec, 0x00ff00ff")
    a(f"buffer_store_dwordx4 {q(S)}, v7, s[40:43], s49 offen sc1")
    a("s_mov_b64 exec, -1")
    stamp(7)
    if diag:
        a("s_cmp_lg_u32 s3, 2"); a("s_cbranch_scc1 L_ny"); a("s_waitcnt vmcnt(0)"); stamp(5); a("L_ny:")
    a("s_cmp_lt_u32 s3, 3")
    a("s_cbranch_scc1 L_done")
    a("s_cmp_eq_u32 s3, 3")
    a("s_cbranch_scc1 L_r1")
    a("s_cmp_ge_u32 s2, 112")
    a("s_cbranch_scc1 L_done")

    a("v_lshlrev_b32 v5, 5, v0")
    a(f"s_and_b32 s48, s2, {nrep-1}"); a("s_mul_i32 s48, s48, 7168"); a("s_mul_i32 s49, s62, 1792"); a("s_add_u32 s48, s48, s49")
    a(f"s_add_u32 s56, s48, {W_HB}"); a("s_add_u32 s57, s56, 16")
    X = T2
    for e in range(8):
        a(f"v_mov_b32 v{X+e}, 0")
    a("v_lshlrev_b32 v8, 4, v0"); a("s_mul_i32 s48, s62, 960"); a(f"s_add_u32 s48, s48, {L_XN2}"); a("v_add_u32 v8, s48, v8")
    a("v_and_b32 v9, 3, v1"); a("v_mul_u32_u24 v10, 960, v9"); a("v_lshl_add_u32 v10, v2, 4, v10")
    a("s_and_b32 s48, s62, 1"); a("s_mul_i32 s48, s48, 448"); a(f"s_add_u32 s48, s48, {L_XN2}"); a("v_add_u32 v10, s48, v10")
    a("v_lshlrev_b32 v11, 6, v9"); a("v_lshl_add_u32 v11, v2, 4, v11"); a(f"v_add_u32 v11, {L_GU}, v11")
    a("s_lshl_b32 s48, s62, 8"); a("v_add_u32 v12, s48, v11")
    if opl:
        a(f"v_mul_u32_u24 v13, {28*7168}, v1"); a("v_lshl_add_u32 v13, v2, 4, v13")
        a("s_lshl_b32 s58, s59, 6"); a(f"s_mul_i32 s48, s62, {7*7168}"); a("s_add_u32 s58, s58, s48"); a(f"s_add_u32 s58, s58, {W_OP}")
    else:
        a("v_mul_u32_u24 v13, 1792, v1"); a("v_lshl_add_u32 v13, v2, 4, v13")
        a("s_mul_i32 s58, s59, 7168"); a("s_mul_i32 s48, s62, 448"); a("s_add_u32 s58, s58, s48"); a(f"s_add_u32 s58, s58, {W_OP}")
    if r2sleep:
        a(f"s_sleep {r2sleep}")
    a("s_mov_b32 exec_hi, 0x00ffffff")
    poll_quads(2, X, 5, ["s56", "s57"], 40, 6)
    a("s_mov_b32 exec_hi, -1")
    stamp(3)
    layernorm(X, T2 + 8)
    for d in range(4):
        a(f"v_cvt_pk_bf16_f32 v{YA+d}, v{X+2*d}, v{X+2*d+1}")
    a("s_mov_b32 exec_hi, 0x00ffffff")
    a(f"ds_write_b128 v8, {q(YA)}")
    a("s_mov_b32 exec_hi, -1")
    a("s_waitcnt lgkmcnt(0)")
    a("s_barrier")
    for f in range(7):
        a(f"ds_read_b128 {q(T2+4*f)}, v10 offset:{f*64}")
    for f in range(7):
        a(f"s_waitcnt lgkmcnt({6-f})")
        a(f"v_mfma_f32_16x16x32_bf16 {q(ACC)}, {q(QA+4*f)}, {q(T2+4*f)}, {q(ACC) if f else 0}")
    a("s_nop 7")
    a(f"ds_write_b128 v12, {q(ACC)}")
    a("s_waitcnt lgkmcnt(0)")
    a("s_barrier")
    for p in range(4):
        a(f"ds_read_b128 {q(YA+4*p)}, v11 offset:{p*256}")
    a("s_waitcnt lgkmcnt(2)")
    for r in range(4):
        a(f"v_add_f32 v{YA+r}, v{YA+r}, v{YA+4+r}")
    a("s_waitcnt lgkmcnt(0)")
    for r in range(4):
        a(f"v_add_f32 v{YA+8+r}, v{YA+8+r}, v{YA+12+r}")
    for r in range(4):
        a(f"v_cvt_pk_bf16_f32 v{YA+4+r}, v{YA+r}, v{YA+8+r}")
    for r in range(4):
        a(f"v_lshlrev_b32 v{YA+r}, 16, v{YA+4+r}"); a(f"v_and_b32 v{YA+4+r}, 0xffff0000, v{YA+4+r}")
    for r in range(4):
        a(f"v_mul_f32 v{YA+r}, v{YA+r}, v{YA+4+r}")
    a(f"v_cvt_pk_bf16_f32 v{YA+8}, v{YA}, v{YA+1}"); a(f"v_cvt_pk_bf16_f32 v{YA+9}, v{YA+2}, v{YA+3}")
    a("s_nop 1")
    for u in range(7):
        a(f"v_mfma_f32_16x16x16_bf16 {q(T2+4*u)}, {q(DN+2*u,2)}, {q(YA+8,2)}, 0")
    a("s_mov_b32 exec_lo, 0x000f000f"); a("s_mov_b32 exec_hi, 0x000f000f")
    if sttest:
        a("s_mov_b64 exec, 0xffff")
        a("v_lshrrev_b32 v6, 2, v0"); a(f"v_mul_u32_u24 v13, {28*7168}, v6"); a("v_and_b32 v6, 3, v0"); a("v_lshl_add_u32 v13, v6, 4, v13")
    for u in range(7):
        if u == 0:
            a("s_nop 0")
        a(f"buffer_store_dwordx4 {q(T2+4*u)}, v13, s[40:43], s58 offen offset:{0 if opl else u*64} sc1")
        if u < 6:
            a("s_add_u32 s58, s58, 7168") if opl else a("s_nop 0")
    a("s_mov_b64 exec, -1")
    stamp(4)
    if diag:
        a("s_waitcnt vmcnt(0)")
        stamp(5)
    a("s_branch L_done")

    a("L_r1:")
    a("s_sub_u32 s48, s2, 112")
    a("s_cmp_lt_u32 s48, 112")
    a("s_cbranch_scc0 L_done")
    a("v_lshrrev_b32 v5, 2, v0"); a("v_and_b32 v6, 3, v0"); a("v_lshlrev_b32 v6, 4, v6")
    a("v_mul_u32_u24 v7, 1792, v5"); a("v_add_u32 v7, v7, v6")
    if opl:
        a("v_lshlrev_b32 v8, 4, v0")
    else:
        a("v_mul_u32_u24 v8, 7168, v5"); a("v_add_u32 v8, v8, v6")
    a(f"s_mul_i32 s44, s58, {64*1792}"); a("s_lshl_b32 s48, s59, 6"); a("s_add_u32 s44, s44, s48")
    for g in range(1, 4):
        a(f"s_add_u32 s{44+g}, s{43+g}, {16*1792}")
    a("v_lshlrev_b32 v11, 16, v11")
    poll_quads(4, T2, 7, ["s44", "s45", "s46", "s47"], 40, 6)
    stamp(3)
    for r in range(4):
        a(f"v_add_f32 v{T2+r}, v{T2+r}, v{T2+4+r}"); a(f"v_add_f32 v{T2+8+r}, v{T2+8+r}, v{T2+12+r}")
    for r in range(4):
        a(f"v_add_f32 v{T2+r}, v{T2+r}, v{T2+8+r}")
    xreduce(T2)
    bf16r(T2, T2)
    a(f"v_add_f32 v11, v11, v{T2}")
    bf16r(11, 11)
    a(f"s_add_u32 s48, s56, {W_HB}")
    for k in range(nrep // 4):
        a("buffer_store_dword v11, v13, s[40:43], s48 offen sc1")
        if k + 1 < nrep // 4:
            a(f"s_add_u32 s48, s48, {4*7168}")
    stamp(4)
    so = ["s32", "s33", "s34", "s35", "s36", "s37", "s38"]
    if opl:
        a("s_mul_i32 s32, s58, 28"); a("s_add_u32 s32, s32, s59"); a("s_mul_i32 s32, s32, 7168"); a(f"s_add_u32 s32, s32, {W_OP}")
    else:
        a(f"s_add_u32 s32, s56, {W_OP}")
    for g in range(1, 7):
        a(f"s_add_u32 {so[g]}, {so[g-1]}, {1024 if opl else 16*7168}")
    srd(44, 22, 3584)
    a("s_waitcnt vmcnt(0)")
    if r3sleep:
        a(f"s_sleep {r3sleep}")
    poll_quads(7, T2, 8, so, 40, 6)
    stamp(5)
    for r in range(4):
        a(f"v_add_f32 v{T2+r}, v{T2+r}, v{T2+4+r}"); a(f"v_add_f32 v{T2+8+r}, v{T2+8+r}, v{T2+12+r}")
        a(f"v_add_f32 v{T2+16+r}, v{T2+16+r}, v{T2+20+r}")
    for r in range(4):
        a(f"v_add_f32 v{T2+r}, v{T2+r}, v{T2+8+r}"); a(f"v_add_f32 v{T2+16+r}, v{T2+16+r}, v{T2+24+r}")
    for r in range(4):
        a(f"v_add_f32 v{T2+r}, v{T2+r}, v{T2+16+r}")
    xreduce(T2)
    bf16r(T2, T2)
    a(f"v_add_f32 v11, v11, v{T2}")
    a("v_cvt_pk_bf16_f32 v11, v11, v11")
    a("s_lshr_b32 s48, s56, 1")
    a("s_mov_b32 exec_lo, 0x000f000f"); a("s_mov_b32 exec_hi, 0x000f000f")
    a("buffer_store_short v11, v12, s[44:47], s48 offen")
    a("s_mov_b64 exec, -1")
    stamp(6)
    a("L_done:")
    finish()

    a("L_loader:")
    a("; ---- wave 0: streams K then V (1 MiB each) into the LDS ring, DEPTH KiB in flight")
    a("s_setprio 3")
    a("v_and_b32 v4, 31, v0")
    for k in range(8):
        a(f"v_add_u32 v5, {2*k}, v3"); a("v_xor_b32 v5, v5, v4") if not noswz else a("v_mov_b32 v5, v4"); a("v_lshlrev_b32 v5, 4, v5"); a(f"v_lshl_add_u32 v{8+k}, v3, 9, v5")
    a("v_lshlrev_b32 v16, 4, v0")
    a(f"v_mov_b32 v24, {M0_}"); a(f"v_mov_b32 v17, {F_CONS}")
    for r in range(4):
        a(f"v_mov_b32 v{20+r}, 0")
    a("ds_write_b128 v24, v[20:23]"); a("ds_write_b128 v24, v[20:23] offset:16")
    a("s_lshl_b32 s48, s31, 22"); a("s_lshl_b32 s49, s29, 20"); a("s_add_u32 s48, s48, s49")
    a("s_waitcnt lgkmcnt(0)")
    for r, p in ((32, 6), (36, 8)):
        a(f"s_add_u32 s{r}, s{p}, s48"); a(f"s_addc_u32 s{r+1}, s{p+1}, 0"); a(f"s_and_b32 s{r+1}, s{r+1}, 0xffff")
        a(f"s_mov_b32 s{r+2}, 0x100000"); a(f"s_mov_b32 s{r+3}, 0x20000")
    if diag:
        srd(40, 26, WS_BYTES)
    a("s_mov_b32 s56, 0")
    a("s_mov_b32 s57, 0")
    a("s_mov_b32 s58, 0")
    a("v_mov_b32 v18, 0")

    a("v_mov_b32 v25, 0")
    depths = [depth] + list(fbd)
    tend = 256 if qonly < 0 else qonly
    if qonly == 0:
        a("s_barrier"); finish()
    a("L_ltop:")
    a("; slot free? consumer (T&1) must have finished tile T-16")
    a("s_lshr_b32 s49, s58, 1"); a("s_sub_u32 s49, s49, 7")
    p, go = lab("fp"), lab("fg")
    a("s_waitcnt lgkmcnt(0)")
    a("v_readfirstlane_b32 s48, v18")
    a("v_readfirstlane_b32 s50, v25")
    a("s_cmp_ge_i32 s48, s49")
    a(f"s_cbranch_scc1 {go}")
    bound_init()
    a(f"{p}:")
    a("ds_read_b32 v18, v17"); a("s_waitcnt lgkmcnt(0)"); a("v_readfirstlane_b32 s48, v18")
    a("s_cmp_ge_i32 s48, s49")
    a(f"s_cbranch_scc1 {go}")
    a("s_sleep 1")
    bound_loop(p)
    a(f"{go}:")
    a("v_xor_b32 v17, 12, v17")
    a("s_mov_b32 m0, s56")
    for di in range(1, len(depths)):
        a(f"s_cmp_eq_u32 s50, {di}"); a(f"s_cbranch_scc1 L_ld{di}")
    for di, dd in enumerate(depths):
        kpub, lag = (dd - 1) % 8, (dd - 1) // 8
        a(f"L_ld{di}:")
        for k in range(8):
            if k == 4:
                a("s_add_u32 m0, s56, 4096"); a("s_add_u32 s57, s57, 4096")
            if k == kpub:
                a(f"s_sub_u32 s49, s58, {lag}"); a("s_max_i32 s49, s49, 0"); a("v_mov_b32 v19, s49")
            a(f"s_waitcnt vmcnt({dd-1})")
            a(f"buffer_load_dwordx4 v{8+k}, s[32:35], s57 offen offset:{(k&3)*1024} nt lds")
            if k == kpub:
                a("ds_write_b32 v24, v19")
            if k == 6:
                a("ds_read_b32 v18, v17")
                if len(depths) > 1:
                    a(f"ds_read_b32 v25, v24 offset:{F_DEP-M0_}")
            if di == 0 and k == barpos:
                sk = lab("nb")
                a("s_cmp_lg_u32 s58, 0"); a(f"s_cbranch_scc1 {sk}"); a("s_barrier"); a(f"{sk}:")
        if di + 1 < len(depths):
            a("s_branch L_lnext")
    a("L_lnext:")
    a("s_add_u32 s57, s57, 4096")
    a("s_add_u32 s56, s56, 8192"); a("s_and_b32 s56, s56, 0x1ffff")
    a("s_add_u32 s58, s58, 1")
    if diag:
        for kk, tt in (((4, 16), (5, 32), (6, 64), (7, 192)) if qonly < 0 else ((4, 3), (5, 4), (6, 6), (7, 10))):
            sk = lab("st")
            a(f"s_cmp_lg_u32 s58, {tt}"); a(f"s_cbranch_scc1 {sk}"); stamp(kk); a(f"{sk}:")
    a("s_cmp_lg_u32 s58, 128")
    a("s_cbranch_scc1 L_lnosw")
    a("; switch the stream from K to V")
    a("s_mov_b32 s32, s36"); a("s_mov_b32 s33, s37"); a("s_mov_b32 s57, 0")
    for k in range(8):
        a(f"v_mov_b32 v{8+k}, v16")
    stamp(1)
    a("L_lnosw:")
    a(f"s_cmp_lt_u32 s58, {tend}")
    a("s_cbranch_scc1 L_ltop")
    if qonly > 0:
        a("s_waitcnt vmcnt(0)"); stamp(1); finish()
    stamp(2)
    for c in range(256 - (max(depths) - 1) // 8, 257):
        a(f"v_mov_b32 v19, {c}")
        a(f"s_waitcnt vmcnt({8*(256-c)})")
        a("ds_write_b32 v24, v19")
    a("s_waitcnt lgkmcnt(0)")
    stamp(3)
    finish()

    if diag:
        a("L_stamps:")
        if dbgstamps:
            srd(44, 24, 256)
            a("s_mov_b64 exec, 1")
            def amax(sreg, slot, inv=False):
                a(f"s_not_b32 s48, {sreg}") if inv else a(f"s_mov_b32 s48, {sreg}")
                a("v_mov_b32 v4, s48"); a(f"v_mov_b32 v5, {slot*4}")
                a("buffer_atomic_umax v4, v5, s[44:47], 0 offen sc1")
            a("s_cmp_lg_u32 s3, 0"); a("s_cbranch_scc1 L_ds1")
            amax("s64", 1, True); amax("s64", 2); amax("s72", 3); amax("s66", 4); amax("s70", 5); amax("s70", 6, True)
            a("s_endpgm")
            a("L_ds1:")
            a("s_cmp_lg_u32 s3, 1"); a("s_cbranch_scc1 L_ds2")
            amax("s70", 12); amax("s78", 7)
            a("s_endpgm")
            a("L_ds2:")
            a("s_cmp_lg_u32 s3, 3"); a("s_cbranch_scc1 L_ds3")
            amax("s70", 8); amax("s72", 13); amax("s74", 14); amax("s76", 11)
            a("s_endpgm")
            a("L_ds3:")
            a("s_cmp_lt_u32 s3, 4"); a("s_cbranch_scc1 L_exit")
            amax("s70", 9); amax("s72", 10)
            a("s_endpgm")
        a("v_mov_b32 v4, 0")
        for k in range(8):
            a(f"v_writelane_b32 v4, s{64+2*k}, {k}")
        a("s_getreg_b32 s48, hwreg(HW_REG_XCC_ID, 0, 4)")
        a("v_writelane_b32 v4, s48, 8")
        a("v_writelane_b32 v4, s63, 9")
        a("v_lshlrev_b32 v5, 2, v0")
        a("s_lshl_b32 s48, s2, 3"); a("s_add_u32 s48, s48, s3"); a("s_lshl_b32 s48, s48, 6"); a(f"s_add_u32 s48, s48, {W_ST}")
        a("s_mov_b64 exec, 0xffff")
        a("buffer_store_dword v4, v5, s[40:43], s48 offen")
    a("L_exit:")
    a("s_endpgm")
    a('.section .rodata,"a"')
    a(".p2align 6")
    a(f".amdhsa_kernel {KNAME}")
    a("  .amdhsa_next_free_vgpr 256")
    a("  .amdhsa_next_free_sgpr 96")
    a("  .amdhsa_accum_offset 256")
    a("  .amdhsa_group_segment_fixed_size 0")
    a("  .amdhsa_kernarg_size 96")
    a("  .amdhsa_user_sgpr_count 2")
    a("  .amdhsa_user_sgpr_kernarg_segment_ptr 1")
    a("  .amdhsa_system_sgpr_workgroup_id_x 1")
    a("  .amdhsa_float_denorm_mode_32 3")
    a(".end_amdhsa_kernel")
    out = []
    for x in L:
        if x is None:
            continue
        if x.endswith(":") or x.startswith((";", ".")) or x.startswith("  ."):
            out.append(x)
        else:
            out.append("    " + x)
    return "\n".join(out) + "\n"


if __name__ == "__main__":
    kw = eval("dict(%s)" % (sys.argv[2] if len(sys.argv) > 2 else ""))
    open(sys.argv[1], "w").write(gen(**kw))
```

```python
import sys
KNAME = "sequential_preLN__mha_block_cached__glu_gated_bilinear__decode_kernel"

HEADER = """; Kernarg layout for this problem (96 bytes, ptrs only, base s[0:1]):
;
; pattern written earlier in the same launch, or once it carries this launch's tag."""

M0_ = 131072
F_FILL, F_CONS, F_QCNT, F_MLCNT, F_FOK, F_QOK, F_DEP, F_CB = (M0_ + o for o in (0, 4, 12, 16, 20, 24, 28, 32))
L_ML, L_F = M0_ + 64, M0_ + 80
L_XN = M0_ + 128
L_QP = M0_ + 1024
L_QB = M0_ + 4608
L_PB = M0_ + 5120
L_CB = M0_ + 9216
L_RB = M0_ + 10240
L_XN2 = M0_ + 14080
L_GU = M0_ + 17920
L_STG = M0_ + 19968
LDS_BYTES = M0_ + 28160
W_YP = 0
W_ML = 0x80000
W_HB = 0x90000
W_OP = 0xC0000
W_QX = 0x130000
W_EP = 0x140000
W_FB = 0x150000
W_FL = 0x170000
W_OX = 0x180000
W_ST = 0x280000
WS_BYTES = 0x300000
SEL, SB, ACC, ACA, YA, QA, T, WL, FF = 16, 24, 32, 36, 40, 56, 88, 120, 184
T2 = WL + 32
LOG2E_16 = 0x3db8aa3b
INV448 = 0x3b124925
EPS = 0x3727c5ac
NF, R0LO, R1LO = 56, 56, 120


def gen(depth=22, fbd=(18, 20, 24, 27, 32), fbt=(32, 96, 160, 192, 224), fbg=8, fbs=(128, 192, 224, 240), fbmix=4,
        r2dep=0, wt0=64, wdt=3, gt0=14, gdt=1, nrep=8, pstag=5, psleep=0, barpos=7, krot=0,
        diag=False, spin_bound=True, nowo=False, noffn=False, mlt=144, boost=22, tpoll=255, r3sleep=0, g1=1, g2=0, g3=4, b3=False, b2=True, gsl=0, pdep=1, tst='', vpre=0, direct=0, dry0=False, dry1=False, trig='cb', g1n=16, gpair=False, pd=(2, 2, 1, 2), fastln=False, dry=True, patom=True, chkt=192, fbsl=4, csl=1, ldfirst=True, dummy=6, fbm='ls', fbstr=256, lad=None, pi=None, r0dep=0, stt=((4, 224), (5, 240), (6, 248), (7, 192)), fbr=None, endt=0, endd=40, clrt=0, atomt=0, slowthr=0, slowsl=0, first2=False, stfl='sc1', ldfl='sc1', pret=False):
    if fbr is None:
        lv = sorted([depth] + list(fbd))
        ths = [th*8//256 for th in fbt]
        tab = tuple(lv[sum(r >= t for t in ths)] if fbd else depth for r in range(8))
        fbr = [(t, tab) for t in (fbs if fbd else ())]
    if lad:
        fbr = [(t, tuple(lad)) for t, _, _ in pi]
    depths = [boost, depth] if not lad else [boost]
    for _, tab in fbr:
        for d in tab:
            if d not in depths[1:]:
                depths.append(d)
    for d in ([endd] if endt else []) + [x for x in (r2dep, r0dep) if x]:
        if d not in depths[1:]:
            depths.append(d)
    didx = lambda d: depths.index(d, 1)
    use_fb = bool(fbr)
    NT = 254 if direct else 256
    tpoll = min(tpoll, NT - 1)
    L = []
    a = L.append
    uid = [0]

    def fb_call(t):
        tab = dict(fbr)[t]
        if lad:
            _, P, I = [x for x in pi if x[0] == t][0]
            a(f"s_mov_b32 s50, {t}"); a(f"s_mov_b32 s51, {sum((d + 8) << (4*r) for r, d in enumerate(P)):#x}")
            a(f"s_mov_b32 s92, {sum((d + 8) << (4*r) for r, d in enumerate(I)):#x}")
            a("s_swappc_b64 s[54:55], s[52:53]")
            return
        a(f"s_mov_b32 s50, {t}"); a(f"s_mov_b32 s51, {sum(didx(d) << (4*r) for r, d in enumerate(tab)):#x}")
        a("s_swappc_b64 s[54:55], s[52:53]")

    def lab(p):
        uid[0] += 1
        return f"L_{p}{uid[0]}"

    def q(r, n=4):
        return f"v[{r}:{r+n-1}]"

    def srd(r, p, nbytes):
        a(f"s_mov_b32 s{r}, s{p}")
        a(f"s_and_b32 s{r+1}, s{p+1}, 0xffff")
        a(f"s_mov_b32 s{r+2}, {nbytes}")
        a(f"s_mov_b32 s{r+3}, 0x20000")

    def stamp(k):
        if diag:
            a(f"s_memrealtime s[{64+2*k}:{65+2*k}]")
            a("s_waitcnt lgkmcnt(0)")

    def finish():
        a("s_branch L_stamps" if diag else "s_endpgm")

    def bound_init(n=1 << 20):
        if spin_bound:
            a(f"s_mov_b32 s63, {n}")

    def bound_loop(target):
        if spin_bound:
            a("s_sub_u32 s63, s63, 1")
            a(f"s_cbranch_scc0 {target}")
        else:
            a(f"s_branch {target}")

    def lds_wait_ge(off, sdst, cmp_operand, vt, sleep=1, precheck=False, vaddr=14):
        p, go = lab("poll"), lab("go")
        if precheck:
            a(f"s_cmp_ge_u32 {sdst}, {cmp_operand}")
            a(f"s_cbranch_scc1 {go}")
        bound_init()
        a(f"{p}:")
        a(f"ds_read_b32 v{vt}, v{vaddr} offset:{off - M0_}")
        a("s_waitcnt lgkmcnt(0)")
        a(f"v_readfirstlane_b32 {sdst}, v{vt}")
        a(f"s_cmp_ge_u32 {sdst}, {cmp_operand}")
        a(f"s_cbranch_scc1 {go}")
        if sleep:
            a(f"s_sleep {sleep}")
        bound_loop(p)
        a(f"{go}:")

    def call_setup(target, fwd):
        l0 = lab("pc")
        a("s_getpc_b64 s[52:53]")
        a(f"{l0}:")
        if fwd:
            a(f"s_add_u32 s52, s52, {target}-{l0}"); a("s_addc_u32 s53, s53, 0")
        else:
            a(f"s_sub_u32 s52, s52, {l0}-{target}"); a("s_subb_u32 s53, s53, 0")

    def call():
        a("s_swappc_b64 s[54:55], s[52:53]")

    def call_woperm():
        l0, l1 = lab("wr"), lab("wr")
        a("s_getpc_b64 s[54:55]")
        a(f"{l0}:")
        a(f"s_add_u32 s54, s54, {l1}-{l0}"); a("s_addc_u32 s55, s55, 0")
        a("s_branch L_woperm")
        a(f"{l1}:")

    DPPS = [("row_ror:8", 0xf), ("row_ror:4", 0xf), ("row_ror:2", 0xf), ("row_ror:1", 0xf),
            ("row_bcast:15", 0xa), ("row_bcast:31", 0xc)]

    def wave_red(op, v, sdst):
        for d, m in DPPS:
            a("s_nop 1")
            a(f"{op}_dpp v{v}, v{v}, v{v} {d} row_mask:{m:#x} bank_mask:0xf")
        a("s_nop 0")
        a(f"v_readlane_b32 {sdst}, v{v}, 63")
        a("s_nop 1")

    def bf16r(dst, src):
        a(f"v_cvt_pk_bf16_f32 v{dst}, v{src}, v{src}")
        a(f"v_and_b32 v{dst}, 0xffff0000, v{dst}")

    def layernorm(X, t, out, fast=False):
        D, s1, s2, u = t, t + 8, t + 10, t + 12
        a(f"v_readfirstlane_b32 s48, v{X}")
        a(f"v_mov_b32 v{s1}, 0"); a(f"v_mov_b32 v{s2}, 0")
        a("s_mov_b32 exec_hi, 0x00ffffff")
        for e in range(0, 8, 2):
            a(f"v_pk_add_f32 {q(D+e,2)}, {q(X+e,2)}, s[48:49] op_sel_hi:[1,0] neg_lo:[0,1] neg_hi:[0,1]")
        a(f"v_pk_add_f32 {q(u,2)}, {q(D,2)}, {q(D+2,2)}")
        a(f"v_pk_mul_f32 {q(s2,2)}, {q(D,2)}, {q(D,2)}")
        a(f"v_pk_add_f32 {q(s1,2)}, {q(D+4,2)}, {q(D+6,2)}")
        a(f"v_pk_fma_f32 {q(s2,2)}, {q(D+2,2)}, {q(D+2,2)}, {q(s2,2)}")
        a(f"v_pk_add_f32 {q(s1,2)}, {q(s1,2)}, {q(u,2)}")
        a(f"v_pk_fma_f32 {q(s2,2)}, {q(D+4,2)}, {q(D+4,2)}, {q(s2,2)}")
        a(f"v_add_f32 v{s1}, v{s1}, v{s1+1}")
        a(f"v_pk_fma_f32 {q(s2,2)}, {q(D+6,2)}, {q(D+6,2)}, {q(s2,2)}")
        a(f"s_mov_b32 s49, {INV448:#x}")
        a(f"v_add_f32 v{s2}, v{s2}, v{s2+1}")
        a("s_mov_b32 exec_hi, -1")
        for d, m in DPPS:
            a("s_nop 0")
            a(f"v_add_f32_dpp v{s1}, v{s1}, v{s1} {d} row_mask:{m:#x} bank_mask:0xf")
            a(f"v_add_f32_dpp v{s2}, v{s2}, v{s2} {d} row_mask:{m:#x} bank_mask:0xf")
        a(f"v_mov_b32 v{u}, s49")
        a(f"v_readlane_b32 s50, v{s1}, 63")
        a(f"v_readlane_b32 s51, v{s2}, 63")
        a("s_nop 0")
        a(f"v_mul_f32 v{s1}, s50, v{u}")
        a(f"v_mul_f32 v{s2}, s51, v{u}")
        a(f"v_add_f32 v{u}, s48, v{s1}")
        a(f"v_fma_f32 v{s2}, -v{s1}, v{s1}, v{s2}")
        if fast:
            a(f"v_max_f32 v{s2}, 0, v{s2}")
            a(f"v_pk_add_f32 {q(D,2)}, {q(X,2)}, {q(u,2)} op_sel_hi:[1,0] neg_lo:[0,1] neg_hi:[0,1]")
            a(f"v_add_f32 v{s2}, {EPS:#x}, v{s2}")
            a(f"v_pk_add_f32 {q(D+2,2)}, {q(X+2,2)}, {q(u,2)} op_sel_hi:[1,0] neg_lo:[0,1] neg_hi:[0,1]")
            a(f"v_rsq_f32 v{s2}, v{s2}")
            a(f"v_pk_add_f32 {q(D+4,2)}, {q(X+4,2)}, {q(u,2)} op_sel_hi:[1,0] neg_lo:[0,1] neg_hi:[0,1]")
            a(f"v_pk_add_f32 {q(D+6,2)}, {q(X+6,2)}, {q(u,2)} op_sel_hi:[1,0] neg_lo:[0,1] neg_hi:[0,1]")
            for e in range(0, 8, 2):
                a(f"v_pk_mul_f32 {q(D+e,2)}, {q(D+e,2)}, {q(s2,2)} op_sel_hi:[1,0]")
            for d in range(4):
                a(f"v_cvt_pk_bf16_f32 v{out+d}, v{D+2*d}, v{D+2*d+1}")
            return
        a(f"v_cvt_pk_bf16_f32 v{u}, v{u}, v{u}")
        a(f"v_max_f32 v{s2}, 0, v{s2}")
        a(f"v_and_b32 v{u}, 0xffff0000, v{u}")
        a(f"v_cvt_pk_bf16_f32 v{s2}, v{s2}, v{s2}")
        a(f"v_pk_add_f32 {q(D,2)}, {q(X,2)}, {q(u,2)} op_sel_hi:[1,0] neg_lo:[0,1] neg_hi:[0,1]")
        a(f"v_and_b32 v{s2}, 0xffff0000, v{s2}")
        a(f"v_pk_add_f32 {q(D+2,2)}, {q(X+2,2)}, {q(u,2)} op_sel_hi:[1,0] neg_lo:[0,1] neg_hi:[0,1]")
        a(f"v_add_f32 v{s2}, {EPS:#x}, v{s2}")
        a(f"v_pk_add_f32 {q(D+4,2)}, {q(X+4,2)}, {q(u,2)} op_sel_hi:[1,0] neg_lo:[0,1] neg_hi:[0,1]")
        a(f"v_cvt_pk_bf16_f32 v{s2}, v{s2}, v{s2}")
        a(f"v_pk_add_f32 {q(D+6,2)}, {q(X+6,2)}, {q(u,2)} op_sel_hi:[1,0] neg_lo:[0,1] neg_hi:[0,1]")
        a(f"v_and_b32 v{s2}, 0xffff0000, v{s2}")
        a(f"v_cvt_pk_bf16_f32 v{out}, v{D}, v{D+1}")
        a(f"v_sqrt_f32 v{s2}, v{s2}")
        a(f"v_cvt_pk_bf16_f32 v{out+1}, v{D+2}, v{D+3}")
        a(f"v_cvt_pk_bf16_f32 v{s2}, v{s2}, v{s2}")
        a(f"v_cvt_pk_bf16_f32 v{out+2}, v{D+4}, v{D+5}")
        a(f"v_and_b32 v{s2}, 0xffff0000, v{s2}")
        a(f"v_cvt_pk_bf16_f32 v{out+3}, v{D+6}, v{D+7}")
        a(f"v_rcp_f32 v{s2}, v{s2}")
        for d in range(4):
            a(f"v_lshlrev_b32 v{D+2*d}, 16, v{out+d}"); a(f"v_and_b32 v{D+2*d+1}, 0xffff0000, v{out+d}")
        for e in range(0, 8, 2):
            a(f"v_pk_mul_f32 {q(D+e,2)}, {q(D+e,2)}, {q(s2,2)} op_sel_hi:[1,0]")
        for d in range(4):
            a(f"v_cvt_pk_bf16_f32 v{out+d}, v{D+2*d}, v{D+2*d+1}")

    def build_a(dst, psrc, n):
        for w in range(4):
            a(f"v_perm_b32 v{dst+w}, v{psrc + (n >> 1)}, v{psrc + (n >> 1)}, v{SEL + (n & 1)*4 + w}")

    def xreduce(V):
        a("s_nop 1")
        a(f"v_permlane16_swap_b32 v{V}, v{V+1}")
        a(f"v_permlane16_swap_b32 v{V+2}, v{V+3}")
        a(f"v_add_f32 v{V}, v{V}, v{V+1}")
        a(f"v_add_f32 v{V+2}, v{V+2}, v{V+3}")
        a("s_nop 1")
        a(f"v_permlane32_swap_b32 v{V}, v{V+2}")
        a(f"v_add_f32 v{V}, v{V}, v{V+2}")
        a("s_nop 1")
        a(f"v_add_f32_dpp v{V}, v{V}, v{V} row_ror:8 row_mask:0xf bank_mask:0xf")
        a("s_nop 1")
        a(f"v_add_f32_dpp v{V}, v{V}, v{V} row_ror:4 row_mask:0xf bank_mask:0xf")

    def poll_quads(R, voff, soffs, vt, execs=None, both=False, pdep=1):
        n = len(soffs)
        execs = execs or ["-1"] * n

        def batch(masked):
            for g in range(n):
                if masked:
                    a(f"s_or_b64 exec, s[{80+2*g}:{81+2*g}], 1")
                elif g == 0 or execs[g] != execs[g-1]:
                    a(f"s_mov_b64 exec, {execs[g]}")
                a(f"buffer_load_dwordx4 {q(R+4*g)}, v{voff}, s[40:43], {soffs[g]} offen {ldfl}")

        def check(extra, go):
            for g in range(n):
                if g == 0 or execs[g] != execs[g-1]:
                    a(f"s_mov_b64 exec, {execs[g]}")
                a(f"s_waitcnt vmcnt({extra + n-1-g})")
                a(f"v_max3_u32 v{vt}, v{R+4*g}, v{R+4*g+1}, v{R+4*g+2}")
                a(f"v_max_u32 v{vt}, v{vt}, v{R+4*g+3}")
                a(f"v_cmp_eq_u32 s[{80+2*g}:{81+2*g}], -1, v{vt}")
            a("s_or_b64 s[50:51], s[80:81], s[82:83]")
            for g in range(2, n):
                a(f"s_or_b64 s[50:51], s[50:51], s[{80+2*g}:{81+2*g}]")
            a(f"s_cbranch_scc0 {go}")
        p, go = lab("gp"), lab("gg")
        batch(False)
        if both:
            for _ in range(pdep - 1):
                a(f"s_sleep {pstag}")
                batch(False)
        else:
            check(0, go)
            batch(True)
            for _ in range(pdep - 1):
                a(f"s_sleep {pstag}")
                batch(True)
        bound_init(1 << 17)
        a(f"{p}:")
        check((pdep - 1) * n, go)
        if slowsl:
            sk = lab("fs")
            a("s_bcnt1_i32_b64 s48, s[50:51]"); a(f"s_cmp_le_u32 s48, {slowthr}"); a(f"s_cbranch_scc1 {sk}")
            a(f"s_sleep {slowsl}")
            a(f"{sk}:")
        if psleep:
            a(f"s_sleep {psleep}")
        batch(True)
        bound_loop(p)
        a(f"{go}:")
        a("s_mov_b64 exec, -1")

    def gate(voff, soff, nl, need, vt):
        p, go = lab("wp"), lab("wg")
        bound_init(1 << 17)
        a(f"s_mov_b64 exec, {hex((1 << nl) - 1)}")
        a(f"{p}:")
        a(f"buffer_load_dword v{vt}, v{voff}, s[40:43], {soff} offen {ldfl}")
        a("s_waitcnt vmcnt(0)")
        a(f"v_cmp_ne_u32 s[50:51], -1, v{vt}")
        a("s_bcnt1_i32_b64 s48, s[50:51]")
        a(f"s_cmp_ge_u32 s48, {need}")
        a(f"s_cbranch_scc1 {go}")
        if gsl:
            a(f"s_sleep {gsl}")
        bound_loop(p)
        a(f"{go}:")
        a("s_mov_b64 exec, -1")

    def end_wait(t):
        if trig == 'cb':
            lds_wait_ge(F_CB, "s48", 1, 6, sleep=4)
        else:
            lds_wait_ge(F_FILL, "s48", t, 6, sleep=4)

    def set_depth(src):
        a(f"v_mov_b32 v6, {src}")
        a(f"ds_write_b32 v14, v6 offset:{F_DEP-M0_}")

    def wo_load(k):
        ks, e = k >> 3, k & 7
        if nowo:
            return
        if (e & 3) == 0:
            a(f"s_mov_b32 s48, {(ks*32 + (e & 4))*896}")
        a(f"buffer_load_dwordx2 {q(WL+4*k,2)}, v4, s[36:39], s48 offen offset:{(e & 3)*896} nt")
        a(f"buffer_load_dwordx2 {q(WL+4*k+2,2)}, v4, s[36:39], s48 offen offset:{(e & 3)*896 + 128} nt")

    def wfrag(ks, t):
        return (T if ks == 0 else WL) + 4*t

    a(HEADER)
    a(f"; @launch grid=(256,1,1) block=(512,1,1) lds={LDS_BYTES}")
    a('.amdgcn_target "amdgcn-amd-amdhsa--gfx950"')
    a(".text")
    a(f".globl {KNAME}")
    a(".p2align 8")
    a(f".type {KNAME},@function")
    a(f"{KNAME}:")
    a("s_cmp_ge_u32 s2, 256")
    a("s_cbranch_scc1 L_exit")
    a("s_load_dwordx16 s[4:19], s[0:1], 0")
    a("s_load_dwordx8 s[20:27], s[0:1], 64")
    if diag:
        for k in range(16):
            a(f"s_mov_b32 s{64+k}, 0")
        a("s_memrealtime s[64:65]")
    a("v_lshrrev_b32 v1, 6, v0")
    a("v_and_b32 v0, 63, v0")
    a("v_readfirstlane_b32 s3, v1")
    a("s_and_b32 s28, s2, 7"); a("s_lshr_b32 s48, s2, 3"); a("s_and_b32 s49, s48, 1"); a("s_lshl_b32 s49, s49, 3")
    a("s_add_u32 s28, s28, s49")
    a("s_lshr_b32 s29, s48, 1"); a("s_and_b32 s29, s29, 3"); a("s_lshr_b32 s30, s48, 3")
    a("s_lshl_b32 s31, s30, 4"); a("s_add_u32 s31, s31, s28")
    a("v_and_b32 v1, 15, v0")
    a("v_lshrrev_b32 v2, 4, v0")
    a("v_lshrrev_b32 v3, 5, v0")
    def emit_loader():
        a("L_loader:")
        a("s_setprio 3")
        a("v_and_b32 v4, 31, v0"); a("v_xor_b32 v4, v4, v3"); a("v_lshlrev_b32 v4, 4, v4"); a("v_lshl_add_u32 v8, v3, 9, v4")
        for k in range(1, 8):
            a(f"v_xor_b32 v{8+k}, {k << 5}, v8")
        a("s_lshl_b32 s59, s31, 22"); a("s_lshl_b32 s49, s29, 20"); a("s_add_u32 s59, s59, s49")
        a("s_mov_b32 s56, 0"); a("s_mov_b32 s57, 0"); a("s_mov_b32 s58, 0"); a("s_mov_b32 m0, 0")
        a("s_mov_b32 s34, 0x100000"); a("s_mov_b32 s35, 0x20000")
        a(f"v_mov_b32 v24, {M0_}"); a(f"v_mov_b32 v17, {F_CONS + 4}")
        for r in range(4):
            a(f"v_mov_b32 v{20+r}, 0")
        a("ds_write_b128 v24, v[20:23]"); a("ds_write_b128 v24, v[20:23] offset:16"); a("ds_write_b128 v24, v[20:23] offset:32")
        a("s_waitcnt lgkmcnt(0)")
        if 'e' in tst:
            stamp(4)
        a("s_add_u32 s32, s6, s59"); a("s_addc_u32 s33, s7, 0"); a("s_and_b32 s33, s33, 0xffff")
        if diag:
            srd(40, 26, WS_BYTES)
        for di, dd in enumerate(depths):
            kpub, lag = (dd - 1) % 8, (dd - 1) // 8
            a(f"L_ld{di}:")
            for k in range(8):
                if k == 4:
                    a("s_add_u32 m0, s56, 4096"); a("s_add_u32 s57, s57, 4096")
                if k == kpub:
                    a(f"s_sub_u32 s49, s58, {lag}"); a("s_max_i32 s49, s49, 0"); a("v_mov_b32 v19, s49")
                a(f"s_waitcnt vmcnt({dd-1})")
                a(f"buffer_load_dwordx4 v{8+k}, s[32:35], s57 offen offset:{(k&3)*1024} nt lds")
                if k == kpub:
                    a("ds_write_b32 v24, v19")
                if k == 6:
                    a("ds_read_b32 v18, v17")
                    if len(depths) > 1:
                        a(f"ds_read_b32 v25, v24 offset:{F_DEP-M0_}")
                if di == 0 and k == barpos:
                    sk = lab("nb")
                    a("s_cmp_lg_u32 s58, 0"); a(f"s_cbranch_scc1 {sk}")
                    if 'e' in tst:
                        stamp(5)
                    a("s_barrier")
                    if 'e' in tst:
                        a("s_waitcnt vmcnt(7)"); stamp(6)
                    a(f"{sk}:")
            if di + 1 < len(depths):
                a("s_branch L_lnext")
        a("L_lnext:")
        a("s_add_u32 s57, s57, 4096")
        a("s_add_u32 s56, s56, 8192"); a("s_and_b32 s56, s56, 0x1ffff")
        a("s_add_u32 s58, s58, 1")
        if diag:
            for kk, tt in stt:
                sk = lab("st")
                a(f"s_cmp_lg_u32 s58, {tt}"); a(f"s_cbranch_scc1 {sk}"); stamp(kk); a(f"{sk}:")
        a("s_cmp_lg_u32 s58, 128")
        a("s_cbranch_scc1 L_lnosw")
        a("s_add_u32 s32, s8, s59"); a("s_addc_u32 s33, s9, 0"); a("s_and_b32 s33, s33, 0xffff"); a("s_mov_b32 s57, 0")
        for k in range(8):
            a(f"v_lshlrev_b32 v{8+k}, 4, v0")
        stamp(1)
        a("L_lnosw:")
        a(f"s_cmp_ge_u32 s58, {NT}")
        a("s_cbranch_scc1 L_ldrain")
        a("s_lshr_b32 s49, s58, 1"); a("s_sub_u32 s49, s49, 7")
        p, go = lab("fp"), lab("fg")
        a("s_waitcnt lgkmcnt(0)")
        a("v_readfirstlane_b32 s48, v18")
        a("v_readfirstlane_b32 s50, v25")
        a("s_cmp_ge_i32 s48, s49")
        a(f"s_cbranch_scc1 {go}")
        bound_init()
        a(f"{p}:")
        a("ds_read_b32 v18, v17"); a("s_waitcnt lgkmcnt(0)"); a("v_readfirstlane_b32 s48, v18")
        a("s_cmp_ge_i32 s48, s49")
        a(f"s_cbranch_scc1 {go}")
        a("s_sleep 1")
        bound_loop(p)
        a(f"{go}:")
        a("v_xor_b32 v17, 12, v17")
        a("s_mov_b32 m0, s56")
        for di in range(1, len(depths)):
            a(f"s_cmp_eq_u32 s50, {di}"); a(f"s_cbranch_scc1 L_ld{di}")
        a("s_branch L_ld0")
        a("L_ldrain:")
        stamp(2)
        for c in range(NT - (max(depths) - 1) // 8, NT + 1):
            a(f"v_mov_b32 v19, {c}")
            a(f"s_waitcnt vmcnt({8*(NT-c)})")
            a("ds_write_b32 v24, v19")
        a("s_waitcnt lgkmcnt(0)")
        stamp(3)
        finish()


    if ldfirst:
        a("s_cmp_lg_u32 s3, 0")
        a("s_cbranch_scc1 L_worker")
        emit_loader()
        a("L_worker:")
    else:
        a("s_cmp_eq_u32 s3, 0")
        a("s_cbranch_scc1 L_loader")

    a("s_sub_u32 s60, s3, 1")
    a("v_lshlrev_b32 v5, 4, v0")
    a("s_mul_i32 s48, s30, 896")
    a("v_add_u32 v5, s48, v5")
    a("v_mov_b32 v6, 0x7fffff00")
    a("v_cmp_gt_u32 vcc, 56, v0")
    a("v_and_b32 v4, 7, v0")
    a("v_lshlrev_b32 v4, 4, v4")
    a("v_cndmask_b32 v5, v6, v5, vcc")
    a("v_lshrrev_b32 v13, 3, v0")
    a("v_lshl_add_u32 v4, v13, 16, v4")
    a("s_lshl_b32 s48, s60, 19"); a("s_lshl_b32 s49, s28, 9"); a("s_add_u32 s48, s48, s49")
    a("s_lshl_b32 s49, s29, 7"); a("s_add_u32 s48, s48, s49")
    a("v_add_u32 v4, s48, v4")
    a("s_waitcnt lgkmcnt(0)")
    srd(32, 4, 3584)
    srd(36, 10, 3670016)
    a(f"buffer_load_dwordx4 {q(YA)}, v5, s[32:35], 0 offen")
    a(f"s_add_u32 s48, s26, {W_EP}"); a("s_addc_u32 s49, s27, 0")
    a("s_load_dword s62, s[48:49], 0")
    a("v_mov_b32 v15, 0")
    a("s_barrier")
    a("s_mov_b32 s50, 0")
    for n in range(8):
        a(f"buffer_load_dwordx4 {q(QA+4*n)}, v4, s[36:39], s50 offen nt") if 'w' not in tst else a(f"buffer_load_dword v{QA+4*n}, v15, s[32:35], 0 offen")
        if n < 7:
            a("s_add_u32 s50, s50, 8192")
    srd(40, 26, WS_BYTES)
    a("v_and_b32 v6, 1, v1"); a("v_cmp_eq_u32 vcc, 1, v6")
    a("v_mov_b32 v7, 0x0c0c0100"); a("v_mov_b32 v8, 0x01000c0c"); a("v_mov_b32 v9, 0x0c0c0302"); a("v_mov_b32 v10, 0x03020c0c")
    a("v_cndmask_b32 v7, v7, v8, vcc"); a("v_cndmask_b32 v9, v9, v10, vcc")
    a("v_bfe_u32 v6, v1, 1, 2"); a("v_mov_b32 v10, 0x0c0c0c0c")
    for w in range(4):
        a(f"v_cmp_eq_u32 vcc, {w}, v6"); a("s_nop 1")
        a(f"v_cndmask_b32 v{SEL+w}, v10, v7, vcc"); a(f"v_cndmask_b32 v{SEL+4+w}, v10, v9, vcc")
    a("v_mov_b32 v15, 0")
    a(f"v_mov_b32 v14, {M0_}")
    a(f"v_lshlrev_b32 v8, 4, v0"); a(f"v_add_u32 v8, {L_XN}, v8")
    a("s_lshl_b32 s48, s60, 7"); a(f"s_add_u32 s48, s48, {L_XN}")
    a("v_lshl_add_u32 v9, v13, 4, s48")
    a("v_lshrrev_b32 v6, 1, v2"); a("v_lshlrev_b32 v6, 8, v6"); a("v_and_b32 v7, 7, v1"); a("v_lshl_add_u32 v6, v7, 5, v6")
    a("v_and_b32 v7, 1, v2"); a("v_lshl_add_u32 v6, v7, 4, v6")
    a("s_lshl_b32 s48, s60, 9"); a(f"s_add_u32 s48, s48, {L_QP}")
    a("v_add_u32 v6, s48, v6")
    a("v_mov_b32 v7, 1")
    a("s_waitcnt vmcnt(8)")
    for d in range(4):
        a(f"v_lshlrev_b32 v{T+2*d}, 16, v{YA+d}"); a(f"v_and_b32 v{T+2*d+1}, 0xffff0000, v{YA+d}")
    layernorm(T, T + 8, YA)
    a("s_mov_b32 exec_hi, 0x00ffffff")
    a(f"ds_write_b128 v8, {q(YA)}")
    a("s_mov_b32 exec_hi, -1")
    a("s_waitcnt lgkmcnt(0)")
    a(f"ds_read_b128 {q(YA)}, v9")
    stamp(1)
    a("s_waitcnt lgkmcnt(0)")
    for n in range(8):
        build_a(T + 4*n, YA, n)
    for n in range(8):
        a(f"s_waitcnt vmcnt({7-n})")
        a(f"v_mfma_f32_16x16x32_bf16 {q(ACC)}, {q(T+4*n)}, {q(QA+4*n)}, {q(ACC) if n else 0}")
    a("s_mov_b32 exec_lo, 0x00ff00ff"); a("s_mov_b32 exec_hi, 0xff00ff00")
    a("s_nop 5")
    a(f"ds_write_b128 v6, {q(ACC)}")
    a("s_waitcnt lgkmcnt(0)")
    a("s_mov_b64 exec, 1")
    a(f"ds_add_u32 v14, v7 offset:{F_QCNT-M0_}")
    a("s_mov_b64 exec, -1")
    stamp(2)
    a("s_cmp_eq_u32 s3, 3")
    a("s_cbranch_scc1 L_h4")
    a("s_cmp_gt_u32 s3, 3")
    a("s_cbranch_scc1 L_helper")

    a("v_and_b32 v6, 1, v2"); a("v_lshrrev_b32 v8, 3, v1"); a("v_cmp_eq_u32 vcc, v6, v8"); a("s_nop 1")
    for w in range(8):
        a(f"v_cndmask_b32 v{SEL+w}, v10, v{SEL+w}, vcc")
    a("v_and_b32 v6, 3, v1"); a("v_xor_b32 v6, v6, v2"); a("v_and_b32 v7, 12, v1"); a("v_or_b32 v6, v6, v7")
    for m in range(4):
        a(f"v_xor_b32 v7, {m*4}, v6"); a("v_lshlrev_b32 v7, 4, v7"); a(f"v_lshl_add_u32 v{8+m}, v1, 9, v7")
    a("v_and_b32 v6, 1, v1"); a("v_lshlrev_b32 v6, 4, v6"); a("v_and_b32 v7, 14, v1"); a("v_add_u32 v12, v6, v7")
    a("s_lshl_b32 s48, s60, 5"); a(f"s_add_u32 s61, s48, {L_PB}")
    a("v_add_u32 v12, s61, v12")
    a("s_lshl_b32 s48, s60, 2"); a(f"s_add_u32 s48, s48, {F_CONS}"); a("v_mov_b32 v13, s48")
    a("s_lshl_b32 s56, s60, 13")
    a("s_add_u32 s57, s60, 1")
    a("s_mov_b32 s58, 0")
    a("v_mov_b32 v5, 0")
    a(f"v_lshlrev_b32 v7, 4, v2"); a(f"v_add_u32 v7, {L_QB}, v7")
    lds_wait_ge(F_QOK, "s48", 1, 6)
    for ks in range(8):
        a(f"ds_read_b128 {q(QA+4*ks)}, v7 offset:{ks*64}")
    stamp(3)
    a("L_kloop:")
    for m in range(4):
        a(f"v_add_u32 v{SB+m}, s56, v{8+m}")
    a("v_add_u32 v5, 1, v5")
    lds_wait_ge(F_FILL, "s58", "s57", 6, precheck=True, sleep=csl)
    for ks in range(8):
        a(f"ds_read_b128 {q(T+4*ks)}, v{SB+(ks&3)} offset:{(ks>>2)*256}")
    for ks in range(8):
        a(f"s_waitcnt lgkmcnt({7-ks})")
        a(f"v_mfma_f32_16x16x32_bf16 {q(ACC)}, {q(QA+4*ks)}, {q(T+4*ks)}, {q(ACC) if ks else 0}")
    a("ds_write_b32 v13, v5")
    a("s_add_u32 s56, s56, 16384"); a("s_and_b32 s56, s56, 0x1ffff")
    a("s_add_u32 s57, s57, 2")
    a("s_nop 4")
    a(f"v_cvt_pk_bf16_f32 v6, v{ACC}, v{ACC}")
    a("ds_write_b16 v12, v6")
    a("v_add_u32 v12, 64, v12")
    a("s_cmp_lt_u32 s57, 129")
    a("s_cbranch_scc1 L_kloop")
    stamp(4)
    a("v_lshl_add_u32 v12, v0, 6, s61")
    a("s_waitcnt lgkmcnt(0)")
    a(f"ds_read_b128 {q(YA)}, v12"); a(f"ds_read_b128 {q(YA+4)}, v12 offset:16")
    a("s_waitcnt lgkmcnt(0)")
    for d in range(8):
        a(f"v_lshlrev_b32 v{T+2*d}, 16, v{YA+d}"); a(f"v_and_b32 v{T+2*d+1}, 0xffff0000, v{YA+d}")
    a(f"v_max3_f32 v6, v{T}, v{T+1}, v{T+2}")
    for d in range(3, 15, 2):
        a(f"v_max3_f32 v6, v6, v{T+d}, v{T+d+1}")
    a(f"v_max_f32 v6, v6, v{T+15}")
    wave_red("v_max_f32", 6, "s48")
    a(f"s_mov_b32 s49, {LOG2E_16:#x}")
    for d in range(16):
        a(f"v_subrev_f32 v{T+d}, s48, v{T+d}")
    for d in range(16):
        a(f"v_mul_f32 v{T+d}, s49, v{T+d}")
    for d in range(16):
        a(f"v_exp_f32 v{T+d}, v{T+d}")
    a("s_nop 0")
    for d in range(8):
        a(f"v_cvt_pk_bf16_f32 v{YA+d}, v{T+2*d}, v{T+2*d+1}")
    a(f"ds_write_b128 v12, {q(YA)}"); a(f"ds_write_b128 v12, {q(YA+4)} offset:16")
    for st in (8, 4, 2, 1):
        for d in range(st):
            a(f"v_add_f32 v{T+d}, v{T+d}, v{T+d+st}")
    wave_red("v_add_f32", T, "s49")
    a("v_mov_b32 v6, s48"); a("v_mov_b32 v7, s49")
    a("s_lshl_b32 s48, s60, 3"); a(f"s_add_u32 s48, s48, {L_ML}"); a("v_mov_b32 v8, s48"); a("v_mov_b32 v9, 1")
    a("s_mov_b64 exec, 1")
    a("ds_write_b64 v8, v[6:7]")
    a("s_waitcnt lgkmcnt(0)")
    a(f"ds_add_u32 v14, v9 offset:{F_MLCNT-M0_}")
    a("s_mov_b64 exec, -1")
    a("v_lshlrev_b32 v8, 4, v0")
    a("v_lshl_add_u32 v12, v3, 4, s61")
    a(f"v_add_u32 v10, {L_CB}, v8")
    for r in range(4):
        a(f"v_mov_b32 v{ACC+r}, 0")
    a("s_mov_b32 s59, 225")
    stamp(5)
    a("L_vloop:")
    a(f"ds_read_b128 {q(YA)}, v12")
    a("v_add_u32 v9, s56, v8")
    a("v_add_u32 v12, 64, v12")
    a("v_add_u32 v5, 1, v5")
    a("s_waitcnt lgkmcnt(0)")
    for n in range(8):
        build_a(QA + 4*n, YA, n)
    lds_wait_ge(F_FILL, "s58", "s57", 6, precheck=True, sleep=csl)
    for n in range(8):
        a(f"ds_read_b128 {q(T+4*n)}, v9 offset:{n*1024}")
    a(f"ds_read_b32 v6, v14 offset:{F_CB-M0_}")
    a(f"ds_read_b128 {q(ACA)}, v10")
    for n in range(8):
        a(f"s_waitcnt lgkmcnt({9-n})")
        a(f"v_mfma_f32_16x16x32_bf16 {q(ACC)}, {q(QA+4*n)}, {q(T+4*n)}, {q(ACC)}")
    a("ds_write_b32 v13, v5")
    a("s_add_u32 s56, s56, 16384"); a("s_and_b32 s56, s56, 0x1ffff")
    a("s_add_u32 s57, s57, 2")
    a("s_cmp_lt_u32 s57, s59")
    a("s_cbranch_scc1 L_vloop")
    a("s_cmp_gt_u32 s59, 253")
    a("s_cbranch_scc1 L_vdone")
    if direct:
        a("s_cmp_gt_u32 s59, 240")
        a("s_cbranch_scc1 L_vdir")
    lds_wait_ge(F_FOK, "s48", 1, 6)
    a("s_lshl_b32 s48, s60, 2"); a(f"s_add_u32 s48, s48, {L_F}"); a("v_mov_b32 v11, s48")
    a("ds_read_b32 v11, v11")
    a("v_lshrrev_b32 v6, 3, v1"); a("v_lshl_add_u32 v6, v3, 1, v6"); a("v_lshlrev_b32 v7, 11, v6")
    a("v_and_b32 v6, 7, v1"); a("v_lshl_add_u32 v7, v6, 4, v7"); a("v_and_b32 v6, 1, v2"); a("v_lshl_add_u32 v7, v6, 3, v7")
    a("s_lshl_b32 s48, s28, 13"); a("s_lshl_b32 s49, s30, 2"); a("s_add_u32 s49, s49, s29"); a("s_lshl_b32 s49, s49, 7")
    a("s_add_u32 s48, s48, s49"); a(f"s_add_u32 s61, s48, {W_OX}")
    if direct:
        a("s_lshl_b32 s48, s31, 22"); a("s_lshl_b32 s49, s29, 20"); a("s_add_u32 s48, s48, s49")
        a("s_add_u32 s36, s8, s48"); a("s_addc_u32 s37, s9, 0"); a("s_and_b32 s37, s37, 0xffff")
        a("s_mov_b32 s38, 0x100000"); a("s_mov_b32 s39, 0x20000")
        a(f"s_mov_b32 s59, {direct}")
        a("s_branch L_vloop")
        a("L_vdir:")
        lds_wait_ge(F_FILL, "s58", "s57", 6, precheck=True, sleep=csl)
        a("s_lshl_b32 s48, s60, 13"); a(f"s_add_u32 s48, s48, {126*8192}")
        for n in range(8):
            if n == 4:
                a("s_add_u32 s48, s48, 4096")
            a(f"buffer_load_dwordx4 {q(WL+4*n)}, v8, s[36:39], s48 offen offset:{(n&3)*1024} nt")
        a("s_mov_b32 s59, 255")
    else:
        a("s_mov_b32 s59, 257")
    a("s_branch L_vloop")
    a("L_vdone:")
    if direct:
        a(f"ds_read_b128 {q(YA)}, v12")
        a("s_waitcnt lgkmcnt(0)")
        for n in range(8):
            build_a(QA + 4*n, YA, n)
        for n in range(8):
            a(f"s_waitcnt vmcnt({7-n})")
            if n == 5:
                a(f"ds_read_b32 v6, v14 offset:{F_CB-M0_}")
                a(f"ds_read_b128 {q(ACA)}, v10")
            a(f"v_mfma_f32_16x16x32_bf16 {q(ACC)}, {q(QA+4*n)}, {q(WL+4*n)}, {q(ACC)}")
        stamp(6)
        a("s_nop 5")
    if not direct:
        stamp(6)
    a("s_cmp_eq_u32 s60, 0")
    a("s_cbranch_scc0 L_vpub")
    for r in range(4):
        a(f"v_mul_f32 v{ACC+r}, v11, v{ACC+r}")
    a("v_mov_b32 v9, 1")
    a(f"ds_write_b128 v10, {q(ACC)}")
    a("s_waitcnt lgkmcnt(0)")
    a(f"ds_write_b32 v14, v9 offset:{F_CB-M0_}")
    a("s_waitcnt lgkmcnt(0)")
    finish()
    a("L_vpub:")
    a("s_waitcnt lgkmcnt(0)")
    a("v_readfirstlane_b32 s48, v6")
    a("s_cmp_eq_u32 s48, 1")
    a("s_cbranch_scc1 L_vsum")
    lds_wait_ge(F_CB, "s48", 1, 6, sleep=0)
    a(f"ds_read_b128 {q(ACA)}, v10")
    a("s_waitcnt lgkmcnt(0)")
    a("L_vsum:")
    for r in range(4):
        a(f"v_fma_f32 v{ACC+r}, v11, v{ACC+r}, v{ACA+r}")
    a(f"v_cvt_pk_bf16_f32 v{ACC}, v{ACC}, v{ACC+1}"); a(f"v_cvt_pk_bf16_f32 v{ACC+1}, v{ACC+2}, v{ACC+3}")
    a(f"v_min_u32 v{ACC}, -2, v{ACC}"); a(f"v_min_u32 v{ACC+1}, -2, v{ACC+1}")
    a(f"buffer_store_dwordx2 {q(ACC,2)}, v7, s[40:43], s61 offen {stfl}")
    stamp(7)
    finish()

    a("L_pace:")
    lds_wait_ge(F_FILL, "s58", "s56", 12, sleep=8, precheck=True)
    a("s_add_u32 s56, s56, s57")
    a("s_setpc_b64 s[54:55]")

    a("L_helper:")
    call_setup("L_pace", False)
    a("s_mov_b32 s58, 0")
    a("s_sub_u32 s62, s3, 4")
    a("s_and_b32 s48, s2, 7"); a("s_mul_i32 s48, s48, 7"); a("s_lshr_b32 s49, s2, 3"); a("s_add_u32 s59, s48, s49")
    if not noffn:
        a(f"s_cmp_ge_u32 s2, {NF}")
        a("s_cbranch_scc1 L_noffn")
        a("s_cmp_ge_u32 s62, 2")
        a("s_cselect_b32 s44, s18, s16"); a("s_cselect_b32 s45, s19, s17")
        a("s_and_b32 s45, s45, 0xffff"); a("s_mov_b32 s46, 1605632"); a("s_mov_b32 s47, 0x20000")
        a("v_lshrrev_b32 v7, 2, v0"); a("v_and_b32 v8, 7, v7"); a("v_lshrrev_b32 v6, 3, v7"); a("v_lshl_add_u32 v6, v8, 2, v6")
        a("v_mul_u32_u24 v6, 3584, v6"); a("v_and_b32 v8, 3, v0"); a("v_lshl_add_u32 v6, v8, 4, v6")
        a("s_and_b32 s48, s62, 1"); a(f"s_mul_i32 s50, s48, {7*32*3584}"); a("s_lshl_b32 s49, s59, 6"); a("s_add_u32 s50, s50, s49")
        a("s_lshl_b32 s51, s62, 11"); a(f"s_add_u32 s51, s51, {L_STG}")
        a("v_lshrrev_b32 v9, 2, v1"); a("v_lshl_add_u32 v10, v2, 3, v9"); a("v_lshlrev_b32 v10, 6, v10")
        a("v_and_b32 v11, 3, v1"); a("v_lshl_add_u32 v10, v11, 3, v10"); a("v_add_u32 v10, s51, v10")
        a(f"s_mov_b32 s56, {gt0}"); a(f"s_mov_b32 s57, {gdt}")

        def stage(step2, step_next):
            call()
            a("s_mov_b32 m0, s51"); a("s_nop 0")
            a("buffer_load_dwordx4 v6, s[44:47], s50 offen nt lds")
            if not gpair:
                call()
            a("s_add_u32 m0, s51, 1024"); a(f"s_add_u32 s50, s50, {step2}")
            a("buffer_load_dwordx4 v6, s[44:47], s50 offen nt lds")
            a(f"s_add_u32 s50, s50, {step_next}")
            a("s_waitcnt vmcnt(0)")
        for f in range(7):
            stage(2*3584, 30*3584)
            for ft in range(2):
                a(f"ds_read_b64_tr_b16 {q(FF+8*f+4*ft,2)}, v10 offset:{ft*32}")
                a(f"ds_read_b64_tr_b16 {q(FF+8*f+4*ft+2,2)}, v10 offset:{ft*32+256}")
            a("s_waitcnt lgkmcnt(0)")
        srd(44, 20, 1605632)
        a("v_mul_u32_u24 v6, 896, v7"); a("v_lshl_add_u32 v6, v8, 4, v6")
        a("s_mul_i32 s50, s59, 28672"); a("s_lshl_b32 s49, s62, 8"); a("s_add_u32 s50, s50, s49")
        a("v_lshl_add_u32 v10, v2, 2, v9"); a("v_lshlrev_b32 v10, 6, v10"); a("v_lshl_add_u32 v10, v11, 3, v10"); a("v_add_u32 v10, s51, v10")
        for pr in range(4):
            stage(16*896, 64 - 16*896 + (1 << 32))
            for sub in range(2):
                a(f"ds_read_b64_tr_b16 {q(QA+8*pr+4*sub,2)}, v10 offset:{sub*32}")
                a(f"ds_read_b64_tr_b16 {q(QA+8*pr+4*sub+2,2)}, v10 offset:{sub*32+1024}")
            a("s_waitcnt lgkmcnt(0)")
        a("s_branch L_ffn")
        a("L_noffn:")
    else:
        a(f"s_cmp_lt_u32 s2, {NF}")
        a("s_cbranch_scc1 L_ffn")
    a(f"s_sub_u32 s59, s2, {R0LO}")
    a("s_cmp_lt_u32 s59, 64")
    a("s_cbranch_scc0 L_r1")
    srd(36, 12, 3670016)
    a("v_mul_u32_u24 v4, 7168, v2"); a("v_lshl_add_u32 v4, v1, 3, v4")
    a("s_lshl_b32 s47, s62, 8"); a("s_cmp_eq_u32 s62, 3"); a("s_cselect_b32 s47, 704, s47")
    a("s_mul_i32 s48, s59, 57344"); a("s_add_u32 s48, s48, s47")
    a("v_add_u32 v4, s48, v4")
    a(f"s_mov_b32 s56, {wt0}"); a(f"s_mov_b32 s57, {wdt}")
    for k in range(16):
        call()
        wo_load(k)
    a("v_lshlrev_b32 v5, 7, v1"); a("v_lshl_add_u32 v5, v2, 4, v5")
    a("s_lshl_b32 s44, s59, 11"); a(f"s_add_u32 s44, s44, {W_OX}"); a("s_add_u32 s45, s44, 64")
    a(f"v_mul_u32_u24 v7, {64*1792}, v2"); a("v_lshl_add_u32 v7, v1, 4, v7")
    a("s_mul_i32 s46, s59, 1792"); a("s_lshl_b32 s48, s47, 1"); a("s_add_u32 s46, s46, s48")
    a("s_cmp_ge_u32 s62, 2"); a("s_cselect_b32 s38, 0x00ff00ff, -1"); a("s_mov_b32 s39, s38")
    a("s_mov_b32 s48, 0x05040100"); a("s_mov_b32 s49, 0x07060302")
    a("s_waitcnt vmcnt(0)")
    for ks in range(2):
        src = WL + ks*32
        for t in range(8):
            for d in range(4):
                a(f"v_perm_b32 v{wfrag(ks,t)+d}, v{src+(2*d+1)*4+(t>>1)}, v{src+(2*d)*4+(t>>1)}, s{48+(t&1)}")
    if dry0:
        a("s_mov_b32 s42, 0"); a("s_mov_b64 vcc, -1")
        a("s_branch L_r0body")
        a("L_r0real:")
        a(f"s_mov_b32 s42, {WS_BYTES}"); a("s_mov_b64 vcc, 0"); a("s_mov_b64 exec, -1")
    lds_wait_ge(F_FOK, "s48", 1, 6, sleep=16)
    end_wait(tpoll)
    poll_quads(YA, 5, ["s44", "s45"], 6, pdep=pd[0])
    stamp(3)
    a("L_r0body:")
    for t in range(8):
        for ks in range(2):
            a(f"v_mfma_f32_16x16x32_bf16 {q(T2+4*t)}, {q(YA+4*ks)}, {q(wfrag(ks,t))}, {q(T2+4*t) if ks else 0}")
        if t >= 4:
            u = t - 4
            a(f"v_pk_add_f32 {q(T2+4*u,2)}, {q(T2+4*u,2)}, {q(T2+4*u+2,2)}")
            a(f"v_add_f32 v{SB+u}, v{T2+4*u}, v{T2+4*u+1}")
    a("s_nop 0")
    a(f"buffer_store_dwordx4 {q(SB)}, v7, s[40:43], s46 offen {stfl}")
    for u in range(4, 8):
        if u == 7:
            a("s_nop 0")
        a(f"v_pk_add_f32 {q(T2+4*u,2)}, {q(T2+4*u,2)}, {q(T2+4*u+2,2)}")
        a(f"v_add_f32 v{SB+u}, v{T2+4*u}, v{T2+4*u+1}")
    a("s_mov_b64 exec, s[38:39]")
    a(f"buffer_store_dwordx4 {q(SB+4)}, v7, s[40:43], s46 offen offset:256 {stfl}")
    if dry0:
        a("s_cbranch_vccnz L_r0real")
    a("s_mov_b64 exec, -1")
    stamp(4)
    if diag:
        a("s_waitcnt vmcnt(0)")
        stamp(5)
    finish()

    def count_check():
        a("; all workgroups have emptied their hand-off words once d_debug[0] reaches 256")
        a("s_load_dword s48, s[24:25], 0") if 'l' not in tst else a("s_mov_b32 s48, 256")
        a("s_waitcnt lgkmcnt(0)")
        bound_init(1 << 17)
        a("L_cntpoll:")
        a(f"s_cmp_ge_u32 s48, {256 if 'a' not in tst else 0}")
        a("s_cbranch_scc1 L_cntok")
        a("s_sleep 64")
        a("s_mov_b32 s48, 0")
        a("s_atomic_add s48, s[24:25], 0 glc")
        a("s_waitcnt lgkmcnt(0)")
        bound_loop("L_cntpoll")
        a("L_cntok:")
        a("s_cmp_lg_u32 s2, 0")
        a("s_cbranch_scc1 L_noep")
        a("v_mov_b32 v6, s62"); a(f"s_mov_b32 s48, {W_EP}")
        a("s_mov_b64 exec, 1")
        a("buffer_store_dword v6, v15, s[40:43], s48 offen sc1")
        a("s_mov_b64 exec, -1")
        a("L_noep:")

    a("L_h4:")
    a("; sum the 14 partials, exchange the q quarters of the four workgroups of this head through tagged granules")
    a("v_and_b32 v8, 31, v0"); a("v_lshlrev_b32 v8, 3, v8")
    a("v_mul_u32_u24 v9, 1792, v3"); a("v_add_u32 v9, v9, v8"); a(f"v_add_u32 v9, {L_QP}, v9")
    a("s_lshl_b32 s56, s31, 10"); a(f"s_add_u32 s56, s56, {W_QX}"); a("s_lshl_b32 s57, s29, 8"); a("s_add_u32 s57, s57, s56")
    a("s_add_u32 s62, s62, 1")
    a("v_lshlrev_b32 v5, 4, v0")
    a("v_lshlrev_b32 v11, 3, v0"); a(f"v_add_u32 v11, {L_QB}, v11")
    lds_wait_ge(F_QCNT, "s48", 7, 6, sleep=0)
    for p in range(7):
        a(f"ds_read_b64 {q(T+2*p,2)}, v9 offset:{p*256}")
    for p in range(1, 7):
        a(f"s_waitcnt lgkmcnt({6-p})")
        a(f"v_pk_add_f32 {q(T,2)}, {q(T,2)}, {q(T+2*p,2)}")
    a(f"v_mov_b32 v{T+2}, v{T}"); a(f"v_mov_b32 v{T+3}, v{T+1}"); a("s_nop 1")
    a(f"v_permlane32_swap_b32 v{T}, v{T+2}"); a(f"v_permlane32_swap_b32 v{T+1}, v{T+3}")
    a(f"v_pk_add_f32 {q(T,2)}, {q(T,2)}, {q(T+2,2)}")
    a("v_mov_b32 v7, s62")
    a(f"v_cvt_pk_bf16_f32 v6, v{T}, v{T+1}")
    a("s_mov_b32 exec_hi, 0")
    a("buffer_store_dwordx2 v[6:7], v8, s[40:43], s57 offen sc1")
    a("s_mov_b32 exec_hi, -1")
    bound_init(1 << 17)
    a("L_qpoll:")
    a(f"buffer_load_dwordx4 {q(T)}, v5, s[40:43], s56 offen sc1")
    a("s_waitcnt vmcnt(0)")
    a(f"v_cmp_ne_u32 vcc, s62, v{T+1}"); a(f"v_cmp_ne_u32 s[48:49], s62, v{T+3}")
    a("s_or_b64 vcc, vcc, s[48:49]")
    a("s_cbranch_scc0 L_qok") if 'q' not in tst else a("s_branch L_qok")
    a("s_sleep 2")
    bound_loop("L_qpoll")
    a("L_qok:")
    a(f"v_mov_b32 v{T+1}, v{T+2}")
    a(f"ds_write_b64 v11, {q(T,2)}")
    a("v_mov_b32 v6, 1")
    a("s_waitcnt lgkmcnt(0)")
    a(f"ds_write_b32 v14, v6 offset:{F_QOK-M0_}")
    if use_fb and fbm == 'ls':
        a("; progress words of the eight members of this workgroup's balancing group (one per die-sized stride of ids)")
        a("s_lshr_b32 s48, s2, 3"); a("s_and_b32 s49, s2, 7"); a(f"s_mul_i32 s50, s49, {fbmix}"); a("s_add_u32 s48, s48, s50")
        a(f"v_mul_u32_u24 v6, {fbmix}, v0"); a("v_sub_u32 v6, s48, v6"); a("v_and_b32 v6, 31, v6"); a("v_lshl_add_u32 v6, v6, 3, v0")
        a(f"v_mul_u32_u24 v{FF}, {fbstr}, v6")
        a(f"s_mul_i32 s94, s2, {fbstr}"); a(f"s_add_u32 s94, s94, {W_FB}"); a(f"s_mov_b32 s95, {W_FB}")
    elif use_fb:
        ng = 256 // fbg
        a("s_lshr_b32 s48, s2, 3"); a("s_and_b32 s49, s2, 7"); a(f"s_mul_i32 s50, s49, {fbmix}"); a("s_add_u32 s48, s48, s50")
        a(f"s_and_b32 s48, s48, {ng-1}"); a("s_lshl_b32 s48, s48, 12"); a(f"s_add_u32 s48, s48, {W_FB}")
        a("s_add_u32 s94, s26, s48"); a("s_addc_u32 s95, s27, 0")
        a(f"s_lshr_b32 s50, s2, {3 + ng.bit_length() - 1}"); a("s_or_b32 s49, s49, s50")
        a("s_cbranch_scc1 L_nolead")
        a("v_lshlrev_b32 v6, 8, v0")
        a("s_mov_b64 exec, 0xffff")
        a("buffer_store_dword v15, v6, s[40:43], s48 offen sc1")
        a("s_mov_b64 exec, -1")
        a("L_nolead:")
    a(f"s_mov_b32 s93, {didx(depth)}"); a(f"s_mov_b32 s91, {didx(depth)}")
    if r0dep:
        a(f"s_sub_u32 s48, s2, {R0LO}"); a("s_cmp_lt_u32 s48, 64"); a(f"s_cselect_b32 s93, {didx(r0dep)}, s93")
    if clrt:
        lds_wait_ge(F_FILL, "s48", clrt, 6, sleep=8)
    for r in range(4):
        a(f"v_mov_b32 v{YA+r}, -1")
    a("s_mul_i32 s48, s2, 1792")
    None if 'c' in tst else a(f"buffer_store_dwordx4 {q(YA)}, v5, s[40:43], s48 offen sc1")
    a("s_mov_b32 exec_hi, 0x0000ffff")
    None if 'c' in tst else a(f"buffer_store_dwordx4 {q(YA)}, v5, s[40:43], s48 offen offset:1024 sc1")
    a("s_mov_b32 exec_hi, 0")
    a("s_lshl_b32 s48, s2, 9"); a(f"s_add_u32 s48, s48, {W_OX}")
    None if 'c' in tst else a(f"buffer_store_dwordx4 {q(YA)}, v5, s[40:43], s48 offen sc1")
    a("s_mov_b32 exec_hi, -1")
    a(f"s_cmp_ge_u32 s2, {NF}")
    a("s_cbranch_scc1 L_h4_nor2")
    if r2dep:
        a(f"s_mov_b32 s93, {didx(r2dep)}")
    a("s_lshl_b32 s48, s2, 7"); a(f"s_add_u32 s48, s48, {W_FL}")
    a("s_mov_b64 exec, 1")
    None if 'c' in tst else a(f"buffer_store_dword v{YA}, v15, s[40:43], s48 offen sc1")
    a("s_mov_b64 exec, -1")
    a("s_mul_i32 s48, s2, 7168"); a(f"s_add_u32 s48, s48, {W_OP}")
    for k in range(7):
        if k == 4:
            a("s_add_u32 s48, s48, 4096")
        None if 'c' in tst else a(f"buffer_store_dwordx4 {q(YA)}, v5, s[40:43], s48 offen offset:{(k&3)*1024} sc1")
    a("L_h4_nor2:")
    a(f"s_sub_u32 s48, s2, {R1LO}")
    a("s_cmp_lt_u32 s48, 56")
    a("s_cbranch_scc0 L_h4_nor1")
    a("s_lshl_b32 s48, s48, 7"); a(f"s_add_u32 s48, s48, {W_HB}")
    a("v_lshrrev_b32 v6, 3, v0"); a("v_mul_u32_u24 v6, 7168, v6"); a("v_and_b32 v7, 7, v0"); a("v_lshl_add_u32 v6, v7, 4, v6")
    a(f"buffer_store_dwordx4 {q(YA)}, v6, s[40:43], s48 offen sc1")
    a("L_h4_nor1:")
    a("s_waitcnt vmcnt(0)")
    set_depth("s93")
    if atomt:
        a(f"s_and_b32 s49, s2, {atomt - 1}"); a(f"s_add_u32 s49, s49, {max(clrt, 16)}")
        lds_wait_ge(F_FILL, "s48", "s49", 6, sleep=8)
    if 'a' not in tst and not patom:
        a("s_mov_b32 s48, 1")
        a("s_atomic_add s48, s[24:25], 0")
        a("s_waitcnt lgkmcnt(0)")
    sched = [t for t, _ in fbr]
    if use_fb:
        call_setup("L_fb", True)
    if vpre:
        a("; first touch of this workgroup's V pages through the scalar path, ahead of the stream")
        a("s_lshl_b32 s48, s31, 22"); a("s_lshl_b32 s49, s29, 20"); a("s_add_u32 s48, s48, s49")
        a("s_add_u32 s96, s8, s48"); a("s_addc_u32 s97, s9, 0")
        lds_wait_ge(F_FILL, "s48", vpre, 6, sleep=8)
        a("s_load_dword s48, s[96:97], 0")
        a("s_waitcnt lgkmcnt(0)")
    for t in [t for t in sched if t < 128]:
        fb_call(t)
    a("v_lshlrev_b32 v9, 3, v0"); a(f"v_add_u32 v9, {L_ML}, v9")
    lds_wait_ge(F_MLCNT, "s48", 2, 6, sleep=8)
    a("s_mov_b64 exec, 3")
    a("ds_read_b64 v[6:7], v9")
    a("s_lshl_b32 s48, s31, 2"); a("s_add_u32 s48, s48, s29"); a("s_lshl_b32 s48, s48, 5"); a(f"s_add_u32 s48, s48, {W_ML}")
    a("s_waitcnt lgkmcnt(0)")
    a(f"v_mov_b32 v{YA}, v6"); a(f"v_mov_b32 v{YA+1}, s62"); a(f"v_mov_b32 v{YA+2}, v7"); a(f"v_mov_b32 v{YA+3}, s62")
    None if 'm' in tst else a(f"buffer_store_dwordx4 {q(YA)}, v5, s[40:43], s48 offen sc1")
    a("s_mov_b64 exec, -1")
    if not patom:
        count_check()
    for t in [t for t in sched if 128 <= t <= mlt]:
        fb_call(t)
    lds_wait_ge(F_FILL, "s48", mlt, 6, sleep=8)
    a("v_and_b32 v8, 7, v0"); a("v_lshlrev_b32 v9, 4, v8")
    a("s_lshl_b32 s61, s31, 7"); a(f"s_add_u32 s61, s61, {W_ML}")
    bound_init(1 << 17)
    a("L_mlpoll:")
    if 'm' in tst:
        a("s_branch L_mlgot")
    a(f"buffer_load_dwordx4 {q(YA+4)}, v9, s[40:43], s61 offen sc1")
    a("s_waitcnt vmcnt(0)")
    a(f"v_cmp_ne_u32 vcc, s62, v{YA+5}"); a(f"v_cmp_ne_u32 s[48:49], s62, v{YA+7}")
    a("s_or_b64 vcc, vcc, s[48:49]")
    a("s_cbranch_scc0 L_mlgot")
    a("s_sleep 24")
    bound_loop("L_mlpoll")
    a("L_mlgot:")
    a(f"v_mov_b32 v10, v{YA+4}")
    for d in ("row_ror:4", "row_ror:2", "row_ror:1"):
        a("s_nop 1")
        a(f"v_max_f32_dpp v10, v10, v10 {d} row_mask:0xf bank_mask:0xf")
    a(f"v_sub_f32 v6, v{YA+4}, v10"); a(f"v_mul_f32 v6, {LOG2E_16:#x}, v6"); a("v_exp_f32 v6, v6"); a("s_nop 0")
    a(f"v_mul_f32 v7, v6, v{YA+6}")
    for d in ("row_ror:4", "row_ror:2", "row_ror:1"):
        a("s_nop 1")
        a(f"v_add_f32_dpp v7, v7, v7 {d} row_mask:0xf bank_mask:0xf")
    a("v_rcp_f32 v7, v7"); a("v_lshrrev_b32 v9, 1, v0"); a("v_and_b32 v8, 1, v0")
    a("v_mul_f32 v6, v6, v7")
    a("v_lshlrev_b32 v8, 2, v8"); a(f"v_add_u32 v8, {L_F}, v8")
    a("v_cmp_eq_u32 vcc, s29, v9")
    a("s_mov_b64 exec, vcc")
    a("ds_write_b32 v8, v6")
    a("s_mov_b64 exec, -1")
    if patom:
        a("; the four workgroups of this pair published after emptying their hand-off words: quarter 0 counts them")
        a("s_cmp_lg_u32 s29, 0"); a("s_cbranch_scc1 L_noadd")
        a("s_mov_b32 s48, 4"); a("s_atomic_add s48, s[24:25], 0"); a("s_waitcnt lgkmcnt(0)")
        a("L_noadd:")
        for t in [t for t in sched if mlt < t <= chkt]:
            fb_call(t)
        lds_wait_ge(F_FILL, "s48", chkt, 6, sleep=8)
        count_check()
    a("v_mov_b32 v6, 1")
    a("s_waitcnt lgkmcnt(0)")
    a(f"ds_write_b32 v14, v6 offset:{F_FOK-M0_}")
    for t in [t for t in sched if t > (chkt if patom else mlt)]:
        fb_call(t)
    if endt:
        lds_wait_ge(F_FILL, "s48", endt, 6, sleep=2)
        set_depth(didx(endd))
    a("s_branch L_done")
    if use_fb:
        a("; the arrival rank of this workgroup at tile s50 within its group selects the loader depth")
        a("L_fb:")
        lds_wait_ge(F_FILL, "s48", "s50", 6, sleep=fbsl)
        if fbm == 'ls':
            a("s_lshl_b32 s49, s62, 10"); a("s_add_u32 s49, s49, s50"); a("v_mov_b32 v7, s49")
            a("s_mov_b64 exec, 0xff")
            a(f"buffer_load_dword v6, v{FF}, s[40:43], s95 offen sc1")
            a("s_mov_b64 exec, 1")
            a("buffer_store_dword v7, v15, s[40:43], s94 offen sc1")
            a("s_mov_b64 exec, 0xff")
            a("s_waitcnt vmcnt(1)")
            a("v_subrev_u32 v6, s49, v6"); a("v_cmp_gt_u32 vcc, 0x100, v6")
            a("s_mov_b64 exec, -1")
            a("s_bcnt1_i32_b64 s48, vcc")
        elif fbm == 'none':
            a("s_mov_b32 s48, 3")
        else:
            a("s_mov_b32 s48, 1")
            a("s_atomic_add s48, s[94:95], 0 glc")
            a("s_waitcnt lgkmcnt(0)")
        if fbg > 8:
            a(f"s_lshr_b32 s48, s48, {(fbg // 8).bit_length() - 1}")
        a("s_min_u32 s48, s48, 7"); a("s_lshl_b32 s48, s48, 2"); a("s_lshr_b32 s93, s51, s48"); a("s_and_b32 s93, s93, 15")
        if lad:
            a("s_lshr_b32 s49, s92, s48"); a("s_and_b32 s49, s49, 15"); a("s_add_u32 s91, s91, s49"); a("s_sub_u32 s91, s91, 8")
            a("s_max_i32 s91, s91, 1"); a(f"s_min_i32 s91, s91, {len(lad)}")
            a("s_add_u32 s93, s93, s91"); a("s_sub_u32 s93, s93, 8")
            a("s_max_i32 s93, s93, 1"); a(f"s_min_i32 s93, s93, {len(lad)}")
        a("v_mov_b32 v6, s93")
        a(f"ds_write_b32 v14, v6 offset:{F_DEP-M0_}")
        if fbm != 'ls':
            a("s_add_u32 s94, s94, 256"); a("s_addc_u32 s95, s95, 0")
        a("s_setpc_b64 s[54:55]")

    a("L_ffn:")

    def flag(pos):
        if g3 == pos:
            a("s_cmp_lg_u32 s62, 3"); a("s_cbranch_scc1 L_nofl")
            a("s_mov_b64 exec, 1")
            a(f"buffer_store_dword v15, v15, s[40:43], s61 offen {stfl}")
            a("s_mov_b64 exec, -1")
            a("L_nofl:")
    a("v_lshlrev_b32 v5, 5, v0")
    a(f"s_and_b32 s48, s2, {nrep-1}"); a("s_mul_i32 s48, s48, 7168"); a("s_mul_i32 s49, s62, 1792"); a("s_add_u32 s48, s48, s49")
    a(f"s_add_u32 s56, s48, {W_HB}"); a("s_add_u32 s57, s56, 16")
    X = T2
    a("v_lshlrev_b32 v8, 4, v0"); a("s_mul_i32 s48, s62, 960"); a(f"s_add_u32 s48, s48, {L_XN2}"); a("v_add_u32 v8, s48, v8")
    a("v_and_b32 v9, 3, v1"); a("v_mul_u32_u24 v10, 960, v9"); a("v_lshl_add_u32 v10, v2, 4, v10")
    a("s_and_b32 s48, s62, 1"); a("s_mul_i32 s48, s48, 448"); a(f"s_add_u32 s48, s48, {L_XN2}"); a("v_add_u32 v10, s48, v10")
    a("v_lshlrev_b32 v11, 6, v9"); a("v_lshl_add_u32 v11, v2, 4, v11"); a(f"v_add_u32 v11, {L_GU}, v11")
    a("s_lshl_b32 s48, s62, 9"); a("v_add_u32 v12, s48, v11")
    a(f"v_mul_u32_u24 v13, {14*7168}, v9"); a("v_bfe_u32 v6, v1, 2, 1"); a("v_lshl_add_u32 v13, v6, 6, v13"); a("v_lshl_add_u32 v13, v2, 4, v13")
    a("v_cmp_eq_u32 s[46:47], 0, v6"); a("v_mov_b32 v7, v13")
    a("s_lshl_b32 s58, s59, 7"); a(f"s_mul_i32 s48, s62, {4*7168}"); a("s_add_u32 s58, s58, s48"); a(f"s_add_u32 s58, s58, {W_OP}")
    a("s_mov_b32 s44, -1"); a("s_mov_b32 s45, 0x00ffffff")
    if dry:
        a("; one pass over the code below with stores disabled and barriers skipped loads it into the instruction cache")
        a("s_mov_b32 s42, 0"); a("s_mov_b64 vcc, -1"); a("s_mov_b32 s61, 0")
        a("s_branch L_ffnbody")
        a("L_ffnreal:")
        a(f"s_mov_b32 s42, {WS_BYTES}"); a("s_mov_b64 vcc, 0"); a("s_mov_b64 exec, -1")
        a("v_mov_b32 v13, v7")
    lds_wait_ge(F_FOK, "s48", 1, 6, sleep=16)
    end_wait(NT)
    if g2:
        a(f"v_mul_u32_u24 v9, {4*1792}, v0")
        a(f"s_mul_i32 s61, s62, {64*1792}"); a("s_and_b32 s48, s2, 3"); a("s_mul_i32 s48, s48, 1792"); a("s_add_u32 s61, s61, s48")
        a("s_lshr_b32 s48, s2, 2"); a("s_lshl_b32 s48, s48, 7"); a("s_add_u32 s61, s61, s48")
        gate(9, "s61", 16, g2, 6)
    a("s_lshl_b32 s61, s2, 7"); a(f"s_add_u32 s61, s61, {W_FL}")
    poll_quads(X, 5, ["s56", "s57"], 6, execs=["s[44:45]"]*2, both=b2, pdep=pd[2])
    stamp(3)
    a("L_ffnbody:")
    layernorm(X, T, YA, fast=fastln)
    a("s_mov_b32 exec_hi, 0x00ffffff")
    a(f"ds_write_b128 v8, {q(YA)}")
    a("s_mov_b32 exec_hi, -1")
    a("s_waitcnt lgkmcnt(0)")
    if dry:
        a("s_cbranch_vccnz L_nb1x")
    a("s_barrier")
    a("L_nb1x:")
    for f in range(7):
        a(f"ds_read_b128 {q(T+4*f)}, v10 offset:{f*64}")
    flag(1)
    for f in range(7):
        a(f"s_waitcnt lgkmcnt({6-f})")
        a(f"v_mfma_f32_16x16x32_bf16 {q(ACC)}, {q(FF+8*f)}, {q(T+4*f)}, {q(ACC) if f else 0}")
        a(f"v_mfma_f32_16x16x32_bf16 {q(ACA)}, {q(FF+8*f+4)}, {q(T+4*f)}, {q(ACA) if f else 0}")
    flag(2)
    a("s_nop 6")
    a(f"ds_write_b128 v12, {q(ACC)}")
    a(f"ds_write_b128 v12, {q(ACA)} offset:256")
    a("s_waitcnt lgkmcnt(0)")
    if dry:
        a("s_cbranch_vccnz L_nb2x")
    a("s_barrier")
    a("L_nb2x:")
    G0 = T
    for ft in range(2):
        for p in range(4):
            a(f"ds_read_b128 {q(G0+16*ft+4*p)}, v11 offset:{p*512+ft*256}")
    flag(3)
    for ft in range(2):
        B = G0 + 16*ft
        a(f"s_waitcnt lgkmcnt({6-4*ft})")
        a(f"v_pk_add_f32 {q(B,2)}, {q(B,2)}, {q(B+4,2)}"); a(f"v_pk_add_f32 {q(B+2,2)}, {q(B+2,2)}, {q(B+6,2)}")
        a(f"s_waitcnt lgkmcnt({4-4*ft})")
        a(f"v_pk_add_f32 {q(B+8,2)}, {q(B+8,2)}, {q(B+12,2)}"); a(f"v_pk_add_f32 {q(B+10,2)}, {q(B+10,2)}, {q(B+14,2)}")
        for r in range(4):
            a(f"v_cvt_pk_bf16_f32 v{B+4+r}, v{B+r}, v{B+8+r}")
        for r in range(4):
            a(f"v_lshlrev_b32 v{B+r}, 16, v{B+4+r}"); a(f"v_and_b32 v{B+4+r}, 0xffff0000, v{B+4+r}")
        a(f"v_pk_mul_f32 {q(B,2)}, {q(B,2)}, {q(B+4,2)}"); a(f"v_pk_mul_f32 {q(B+2,2)}, {q(B+2,2)}, {q(B+6,2)}")
        a(f"v_cvt_pk_bf16_f32 v{YA+2*ft}, v{B}, v{B+1}"); a(f"v_cvt_pk_bf16_f32 v{YA+2*ft+1}, v{B+2}, v{B+3}")
    flag(4)
    for d in range(4):
        a(f"v_cndmask_b32 v{YA+4+d}, 0, v{YA+d}, s[46:47]")
    for d in range(4):
        a(f"v_cndmask_b32 v{YA+8+d}, v{YA+d}, 0, s[46:47]")
    for pr in range(4):
        a(f"v_mfma_f32_16x16x32_bf16 {q(T+4*pr)}, {q(QA+8*pr)}, {q(YA+4)}, 0")
        if pr == 0:
            a("s_nop 0")
    for pr in range(4):
        a(f"v_mfma_f32_16x16x32_bf16 {q(T+4*pr)}, {q(QA+8*pr+4)}, {q(YA+8)}, {q(T+4*pr)}")
    a("s_mov_b32 exec_lo, 0x00ff00ff"); a("s_mov_b32 exec_hi, 0x00ff00ff")
    a("s_cmp_eq_u32 s62, 3")
    a("s_nop 1")
    for pr in range(4):
        if pr == 2:
            a("s_cbranch_scc1 L_opdone")
        a(f"buffer_store_dwordx4 {q(T+4*pr)}, v13, s[40:43], s58 offen {stfl}")
        if pr < 3:
            a("v_add_u32 v13, 7168, v13")
    a("L_opdone:")
    if dry:
        a("s_cbranch_vccnz L_ffnreal")
    a("s_mov_b64 exec, -1")
    stamp(4)
    if diag:
        a("s_waitcnt vmcnt(0)")
        stamp(5)
    a("s_branch L_done")

    a("L_r1:")
    a(f"s_sub_u32 s48, s2, {R1LO}")
    a("s_cmp_lt_u32 s48, 56")
    a("s_cbranch_scc0 L_done")
    a("s_mul_i32 s58, s48, 4682"); a("s_lshr_b32 s58, s58, 16"); a("s_mul_i32 s49, s58, 14"); a("s_sub_u32 s59, s48, s49")
    a("s_lshl_b32 s56, s48, 7")
    a("v_lshrrev_b32 v5, 3, v0"); a("v_and_b32 v6, 7, v0"); a("v_lshlrev_b32 v9, 4, v6")
    a("v_mul_u32_u24 v7, 1792, v5"); a("v_add_u32 v7, v7, v9")
    a("v_lshl_add_u32 v8, v5, 7, v9")
    a("v_lshl_add_u32 v10, v2, 3, v6"); a("v_lshlrev_b32 v10, 4, v10"); a("s_lshl_b32 s49, s62, 2"); a(f"s_add_u32 s49, s49, {L_RB}"); a("v_add_u32 v10, s49, v10")
    a("v_and_b32 v4, 31, v0"); a("v_lshlrev_b32 v9, 4, v4"); a(f"v_add_u32 v9, {L_RB}, v9")
    a("v_lshrrev_b32 v12, 3, v4"); a("v_lshl_add_u32 v12, v6, 2, v12"); a("v_lshlrev_b32 v12, 1, v12")
    a("s_lshr_b32 s61, s56, 1")
    a("buffer_load_ushort v11, v12, s[32:35], s61 offen")
    a("v_mul_u32_u24 v13, 7168, v3"); a("v_lshl_add_u32 v13, v4, 2, v13")
    a(f"s_mul_i32 s57, s62, {2*7168}"); a("s_add_u32 s57, s57, s56"); a(f"s_add_u32 s57, s57, {W_HB}")
    a(f"s_mul_i32 s44, s58, {64*1792}"); a("s_lshl_b32 s49, s59, 7"); a("s_add_u32 s44, s44, s49")
    a(f"s_mul_i32 s49, s62, {16*1792}"); a("s_add_u32 s44, s44, s49"); a(f"s_add_u32 s45, s44, {8*1792}")
    a("s_mul_i32 s46, s48, 7168"); a(f"s_mul_i32 s49, s62, {14*128}"); a("s_add_u32 s46, s46, s49"); a(f"s_add_u32 s46, s46, {W_OP}"); a("s_add_u32 s47, s46, 1024")
    a("s_lshl_b32 s60, s48, 7"); a(f"s_add_u32 s60, s60, {W_FL}")
    a("s_mov_b32 s36, -1"); a("s_mov_b32 s37, 0xffff")
    for r in range(4):
        a(f"v_mov_b32 v{T+4+r}, 0")
    a("s_waitcnt vmcnt(0)")
    a("v_lshlrev_b32 v11, 16, v11")
    srd(32, 22, 3584)
    if dry1:
        a("s_mov_b32 s42, 0"); a("s_mov_b32 s34, 0"); a("s_mov_b64 vcc, -1"); a("v_mov_b32 v5, v11")
        a("s_branch L_r1body")
        a("L_r1real:")
        a(f"s_mov_b32 s42, {WS_BYTES}"); a("s_mov_b32 s34, 3584"); a("s_mov_b64 vcc, 0"); a("s_mov_b64 exec, -1"); a("v_mov_b32 v11, v5")
    lds_wait_ge(F_FOK, "s48", 1, 6, sleep=16)
    end_wait(NT)
    if g1:
        a("v_mul_u32_u24 v4, 1792, v0")
        gate(4, "s44", g1n, g1, 6)
    poll_quads(T2, 7, ["s44", "s45"], 6, both=first2, pdep=pd[1])
    stamp(3)

    def sum2(R, off):
        a(f"v_pk_add_f32 {q(YA,2)}, {q(R,2)}, {q(R+4,2)}"); a(f"v_pk_add_f32 {q(YA+2,2)}, {q(R+2,2)}, {q(R+6,2)}")
        a("s_nop 1")
        a(f"v_permlane16_swap_b32 v{YA}, v{YA+1}")
        a(f"v_permlane16_swap_b32 v{YA+2}, v{YA+3}")
        a(f"v_add_f32 v{YA}, v{YA}, v{YA+1}")
        a(f"v_add_f32 v{YA+2}, v{YA+2}, v{YA+3}")
        a("s_nop 1")
        a(f"v_permlane32_swap_b32 v{YA}, v{YA+2}")
        a(f"v_add_f32 v{YA}, v{YA}, v{YA+2}")
        a("s_nop 1")
        a(f"v_add_f32_dpp v{YA}, v{YA}, v{YA} row_ror:8 row_mask:0xf bank_mask:0xf")
        a(f"ds_write_b32 v10, v{YA} offset:{off}")
        a("s_waitcnt lgkmcnt(0)")
        if dry1:
            a(f"s_cbranch_vccnz L_rb{off}")
        a("s_barrier")
        a(f"L_rb{off}:")
        a(f"ds_read_b128 {q(YA)}, v9 offset:{off}")
        a("s_waitcnt lgkmcnt(0)")
        a(f"v_pk_add_f32 {q(YA,2)}, {q(YA,2)}, {q(YA+2,2)}")
        a(f"v_add_f32 v{YA}, v{YA}, v{YA+1}")
        bf16r(YA, YA)
        a(f"v_add_f32 v11, v11, v{YA}")
    a("L_r1body:")
    sum2(T2, 0)
    bf16r(11, 11)
    a(f"buffer_store_dword v11, v13, s[40:43], s57 offen {stfl}")
    stamp(4)
    if dry1:
        a("s_cbranch_vccnz L_r3body")
    if g3:
        gate(15, "s60", 1, 1, 6)
    poll_quads(T, 8, ["s46", "s47"], 6, execs=["-1", "s[36:37]"], both=b3, pdep=pd[3])
    stamp(5)
    a("L_r3body:")
    sum2(T, 512)
    a("v_cvt_pk_bf16_f32 v11, v11, v11")
    a("s_lshl_b32 s48, s62, 3"); a("s_lshl_b32 exec_lo, 0xff, s48"); a("s_mov_b32 exec_hi, 0")
    a("buffer_store_short v11, v12, s[32:35], s61 offen")
    if dry1:
        a("s_cbranch_vccnz L_r1real")
    a("s_mov_b64 exec, -1")
    stamp(6)
    a("L_done:")
    finish()

    if not ldfirst:
        emit_loader()

    if diag:
        a("L_stamps:")
        a("v_mov_b32 v4, 0")
        for k in range(8):
            a(f"v_writelane_b32 v4, s{64+2*k}, {k}")
        a("s_getreg_b32 s48, hwreg(HW_REG_XCC_ID, 0, 4)")
        a("v_writelane_b32 v4, s48, 8")
        a("v_writelane_b32 v4, s63, 9")
        a("v_lshlrev_b32 v5, 2, v0")
        a("s_lshl_b32 s48, s2, 3"); a("s_add_u32 s48, s48, s3"); a("s_lshl_b32 s48, s48, 6"); a(f"s_add_u32 s48, s48, {W_ST}")
        a("s_mov_b64 exec, 0xffff")
        a("buffer_store_dword v4, v5, s[40:43], s48 offen")
    a("L_exit:")
    a("s_endpgm")
    a('.section .rodata,"a"')
    a(".p2align 6")
    a(f".amdhsa_kernel {KNAME}")
    a("  .amdhsa_next_free_vgpr 240")
    a("  .amdhsa_next_free_sgpr 100")
    a("  .amdhsa_accum_offset 240")
    a("  .amdhsa_group_segment_fixed_size 0")
    a("  .amdhsa_kernarg_size 96")
    a("  .amdhsa_user_sgpr_count 2")
    a("  .amdhsa_user_sgpr_kernarg_segment_ptr 1")
    a("  .amdhsa_system_sgpr_workgroup_id_x 1")
    a("  .amdhsa_float_denorm_mode_32 3")
    a(".end_amdhsa_kernel")
    out = []
    for x in L:
        if x is None:
            continue
        if x.endswith(":") or x.startswith((";", ".")) or x.startswith("  ."):
            out.append(x)
        else:
            out.append("    " + x)
    return "\n".join(out) + "\n"


if __name__ == "__main__":
    kw = eval("dict(%s)" % (sys.argv[2] if len(sys.argv) > 2 else ""))
    open(sys.argv[1], "w").write(gen(**kw))
```

```python
import sys
KNAME = "sequential_preLN__mha_block_cached__glu_gated_bilinear__decode_kernel"

HEADER = """; Kernarg layout for this problem (96 bytes, ptrs only, base s[0:1]):
;
; pattern written earlier in the same launch, or once it carries this launch's tag."""

M0_ = 131072
F_FILL, F_CONS, F_QCNT, F_MLCNT, F_FOK, F_QOK, F_DEP, F_CB = (M0_ + o for o in (0, 4, 12, 16, 20, 24, 28, 32))
L_ML, L_F = M0_ + 64, M0_ + 80
L_XN = M0_ + 128
L_QP = M0_ + 1024
L_QB = M0_ + 4608
L_PB = M0_ + 5120
L_CB = M0_ + 9216
L_RB = M0_ + 10240
L_XN2 = M0_ + 14080
L_GU = M0_ + 17920
L_STG = M0_ + 19968
LDS_BYTES = M0_ + 28160
W_YP = 0
W_ML = 0x80000
W_HB = 0x90000
W_OP = 0xC0000
W_QX = 0x130000
W_EP = 0x140000
W_FB = 0x150000
W_FL = 0x170000
W_OX = 0x180000
W_ST = 0x280000
WS_BYTES = 0x300000
SEL, SB, ACC, ACA, YA, QA, T, WL, FF = 16, 24, 32, 36, 40, 56, 88, 120, 184
T2 = WL + 32
LOG2E_16 = 0x3db8aa3b
INV448 = 0x3b124925
EPS = 0x3727c5ac
NF, R0LO, R1LO = 56, 56, 120


def gen(depth=22, fbd=(18, 20, 24, 27, 32), fbt=(32, 96, 160, 192, 224), fbg=8, fbs=(128, 192, 224, 240), fbmix=4,
        r2dep=0, wt0=64, wdt=3, gt0=14, gdt=1, nrep=8, pstag=5, psleep=0, barpos=7, krot=0,
        diag=False, spin_bound=True, nowo=False, noffn=False, mlt=144, boost=22, tpoll=255, r3sleep=0, g1=1, g2=0, g3=4, b3=False, b2=True, gsl=0, pdep=1, tst='', vpre=0, padto=0, direct=0, dry0=False, dry1=False, trig='cb', g1n=16, gpair=False, pd=(2, 2, 1, 2), fastln=False, dry=True, patom=True, chkt=192, fbsl=4, csl=1, ldfirst=True, dummy=6, fbm='ls', fbstr=256, lad=None, pi=None, r0dep=0, stt=((4, 224), (5, 240), (6, 248), (7, 192)), fbr=None, endt=0, endd=40, clrt=0, atomt=0, slowthr=0, slowsl=0, first2=False, stfl='sc1', ldfl='sc1', pret=False):
    if fbr is None:
        lv = sorted([depth] + list(fbd))
        ths = [th*8//256 for th in fbt]
        tab = tuple(lv[sum(r >= t for t in ths)] if fbd else depth for r in range(8))
        fbr = [(t, tab) for t in (fbs if fbd else ())]
    if lad:
        fbr = [(t, tuple(lad)) for t, _, _ in pi]
    depths = [boost, depth] if not lad else [boost]
    for _, tab in fbr:
        for d in tab:
            if d not in depths[1:]:
                depths.append(d)
    for d in ([endd] if endt else []) + [x for x in (r2dep, r0dep) if x]:
        if d not in depths[1:]:
            depths.append(d)
    didx = lambda d: depths.index(d, 1)
    use_fb = bool(fbr)
    NT = 254 if direct else 256
    tpoll = min(tpoll, NT - 1)
    L = []
    a = L.append
    uid = [0]

    def fb_call(t):
        tab = dict(fbr)[t]
        if lad:
            _, P, I = [x for x in pi if x[0] == t][0]
            a(f"s_mov_b32 s50, {t}"); a(f"s_mov_b32 s51, {sum((d + 8) << (4*r) for r, d in enumerate(P)):#x}")
            a(f"s_mov_b32 s92, {sum((d + 8) << (4*r) for r, d in enumerate(I)):#x}")
            a("s_swappc_b64 s[54:55], s[52:53]")
            return
        a(f"s_mov_b32 s50, {t}"); a(f"s_mov_b32 s51, {sum(didx(d) << (4*r) for r, d in enumerate(tab)):#x}")
        a("s_swappc_b64 s[54:55], s[52:53]")

    def lab(p):
        uid[0] += 1
        return f"L_{p}{uid[0]}"

    def q(r, n=4):
        return f"v[{r}:{r+n-1}]"

    def srd(r, p, nbytes):
        a(f"s_mov_b32 s{r}, s{p}")
        a(f"s_and_b32 s{r+1}, s{p+1}, 0xffff")
        a(f"s_mov_b32 s{r+2}, {nbytes}")
        a(f"s_mov_b32 s{r+3}, 0x20000")

    def stamp(k):
        if diag:
            a(f"s_memrealtime s[{64+2*k}:{65+2*k}]")
            a("s_waitcnt lgkmcnt(0)")

    def finish():
        a("s_branch L_stamps" if diag else "s_endpgm")

    def bound_init(n=1 << 20):
        if spin_bound:
            a(f"s_mov_b32 s63, {n}")

    def bound_loop(target):
        if spin_bound:
            a("s_sub_u32 s63, s63, 1")
            a(f"s_cbranch_scc0 {target}")
        else:
            a(f"s_branch {target}")

    def lds_wait_ge(off, sdst, cmp_operand, vt, sleep=1, precheck=False, vaddr=14):
        p, go = lab("poll"), lab("go")
        if precheck:
            a(f"s_cmp_ge_u32 {sdst}, {cmp_operand}")
            a(f"s_cbranch_scc1 {go}")
        bound_init()
        a(f"{p}:")
        a(f"ds_read_b32 v{vt}, v{vaddr} offset:{off - M0_}")
        a("s_waitcnt lgkmcnt(0)")
        a(f"v_readfirstlane_b32 {sdst}, v{vt}")
        a(f"s_cmp_ge_u32 {sdst}, {cmp_operand}")
        a(f"s_cbranch_scc1 {go}")
        if sleep:
            a(f"s_sleep {sleep}")
        bound_loop(p)
        a(f"{go}:")

    def call_setup(target, fwd):
        l0 = lab("pc")
        a("s_getpc_b64 s[52:53]")
        a(f"{l0}:")
        if fwd:
            a(f"s_add_u32 s52, s52, {target}-{l0}"); a("s_addc_u32 s53, s53, 0")
        else:
            a(f"s_sub_u32 s52, s52, {l0}-{target}"); a("s_subb_u32 s53, s53, 0")

    def call():
        a("s_swappc_b64 s[54:55], s[52:53]")

    def call_woperm():
        l0, l1 = lab("wr"), lab("wr")
        a("s_getpc_b64 s[54:55]")
        a(f"{l0}:")
        a(f"s_add_u32 s54, s54, {l1}-{l0}"); a("s_addc_u32 s55, s55, 0")
        a("s_branch L_woperm")
        a(f"{l1}:")

    DPPS = [("row_ror:8", 0xf), ("row_ror:4", 0xf), ("row_ror:2", 0xf), ("row_ror:1", 0xf),
            ("row_bcast:15", 0xa), ("row_bcast:31", 0xc)]

    def wave_red(op, v, sdst):
        for d, m in DPPS:
            a("s_nop 1")
            a(f"{op}_dpp v{v}, v{v}, v{v} {d} row_mask:{m:#x} bank_mask:0xf")
        a("s_nop 0")
        a(f"v_readlane_b32 {sdst}, v{v}, 63")
        a("s_nop 1")

    def bf16r(dst, src):
        a(f"v_cvt_pk_bf16_f32 v{dst}, v{src}, v{src}")
        a(f"v_and_b32 v{dst}, 0xffff0000, v{dst}")

    def layernorm(X, t, out, fast=False):
        D, s1, s2, u = t, t + 8, t + 10, t + 12
        a(f"v_readfirstlane_b32 s48, v{X}")
        a(f"v_mov_b32 v{s1}, 0"); a(f"v_mov_b32 v{s2}, 0")
        a("s_mov_b32 exec_hi, 0x00ffffff")
        for e in range(0, 8, 2):
            a(f"v_pk_add_f32 {q(D+e,2)}, {q(X+e,2)}, s[48:49] op_sel_hi:[1,0] neg_lo:[0,1] neg_hi:[0,1]")
        a(f"v_pk_add_f32 {q(u,2)}, {q(D,2)}, {q(D+2,2)}")
        a(f"v_pk_mul_f32 {q(s2,2)}, {q(D,2)}, {q(D,2)}")
        a(f"v_pk_add_f32 {q(s1,2)}, {q(D+4,2)}, {q(D+6,2)}")
        a(f"v_pk_fma_f32 {q(s2,2)}, {q(D+2,2)}, {q(D+2,2)}, {q(s2,2)}")
        a(f"v_pk_add_f32 {q(s1,2)}, {q(s1,2)}, {q(u,2)}")
        a(f"v_pk_fma_f32 {q(s2,2)}, {q(D+4,2)}, {q(D+4,2)}, {q(s2,2)}")
        a(f"v_add_f32 v{s1}, v{s1}, v{s1+1}")
        a(f"v_pk_fma_f32 {q(s2,2)}, {q(D+6,2)}, {q(D+6,2)}, {q(s2,2)}")
        a(f"s_mov_b32 s49, {INV448:#x}")
        a(f"v_add_f32 v{s2}, v{s2}, v{s2+1}")
        a("s_mov_b32 exec_hi, -1")
        for d, m in DPPS:
            a("s_nop 0")
            a(f"v_add_f32_dpp v{s1}, v{s1}, v{s1} {d} row_mask:{m:#x} bank_mask:0xf")
            a(f"v_add_f32_dpp v{s2}, v{s2}, v{s2} {d} row_mask:{m:#x} bank_mask:0xf")
        a(f"v_mov_b32 v{u}, s49")
        a(f"v_readlane_b32 s50, v{s1}, 63")
        a(f"v_readlane_b32 s51, v{s2}, 63")
        a("s_nop 0")
        a(f"v_mul_f32 v{s1}, s50, v{u}")
        a(f"v_mul_f32 v{s2}, s51, v{u}")
        a(f"v_add_f32 v{u}, s48, v{s1}")
        a(f"v_fma_f32 v{s2}, -v{s1}, v{s1}, v{s2}")
        if fast:
            a(f"v_max_f32 v{s2}, 0, v{s2}")
            a(f"v_pk_add_f32 {q(D,2)}, {q(X,2)}, {q(u,2)} op_sel_hi:[1,0] neg_lo:[0,1] neg_hi:[0,1]")
            a(f"v_add_f32 v{s2}, {EPS:#x}, v{s2}")
            a(f"v_pk_add_f32 {q(D+2,2)}, {q(X+2,2)}, {q(u,2)} op_sel_hi:[1,0] neg_lo:[0,1] neg_hi:[0,1]")
            a(f"v_rsq_f32 v{s2}, v{s2}")
            a(f"v_pk_add_f32 {q(D+4,2)}, {q(X+4,2)}, {q(u,2)} op_sel_hi:[1,0] neg_lo:[0,1] neg_hi:[0,1]")
            a(f"v_pk_add_f32 {q(D+6,2)}, {q(X+6,2)}, {q(u,2)} op_sel_hi:[1,0] neg_lo:[0,1] neg_hi:[0,1]")
            for e in range(0, 8, 2):
                a(f"v_pk_mul_f32 {q(D+e,2)}, {q(D+e,2)}, {q(s2,2)} op_sel_hi:[1,0]")
            for d in range(4):
                a(f"v_cvt_pk_bf16_f32 v{out+d}, v{D+2*d}, v{D+2*d+1}")
            return
        a(f"v_cvt_pk_bf16_f32 v{u}, v{u}, v{u}")
        a(f"v_max_f32 v{s2}, 0, v{s2}")
        a(f"v_and_b32 v{u}, 0xffff0000, v{u}")
        a(f"v_cvt_pk_bf16_f32 v{s2}, v{s2}, v{s2}")
        a(f"v_pk_add_f32 {q(D,2)}, {q(X,2)}, {q(u,2)} op_sel_hi:[1,0] neg_lo:[0,1] neg_hi:[0,1]")
        a(f"v_and_b32 v{s2}, 0xffff0000, v{s2}")
        a(f"v_pk_add_f32 {q(D+2,2)}, {q(X+2,2)}, {q(u,2)} op_sel_hi:[1,0] neg_lo:[0,1] neg_hi:[0,1]")
        a(f"v_add_f32 v{s2}, {EPS:#x}, v{s2}")
        a(f"v_pk_add_f32 {q(D+4,2)}, {q(X+4,2)}, {q(u,2)} op_sel_hi:[1,0] neg_lo:[0,1] neg_hi:[0,1]")
        a(f"v_cvt_pk_bf16_f32 v{s2}, v{s2}, v{s2}")
        a(f"v_pk_add_f32 {q(D+6,2)}, {q(X+6,2)}, {q(u,2)} op_sel_hi:[1,0] neg_lo:[0,1] neg_hi:[0,1]")
        a(f"v_and_b32 v{s2}, 0xffff0000, v{s2}")
        a(f"v_cvt_pk_bf16_f32 v{out}, v{D}, v{D+1}")
        a(f"v_sqrt_f32 v{s2}, v{s2}")
        a(f"v_cvt_pk_bf16_f32 v{out+1}, v{D+2}, v{D+3}")
        a(f"v_cvt_pk_bf16_f32 v{s2}, v{s2}, v{s2}")
        a(f"v_cvt_pk_bf16_f32 v{out+2}, v{D+4}, v{D+5}")
        a(f"v_and_b32 v{s2}, 0xffff0000, v{s2}")
        a(f"v_cvt_pk_bf16_f32 v{out+3}, v{D+6}, v{D+7}")
        a(f"v_rcp_f32 v{s2}, v{s2}")
        for d in range(4):
            a(f"v_lshlrev_b32 v{D+2*d}, 16, v{out+d}"); a(f"v_and_b32 v{D+2*d+1}, 0xffff0000, v{out+d}")
        for e in range(0, 8, 2):
            a(f"v_pk_mul_f32 {q(D+e,2)}, {q(D+e,2)}, {q(s2,2)} op_sel_hi:[1,0]")
        for d in range(4):
            a(f"v_cvt_pk_bf16_f32 v{out+d}, v{D+2*d}, v{D+2*d+1}")

    def build_a(dst, psrc, n):
        for w in range(4):
            a(f"v_perm_b32 v{dst+w}, v{psrc + (n >> 1)}, v{psrc + (n >> 1)}, v{SEL + (n & 1)*4 + w}")

    def xreduce(V):
        a("s_nop 1")
        a(f"v_permlane16_swap_b32 v{V}, v{V+1}")
        a(f"v_permlane16_swap_b32 v{V+2}, v{V+3}")
        a(f"v_add_f32 v{V}, v{V}, v{V+1}")
        a(f"v_add_f32 v{V+2}, v{V+2}, v{V+3}")
        a("s_nop 1")
        a(f"v_permlane32_swap_b32 v{V}, v{V+2}")
        a(f"v_add_f32 v{V}, v{V}, v{V+2}")
        a("s_nop 1")
        a(f"v_add_f32_dpp v{V}, v{V}, v{V} row_ror:8 row_mask:0xf bank_mask:0xf")
        a("s_nop 1")
        a(f"v_add_f32_dpp v{V}, v{V}, v{V} row_ror:4 row_mask:0xf bank_mask:0xf")

    def poll_quads(R, voff, soffs, vt, execs=None, both=False, pdep=1):
        n = len(soffs)
        execs = execs or ["-1"] * n

        def batch(masked):
            for g in range(n):
                if masked:
                    a(f"s_or_b64 exec, s[{80+2*g}:{81+2*g}], 1")
                elif g == 0 or execs[g] != execs[g-1]:
                    a(f"s_mov_b64 exec, {execs[g]}")
                a(f"buffer_load_dwordx4 {q(R+4*g)}, v{voff}, s[40:43], {soffs[g]} offen {ldfl}")

        def check(extra, go):
            for g in range(n):
                if g == 0 or execs[g] != execs[g-1]:
                    a(f"s_mov_b64 exec, {execs[g]}")
                a(f"s_waitcnt vmcnt({extra + n-1-g})")
                a(f"v_max3_u32 v{vt}, v{R+4*g}, v{R+4*g+1}, v{R+4*g+2}")
                a(f"v_max_u32 v{vt}, v{vt}, v{R+4*g+3}")
                a(f"v_cmp_eq_u32 s[{80+2*g}:{81+2*g}], -1, v{vt}")
            a("s_or_b64 s[50:51], s[80:81], s[82:83]")
            for g in range(2, n):
                a(f"s_or_b64 s[50:51], s[50:51], s[{80+2*g}:{81+2*g}]")
            a(f"s_cbranch_scc0 {go}")
        p, go = lab("gp"), lab("gg")
        batch(False)
        if both:
            for _ in range(pdep - 1):
                a(f"s_sleep {pstag}")
                batch(False)
        else:
            check(0, go)
            batch(True)
            for _ in range(pdep - 1):
                a(f"s_sleep {pstag}")
                batch(True)
        bound_init(1 << 17)
        a(f"{p}:")
        check((pdep - 1) * n, go)
        if slowsl:
            sk = lab("fs")
            a("s_bcnt1_i32_b64 s48, s[50:51]"); a(f"s_cmp_le_u32 s48, {slowthr}"); a(f"s_cbranch_scc1 {sk}")
            a(f"s_sleep {slowsl}")
            a(f"{sk}:")
        if psleep:
            a(f"s_sleep {psleep}")
        batch(True)
        bound_loop(p)
        a(f"{go}:")
        a("s_mov_b64 exec, -1")

    def gate(voff, soff, nl, need, vt):
        p, go = lab("wp"), lab("wg")
        bound_init(1 << 17)
        a(f"s_mov_b64 exec, {hex((1 << nl) - 1)}")
        a(f"{p}:")
        a(f"buffer_load_dword v{vt}, v{voff}, s[40:43], {soff} offen {ldfl}")
        a("s_waitcnt vmcnt(0)")
        a(f"v_cmp_ne_u32 s[50:51], -1, v{vt}")
        a("s_bcnt1_i32_b64 s48, s[50:51]")
        a(f"s_cmp_ge_u32 s48, {need}")
        a(f"s_cbranch_scc1 {go}")
        if gsl:
            a(f"s_sleep {gsl}")
        bound_loop(p)
        a(f"{go}:")
        a("s_mov_b64 exec, -1")

    def end_wait(t):
        if trig == 'cb':
            lds_wait_ge(F_CB, "s48", 1, 6, sleep=4)
        else:
            lds_wait_ge(F_FILL, "s48", t, 6, sleep=4)

    def set_depth(src):
        a(f"v_mov_b32 v6, {src}")
        a(f"ds_write_b32 v14, v6 offset:{F_DEP-M0_}")

    def wo_load(k):
        ks, e = k >> 3, k & 7
        if nowo:
            return
        if (e & 3) == 0:
            a(f"s_mov_b32 s48, {(ks*32 + (e & 4))*896}")
        a(f"buffer_load_dwordx2 {q(WL+4*k,2)}, v4, s[36:39], s48 offen offset:{(e & 3)*896} nt")
        a(f"buffer_load_dwordx2 {q(WL+4*k+2,2)}, v4, s[36:39], s48 offen offset:{(e & 3)*896 + 128} nt")

    def wfrag(ks, t):
        return (T if ks == 0 else WL) + 4*t

    a(HEADER)
    a(f"; @launch grid=(256,1,1) block=(512,1,1) lds={LDS_BYTES}")
    a('.amdgcn_target "amdgcn-amd-amdhsa--gfx950"')
    a(".text")
    a(f".globl {KNAME}")
    a(".p2align 8")
    a(f".type {KNAME},@function")
    a(f"{KNAME}:")
    a("s_cmp_ge_u32 s2, 256")
    a("s_cbranch_scc1 L_exit")
    a("s_load_dwordx16 s[4:19], s[0:1], 0")
    a("s_load_dwordx8 s[20:27], s[0:1], 64")
    if diag:
        for k in range(16):
            a(f"s_mov_b32 s{64+k}, 0")
        a("s_memrealtime s[64:65]")
    if padto:
        a("s_memrealtime s[98:99]")
    a("v_lshrrev_b32 v1, 6, v0")
    a("v_and_b32 v0, 63, v0")
    a("v_readfirstlane_b32 s3, v1")
    a("s_and_b32 s28, s2, 7"); a("s_lshr_b32 s48, s2, 3"); a("s_and_b32 s49, s48, 1"); a("s_lshl_b32 s49, s49, 3")
    a("s_add_u32 s28, s28, s49")
    a("s_lshr_b32 s29, s48, 1"); a("s_and_b32 s29, s29, 3"); a("s_lshr_b32 s30, s48, 3")
    a("s_lshl_b32 s31, s30, 4"); a("s_add_u32 s31, s31, s28")
    a("v_and_b32 v1, 15, v0")
    a("v_lshrrev_b32 v2, 4, v0")
    a("v_lshrrev_b32 v3, 5, v0")
    def emit_loader():
        a("L_loader:")
        a("s_setprio 3")
        a("v_and_b32 v4, 31, v0"); a("v_xor_b32 v4, v4, v3"); a("v_lshlrev_b32 v4, 4, v4"); a("v_lshl_add_u32 v8, v3, 9, v4")
        for k in range(1, 8):
            a(f"v_xor_b32 v{8+k}, {k << 5}, v8")
        a("s_lshl_b32 s59, s31, 22"); a("s_lshl_b32 s49, s29, 20"); a("s_add_u32 s59, s59, s49")
        a("s_mov_b32 s56, 0"); a("s_mov_b32 s57, 0"); a("s_mov_b32 s58, 0"); a("s_mov_b32 m0, 0")
        a("s_mov_b32 s34, 0x100000"); a("s_mov_b32 s35, 0x20000")
        a(f"v_mov_b32 v24, {M0_}"); a(f"v_mov_b32 v17, {F_CONS + 4}")
        for r in range(4):
            a(f"v_mov_b32 v{20+r}, 0")
        a("ds_write_b128 v24, v[20:23]"); a("ds_write_b128 v24, v[20:23] offset:16"); a("ds_write_b128 v24, v[20:23] offset:32")
        a("s_waitcnt lgkmcnt(0)")
        if 'e' in tst:
            stamp(4)
        a("s_add_u32 s32, s6, s59"); a("s_addc_u32 s33, s7, 0"); a("s_and_b32 s33, s33, 0xffff")
        if diag:
            srd(40, 26, WS_BYTES)
        for di, dd in enumerate(depths):
            kpub, lag = (dd - 1) % 8, (dd - 1) // 8
            a(f"L_ld{di}:")
            for k in range(8):
                if k == 4:
                    a("s_add_u32 m0, s56, 4096"); a("s_add_u32 s57, s57, 4096")
                if k == kpub:
                    a(f"s_sub_u32 s49, s58, {lag}"); a("s_max_i32 s49, s49, 0"); a("v_mov_b32 v19, s49")
                a(f"s_waitcnt vmcnt({dd-1})")
                a(f"buffer_load_dwordx4 v{8+k}, s[32:35], s57 offen offset:{(k&3)*1024} nt lds")
                if k == kpub:
                    a("ds_write_b32 v24, v19")
                if k == 6:
                    a("ds_read_b32 v18, v17")
                    if len(depths) > 1:
                        a(f"ds_read_b32 v25, v24 offset:{F_DEP-M0_}")
                if di == 0 and k == barpos:
                    sk = lab("nb")
                    a("s_cmp_lg_u32 s58, 0"); a(f"s_cbranch_scc1 {sk}")
                    if 'e' in tst:
                        stamp(5)
                    a("s_barrier")
                    if 'e' in tst:
                        a("s_waitcnt vmcnt(7)"); stamp(6)
                    a(f"{sk}:")
            if di + 1 < len(depths):
                a("s_branch L_lnext")
        a("L_lnext:")
        a("s_add_u32 s57, s57, 4096")
        a("s_add_u32 s56, s56, 8192"); a("s_and_b32 s56, s56, 0x1ffff")
        a("s_add_u32 s58, s58, 1")
        if diag:
            for kk, tt in stt:
                sk = lab("st")
                a(f"s_cmp_lg_u32 s58, {tt}"); a(f"s_cbranch_scc1 {sk}"); stamp(kk); a(f"{sk}:")
        a("s_cmp_lg_u32 s58, 128")
        a("s_cbranch_scc1 L_lnosw")
        a("s_add_u32 s32, s8, s59"); a("s_addc_u32 s33, s9, 0"); a("s_and_b32 s33, s33, 0xffff"); a("s_mov_b32 s57, 0")
        for k in range(8):
            a(f"v_lshlrev_b32 v{8+k}, 4, v0")
        stamp(1)
        a("L_lnosw:")
        a(f"s_cmp_ge_u32 s58, {NT}")
        a("s_cbranch_scc1 L_ldrain")
        a("s_lshr_b32 s49, s58, 1"); a("s_sub_u32 s49, s49, 7")
        p, go = lab("fp"), lab("fg")
        a("s_waitcnt lgkmcnt(0)")
        a("v_readfirstlane_b32 s48, v18")
        a("v_readfirstlane_b32 s50, v25")
        a("s_cmp_ge_i32 s48, s49")
        a(f"s_cbranch_scc1 {go}")
        bound_init()
        a(f"{p}:")
        a("ds_read_b32 v18, v17"); a("s_waitcnt lgkmcnt(0)"); a("v_readfirstlane_b32 s48, v18")
        a("s_cmp_ge_i32 s48, s49")
        a(f"s_cbranch_scc1 {go}")
        a("s_sleep 1")
        bound_loop(p)
        a(f"{go}:")
        a("v_xor_b32 v17, 12, v17")
        a("s_mov_b32 m0, s56")
        for di in range(1, len(depths)):
            a(f"s_cmp_eq_u32 s50, {di}"); a(f"s_cbranch_scc1 L_ld{di}")
        a("s_branch L_ld0")
        a("L_ldrain:")
        stamp(2)
        for c in range(NT - (max(depths) - 1) // 8, NT + 1):
            a(f"v_mov_b32 v19, {c}")
            a(f"s_waitcnt vmcnt({8*(NT-c)})")
            a("ds_write_b32 v24, v19")
        a("s_waitcnt lgkmcnt(0)")
        stamp(3)
        finish()


    if ldfirst:
        a("s_cmp_lg_u32 s3, 0")
        a("s_cbranch_scc1 L_worker")
        emit_loader()
        a("L_worker:")
    else:
        a("s_cmp_eq_u32 s3, 0")
        a("s_cbranch_scc1 L_loader")

    a("s_sub_u32 s60, s3, 1")
    a("v_lshlrev_b32 v5, 4, v0")
    a("s_mul_i32 s48, s30, 896")
    a("v_add_u32 v5, s48, v5")
    a("v_mov_b32 v6, 0x7fffff00")
    a("v_cmp_gt_u32 vcc, 56, v0")
    a("v_and_b32 v4, 7, v0")
    a("v_lshlrev_b32 v4, 4, v4")
    a("v_cndmask_b32 v5, v6, v5, vcc")
    a("v_lshrrev_b32 v13, 3, v0")
    a("v_lshl_add_u32 v4, v13, 16, v4")
    a("s_lshl_b32 s48, s60, 19"); a("s_lshl_b32 s49, s28, 9"); a("s_add_u32 s48, s48, s49")
    a("s_lshl_b32 s49, s29, 7"); a("s_add_u32 s48, s48, s49")
    a("v_add_u32 v4, s48, v4")
    a("s_waitcnt lgkmcnt(0)")
    srd(32, 4, 3584)
    srd(36, 10, 3670016)
    a(f"buffer_load_dwordx4 {q(YA)}, v5, s[32:35], 0 offen")
    a(f"s_add_u32 s48, s26, {W_EP}"); a("s_addc_u32 s49, s27, 0")
    a("s_load_dword s62, s[48:49], 0")
    a("v_mov_b32 v15, 0")
    a("s_barrier")
    a("s_mov_b32 s50, 0")
    for n in range(8):
        a(f"buffer_load_dwordx4 {q(QA+4*n)}, v4, s[36:39], s50 offen nt") if 'w' not in tst else a(f"buffer_load_dword v{QA+4*n}, v15, s[32:35], 0 offen")
        if n < 7:
            a("s_add_u32 s50, s50, 8192")
    srd(40, 26, WS_BYTES)
    a("v_and_b32 v6, 1, v1"); a("v_cmp_eq_u32 vcc, 1, v6")
    a("v_mov_b32 v7, 0x0c0c0100"); a("v_mov_b32 v8, 0x01000c0c"); a("v_mov_b32 v9, 0x0c0c0302"); a("v_mov_b32 v10, 0x03020c0c")
    a("v_cndmask_b32 v7, v7, v8, vcc"); a("v_cndmask_b32 v9, v9, v10, vcc")
    a("v_bfe_u32 v6, v1, 1, 2"); a("v_mov_b32 v10, 0x0c0c0c0c")
    for w in range(4):
        a(f"v_cmp_eq_u32 vcc, {w}, v6"); a("s_nop 1")
        a(f"v_cndmask_b32 v{SEL+w}, v10, v7, vcc"); a(f"v_cndmask_b32 v{SEL+4+w}, v10, v9, vcc")
    a("v_mov_b32 v15, 0")
    a(f"v_mov_b32 v14, {M0_}")
    a(f"v_lshlrev_b32 v8, 4, v0"); a(f"v_add_u32 v8, {L_XN}, v8")
    a("s_lshl_b32 s48, s60, 7"); a(f"s_add_u32 s48, s48, {L_XN}")
    a("v_lshl_add_u32 v9, v13, 4, s48")
    a("v_lshrrev_b32 v6, 1, v2"); a("v_lshlrev_b32 v6, 8, v6"); a("v_and_b32 v7, 7, v1"); a("v_lshl_add_u32 v6, v7, 5, v6")
    a("v_and_b32 v7, 1, v2"); a("v_lshl_add_u32 v6, v7, 4, v6")
    a("s_lshl_b32 s48, s60, 9"); a(f"s_add_u32 s48, s48, {L_QP}")
    a("v_add_u32 v6, s48, v6")
    a("v_mov_b32 v7, 1")
    a("s_waitcnt vmcnt(8)")
    for d in range(4):
        a(f"v_lshlrev_b32 v{T+2*d}, 16, v{YA+d}"); a(f"v_and_b32 v{T+2*d+1}, 0xffff0000, v{YA+d}")
    layernorm(T, T + 8, YA)
    a("s_mov_b32 exec_hi, 0x00ffffff")
    a(f"ds_write_b128 v8, {q(YA)}")
    a("s_mov_b32 exec_hi, -1")
    a("s_waitcnt lgkmcnt(0)")
    a(f"ds_read_b128 {q(YA)}, v9")
    stamp(1)
    a("s_waitcnt lgkmcnt(0)")
    for n in range(8):
        build_a(T + 4*n, YA, n)
    for n in range(8):
        a(f"s_waitcnt vmcnt({7-n})")
        a(f"v_mfma_f32_16x16x32_bf16 {q(ACC)}, {q(T+4*n)}, {q(QA+4*n)}, {q(ACC) if n else 0}")
    a("s_mov_b32 exec_lo, 0x00ff00ff"); a("s_mov_b32 exec_hi, 0xff00ff00")
    a("s_nop 5")
    a(f"ds_write_b128 v6, {q(ACC)}")
    a("s_waitcnt lgkmcnt(0)")
    a("s_mov_b64 exec, 1")
    a(f"ds_add_u32 v14, v7 offset:{F_QCNT-M0_}")
    a("s_mov_b64 exec, -1")
    stamp(2)
    a("s_cmp_eq_u32 s3, 3")
    a("s_cbranch_scc1 L_h4")
    a("s_cmp_gt_u32 s3, 3")
    a("s_cbranch_scc1 L_helper")

    a("v_and_b32 v6, 1, v2"); a("v_lshrrev_b32 v8, 3, v1"); a("v_cmp_eq_u32 vcc, v6, v8"); a("s_nop 1")
    for w in range(8):
        a(f"v_cndmask_b32 v{SEL+w}, v10, v{SEL+w}, vcc")
    a("v_and_b32 v6, 3, v1"); a("v_xor_b32 v6, v6, v2"); a("v_and_b32 v7, 12, v1"); a("v_or_b32 v6, v6, v7")
    for m in range(4):
        a(f"v_xor_b32 v7, {m*4}, v6"); a("v_lshlrev_b32 v7, 4, v7"); a(f"v_lshl_add_u32 v{8+m}, v1, 9, v7")
    a("v_and_b32 v6, 1, v1"); a("v_lshlrev_b32 v6, 4, v6"); a("v_and_b32 v7, 14, v1"); a("v_add_u32 v12, v6, v7")
    a("s_lshl_b32 s48, s60, 5"); a(f"s_add_u32 s61, s48, {L_PB}")
    a("v_add_u32 v12, s61, v12")
    a("s_lshl_b32 s48, s60, 2"); a(f"s_add_u32 s48, s48, {F_CONS}"); a("v_mov_b32 v13, s48")
    a("s_lshl_b32 s56, s60, 13")
    a("s_add_u32 s57, s60, 1")
    a("s_mov_b32 s58, 0")
    a("v_mov_b32 v5, 0")
    a(f"v_lshlrev_b32 v7, 4, v2"); a(f"v_add_u32 v7, {L_QB}, v7")
    lds_wait_ge(F_QOK, "s48", 1, 6)
    for ks in range(8):
        a(f"ds_read_b128 {q(QA+4*ks)}, v7 offset:{ks*64}")
    stamp(3)
    a("L_kloop:")
    for m in range(4):
        a(f"v_add_u32 v{SB+m}, s56, v{8+m}")
    a("v_add_u32 v5, 1, v5")
    lds_wait_ge(F_FILL, "s58", "s57", 6, precheck=True, sleep=csl)
    for ks in range(8):
        a(f"ds_read_b128 {q(T+4*ks)}, v{SB+(ks&3)} offset:{(ks>>2)*256}")
    for ks in range(8):
        a(f"s_waitcnt lgkmcnt({7-ks})")
        a(f"v_mfma_f32_16x16x32_bf16 {q(ACC)}, {q(QA+4*ks)}, {q(T+4*ks)}, {q(ACC) if ks else 0}")
    a("ds_write_b32 v13, v5")
    a("s_add_u32 s56, s56, 16384"); a("s_and_b32 s56, s56, 0x1ffff")
    a("s_add_u32 s57, s57, 2")
    a("s_nop 4")
    a(f"v_cvt_pk_bf16_f32 v6, v{ACC}, v{ACC}")
    a("ds_write_b16 v12, v6")
    a("v_add_u32 v12, 64, v12")
    a("s_cmp_lt_u32 s57, 129")
    a("s_cbranch_scc1 L_kloop")
    stamp(4)
    a("v_lshl_add_u32 v12, v0, 6, s61")
    a("s_waitcnt lgkmcnt(0)")
    a(f"ds_read_b128 {q(YA)}, v12"); a(f"ds_read_b128 {q(YA+4)}, v12 offset:16")
    a("s_waitcnt lgkmcnt(0)")
    for d in range(8):
        a(f"v_lshlrev_b32 v{T+2*d}, 16, v{YA+d}"); a(f"v_and_b32 v{T+2*d+1}, 0xffff0000, v{YA+d}")
    a(f"v_max3_f32 v6, v{T}, v{T+1}, v{T+2}")
    for d in range(3, 15, 2):
        a(f"v_max3_f32 v6, v6, v{T+d}, v{T+d+1}")
    a(f"v_max_f32 v6, v6, v{T+15}")
    wave_red("v_max_f32", 6, "s48")
    a(f"s_mov_b32 s49, {LOG2E_16:#x}")
    for d in range(16):
        a(f"v_subrev_f32 v{T+d}, s48, v{T+d}")
    for d in range(16):
        a(f"v_mul_f32 v{T+d}, s49, v{T+d}")
    for d in range(16):
        a(f"v_exp_f32 v{T+d}, v{T+d}")
    a("s_nop 0")
    for d in range(8):
        a(f"v_cvt_pk_bf16_f32 v{YA+d}, v{T+2*d}, v{T+2*d+1}")
    a(f"ds_write_b128 v12, {q(YA)}"); a(f"ds_write_b128 v12, {q(YA+4)} offset:16")
    for st in (8, 4, 2, 1):
        for d in range(st):
            a(f"v_add_f32 v{T+d}, v{T+d}, v{T+d+st}")
    wave_red("v_add_f32", T, "s49")
    a("v_mov_b32 v6, s48"); a("v_mov_b32 v7, s49")
    a("s_lshl_b32 s48, s60, 3"); a(f"s_add_u32 s48, s48, {L_ML}"); a("v_mov_b32 v8, s48"); a("v_mov_b32 v9, 1")
    a("s_mov_b64 exec, 1")
    a("ds_write_b64 v8, v[6:7]")
    a("s_waitcnt lgkmcnt(0)")
    a(f"ds_add_u32 v14, v9 offset:{F_MLCNT-M0_}")
    a("s_mov_b64 exec, -1")
    a("v_lshlrev_b32 v8, 4, v0")
    a("v_lshl_add_u32 v12, v3, 4, s61")
    a(f"v_add_u32 v10, {L_CB}, v8")
    for r in range(4):
        a(f"v_mov_b32 v{ACC+r}, 0")
    a("s_mov_b32 s59, 225")
    stamp(5)
    a("L_vloop:")
    a(f"ds_read_b128 {q(YA)}, v12")
    a("v_add_u32 v9, s56, v8")
    a("v_add_u32 v12, 64, v12")
    a("v_add_u32 v5, 1, v5")
    a("s_waitcnt lgkmcnt(0)")
    for n in range(8):
        build_a(QA + 4*n, YA, n)
    lds_wait_ge(F_FILL, "s58", "s57", 6, precheck=True, sleep=csl)
    for n in range(8):
        a(f"ds_read_b128 {q(T+4*n)}, v9 offset:{n*1024}")
    a(f"ds_read_b32 v6, v14 offset:{F_CB-M0_}")
    a(f"ds_read_b128 {q(ACA)}, v10")
    for n in range(8):
        a(f"s_waitcnt lgkmcnt({9-n})")
        a(f"v_mfma_f32_16x16x32_bf16 {q(ACC)}, {q(QA+4*n)}, {q(T+4*n)}, {q(ACC)}")
    a("ds_write_b32 v13, v5")
    a("s_add_u32 s56, s56, 16384"); a("s_and_b32 s56, s56, 0x1ffff")
    a("s_add_u32 s57, s57, 2")
    a("s_cmp_lt_u32 s57, s59")
    a("s_cbranch_scc1 L_vloop")
    a("s_cmp_gt_u32 s59, 253")
    a("s_cbranch_scc1 L_vdone")
    if direct:
        a("s_cmp_gt_u32 s59, 240")
        a("s_cbranch_scc1 L_vdir")
    lds_wait_ge(F_FOK, "s48", 1, 6)
    a("s_lshl_b32 s48, s60, 2"); a(f"s_add_u32 s48, s48, {L_F}"); a("v_mov_b32 v11, s48")
    a("ds_read_b32 v11, v11")
    a("v_lshrrev_b32 v6, 3, v1"); a("v_lshl_add_u32 v6, v3, 1, v6"); a("v_lshlrev_b32 v7, 11, v6")
    a("v_and_b32 v6, 7, v1"); a("v_lshl_add_u32 v7, v6, 4, v7"); a("v_and_b32 v6, 1, v2"); a("v_lshl_add_u32 v7, v6, 3, v7")
    a("s_lshl_b32 s48, s28, 13"); a("s_lshl_b32 s49, s30, 2"); a("s_add_u32 s49, s49, s29"); a("s_lshl_b32 s49, s49, 7")
    a("s_add_u32 s48, s48, s49"); a(f"s_add_u32 s61, s48, {W_OX}")
    if direct:
        a("s_lshl_b32 s48, s31, 22"); a("s_lshl_b32 s49, s29, 20"); a("s_add_u32 s48, s48, s49")
        a("s_add_u32 s36, s8, s48"); a("s_addc_u32 s37, s9, 0"); a("s_and_b32 s37, s37, 0xffff")
        a("s_mov_b32 s38, 0x100000"); a("s_mov_b32 s39, 0x20000")
        a(f"s_mov_b32 s59, {direct}")
        a("s_branch L_vloop")
        a("L_vdir:")
        lds_wait_ge(F_FILL, "s58", "s57", 6, precheck=True, sleep=csl)
        a("s_lshl_b32 s48, s60, 13"); a(f"s_add_u32 s48, s48, {126*8192}")
        for n in range(8):
            if n == 4:
                a("s_add_u32 s48, s48, 4096")
            a(f"buffer_load_dwordx4 {q(WL+4*n)}, v8, s[36:39], s48 offen offset:{(n&3)*1024} nt")
        a("s_mov_b32 s59, 255")
    else:
        a("s_mov_b32 s59, 257")
    a("s_branch L_vloop")
    a("L_vdone:")
    if direct:
        a(f"ds_read_b128 {q(YA)}, v12")
        a("s_waitcnt lgkmcnt(0)")
        for n in range(8):
            build_a(QA + 4*n, YA, n)
        for n in range(8):
            a(f"s_waitcnt vmcnt({7-n})")
            if n == 5:
                a(f"ds_read_b32 v6, v14 offset:{F_CB-M0_}")
                a(f"ds_read_b128 {q(ACA)}, v10")
            a(f"v_mfma_f32_16x16x32_bf16 {q(ACC)}, {q(QA+4*n)}, {q(WL+4*n)}, {q(ACC)}")
        stamp(6)
        a("s_nop 5")
    if not direct:
        stamp(6)
    a("s_cmp_eq_u32 s60, 0")
    a("s_cbranch_scc0 L_vpub")
    for r in range(4):
        a(f"v_mul_f32 v{ACC+r}, v11, v{ACC+r}")
    a("v_mov_b32 v9, 1")
    a(f"ds_write_b128 v10, {q(ACC)}")
    a("s_waitcnt lgkmcnt(0)")
    a(f"ds_write_b32 v14, v9 offset:{F_CB-M0_}")
    a("s_waitcnt lgkmcnt(0)")
    finish()
    a("L_vpub:")
    a("s_waitcnt lgkmcnt(0)")
    a("v_readfirstlane_b32 s48, v6")
    a("s_cmp_eq_u32 s48, 1")
    a("s_cbranch_scc1 L_vsum")
    lds_wait_ge(F_CB, "s48", 1, 6, sleep=0)
    a(f"ds_read_b128 {q(ACA)}, v10")
    a("s_waitcnt lgkmcnt(0)")
    a("L_vsum:")
    for r in range(4):
        a(f"v_fma_f32 v{ACC+r}, v11, v{ACC+r}, v{ACA+r}")
    a(f"v_cvt_pk_bf16_f32 v{ACC}, v{ACC}, v{ACC+1}"); a(f"v_cvt_pk_bf16_f32 v{ACC+1}, v{ACC+2}, v{ACC+3}")
    a(f"v_min_u32 v{ACC}, -2, v{ACC}"); a(f"v_min_u32 v{ACC+1}, -2, v{ACC+1}")
    a(f"buffer_store_dwordx2 {q(ACC,2)}, v7, s[40:43], s61 offen {stfl}")
    stamp(7)
    finish()

    a("L_pace:")
    lds_wait_ge(F_FILL, "s58", "s56", 12, sleep=8, precheck=True)
    a("s_add_u32 s56, s56, s57")
    a("s_setpc_b64 s[54:55]")

    a("L_helper:")
    call_setup("L_pace", False)
    a("s_mov_b32 s58, 0")
    a("s_sub_u32 s62, s3, 4")
    a("s_and_b32 s48, s2, 7"); a("s_mul_i32 s48, s48, 7"); a("s_lshr_b32 s49, s2, 3"); a("s_add_u32 s59, s48, s49")
    if not noffn:
        a(f"s_cmp_ge_u32 s2, {NF}")
        a("s_cbranch_scc1 L_noffn")
        a("s_cmp_ge_u32 s62, 2")
        a("s_cselect_b32 s44, s18, s16"); a("s_cselect_b32 s45, s19, s17")
        a("s_and_b32 s45, s45, 0xffff"); a("s_mov_b32 s46, 1605632"); a("s_mov_b32 s47, 0x20000")
        a("v_lshrrev_b32 v7, 2, v0"); a("v_and_b32 v8, 7, v7"); a("v_lshrrev_b32 v6, 3, v7"); a("v_lshl_add_u32 v6, v8, 2, v6")
        a("v_mul_u32_u24 v6, 3584, v6"); a("v_and_b32 v8, 3, v0"); a("v_lshl_add_u32 v6, v8, 4, v6")
        a("s_and_b32 s48, s62, 1"); a(f"s_mul_i32 s50, s48, {7*32*3584}"); a("s_lshl_b32 s49, s59, 6"); a("s_add_u32 s50, s50, s49")
        a("s_lshl_b32 s51, s62, 11"); a(f"s_add_u32 s51, s51, {L_STG}")
        a("v_lshrrev_b32 v9, 2, v1"); a("v_lshl_add_u32 v10, v2, 3, v9"); a("v_lshlrev_b32 v10, 6, v10")
        a("v_and_b32 v11, 3, v1"); a("v_lshl_add_u32 v10, v11, 3, v10"); a("v_add_u32 v10, s51, v10")
        a(f"s_mov_b32 s56, {gt0}"); a(f"s_mov_b32 s57, {gdt}")

        def stage(step2, step_next):
            call()
            a("s_mov_b32 m0, s51"); a("s_nop 0")
            a("buffer_load_dwordx4 v6, s[44:47], s50 offen nt lds")
            if not gpair:
                call()
            a("s_add_u32 m0, s51, 1024"); a(f"s_add_u32 s50, s50, {step2}")
            a("buffer_load_dwordx4 v6, s[44:47], s50 offen nt lds")
            a(f"s_add_u32 s50, s50, {step_next}")
            a("s_waitcnt vmcnt(0)")
        for f in range(7):
            stage(2*3584, 30*3584)
            for ft in range(2):
                a(f"ds_read_b64_tr_b16 {q(FF+8*f+4*ft,2)}, v10 offset:{ft*32}")
                a(f"ds_read_b64_tr_b16 {q(FF+8*f+4*ft+2,2)}, v10 offset:{ft*32+256}")
            a("s_waitcnt lgkmcnt(0)")
        srd(44, 20, 1605632)
        a("v_mul_u32_u24 v6, 896, v7"); a("v_lshl_add_u32 v6, v8, 4, v6")
        a("s_mul_i32 s50, s59, 28672"); a("s_lshl_b32 s49, s62, 8"); a("s_add_u32 s50, s50, s49")
        a("v_lshl_add_u32 v10, v2, 2, v9"); a("v_lshlrev_b32 v10, 6, v10"); a("v_lshl_add_u32 v10, v11, 3, v10"); a("v_add_u32 v10, s51, v10")
        for pr in range(4):
            stage(16*896, 64 - 16*896 + (1 << 32))
            for sub in range(2):
                a(f"ds_read_b64_tr_b16 {q(QA+8*pr+4*sub,2)}, v10 offset:{sub*32}")
                a(f"ds_read_b64_tr_b16 {q(QA+8*pr+4*sub+2,2)}, v10 offset:{sub*32+1024}")
            a("s_waitcnt lgkmcnt(0)")
        a("s_branch L_ffn")
        a("L_noffn:")
    else:
        a(f"s_cmp_lt_u32 s2, {NF}")
        a("s_cbranch_scc1 L_ffn")
    a(f"s_sub_u32 s59, s2, {R0LO}")
    a("s_cmp_lt_u32 s59, 64")
    a("s_cbranch_scc0 L_r1")
    srd(36, 12, 3670016)
    a("v_mul_u32_u24 v4, 7168, v2"); a("v_lshl_add_u32 v4, v1, 3, v4")
    a("s_lshl_b32 s47, s62, 8"); a("s_cmp_eq_u32 s62, 3"); a("s_cselect_b32 s47, 704, s47")
    a("s_mul_i32 s48, s59, 57344"); a("s_add_u32 s48, s48, s47")
    a("v_add_u32 v4, s48, v4")
    a(f"s_mov_b32 s56, {wt0}"); a(f"s_mov_b32 s57, {wdt}")
    for k in range(16):
        call()
        wo_load(k)
    a("v_lshlrev_b32 v5, 7, v1"); a("v_lshl_add_u32 v5, v2, 4, v5")
    a("s_lshl_b32 s44, s59, 11"); a(f"s_add_u32 s44, s44, {W_OX}"); a("s_add_u32 s45, s44, 64")
    a(f"v_mul_u32_u24 v7, {64*1792}, v2"); a("v_lshl_add_u32 v7, v1, 4, v7")
    a("s_mul_i32 s46, s59, 1792"); a("s_lshl_b32 s48, s47, 1"); a("s_add_u32 s46, s46, s48")
    a("s_cmp_ge_u32 s62, 2"); a("s_cselect_b32 s38, 0x00ff00ff, -1"); a("s_mov_b32 s39, s38")
    a("s_mov_b32 s48, 0x05040100"); a("s_mov_b32 s49, 0x07060302")
    a("s_waitcnt vmcnt(0)")
    for ks in range(2):
        src = WL + ks*32
        for t in range(8):
            for d in range(4):
                a(f"v_perm_b32 v{wfrag(ks,t)+d}, v{src+(2*d+1)*4+(t>>1)}, v{src+(2*d)*4+(t>>1)}, s{48+(t&1)}")
    if dry0:
        a("s_mov_b32 s42, 0"); a("s_mov_b64 vcc, -1")
        a("s_branch L_r0body")
        a("L_r0real:")
        a(f"s_mov_b32 s42, {WS_BYTES}"); a("s_mov_b64 vcc, 0"); a("s_mov_b64 exec, -1")
    lds_wait_ge(F_FOK, "s48", 1, 6, sleep=16)
    end_wait(tpoll)
    poll_quads(YA, 5, ["s44", "s45"], 6, pdep=pd[0])
    stamp(3)
    a("L_r0body:")
    for t in range(8):
        for ks in range(2):
            a(f"v_mfma_f32_16x16x32_bf16 {q(T2+4*t)}, {q(YA+4*ks)}, {q(wfrag(ks,t))}, {q(T2+4*t) if ks else 0}")
        if t >= 4:
            u = t - 4
            a(f"v_pk_add_f32 {q(T2+4*u,2)}, {q(T2+4*u,2)}, {q(T2+4*u+2,2)}")
            a(f"v_add_f32 v{SB+u}, v{T2+4*u}, v{T2+4*u+1}")
    a("s_nop 0")
    a(f"buffer_store_dwordx4 {q(SB)}, v7, s[40:43], s46 offen {stfl}")
    for u in range(4, 8):
        if u == 7:
            a("s_nop 0")
        a(f"v_pk_add_f32 {q(T2+4*u,2)}, {q(T2+4*u,2)}, {q(T2+4*u+2,2)}")
        a(f"v_add_f32 v{SB+u}, v{T2+4*u}, v{T2+4*u+1}")
    a("s_mov_b64 exec, s[38:39]")
    a(f"buffer_store_dwordx4 {q(SB+4)}, v7, s[40:43], s46 offen offset:256 {stfl}")
    if dry0:
        a("s_cbranch_vccnz L_r0real")
    a("s_mov_b64 exec, -1")
    stamp(4)
    if diag:
        a("s_waitcnt vmcnt(0)")
        stamp(5)
    finish()

    def count_check():
        a("; all workgroups have emptied their hand-off words once d_debug[0] reaches 256")
        a("s_load_dword s48, s[24:25], 0") if 'l' not in tst else a("s_mov_b32 s48, 256")
        a("s_waitcnt lgkmcnt(0)")
        bound_init(1 << 17)
        a("L_cntpoll:")
        a(f"s_cmp_ge_u32 s48, {256 if 'a' not in tst else 0}")
        a("s_cbranch_scc1 L_cntok")
        a("s_sleep 64")
        a("s_mov_b32 s48, 0")
        a("s_atomic_add s48, s[24:25], 0 glc")
        a("s_waitcnt lgkmcnt(0)")
        bound_loop("L_cntpoll")
        a("L_cntok:")
        a("s_cmp_lg_u32 s2, 0")
        a("s_cbranch_scc1 L_noep")
        a("v_mov_b32 v6, s62"); a(f"s_mov_b32 s48, {W_EP}")
        a("s_mov_b64 exec, 1")
        a("buffer_store_dword v6, v15, s[40:43], s48 offen sc1")
        a("s_mov_b64 exec, -1")
        a("L_noep:")

    a("L_h4:")
    a("; sum the 14 partials, exchange the q quarters of the four workgroups of this head through tagged granules")
    a("v_and_b32 v8, 31, v0"); a("v_lshlrev_b32 v8, 3, v8")
    a("v_mul_u32_u24 v9, 1792, v3"); a("v_add_u32 v9, v9, v8"); a(f"v_add_u32 v9, {L_QP}, v9")
    a("s_lshl_b32 s56, s31, 10"); a(f"s_add_u32 s56, s56, {W_QX}"); a("s_lshl_b32 s57, s29, 8"); a("s_add_u32 s57, s57, s56")
    a("s_add_u32 s62, s62, 1")
    a("v_lshlrev_b32 v5, 4, v0")
    a("v_lshlrev_b32 v11, 3, v0"); a(f"v_add_u32 v11, {L_QB}, v11")
    lds_wait_ge(F_QCNT, "s48", 7, 6, sleep=0)
    for p in range(7):
        a(f"ds_read_b64 {q(T+2*p,2)}, v9 offset:{p*256}")
    for p in range(1, 7):
        a(f"s_waitcnt lgkmcnt({6-p})")
        a(f"v_pk_add_f32 {q(T,2)}, {q(T,2)}, {q(T+2*p,2)}")
    a(f"v_mov_b32 v{T+2}, v{T}"); a(f"v_mov_b32 v{T+3}, v{T+1}"); a("s_nop 1")
    a(f"v_permlane32_swap_b32 v{T}, v{T+2}"); a(f"v_permlane32_swap_b32 v{T+1}, v{T+3}")
    a(f"v_pk_add_f32 {q(T,2)}, {q(T,2)}, {q(T+2,2)}")
    a("v_mov_b32 v7, s62")
    a(f"v_cvt_pk_bf16_f32 v6, v{T}, v{T+1}")
    a("s_mov_b32 exec_hi, 0")
    a("buffer_store_dwordx2 v[6:7], v8, s[40:43], s57 offen sc1")
    a("s_mov_b32 exec_hi, -1")
    bound_init(1 << 17)
    a("L_qpoll:")
    a(f"buffer_load_dwordx4 {q(T)}, v5, s[40:43], s56 offen sc1")
    a("s_waitcnt vmcnt(0)")
    a(f"v_cmp_ne_u32 vcc, s62, v{T+1}"); a(f"v_cmp_ne_u32 s[48:49], s62, v{T+3}")
    a("s_or_b64 vcc, vcc, s[48:49]")
    a("s_cbranch_scc0 L_qok") if 'q' not in tst else a("s_branch L_qok")
    a("s_sleep 2")
    bound_loop("L_qpoll")
    a("L_qok:")
    a(f"v_mov_b32 v{T+1}, v{T+2}")
    a(f"ds_write_b64 v11, {q(T,2)}")
    a("v_mov_b32 v6, 1")
    a("s_waitcnt lgkmcnt(0)")
    a(f"ds_write_b32 v14, v6 offset:{F_QOK-M0_}")
    if use_fb and fbm == 'ls':
        a("; progress words of the eight members of this workgroup's balancing group (one per die-sized stride of ids)")
        a("s_lshr_b32 s48, s2, 3"); a("s_and_b32 s49, s2, 7"); a(f"s_mul_i32 s50, s49, {fbmix}"); a("s_add_u32 s48, s48, s50")
        a(f"v_mul_u32_u24 v6, {fbmix}, v0"); a("v_sub_u32 v6, s48, v6"); a("v_and_b32 v6, 31, v6"); a("v_lshl_add_u32 v6, v6, 3, v0")
        a(f"v_mul_u32_u24 v{FF}, {fbstr}, v6")
        a(f"s_mul_i32 s94, s2, {fbstr}"); a(f"s_add_u32 s94, s94, {W_FB}"); a(f"s_mov_b32 s95, {W_FB}")
    elif use_fb:
        ng = 256 // fbg
        a("s_lshr_b32 s48, s2, 3"); a("s_and_b32 s49, s2, 7"); a(f"s_mul_i32 s50, s49, {fbmix}"); a("s_add_u32 s48, s48, s50")
        a(f"s_and_b32 s48, s48, {ng-1}"); a("s_lshl_b32 s48, s48, 12"); a(f"s_add_u32 s48, s48, {W_FB}")
        a("s_add_u32 s94, s26, s48"); a("s_addc_u32 s95, s27, 0")
        a(f"s_lshr_b32 s50, s2, {3 + ng.bit_length() - 1}"); a("s_or_b32 s49, s49, s50")
        a("s_cbranch_scc1 L_nolead")
        a("v_lshlrev_b32 v6, 8, v0")
        a("s_mov_b64 exec, 0xffff")
        a("buffer_store_dword v15, v6, s[40:43], s48 offen sc1")
        a("s_mov_b64 exec, -1")
        a("L_nolead:")
    a(f"s_mov_b32 s93, {didx(depth)}"); a(f"s_mov_b32 s91, {didx(depth)}")
    if r0dep:
        a(f"s_sub_u32 s48, s2, {R0LO}"); a("s_cmp_lt_u32 s48, 64"); a(f"s_cselect_b32 s93, {didx(r0dep)}, s93")
    if clrt:
        lds_wait_ge(F_FILL, "s48", clrt, 6, sleep=8)
    for r in range(4):
        a(f"v_mov_b32 v{YA+r}, -1")
    a("s_mul_i32 s48, s2, 1792")
    None if 'c' in tst else a(f"buffer_store_dwordx4 {q(YA)}, v5, s[40:43], s48 offen sc1")
    a("s_mov_b32 exec_hi, 0x0000ffff")
    None if 'c' in tst else a(f"buffer_store_dwordx4 {q(YA)}, v5, s[40:43], s48 offen offset:1024 sc1")
    a("s_mov_b32 exec_hi, 0")
    a("s_lshl_b32 s48, s2, 9"); a(f"s_add_u32 s48, s48, {W_OX}")
    None if 'c' in tst else a(f"buffer_store_dwordx4 {q(YA)}, v5, s[40:43], s48 offen sc1")
    a("s_mov_b32 exec_hi, -1")
    a(f"s_cmp_ge_u32 s2, {NF}")
    a("s_cbranch_scc1 L_h4_nor2")
    if r2dep:
        a(f"s_mov_b32 s93, {didx(r2dep)}")
    a("s_lshl_b32 s48, s2, 7"); a(f"s_add_u32 s48, s48, {W_FL}")
    a("s_mov_b64 exec, 1")
    None if 'c' in tst else a(f"buffer_store_dword v{YA}, v15, s[40:43], s48 offen sc1")
    a("s_mov_b64 exec, -1")
    a("s_mul_i32 s48, s2, 7168"); a(f"s_add_u32 s48, s48, {W_OP}")
    for k in range(7):
        if k == 4:
            a("s_add_u32 s48, s48, 4096")
        None if 'c' in tst else a(f"buffer_store_dwordx4 {q(YA)}, v5, s[40:43], s48 offen offset:{(k&3)*1024} sc1")
    a("L_h4_nor2:")
    a(f"s_sub_u32 s48, s2, {R1LO}")
    a("s_cmp_lt_u32 s48, 56")
    a("s_cbranch_scc0 L_h4_nor1")
    a("s_lshl_b32 s48, s48, 7"); a(f"s_add_u32 s48, s48, {W_HB}")
    a("v_lshrrev_b32 v6, 3, v0"); a("v_mul_u32_u24 v6, 7168, v6"); a("v_and_b32 v7, 7, v0"); a("v_lshl_add_u32 v6, v7, 4, v6")
    a(f"buffer_store_dwordx4 {q(YA)}, v6, s[40:43], s48 offen sc1")
    a("L_h4_nor1:")
    a("s_waitcnt vmcnt(0)")
    set_depth("s93")
    if atomt:
        a(f"s_and_b32 s49, s2, {atomt - 1}"); a(f"s_add_u32 s49, s49, {max(clrt, 16)}")
        lds_wait_ge(F_FILL, "s48", "s49", 6, sleep=8)
    if 'a' not in tst and not patom:
        a("s_mov_b32 s48, 1")
        a("s_atomic_add s48, s[24:25], 0")
        a("s_waitcnt lgkmcnt(0)")
    sched = [t for t, _ in fbr]
    if use_fb:
        call_setup("L_fb", True)
    if vpre:
        a("; first touch of this workgroup's V pages through the scalar path, ahead of the stream")
        a("s_lshl_b32 s48, s31, 22"); a("s_lshl_b32 s49, s29, 20"); a("s_add_u32 s48, s48, s49")
        a("s_add_u32 s96, s8, s48"); a("s_addc_u32 s97, s9, 0")
        lds_wait_ge(F_FILL, "s48", vpre, 6, sleep=8)
        a("s_load_dword s48, s[96:97], 0")
        a("s_waitcnt lgkmcnt(0)")
    for t in [t for t in sched if t < 128]:
        fb_call(t)
    a("v_lshlrev_b32 v9, 3, v0"); a(f"v_add_u32 v9, {L_ML}, v9")
    lds_wait_ge(F_MLCNT, "s48", 2, 6, sleep=8)
    a("s_mov_b64 exec, 3")
    a("ds_read_b64 v[6:7], v9")
    a("s_lshl_b32 s48, s31, 2"); a("s_add_u32 s48, s48, s29"); a("s_lshl_b32 s48, s48, 5"); a(f"s_add_u32 s48, s48, {W_ML}")
    a("s_waitcnt lgkmcnt(0)")
    a(f"v_mov_b32 v{YA}, v6"); a(f"v_mov_b32 v{YA+1}, s62"); a(f"v_mov_b32 v{YA+2}, v7"); a(f"v_mov_b32 v{YA+3}, s62")
    None if 'm' in tst else a(f"buffer_store_dwordx4 {q(YA)}, v5, s[40:43], s48 offen sc1")
    a("s_mov_b64 exec, -1")
    if not patom:
        count_check()
    for t in [t for t in sched if 128 <= t <= mlt]:
        fb_call(t)
    lds_wait_ge(F_FILL, "s48", mlt, 6, sleep=8)
    a("v_and_b32 v8, 7, v0"); a("v_lshlrev_b32 v9, 4, v8")
    a("s_lshl_b32 s61, s31, 7"); a(f"s_add_u32 s61, s61, {W_ML}")
    bound_init(1 << 17)
    a("L_mlpoll:")
    if 'm' in tst:
        a("s_branch L_mlgot")
    a(f"buffer_load_dwordx4 {q(YA+4)}, v9, s[40:43], s61 offen sc1")
    a("s_waitcnt vmcnt(0)")
    a(f"v_cmp_ne_u32 vcc, s62, v{YA+5}"); a(f"v_cmp_ne_u32 s[48:49], s62, v{YA+7}")
    a("s_or_b64 vcc, vcc, s[48:49]")
    a("s_cbranch_scc0 L_mlgot")
    a("s_sleep 24")
    bound_loop("L_mlpoll")
    a("L_mlgot:")
    a(f"v_mov_b32 v10, v{YA+4}")
    for d in ("row_ror:4", "row_ror:2", "row_ror:1"):
        a("s_nop 1")
        a(f"v_max_f32_dpp v10, v10, v10 {d} row_mask:0xf bank_mask:0xf")
    a(f"v_sub_f32 v6, v{YA+4}, v10"); a(f"v_mul_f32 v6, {LOG2E_16:#x}, v6"); a("v_exp_f32 v6, v6"); a("s_nop 0")
    a(f"v_mul_f32 v7, v6, v{YA+6}")
    for d in ("row_ror:4", "row_ror:2", "row_ror:1"):
        a("s_nop 1")
        a(f"v_add_f32_dpp v7, v7, v7 {d} row_mask:0xf bank_mask:0xf")
    a("v_rcp_f32 v7, v7"); a("v_lshrrev_b32 v9, 1, v0"); a("v_and_b32 v8, 1, v0")
    a("v_mul_f32 v6, v6, v7")
    a("v_lshlrev_b32 v8, 2, v8"); a(f"v_add_u32 v8, {L_F}, v8")
    a("v_cmp_eq_u32 vcc, s29, v9")
    a("s_mov_b64 exec, vcc")
    a("ds_write_b32 v8, v6")
    a("s_mov_b64 exec, -1")
    if patom:
        a("; the four workgroups of this pair published after emptying their hand-off words: quarter 0 counts them")
        a("s_cmp_lg_u32 s29, 0"); a("s_cbranch_scc1 L_noadd")
        a("s_mov_b32 s48, 4"); a("s_atomic_add s48, s[24:25], 0"); a("s_waitcnt lgkmcnt(0)")
        a("L_noadd:")
        for t in [t for t in sched if mlt < t <= chkt]:
            fb_call(t)
        lds_wait_ge(F_FILL, "s48", chkt, 6, sleep=8)
        count_check()
    a("v_mov_b32 v6, 1")
    a("s_waitcnt lgkmcnt(0)")
    a(f"ds_write_b32 v14, v6 offset:{F_FOK-M0_}")
    for t in [t for t in sched if t > (chkt if patom else mlt)]:
        fb_call(t)
    if endt:
        lds_wait_ge(F_FILL, "s48", endt, 6, sleep=2)
        set_depth(didx(endd))
    a("s_branch L_done")
    if use_fb:
        a("; the arrival rank of this workgroup at tile s50 within its group selects the loader depth")
        a("L_fb:")
        lds_wait_ge(F_FILL, "s48", "s50", 6, sleep=fbsl)
        if fbm == 'ls':
            a("s_lshl_b32 s49, s62, 10"); a("s_add_u32 s49, s49, s50"); a("v_mov_b32 v7, s49")
            a("s_mov_b64 exec, 0xff")
            a(f"buffer_load_dword v6, v{FF}, s[40:43], s95 offen sc1")
            a("s_mov_b64 exec, 1")
            a("buffer_store_dword v7, v15, s[40:43], s94 offen sc1")
            a("s_mov_b64 exec, 0xff")
            a("s_waitcnt vmcnt(1)")
            a("v_subrev_u32 v6, s49, v6"); a("v_cmp_gt_u32 vcc, 0x100, v6")
            a("s_mov_b64 exec, -1")
            a("s_bcnt1_i32_b64 s48, vcc")
        elif fbm == 'none':
            a("s_mov_b32 s48, 3")
        else:
            a("s_mov_b32 s48, 1")
            a("s_atomic_add s48, s[94:95], 0 glc")
            a("s_waitcnt lgkmcnt(0)")
        if fbg > 8:
            a(f"s_lshr_b32 s48, s48, {(fbg // 8).bit_length() - 1}")
        a("s_min_u32 s48, s48, 7"); a("s_lshl_b32 s48, s48, 2"); a("s_lshr_b32 s93, s51, s48"); a("s_and_b32 s93, s93, 15")
        if lad:
            a("s_lshr_b32 s49, s92, s48"); a("s_and_b32 s49, s49, 15"); a("s_add_u32 s91, s91, s49"); a("s_sub_u32 s91, s91, 8")
            a("s_max_i32 s91, s91, 1"); a(f"s_min_i32 s91, s91, {len(lad)}")
            a("s_add_u32 s93, s93, s91"); a("s_sub_u32 s93, s93, 8")
            a("s_max_i32 s93, s93, 1"); a(f"s_min_i32 s93, s93, {len(lad)}")
        a("v_mov_b32 v6, s93")
        a(f"ds_write_b32 v14, v6 offset:{F_DEP-M0_}")
        if fbm != 'ls':
            a("s_add_u32 s94, s94, 256"); a("s_addc_u32 s95, s95, 0")
        a("s_setpc_b64 s[54:55]")

    a("L_ffn:")

    def flag(pos):
        if g3 == pos:
            a("s_cmp_lg_u32 s62, 3"); a("s_cbranch_scc1 L_nofl")
            a("s_mov_b64 exec, 1")
            a(f"buffer_store_dword v15, v15, s[40:43], s61 offen {stfl}")
            a("s_mov_b64 exec, -1")
            a("L_nofl:")
    a("v_lshlrev_b32 v5, 5, v0")
    a(f"s_and_b32 s48, s2, {nrep-1}"); a("s_mul_i32 s48, s48, 7168"); a("s_mul_i32 s49, s62, 1792"); a("s_add_u32 s48, s48, s49")
    a(f"s_add_u32 s56, s48, {W_HB}"); a("s_add_u32 s57, s56, 16")
    X = T2
    a("v_lshlrev_b32 v8, 4, v0"); a("s_mul_i32 s48, s62, 960"); a(f"s_add_u32 s48, s48, {L_XN2}"); a("v_add_u32 v8, s48, v8")
    a("v_and_b32 v9, 3, v1"); a("v_mul_u32_u24 v10, 960, v9"); a("v_lshl_add_u32 v10, v2, 4, v10")
    a("s_and_b32 s48, s62, 1"); a("s_mul_i32 s48, s48, 448"); a(f"s_add_u32 s48, s48, {L_XN2}"); a("v_add_u32 v10, s48, v10")
    a("v_lshlrev_b32 v11, 6, v9"); a("v_lshl_add_u32 v11, v2, 4, v11"); a(f"v_add_u32 v11, {L_GU}, v11")
    a("s_lshl_b32 s48, s62, 9"); a("v_add_u32 v12, s48, v11")
    a(f"v_mul_u32_u24 v13, {14*7168}, v9"); a("v_bfe_u32 v6, v1, 2, 1"); a("v_lshl_add_u32 v13, v6, 6, v13"); a("v_lshl_add_u32 v13, v2, 4, v13")
    a("v_cmp_eq_u32 s[46:47], 0, v6"); a("v_mov_b32 v7, v13")
    a("s_lshl_b32 s58, s59, 7"); a(f"s_mul_i32 s48, s62, {4*7168}"); a("s_add_u32 s58, s58, s48"); a(f"s_add_u32 s58, s58, {W_OP}")
    a("s_mov_b32 s44, -1"); a("s_mov_b32 s45, 0x00ffffff")
    if dry:
        a("; one pass over the code below with stores disabled and barriers skipped loads it into the instruction cache")
        a("s_mov_b32 s42, 0"); a("s_mov_b64 vcc, -1"); a("s_mov_b32 s61, 0")
        a("s_branch L_ffnbody")
        a("L_ffnreal:")
        a(f"s_mov_b32 s42, {WS_BYTES}"); a("s_mov_b64 vcc, 0"); a("s_mov_b64 exec, -1")
        a("v_mov_b32 v13, v7")
    lds_wait_ge(F_FOK, "s48", 1, 6, sleep=16)
    end_wait(NT)
    if g2:
        a(f"v_mul_u32_u24 v9, {4*1792}, v0")
        a(f"s_mul_i32 s61, s62, {64*1792}"); a("s_and_b32 s48, s2, 3"); a("s_mul_i32 s48, s48, 1792"); a("s_add_u32 s61, s61, s48")
        a("s_lshr_b32 s48, s2, 2"); a("s_lshl_b32 s48, s48, 7"); a("s_add_u32 s61, s61, s48")
        gate(9, "s61", 16, g2, 6)
    a("s_lshl_b32 s61, s2, 7"); a(f"s_add_u32 s61, s61, {W_FL}")
    poll_quads(X, 5, ["s56", "s57"], 6, execs=["s[44:45]"]*2, both=b2, pdep=pd[2])
    stamp(3)
    a("L_ffnbody:")
    layernorm(X, T, YA, fast=fastln)
    a("s_mov_b32 exec_hi, 0x00ffffff")
    a(f"ds_write_b128 v8, {q(YA)}")
    a("s_mov_b32 exec_hi, -1")
    a("s_waitcnt lgkmcnt(0)")
    if dry:
        a("s_cbranch_vccnz L_nb1x")
    a("s_barrier")
    a("L_nb1x:")
    for f in range(7):
        a(f"ds_read_b128 {q(T+4*f)}, v10 offset:{f*64}")
    flag(1)
    for f in range(7):
        a(f"s_waitcnt lgkmcnt({6-f})")
        a(f"v_mfma_f32_16x16x32_bf16 {q(ACC)}, {q(FF+8*f)}, {q(T+4*f)}, {q(ACC) if f else 0}")
        a(f"v_mfma_f32_16x16x32_bf16 {q(ACA)}, {q(FF+8*f+4)}, {q(T+4*f)}, {q(ACA) if f else 0}")
    flag(2)
    a("s_nop 6")
    a(f"ds_write_b128 v12, {q(ACC)}")
    a(f"ds_write_b128 v12, {q(ACA)} offset:256")
    a("s_waitcnt lgkmcnt(0)")
    if dry:
        a("s_cbranch_vccnz L_nb2x")
    a("s_barrier")
    a("L_nb2x:")
    G0 = T
    for ft in range(2):
        for p in range(4):
            a(f"ds_read_b128 {q(G0+16*ft+4*p)}, v11 offset:{p*512+ft*256}")
    flag(3)
    for ft in range(2):
        B = G0 + 16*ft
        a(f"s_waitcnt lgkmcnt({6-4*ft})")
        a(f"v_pk_add_f32 {q(B,2)}, {q(B,2)}, {q(B+4,2)}"); a(f"v_pk_add_f32 {q(B+2,2)}, {q(B+2,2)}, {q(B+6,2)}")
        a(f"s_waitcnt lgkmcnt({4-4*ft})")
        a(f"v_pk_add_f32 {q(B+8,2)}, {q(B+8,2)}, {q(B+12,2)}"); a(f"v_pk_add_f32 {q(B+10,2)}, {q(B+10,2)}, {q(B+14,2)}")
        for r in range(4):
            a(f"v_cvt_pk_bf16_f32 v{B+4+r}, v{B+r}, v{B+8+r}")
        for r in range(4):
            a(f"v_lshlrev_b32 v{B+r}, 16, v{B+4+r}"); a(f"v_and_b32 v{B+4+r}, 0xffff0000, v{B+4+r}")
        a(f"v_pk_mul_f32 {q(B,2)}, {q(B,2)}, {q(B+4,2)}"); a(f"v_pk_mul_f32 {q(B+2,2)}, {q(B+2,2)}, {q(B+6,2)}")
        a(f"v_cvt_pk_bf16_f32 v{YA+2*ft}, v{B}, v{B+1}"); a(f"v_cvt_pk_bf16_f32 v{YA+2*ft+1}, v{B+2}, v{B+3}")
    flag(4)
    for d in range(4):
        a(f"v_cndmask_b32 v{YA+4+d}, 0, v{YA+d}, s[46:47]")
    for d in range(4):
        a(f"v_cndmask_b32 v{YA+8+d}, v{YA+d}, 0, s[46:47]")
    for pr in range(4):
        a(f"v_mfma_f32_16x16x32_bf16 {q(T+4*pr)}, {q(QA+8*pr)}, {q(YA+4)}, 0")
        if pr == 0:
            a("s_nop 0")
    for pr in range(4):
        a(f"v_mfma_f32_16x16x32_bf16 {q(T+4*pr)}, {q(QA+8*pr+4)}, {q(YA+8)}, {q(T+4*pr)}")
    a("s_mov_b32 exec_lo, 0x00ff00ff"); a("s_mov_b32 exec_hi, 0x00ff00ff")
    a("s_cmp_eq_u32 s62, 3")
    a("s_nop 1")
    for pr in range(4):
        if pr == 2:
            a("s_cbranch_scc1 L_opdone")
        a(f"buffer_store_dwordx4 {q(T+4*pr)}, v13, s[40:43], s58 offen {stfl}")
        if pr < 3:
            a("v_add_u32 v13, 7168, v13")
    a("L_opdone:")
    if dry:
        a("s_cbranch_vccnz L_ffnreal")
    a("s_mov_b64 exec, -1")
    stamp(4)
    if diag:
        a("s_waitcnt vmcnt(0)")
        stamp(5)
    a("s_branch L_done")

    a("L_r1:")
    a(f"s_sub_u32 s48, s2, {R1LO}")
    a("s_cmp_lt_u32 s48, 56")
    a("s_cbranch_scc0 L_done")
    a("s_mul_i32 s58, s48, 4682"); a("s_lshr_b32 s58, s58, 16"); a("s_mul_i32 s49, s58, 14"); a("s_sub_u32 s59, s48, s49")
    a("s_lshl_b32 s56, s48, 7")
    a("v_lshrrev_b32 v5, 3, v0"); a("v_and_b32 v6, 7, v0"); a("v_lshlrev_b32 v9, 4, v6")
    a("v_mul_u32_u24 v7, 1792, v5"); a("v_add_u32 v7, v7, v9")
    a("v_lshl_add_u32 v8, v5, 7, v9")
    a("v_lshl_add_u32 v10, v2, 3, v6"); a("v_lshlrev_b32 v10, 4, v10"); a("s_lshl_b32 s49, s62, 2"); a(f"s_add_u32 s49, s49, {L_RB}"); a("v_add_u32 v10, s49, v10")
    a("v_and_b32 v4, 31, v0"); a("v_lshlrev_b32 v9, 4, v4"); a(f"v_add_u32 v9, {L_RB}, v9")
    a("v_lshrrev_b32 v12, 3, v4"); a("v_lshl_add_u32 v12, v6, 2, v12"); a("v_lshlrev_b32 v12, 1, v12")
    a("s_lshr_b32 s61, s56, 1")
    a("buffer_load_ushort v11, v12, s[32:35], s61 offen")
    a("v_mul_u32_u24 v13, 7168, v3"); a("v_lshl_add_u32 v13, v4, 2, v13")
    a(f"s_mul_i32 s57, s62, {2*7168}"); a("s_add_u32 s57, s57, s56"); a(f"s_add_u32 s57, s57, {W_HB}")
    a(f"s_mul_i32 s44, s58, {64*1792}"); a("s_lshl_b32 s49, s59, 7"); a("s_add_u32 s44, s44, s49")
    a(f"s_mul_i32 s49, s62, {16*1792}"); a("s_add_u32 s44, s44, s49"); a(f"s_add_u32 s45, s44, {8*1792}")
    a("s_mul_i32 s46, s48, 7168"); a(f"s_mul_i32 s49, s62, {14*128}"); a("s_add_u32 s46, s46, s49"); a(f"s_add_u32 s46, s46, {W_OP}"); a("s_add_u32 s47, s46, 1024")
    a("s_lshl_b32 s60, s48, 7"); a(f"s_add_u32 s60, s60, {W_FL}")
    a("s_mov_b32 s36, -1"); a("s_mov_b32 s37, 0xffff")
    for r in range(4):
        a(f"v_mov_b32 v{T+4+r}, 0")
    a("s_waitcnt vmcnt(0)")
    a("v_lshlrev_b32 v11, 16, v11")
    srd(32, 22, 3584)
    if dry1:
        a("s_mov_b32 s42, 0"); a("s_mov_b32 s34, 0"); a("s_mov_b64 vcc, -1"); a("v_mov_b32 v5, v11")
        a("s_branch L_r1body")
        a("L_r1real:")
        a(f"s_mov_b32 s42, {WS_BYTES}"); a("s_mov_b32 s34, 3584"); a("s_mov_b64 vcc, 0"); a("s_mov_b64 exec, -1"); a("v_mov_b32 v11, v5")
    lds_wait_ge(F_FOK, "s48", 1, 6, sleep=16)
    end_wait(NT)
    if g1:
        a("v_mul_u32_u24 v4, 1792, v0")
        gate(4, "s44", g1n, g1, 6)
    poll_quads(T2, 7, ["s44", "s45"], 6, both=first2, pdep=pd[1])
    stamp(3)

    def sum2(R, off):
        a(f"v_pk_add_f32 {q(YA,2)}, {q(R,2)}, {q(R+4,2)}"); a(f"v_pk_add_f32 {q(YA+2,2)}, {q(R+2,2)}, {q(R+6,2)}")
        a("s_nop 1")
        a(f"v_permlane16_swap_b32 v{YA}, v{YA+1}")
        a(f"v_permlane16_swap_b32 v{YA+2}, v{YA+3}")
        a(f"v_add_f32 v{YA}, v{YA}, v{YA+1}")
        a(f"v_add_f32 v{YA+2}, v{YA+2}, v{YA+3}")
        a("s_nop 1")
        a(f"v_permlane32_swap_b32 v{YA}, v{YA+2}")
        a(f"v_add_f32 v{YA}, v{YA}, v{YA+2}")
        a("s_nop 1")
        a(f"v_add_f32_dpp v{YA}, v{YA}, v{YA} row_ror:8 row_mask:0xf bank_mask:0xf")
        a(f"ds_write_b32 v10, v{YA} offset:{off}")
        a("s_waitcnt lgkmcnt(0)")
        if dry1:
            a(f"s_cbranch_vccnz L_rb{off}")
        a("s_barrier")
        a(f"L_rb{off}:")
        a(f"ds_read_b128 {q(YA)}, v9 offset:{off}")
        a("s_waitcnt lgkmcnt(0)")
        a(f"v_pk_add_f32 {q(YA,2)}, {q(YA,2)}, {q(YA+2,2)}")
        a(f"v_add_f32 v{YA}, v{YA}, v{YA+1}")
        bf16r(YA, YA)
        a(f"v_add_f32 v11, v11, v{YA}")
    a("L_r1body:")
    sum2(T2, 0)
    bf16r(11, 11)
    a(f"buffer_store_dword v11, v13, s[40:43], s57 offen {stfl}")
    stamp(4)
    if dry1:
        a("s_cbranch_vccnz L_r3body")
    if g3:
        gate(15, "s60", 1, 1, 6)
    poll_quads(T, 8, ["s46", "s47"], 6, execs=["-1", "s[36:37]"], both=b3, pdep=pd[3])
    stamp(5)
    a("L_r3body:")
    sum2(T, 512)
    a("v_cvt_pk_bf16_f32 v11, v11, v11")
    a("s_lshl_b32 s48, s62, 3"); a("s_lshl_b32 exec_lo, 0xff, s48"); a("s_mov_b32 exec_hi, 0")
    a("buffer_store_short v11, v12, s[32:35], s61 offen")
    if dry1:
        a("s_cbranch_vccnz L_r1real")
    a("s_mov_b64 exec, -1")
    stamp(6)
    a("L_done:")
    if padto:
        a("s_cmp_lg_u32 s2, 248"); a("s_cbranch_scc1 L_nopad"); a("s_cmp_lg_u32 s3, 7"); a("s_cbranch_scc1 L_nopad")
        a(f"s_add_u32 s98, s98, {padto*100}")
        a("L_pad:"); a("s_sleep 4"); a("s_memrealtime s[96:97]"); a("s_waitcnt lgkmcnt(0)"); a("s_cmp_lt_u32 s96, s98"); a("s_cbranch_scc1 L_pad")
        a("L_nopad:")
    finish()

    if not ldfirst:
        emit_loader()

    if diag:
        a("L_stamps:")
        a("v_mov_b32 v4, 0")
        for k in range(8):
            a(f"v_writelane_b32 v4, s{64+2*k}, {k}")
        a("s_getreg_b32 s48, hwreg(HW_REG_XCC_ID, 0, 4)")
        a("v_writelane_b32 v4, s48, 8")
        a("v_writelane_b32 v4, s63, 9")
        a("v_lshlrev_b32 v5, 2, v0")
        a("s_lshl_b32 s48, s2, 3"); a("s_add_u32 s48, s48, s3"); a("s_lshl_b32 s48, s48, 6"); a(f"s_add_u32 s48, s48, {W_ST}")
        a("s_mov_b64 exec, 0xffff")
        a("buffer_store_dword v4, v5, s[40:43], s48 offen")
    a("L_exit:")
    a("s_endpgm")
    a('.section .rodata,"a"')
    a(".p2align 6")
    a(f".amdhsa_kernel {KNAME}")
    a("  .amdhsa_next_free_vgpr 240")
    a("  .amdhsa_next_free_sgpr 100")
    a("  .amdhsa_accum_offset 240")
    a("  .amdhsa_group_segment_fixed_size 0")
    a("  .amdhsa_kernarg_size 96")
    a("  .amdhsa_user_sgpr_count 2")
    a("  .amdhsa_user_sgpr_kernarg_segment_ptr 1")
    a("  .amdhsa_system_sgpr_workgroup_id_x 1")
    a("  .amdhsa_float_denorm_mode_32 3")
    a(".end_amdhsa_kernel")
    out = []
    for x in L:
        if x is None:
            continue
        if x.endswith(":") or x.startswith((";", ".")) or x.startswith("  ."):
            out.append(x)
        else:
            out.append("    " + x)
    return "\n".join(out) + "\n"


if __name__ == "__main__":
    kw = eval("dict(%s)" % (sys.argv[2] if len(sys.argv) > 2 else ""))
    open(sys.argv[1], "w").write(gen(**kw))
```

```python
import sys
KNAME = "sequential_preLN__mha_block_cached__glu_gated_bilinear__decode_kernel"

HEADER = """; Kernarg layout for this problem (96 bytes, ptrs only, base s[0:1]):
;
; hand-offs: workgroups 56-119 project 64 head dims of all batches through wo, workgroups 120-175 reduce the
; Hand-offs go through d_ws with agent-scope stores/loads; a word is valid once it differs from the all-ones
; pattern written earlier in the same launch, or once it carries this launch's tag."""

M0_ = 131072
F_FILL, F_CONS, F_QCNT, F_MLCNT, F_FOK, F_QOK, F_DEP, F_CB, F_CLR, F_PUB = (M0_ + o for o in (0, 4, 12, 16, 20, 24, 28, 32, 36, 40))
L_ML, L_F = M0_ + 64, M0_ + 80
L_XN = M0_ + 128
L_QP = M0_ + 1024
L_QB = M0_ + 4608
L_PB = M0_ + 5120
L_CB = M0_ + 9216
L_RB = M0_ + 10240
L_XN2 = M0_ + 14080
L_GU = M0_ + 17920
L_STG = M0_ + 19968
LDS_BYTES = M0_ + 28160
W_YP = 0
W_OP = 0x70000
W_OX = 0xD2000
W_HB = 0xF2000
W_ML = 0x100000
W_QX = 0x110000
W_EP = 0x120000
W_FL = 0x128000
W_FB = 0x130000
W_ST = 0x280000
WS_BYTES = 0x300000
SEL, SB, ACC, ACA, YA, QA, T, WL, FF = 16, 24, 32, 36, 40, 56, 88, 120, 184
T2 = WL + 32
LOG2E_16 = 0x3db8aa3b
INV448 = 0x3b124925
EPS = 0x3727c5ac
NF, R0LO, R1LO = 56, 56, 120


def gen(depth=22, fbd=(18, 20, 24, 27, 32), fbt=(32, 96, 160, 192, 224), fbg=8, fbs=(144, 200, 232), fbmix=4,
        r2dep=0, wt0=32, wdt=1, gt0=24, gdt=1, nrep=8, pstag=5, psleep=0, barpos=7, krot=0,
        diag=False, spin_bound=True, nowo=False, noffn=False, mlt=144, boost=22, tpoll=255, r3sleep=0, g1=1, g2=0, g3=4, b3=False, b2=True, gsl=0, pdep=1, tst='', vpre=0, late=2, nlate=4, r2b=0, wide=True, sync='tmp', mmax=24, pmax=24, gap=0, xs=None, dpos=4, nbr=0, lsl=0, skip=0, msl=0, grp=1, doff=0, lpad=0, sites=(), endwait=False, lstamps=False, al=None, shift=0, outfl='', rsh=0, rmask=127, xl=7, perm=None, rsrc='w', padto=0, direct=251, dry0=False, dry1=False, trig='cb', g1n=16, gpair=False, pd=(2, 2, 1, 2), fastln=False, dry=True, patom=True, chkt=192, fbsl=4, csl=1, ldfirst=True, dummy=6, fbm='at', fbstr=256, lad=None, pi=None, r0dep=0, stt=((4, 224), (5, 240), (6, 248), (7, 192)), fbr=None, endt=0, endd=40, clrt=0, atomt=0, slowthr=0, slowsl=0, first2=False, stfl='sc1', ldfl='sc1', pret=False):
    if fbr is None:
        lv = sorted([depth] + list(fbd))
        ths = [th*8//256 for th in fbt]
        tab = tuple(lv[sum(r >= t for t in ths)] if fbd else depth for r in range(8))
        fbr = [(t, tab) for t in (fbs if fbd else ())]
    if lad:
        fbr = [(t, tuple(lad)) for t, _, _ in pi]
    depths = [boost, depth] if not lad else [boost]
    for _, tab in fbr:
        for d in tab:
            if d not in depths[1:]:
                depths.append(d)
    for d in ([endd] if endt else []) + [x for x in (r2dep, r0dep) if x]:
        if d not in depths[1:]:
            depths.append(d)
    didx = lambda d: depths.index(d, 1)
    use_fb = bool(fbr)
    NT = 254 if direct else 256
    tpoll = min(tpoll, NT - 1)
    L = []
    a = L.append
    uid = [0]

    def fb_call(t):
        tab = dict(fbr)[t]
        if lad:
            _, P, I = [x for x in pi if x[0] == t][0]
            a(f"s_mov_b32 s50, {t}"); a(f"s_mov_b32 s51, {sum((d + 8) << (4*r) for r, d in enumerate(P)):#x}")
            a(f"s_mov_b32 s92, {sum((d + 8) << (4*r) for r, d in enumerate(I)):#x}")
            a("s_swappc_b64 s[54:55], s[52:53]")
            return
        a(f"s_mov_b32 s50, {t}"); a(f"s_mov_b32 s51, {sum(didx(d) << (4*r) for r, d in enumerate(tab)):#x}")
        a("s_swappc_b64 s[54:55], s[52:53]")

    def lab(p):
        uid[0] += 1
        return f"L_{p}{uid[0]}"

    def q(r, n=4):
        return f"v[{r}:{r+n-1}]"

    def srd(r, p, nbytes):
        a(f"s_mov_b32 s{r}, s{p}")
        a(f"s_and_b32 s{r+1}, s{p+1}, 0xffff")
        a(f"s_mov_b32 s{r+2}, {nbytes}")
        a(f"s_mov_b32 s{r+3}, 0x20000")

    site = [0]

    def stamp(k):
        site[0] += 1
        if not diag and (sites == 'all' or site[0] in sites):
            a(f"; site {site[0]}")
            a(f"s_memrealtime s[{64+2*k}:{65+2*k}]")
            a("s_waitcnt lgkmcnt(0)")
        if diag:
            a(f"s_memrealtime s[{64+2*k}:{65+2*k}]")
            a("s_waitcnt lgkmcnt(0)")

    def finish():
        if endwait and not diag:
            a("s_waitcnt vmcnt(0)")
        a("s_branch L_stamps" if diag else "s_endpgm")

    def bound_init(n=1 << 20):
        if spin_bound:
            a(f"s_mov_b32 s63, {n}")

    def bound_loop(target):
        if spin_bound:
            a("s_sub_u32 s63, s63, 1")
            a(f"s_cbranch_scc0 {target}")
        else:
            a(f"s_branch {target}")

    def lds_wait_ge(off, sdst, cmp_operand, vt, sleep=1, precheck=False, vaddr=14):
        p, go = lab("poll"), lab("go")
        if precheck:
            a(f"s_cmp_ge_u32 {sdst}, {cmp_operand}")
            a(f"s_cbranch_scc1 {go}")
        bound_init()
        a(f"{p}:")
        a(f"ds_read_b32 v{vt}, v{vaddr} offset:{off - M0_}")
        a("s_waitcnt lgkmcnt(0)")
        a(f"v_readfirstlane_b32 {sdst}, v{vt}")
        a(f"s_cmp_ge_u32 {sdst}, {cmp_operand}")
        a(f"s_cbranch_scc1 {go}")
        if sleep:
            a(f"s_sleep {sleep}")
        bound_loop(p)
        a(f"{go}:")

    def call_setup(target, fwd):
        l0 = lab("pc")
        a("s_getpc_b64 s[52:53]")
        a(f"{l0}:")
        if fwd:
            a(f"s_add_u32 s52, s52, {target}-{l0}"); a("s_addc_u32 s53, s53, 0")
        else:
            a(f"s_sub_u32 s52, s52, {l0}-{target}"); a("s_subb_u32 s53, s53, 0")

    def call():
        a("s_swappc_b64 s[54:55], s[52:53]")

    def call_woperm():
        l0, l1 = lab("wr"), lab("wr")
        a("s_getpc_b64 s[54:55]")
        a(f"{l0}:")
        a(f"s_add_u32 s54, s54, {l1}-{l0}"); a("s_addc_u32 s55, s55, 0")
        a("s_branch L_woperm")
        a(f"{l1}:")

    DPPS = [("row_ror:8", 0xf), ("row_ror:4", 0xf), ("row_ror:2", 0xf), ("row_ror:1", 0xf),
            ("row_bcast:15", 0xa), ("row_bcast:31", 0xc)]

    def wave_red(op, v, sdst):
        for d, m in DPPS:
            a("s_nop 1")
            a(f"{op}_dpp v{v}, v{v}, v{v} {d} row_mask:{m:#x} bank_mask:0xf")
        a("s_nop 0")
        a(f"v_readlane_b32 {sdst}, v{v}, 63")
        a("s_nop 1")

    def bf16r(dst, src):
        a(f"v_cvt_pk_bf16_f32 v{dst}, v{src}, v{src}")
        a(f"v_and_b32 v{dst}, 0xffff0000, v{dst}")

    def layernorm(X, t, out, fast=False):
        D, s1, s2, u = t, t + 8, t + 10, t + 12
        a(f"v_readfirstlane_b32 s48, v{X}")
        a(f"v_mov_b32 v{s1}, 0"); a(f"v_mov_b32 v{s2}, 0")
        a("s_mov_b32 exec_hi, 0x00ffffff")
        for e in range(0, 8, 2):
            a(f"v_pk_add_f32 {q(D+e,2)}, {q(X+e,2)}, s[48:49] op_sel_hi:[1,0] neg_lo:[0,1] neg_hi:[0,1]")
        a(f"v_pk_add_f32 {q(u,2)}, {q(D,2)}, {q(D+2,2)}")
        a(f"v_pk_mul_f32 {q(s2,2)}, {q(D,2)}, {q(D,2)}")
        a(f"v_pk_add_f32 {q(s1,2)}, {q(D+4,2)}, {q(D+6,2)}")
        a(f"v_pk_fma_f32 {q(s2,2)}, {q(D+2,2)}, {q(D+2,2)}, {q(s2,2)}")
        a(f"v_pk_add_f32 {q(s1,2)}, {q(s1,2)}, {q(u,2)}")
        a(f"v_pk_fma_f32 {q(s2,2)}, {q(D+4,2)}, {q(D+4,2)}, {q(s2,2)}")
        a(f"v_add_f32 v{s1}, v{s1}, v{s1+1}")
        a(f"v_pk_fma_f32 {q(s2,2)}, {q(D+6,2)}, {q(D+6,2)}, {q(s2,2)}")
        a(f"s_mov_b32 s49, {INV448:#x}")
        a(f"v_add_f32 v{s2}, v{s2}, v{s2+1}")
        a("s_mov_b32 exec_hi, -1")
        for d, m in DPPS:
            a("s_nop 0")
            a(f"v_add_f32_dpp v{s1}, v{s1}, v{s1} {d} row_mask:{m:#x} bank_mask:0xf")
            a(f"v_add_f32_dpp v{s2}, v{s2}, v{s2} {d} row_mask:{m:#x} bank_mask:0xf")
        a(f"v_mov_b32 v{u}, s49")
        a(f"v_readlane_b32 s50, v{s1}, 63")
        a(f"v_readlane_b32 s51, v{s2}, 63")
        a("s_nop 0")
        a(f"v_mul_f32 v{s1}, s50, v{u}")
        a(f"v_mul_f32 v{s2}, s51, v{u}")
        a(f"v_add_f32 v{u}, s48, v{s1}")
        a(f"v_fma_f32 v{s2}, -v{s1}, v{s1}, v{s2}")
        if fast:
            a(f"v_max_f32 v{s2}, 0, v{s2}")
            a(f"v_pk_add_f32 {q(D,2)}, {q(X,2)}, {q(u,2)} op_sel_hi:[1,0] neg_lo:[0,1] neg_hi:[0,1]")
            a(f"v_add_f32 v{s2}, {EPS:#x}, v{s2}")
            a(f"v_pk_add_f32 {q(D+2,2)}, {q(X+2,2)}, {q(u,2)} op_sel_hi:[1,0] neg_lo:[0,1] neg_hi:[0,1]")
            a(f"v_rsq_f32 v{s2}, v{s2}")
            a(f"v_pk_add_f32 {q(D+4,2)}, {q(X+4,2)}, {q(u,2)} op_sel_hi:[1,0] neg_lo:[0,1] neg_hi:[0,1]")
            a(f"v_pk_add_f32 {q(D+6,2)}, {q(X+6,2)}, {q(u,2)} op_sel_hi:[1,0] neg_lo:[0,1] neg_hi:[0,1]")
            for e in range(0, 8, 2):
                a(f"v_pk_mul_f32 {q(D+e,2)}, {q(D+e,2)}, {q(s2,2)} op_sel_hi:[1,0]")
            for d in range(4):
                a(f"v_cvt_pk_bf16_f32 v{out+d}, v{D+2*d}, v{D+2*d+1}")
            return
        a(f"v_cvt_pk_bf16_f32 v{u}, v{u}, v{u}")
        a(f"v_max_f32 v{s2}, 0, v{s2}")
        a(f"v_and_b32 v{u}, 0xffff0000, v{u}")
        a(f"v_cvt_pk_bf16_f32 v{s2}, v{s2}, v{s2}")
        a(f"v_pk_add_f32 {q(D,2)}, {q(X,2)}, {q(u,2)} op_sel_hi:[1,0] neg_lo:[0,1] neg_hi:[0,1]")
        a(f"v_and_b32 v{s2}, 0xffff0000, v{s2}")
        a(f"v_pk_add_f32 {q(D+2,2)}, {q(X+2,2)}, {q(u,2)} op_sel_hi:[1,0] neg_lo:[0,1] neg_hi:[0,1]")
        a(f"v_add_f32 v{s2}, {EPS:#x}, v{s2}")
        a(f"v_pk_add_f32 {q(D+4,2)}, {q(X+4,2)}, {q(u,2)} op_sel_hi:[1,0] neg_lo:[0,1] neg_hi:[0,1]")
        a(f"v_cvt_pk_bf16_f32 v{s2}, v{s2}, v{s2}")
        a(f"v_pk_add_f32 {q(D+6,2)}, {q(X+6,2)}, {q(u,2)} op_sel_hi:[1,0] neg_lo:[0,1] neg_hi:[0,1]")
        a(f"v_and_b32 v{s2}, 0xffff0000, v{s2}")
        a(f"v_cvt_pk_bf16_f32 v{out}, v{D}, v{D+1}")
        a(f"v_sqrt_f32 v{s2}, v{s2}")
        a(f"v_cvt_pk_bf16_f32 v{out+1}, v{D+2}, v{D+3}")
        a(f"v_cvt_pk_bf16_f32 v{s2}, v{s2}, v{s2}")
        a(f"v_cvt_pk_bf16_f32 v{out+2}, v{D+4}, v{D+5}")
        a(f"v_and_b32 v{s2}, 0xffff0000, v{s2}")
        a(f"v_cvt_pk_bf16_f32 v{out+3}, v{D+6}, v{D+7}")
        a(f"v_rcp_f32 v{s2}, v{s2}")
        for d in range(4):
            a(f"v_lshlrev_b32 v{D+2*d}, 16, v{out+d}"); a(f"v_and_b32 v{D+2*d+1}, 0xffff0000, v{out+d}")
        for e in range(0, 8, 2):
            a(f"v_pk_mul_f32 {q(D+e,2)}, {q(D+e,2)}, {q(s2,2)} op_sel_hi:[1,0]")
        for d in range(4):
            a(f"v_cvt_pk_bf16_f32 v{out+d}, v{D+2*d}, v{D+2*d+1}")

    def build_a(dst, psrc, n):
        for w in range(4):
            a(f"v_perm_b32 v{dst+w}, v{psrc + (n >> 1)}, v{psrc + (n >> 1)}, v{SEL + (n & 1)*4 + w}")

    def xreduce(V):
        a("s_nop 1")
        a(f"v_permlane16_swap_b32 v{V}, v{V+1}")
        a(f"v_permlane16_swap_b32 v{V+2}, v{V+3}")
        a(f"v_add_f32 v{V}, v{V}, v{V+1}")
        a(f"v_add_f32 v{V+2}, v{V+2}, v{V+3}")
        a("s_nop 1")
        a(f"v_permlane32_swap_b32 v{V}, v{V+2}")
        a(f"v_add_f32 v{V}, v{V}, v{V+2}")
        a("s_nop 1")
        a(f"v_add_f32_dpp v{V}, v{V}, v{V} row_ror:8 row_mask:0xf bank_mask:0xf")
        a("s_nop 1")
        a(f"v_add_f32_dpp v{V}, v{V}, v{V} row_ror:4 row_mask:0xf bank_mask:0xf")

    def poll_quads(R, voff, soffs, vt, execs=None, both=False, pdep=1):
        n = len(soffs)
        execs = execs or ["-1"] * n

        def batch(masked):
            for g in range(n):
                if masked:
                    a(f"s_or_b64 exec, s[{80+2*g}:{81+2*g}], 1")
                elif g == 0 or execs[g] != execs[g-1]:
                    a(f"s_mov_b64 exec, {execs[g]}")
                a(f"buffer_load_dwordx4 {q(R+4*g)}, v{voff}, s[40:43], {soffs[g]} offen {ldfl}")

        def check(extra, go):
            for g in range(n):
                if g == 0 or execs[g] != execs[g-1]:
                    a(f"s_mov_b64 exec, {execs[g]}")
                a(f"s_waitcnt vmcnt({extra + n-1-g})")
                a(f"v_max3_u32 v{vt}, v{R+4*g}, v{R+4*g+1}, v{R+4*g+2}")
                a(f"v_max_u32 v{vt}, v{vt}, v{R+4*g+3}")
                a(f"v_cmp_eq_u32 s[{80+2*g}:{81+2*g}], -1, v{vt}")
            a("s_or_b64 s[50:51], s[80:81], s[82:83]")
            for g in range(2, n):
                a(f"s_or_b64 s[50:51], s[50:51], s[{80+2*g}:{81+2*g}]")
            a(f"s_cbranch_scc0 {go}")
        p, go = lab("gp"), lab("gg")
        batch(False)
        if both:
            for _ in range(pdep - 1):
                a(f"s_sleep {pstag}")
                batch(False)
        else:
            check(0, go)
            batch(True)
            for _ in range(pdep - 1):
                a(f"s_sleep {pstag}")
                batch(True)
        bound_init(1 << 17)
        a(f"{p}:")
        check((pdep - 1) * n, go)
        if slowsl:
            sk = lab("fs")
            a("s_bcnt1_i32_b64 s48, s[50:51]"); a(f"s_cmp_le_u32 s48, {slowthr}"); a(f"s_cbranch_scc1 {sk}")
            a(f"s_sleep {slowsl}")
            a(f"{sk}:")
        if psleep:
            a(f"s_sleep {psleep}")
        batch(True)
        bound_loop(p)
        a(f"{go}:")
        a("s_mov_b64 exec, -1")

    def gate(voff, soff, nl, need, vt, tag=None):
        p, go = lab("wp"), lab("wg")
        bound_init(1 << 17)
        a(f"s_mov_b64 exec, {hex((1 << nl) - 1)}")
        a(f"{p}:")
        a(f"buffer_load_dword v{vt}, v{voff}, s[40:43], {soff} offen {ldfl}")
        a("s_waitcnt vmcnt(0)")
        a(f"v_cmp_ne_u32 s[50:51], -1, v{vt}" if tag is None else f"v_cmp_eq_u32 s[50:51], {tag}, v{vt}")
        a("s_bcnt1_i32_b64 s48, s[50:51]")
        a(f"s_cmp_ge_u32 s48, {need}")
        a(f"s_cbranch_scc1 {go}")
        if gsl:
            a(f"s_sleep {gsl}")
        bound_loop(p)
        a(f"{go}:")
        a("s_mov_b64 exec, -1")

    def end_wait(t):
        if trig == 'cb':
            lds_wait_ge(F_CB, "s48", 1, 6, sleep=4)
        else:
            lds_wait_ge(F_FILL, "s48", t, 6, sleep=4)

    def set_depth(src):
        a(f"v_mov_b32 v6, {src}")
        a(f"ds_write_b32 v14, v6 offset:{F_DEP-M0_}")

    def wo_load(k):
        ks, e = k >> 3, k & 7
        if nowo:
            return
        if (e & 3) == 0:
            a(f"s_mov_b32 s48, {(ks*32 + (e & 4))*896}")
        a(f"buffer_load_dwordx2 {q(WL+4*k,2)}, v4, s[36:39], s48 offen offset:{(e & 3)*896} nt")
        a(f"buffer_load_dwordx2 {q(WL+4*k+2,2)}, v4, s[36:39], s48 offen offset:{(e & 3)*896 + 128} nt")

    def wfrag(ks, t):
        return (T if ks == 0 else WL) + 4*t

    a(HEADER)
    a(f"; @launch grid=(256,1,1) block=(512,1,1) lds={LDS_BYTES}")
    a('.amdgcn_target "amdgcn-amd-amdhsa--gfx950"')
    a(".text")
    a(f".globl {KNAME}")
    a(".p2align 8")
    a(f".type {KNAME},@function")
    a(f"{KNAME}:")
    a("s_cmp_ge_u32 s2, 256")
    a("s_cbranch_scc1 L_exit")
    a("s_load_dwordx16 s[4:19], s[0:1], 0")
    a("s_load_dwordx8 s[20:27], s[0:1], 64")
    if diag:
        for k in range(16):
            a(f"s_mov_b32 s{64+k}, 0")
        a("s_memrealtime s[64:65]")
    if padto:
        a("s_memrealtime s[98:99]")
    a("v_lshrrev_b32 v1, 6, v0")
    a("v_and_b32 v0, 63, v0")
    a("v_readfirstlane_b32 s3, v1")
    if perm:
        a("s_mov_b32 s48, 0")
        for i, pb in enumerate(perm):
            a(f"s_bfe_u32 s49, s2, {(1 << 16) | i}"); a(f"s_lshl_b32 s49, s49, {pb}"); a("s_or_b32 s48, s48, s49")
        a("s_and_b32 s29, s48, 3"); a("s_lshr_b32 s28, s48, 2"); a("s_and_b32 s28, s28, 15"); a("s_lshr_b32 s30, s48, 6")
    elif xl == 2:
        a("s_and_b32 s28, s2, 7"); a("s_lshr_b32 s48, s2, 3"); a("s_and_b32 s49, s48, 1"); a("s_lshl_b32 s49, s49, 3")
        a("s_add_u32 s28, s28, s49")
        a("s_lshr_b32 s29, s48, 1"); a("s_and_b32 s29, s29, 3"); a("s_lshr_b32 s30, s48, 3")
    elif xl == 7:
        a("s_and_b32 s48, s2, 5"); a("s_lshl_b32 s48, s48, 1"); a("s_lshr_b32 s49, s2, 1"); a("s_and_b32 s49, s49, 5"); a("s_or_b32 s48, s48, s49")
        a("s_and_b32 s29, s48, 3"); a("s_and_b32 s49, s2, 0x30"); a("s_or_b32 s28, s48, s49"); a("s_lshr_b32 s28, s28, 2"); a("s_lshr_b32 s30, s2, 6")
    elif xl == 0:
        a("s_and_b32 s29, s2, 3"); a("s_lshr_b32 s28, s2, 2"); a("s_and_b32 s28, s28, 15"); a("s_lshr_b32 s30, s2, 6")
    elif xl == 4:
        a("s_and_b32 s28, s2, 15"); a("s_lshr_b32 s30, s2, 4"); a("s_and_b32 s30, s30, 3"); a("s_lshr_b32 s29, s2, 6")
    elif xl == 6:
        a("s_and_b32 s29, s2, 3"); a("s_lshr_b32 s48, s2, 2"); a("s_and_b32 s49, s48, 1"); a("s_lshl_b32 s49, s49, 3")
        a("s_lshr_b32 s30, s2, 3"); a("s_and_b32 s30, s30, 3"); a("s_lshr_b32 s28, s2, 5"); a("s_add_u32 s28, s28, s49")
    a("s_lshl_b32 s31, s30, 4"); a("s_add_u32 s31, s31, s28")
    a("v_and_b32 v1, 15, v0")
    a("v_lshrrev_b32 v2, 4, v0")
    a("v_lshrrev_b32 v3, 5, v0")
    def emit_loader():
        a("L_loader:")
        a("s_setprio 3")
        a("v_and_b32 v4, 31, v0"); a("v_xor_b32 v4, v4, v3"); a("v_lshlrev_b32 v4, 4, v4"); a("v_lshl_add_u32 v8, v3, 9, v4")
        for k in range(1, 8):
            a(f"v_xor_b32 v{8+k}, {k << 5}, v8")
        a("s_lshl_b32 s59, s31, 22"); a("s_lshl_b32 s49, s29, 20"); a("s_add_u32 s59, s59, s49")
        a("s_mov_b32 s56, 0"); a("s_mov_b32 s58, 0"); a("s_mov_b32 m0, 0")
        if krot:
            a("; both streams start at a workgroup-dependent tile and wrap around")
            a(f"s_lshr_b32 s60, s2, {rsh}"); a(f"s_mul_i32 s60, s60, {krot}"); a(f"s_and_b32 s60, s60, {rmask}"); a("s_lshl_b32 s60, s60, 13")
        else:
            a("s_mov_b32 s60, 0")
        a("s_mov_b32 s57, s60")
        a("s_mov_b32 s34, 0x100000"); a("s_mov_b32 s35, 0x20000")
        a(f"v_mov_b32 v24, {M0_}"); a(f"v_mov_b32 v17, {F_CONS + 4}")
        for r in range(4):
            a(f"v_mov_b32 v{20+r}, 0")
        a("ds_write_b128 v24, v[20:23]"); a("ds_write_b128 v24, v[20:23] offset:16"); a("ds_write_b128 v24, v[20:23] offset:32")
        a("s_waitcnt lgkmcnt(0)")
        if 'e' in tst:
            stamp(4)
        a("s_add_u32 s32, s6, s59"); a("s_addc_u32 s33, s7, 0"); a("s_and_b32 s33, s33, 0xffff")
        if diag:
            srd(40, 26, WS_BYTES)
        for di, dd in enumerate(depths):
            dd += doff
            waits = list(range(0, 8, grp))
            val = {k: (k - (dd - grp)) // 8 for k in waits}
            prev = {k: (val[k - grp] if k else val[waits[-1]] - 1) for k in waits}
            kpub = [k for k in waits if val[k] > prev[k]][0]
            lag = -val[kpub]
            a(f"L_ld{di}:")
            for k in range(8):
                if k == 4:
                    a("s_add_u32 m0, s56, 4096"); a("s_add_u32 s57, s57, 4096")
                    if msl:
                        a(f"s_sleep {msl}")
                if k == kpub:
                    a(f"s_sub_u32 s49, s58, {lag}"); a("s_max_i32 s49, s49, 0"); a("v_mov_b32 v19, s49")
                if k % grp == 0:
                    a(f"s_waitcnt vmcnt({dd-grp})")
                elif k == 4:
                    a("s_nop 0")
                a(f"buffer_load_dwordx4 v{8+k}, s[32:35], s57 offen offset:{(k&3)*1024} nt lds")
                if k == kpub:
                    a("ds_write_b32 v24, v19")
                if k == kpub and 'p' in sync and dd <= pmax:
                    a("s_waitcnt lgkmcnt(0)")
                if k == 6 and 't' not in sync:
                    a("ds_read_b32 v18, v17")
                if k == 6 and 'm' not in sync:
                    a(f"ds_read_b32 v25, v24 offset:{F_DEP-M0_}")
                if k == dpos - 1 and 'm' in sync:
                    a(f"ds_read_b32 v25, v24 offset:{F_DEP-M0_}")
                if k == (dpos - 1 if dd <= mmax else 7) and 'm' in sync:
                    a("s_waitcnt lgkmcnt(0)"); a("v_readfirstlane_b32 s50, v25")
                if xs:
                    for (dmax, kk, nn) in xs:
                        if dd <= dmax and k == kk:
                            a(f"s_nop {nn}")
                if gap:
                    a(f"s_nop {gap-1}")
                if di == 0 and k == barpos:
                    sk = lab("nb")
                    a("s_cmp_lg_u32 s58, 0"); a(f"s_cbranch_scc1 {sk}")
                    if 'e' in tst:
                        stamp(5)
                    a("s_barrier")
                    if 'e' in tst:
                        a("s_waitcnt vmcnt(7)"); stamp(6)
                    a(f"{sk}:")
            if di + 1 < len(depths):
                a("s_branch L_lnext")
        a("L_lnext:")
        a("s_add_u32 s57, s57, 4096"); a("s_and_b32 s57, s57, 0xfffff")
        a("s_add_u32 s56, s56, 8192"); a("s_and_b32 s56, s56, 0x1ffff")
        a("s_add_u32 s58, s58, 1")
        if diag or lstamps:
            for kk, tt in stt:
                sk = lab("st")
                a(f"s_cmp_lg_u32 s58, {tt}"); a(f"s_cbranch_scc1 {sk}"); stamp(kk); a(f"{sk}:")
        for _ in range(lpad):
            a("s_nop 0")
        for _ in range(nbr):
            sk = lab("jb"); a(f"s_branch {sk}"); a(f"{sk}:")
        if lsl:
            a(f"s_sleep {lsl}")
        if skip:
            sk = lab("jb"); a(f"s_branch {sk}")
            for _ in range(skip):
                a("s_nop 0")
            a(f"{sk}:")
        a("s_cmp_lg_u32 s58, 128")
        a("s_cbranch_scc1 L_lnosw")
        a("s_add_u32 s32, s8, s59"); a("s_addc_u32 s33, s9, 0"); a("s_and_b32 s33, s33, 0xffff"); a("s_mov_b32 s57, s60")
        for k in range(8):
            a(f"v_lshlrev_b32 v{8+k}, 4, v0")
        stamp(1)
        a("L_lnosw:")
        a(f"s_cmp_ge_u32 s58, {NT}")
        a("s_cbranch_scc1 L_ldrain")
        a("s_lshr_b32 s49, s58, 1"); a("s_sub_u32 s49, s49, 7")
        p, go = lab("fp"), lab("fg")
        if 't' not in sync or 'm' not in sync:
            a("s_waitcnt lgkmcnt(0)")
        if 'm' not in sync:
            a("v_readfirstlane_b32 s50, v25")
        if 't' not in sync:
            a("v_readfirstlane_b32 s48, v18")
            a("s_cmp_ge_i32 s48, s49")
            a(f"s_cbranch_scc1 {go}")
        bound_init()
        a(f"{p}:")
        a("ds_read_b32 v18, v17"); a("s_waitcnt lgkmcnt(0)"); a("v_readfirstlane_b32 s48, v18")
        a("s_cmp_ge_i32 s48, s49")
        a(f"s_cbranch_scc1 {go}")
        a("s_sleep 1")
        bound_loop(p)
        a(f"{go}:")
        a("v_xor_b32 v17, 12, v17")
        a("s_mov_b32 m0, s56")
        for di in range(1, len(depths)):
            a(f"s_cmp_eq_u32 s50, {di}"); a(f"s_cbranch_scc1 L_ld{di}")
        a("s_branch L_ld0")
        a("L_ldrain:")
        stamp(2)
        for c in range(NT - (max(depths) + doff + 6) // 8, NT + 1):
            a(f"v_mov_b32 v19, {c}")
            a(f"s_waitcnt vmcnt({8*(NT-c)})")
            a("ds_write_b32 v24, v19")
        a("s_waitcnt lgkmcnt(0)")
        stamp(3)
        finish()


    if ldfirst:
        a("s_cmp_lg_u32 s3, 0")
        a("s_cbranch_scc1 L_worker")
        emit_loader()
        a("L_worker:")
    else:
        a("s_cmp_eq_u32 s3, 0")
        a("s_cbranch_scc1 L_loader")

    a("s_sub_u32 s60, s3, 1")
    a("v_lshlrev_b32 v5, 4, v0")
    a("s_mul_i32 s48, s30, 896")
    a("v_add_u32 v5, s48, v5")
    a("v_mov_b32 v6, 0x7fffff00")
    a("v_cmp_gt_u32 vcc, 56, v0")
    a("v_and_b32 v4, 7, v0")
    a("v_lshlrev_b32 v4, 4, v4")
    a("v_cndmask_b32 v5, v6, v5, vcc")
    a("v_lshrrev_b32 v13, 3, v0")
    a("v_lshl_add_u32 v4, v13, 16, v4")
    a("s_lshl_b32 s48, s60, 19"); a("s_lshl_b32 s49, s28, 9"); a("s_add_u32 s48, s48, s49")
    a("s_lshl_b32 s49, s29, 7"); a("s_add_u32 s48, s48, s49")
    a("v_add_u32 v4, s48, v4")
    a("s_waitcnt lgkmcnt(0)")
    srd(32, 4, 3584)
    srd(36, 10, 3670016)
    a(f"buffer_load_dwordx4 {q(YA)}, v5, s[32:35], 0 offen")
    a(f"s_add_u32 s48, s26, {W_EP}"); a("s_addc_u32 s49, s27, 0")
    a("s_load_dword s62, s[48:49], 0")
    a("v_mov_b32 v15, 0")
    a("s_barrier")
    a("s_mov_b32 s50, 0")
    for n in range(8):
        a(f"buffer_load_dwordx4 {q(QA+4*n)}, v4, s[36:39], s50 offen nt") if 'w' not in tst else a(f"buffer_load_dword v{QA+4*n}, v15, s[32:35], 0 offen")
        if n < 7:
            a("s_add_u32 s50, s50, 8192")
    srd(40, 26, WS_BYTES)
    for r in range(4):
        a(f"v_mov_b32 v{ACA+r}, -1")
    a("s_lshl_b32 s48, s2, 2"); a("s_add_u32 s48, s48, s3"); a("s_sub_u32 s48, s48, 4"); a("s_lshl_b32 s48, s48, 10")
    a("s_cmp_ge_u32 s3, 4"); a(f"s_cselect_b32 s48, s48, {WS_BYTES}")
    a("v_lshlrev_b32 v6, 4, v0")
    a(f"buffer_store_dwordx4 {q(ACA)}, v6, s[40:43], s48 offen sc1")
    a("v_and_b32 v6, 1, v1"); a("v_cmp_eq_u32 vcc, 1, v6")
    a("v_mov_b32 v7, 0x0c0c0100"); a("v_mov_b32 v8, 0x01000c0c"); a("v_mov_b32 v9, 0x0c0c0302"); a("v_mov_b32 v10, 0x03020c0c")
    a("v_cndmask_b32 v7, v7, v8, vcc"); a("v_cndmask_b32 v9, v9, v10, vcc")
    a("v_bfe_u32 v6, v1, 1, 2"); a("v_mov_b32 v10, 0x0c0c0c0c")
    for w in range(4):
        a(f"v_cmp_eq_u32 vcc, {w}, v6"); a("s_nop 1")
        a(f"v_cndmask_b32 v{SEL+w}, v10, v7, vcc"); a(f"v_cndmask_b32 v{SEL+4+w}, v10, v9, vcc")
    a("v_mov_b32 v15, 0")
    a(f"v_mov_b32 v14, {M0_}")
    a(f"v_lshlrev_b32 v8, 4, v0"); a(f"v_add_u32 v8, {L_XN}, v8")
    a("s_lshl_b32 s48, s60, 7"); a(f"s_add_u32 s48, s48, {L_XN}")
    a("v_lshl_add_u32 v9, v13, 4, s48")
    a("v_lshrrev_b32 v6, 1, v2"); a("v_lshlrev_b32 v6, 8, v6"); a("v_and_b32 v7, 7, v1"); a("v_lshl_add_u32 v6, v7, 5, v6")
    a("v_and_b32 v7, 1, v2"); a("v_lshl_add_u32 v6, v7, 4, v6")
    a("s_lshl_b32 s48, s60, 9"); a(f"s_add_u32 s48, s48, {L_QP}")
    a("v_add_u32 v6, s48, v6")
    a("v_mov_b32 v7, 1")
    a("s_waitcnt vmcnt(9)")
    for d in range(4):
        a(f"v_lshlrev_b32 v{T+2*d}, 16, v{YA+d}"); a(f"v_and_b32 v{T+2*d+1}, 0xffff0000, v{YA+d}")
    layernorm(T, T + 8, YA)
    a("s_mov_b32 exec_hi, 0x00ffffff")
    a(f"ds_write_b128 v8, {q(YA)}")
    a("s_mov_b32 exec_hi, -1")
    a("s_waitcnt lgkmcnt(0)")
    a(f"ds_read_b128 {q(YA)}, v9")
    stamp(1)
    a("s_waitcnt lgkmcnt(0)")
    for n in range(8):
        build_a(T + 4*n, YA, n)
    for n in range(8):
        a(f"s_waitcnt vmcnt({8-n})")
        a(f"v_mfma_f32_16x16x32_bf16 {q(ACC)}, {q(T+4*n)}, {q(QA+4*n)}, {q(ACC) if n else 0}")
    a("s_mov_b32 exec_lo, 0x00ff00ff"); a("s_mov_b32 exec_hi, 0xff00ff00")
    a("s_nop 5")
    a(f"ds_write_b128 v6, {q(ACC)}")
    a("s_waitcnt lgkmcnt(0)")
    a("s_mov_b64 exec, 1")
    a(f"ds_add_u32 v14, v7 offset:{F_QCNT-M0_}")
    a("s_waitcnt vmcnt(0)")
    a(f"ds_add_u32 v14, v7 offset:{F_CLR-M0_}")
    a("s_add_u32 s91, s62, 1")
    a("s_mov_b64 exec, -1")
    stamp(2)
    a("s_cmp_eq_u32 s3, 3")
    a("s_cbranch_scc1 L_h4")
    a("s_cmp_gt_u32 s3, 3")
    a("s_cbranch_scc1 L_helper")

    a("v_and_b32 v6, 1, v2"); a("v_lshrrev_b32 v8, 3, v1"); a("v_cmp_eq_u32 vcc, v6, v8"); a("s_nop 1")
    for w in range(8):
        a(f"v_cndmask_b32 v{SEL+w}, v10, v{SEL+w}, vcc")
    a("v_and_b32 v6, 3, v1"); a("v_xor_b32 v6, v6, v2"); a("v_and_b32 v7, 12, v1"); a("v_or_b32 v6, v6, v7")
    for m in range(4):
        a(f"v_xor_b32 v7, {m*4}, v6"); a("v_lshlrev_b32 v7, 4, v7"); a(f"v_lshl_add_u32 v{8+m}, v1, 9, v7")
    a("v_and_b32 v6, 1, v1"); a("v_lshlrev_b32 v6, 4, v6"); a("v_and_b32 v7, 14, v1"); a("v_add_u32 v12, v6, v7")
    a("s_lshl_b32 s48, s60, 5"); a(f"s_add_u32 s61, s48, {L_PB}")
    a("v_add_u32 v12, s61, v12")
    a("s_lshl_b32 s48, s60, 2"); a(f"s_add_u32 s48, s48, {F_CONS}"); a("v_mov_b32 v13, s48")
    a("s_lshl_b32 s56, s60, 13")
    a("s_add_u32 s57, s60, 1")
    a("s_mov_b32 s58, 0")
    a("v_mov_b32 v5, 0")
    a(f"v_lshlrev_b32 v7, 4, v2"); a(f"v_add_u32 v7, {L_QB}, v7")
    lds_wait_ge(F_QOK, "s48", 1, 6)
    for ks in range(8):
        a(f"ds_read_b128 {q(QA+4*ks)}, v7 offset:{ks*64}")
    stamp(3)
    a("L_kloop:")
    for m in range(4):
        a(f"v_add_u32 v{SB+m}, s56, v{8+m}")
    a("v_add_u32 v5, 1, v5")
    lds_wait_ge(F_FILL, "s58", "s57", 6, precheck=True, sleep=csl)
    for ks in range(8):
        a(f"ds_read_b128 {q(T+4*ks)}, v{SB+(ks&3)} offset:{(ks>>2)*256}")
    for ks in range(8):
        a(f"s_waitcnt lgkmcnt({7-ks})")
        a(f"v_mfma_f32_16x16x32_bf16 {q(ACC)}, {q(QA+4*ks)}, {q(T+4*ks)}, {q(ACC) if ks else 0}")
    a("ds_write_b32 v13, v5")
    a("s_add_u32 s56, s56, 16384"); a("s_and_b32 s56, s56, 0x1ffff")
    a("s_add_u32 s57, s57, 2")
    a("s_nop 4")
    a(f"v_cvt_pk_bf16_f32 v6, v{ACC}, v{ACC}")
    a("ds_write_b16 v12, v6")
    a("v_add_u32 v12, 64, v12")
    a("s_cmp_lt_u32 s57, 129")
    a("s_cbranch_scc1 L_kloop")
    stamp(4)
    a("v_lshl_add_u32 v12, v0, 6, s61")
    a("s_waitcnt lgkmcnt(0)")
    a(f"ds_read_b128 {q(YA)}, v12"); a(f"ds_read_b128 {q(YA+4)}, v12 offset:16")
    a("s_waitcnt lgkmcnt(0)")
    for d in range(8):
        a(f"v_lshlrev_b32 v{T+2*d}, 16, v{YA+d}"); a(f"v_and_b32 v{T+2*d+1}, 0xffff0000, v{YA+d}")
    a(f"v_max3_f32 v6, v{T}, v{T+1}, v{T+2}")
    for d in range(3, 15, 2):
        a(f"v_max3_f32 v6, v6, v{T+d}, v{T+d+1}")
    a(f"v_max_f32 v6, v6, v{T+15}")
    wave_red("v_max_f32", 6, "s48")
    a(f"s_mov_b32 s49, {LOG2E_16:#x}")
    for d in range(16):
        a(f"v_subrev_f32 v{T+d}, s48, v{T+d}")
    for d in range(16):
        a(f"v_mul_f32 v{T+d}, s49, v{T+d}")
    for d in range(16):
        a(f"v_exp_f32 v{T+d}, v{T+d}")
    a("s_nop 0")
    for d in range(8):
        a(f"v_cvt_pk_bf16_f32 v{YA+d}, v{T+2*d}, v{T+2*d+1}")
    a(f"ds_write_b128 v12, {q(YA)}"); a(f"ds_write_b128 v12, {q(YA+4)} offset:16")
    for st in (8, 4, 2, 1):
        for d in range(st):
            a(f"v_add_f32 v{T+d}, v{T+d}, v{T+d+st}")
    wave_red("v_add_f32", T, "s49")
    a("v_mov_b32 v6, s48"); a("v_mov_b32 v7, s49")
    a("s_lshl_b32 s48, s60, 3"); a(f"s_add_u32 s48, s48, {L_ML}"); a("v_mov_b32 v8, s48"); a("v_mov_b32 v9, 1")
    a("s_mov_b64 exec, 1")
    a("ds_write_b64 v8, v[6:7]")
    a("s_waitcnt lgkmcnt(0)")
    a(f"ds_add_u32 v14, v9 offset:{F_MLCNT-M0_}")
    a("s_mov_b64 exec, -1")
    a("v_lshlrev_b32 v8, 4, v0")
    a("v_lshl_add_u32 v12, v3, 4, s61")
    a(f"v_add_u32 v10, {L_CB}, v8")
    for r in range(4):
        a(f"v_mov_b32 v{ACC+r}, 0")
    a("s_mov_b32 s59, 225")
    stamp(5)
    a("L_vloop:")
    a(f"ds_read_b128 {q(YA)}, v12")
    a("v_add_u32 v9, s56, v8")
    a("v_add_u32 v12, 64, v12")
    a("v_add_u32 v5, 1, v5")
    a("s_waitcnt lgkmcnt(0)")
    for n in range(8):
        build_a(QA + 4*n, YA, n)
    lds_wait_ge(F_FILL, "s58", "s57", 6, precheck=True, sleep=csl)
    for n in range(8):
        a(f"ds_read_b128 {q(T+4*n)}, v9 offset:{n*1024}")
    a(f"ds_read_b32 v6, v14 offset:{F_CB-M0_}")
    a(f"ds_read_b128 {q(ACA)}, v10")
    for n in range(8):
        a(f"s_waitcnt lgkmcnt({9-n})")
        a(f"v_mfma_f32_16x16x32_bf16 {q(ACC)}, {q(QA+4*n)}, {q(T+4*n)}, {q(ACC)}")
    a("ds_write_b32 v13, v5")
    a("s_add_u32 s56, s56, 16384"); a("s_and_b32 s56, s56, 0x1ffff")
    a("s_add_u32 s57, s57, 2")
    a("s_cmp_lt_u32 s57, s59")
    a("s_cbranch_scc1 L_vloop")
    a("s_cmp_gt_u32 s59, 253")
    a("s_cbranch_scc1 L_vdone")
    if direct:
        a("s_cmp_gt_u32 s59, 240")
        a("s_cbranch_scc1 L_vdir")
    lds_wait_ge(F_FOK, "s48", 1, 6)
    a("s_lshl_b32 s48, s60, 2"); a(f"s_add_u32 s48, s48, {L_F}"); a("v_mov_b32 v11, s48")
    a("ds_read_b32 v11, v11")
    a("v_lshrrev_b32 v6, 3, v1"); a("v_lshl_add_u32 v6, v3, 1, v6"); a("v_lshlrev_b32 v7, 11, v6")
    a("v_and_b32 v6, 7, v1"); a("v_lshl_add_u32 v7, v6, 4, v7"); a("v_and_b32 v6, 1, v2"); a("v_lshl_add_u32 v7, v6, 3, v7")
    a("s_lshl_b32 s48, s28, 13"); a("s_lshl_b32 s49, s30, 2"); a("s_add_u32 s49, s49, s29"); a("s_lshl_b32 s49, s49, 7")
    a("s_add_u32 s48, s48, s49"); a(f"s_add_u32 s61, s48, {W_OX}")
    if direct:
        a("s_lshl_b32 s48, s31, 22"); a("s_lshl_b32 s49, s29, 20"); a("s_add_u32 s48, s48, s49")
        a("s_add_u32 s36, s8, s48"); a("s_addc_u32 s37, s9, 0"); a("s_and_b32 s37, s37, 0xffff")
        a("s_mov_b32 s38, 0x100000"); a("s_mov_b32 s39, 0x20000")
        a(f"s_mov_b32 s59, {direct}")
        a("s_branch L_vloop")
        a("L_vdir:")
        lds_wait_ge(F_FILL, "s58", "s57", 6, precheck=True, sleep=csl)
        a("s_lshl_b32 s48, s60, 13"); a(f"s_add_u32 s48, s48, {126*8192}")
        for n in range(8):
            if n == 4:
                a("s_add_u32 s48, s48, 4096")
            a(f"buffer_load_dwordx4 {q(WL+4*n)}, v8, s[36:39], s48 offen offset:{(n&3)*1024} nt")
        a("s_mov_b32 s59, 255")
    else:
        a("s_mov_b32 s59, 257")
    a("s_branch L_vloop")
    a("L_vdone:")
    if direct:
        a(f"ds_read_b128 {q(YA)}, v12")
        a("s_waitcnt lgkmcnt(0)")
        for n in range(8):
            build_a(QA + 4*n, YA, n)
        for n in range(8):
            a(f"s_waitcnt vmcnt({7-n})")
            if n == 5:
                a(f"ds_read_b32 v6, v14 offset:{F_CB-M0_}")
                a(f"ds_read_b128 {q(ACA)}, v10")
            a(f"v_mfma_f32_16x16x32_bf16 {q(ACC)}, {q(QA+4*n)}, {q(WL+4*n)}, {q(ACC)}")
        stamp(6)
        a("s_nop 5")
    if not direct:
        stamp(6)
    a("s_cmp_eq_u32 s60, 0")
    a("s_cbranch_scc0 L_vpub")
    for r in range(4):
        a(f"v_mul_f32 v{ACC+r}, v11, v{ACC+r}")
    a("v_mov_b32 v9, 1")
    a(f"ds_write_b128 v10, {q(ACC)}")
    a("s_waitcnt lgkmcnt(0)")
    a(f"ds_write_b32 v14, v9 offset:{F_CB-M0_}")
    a("s_waitcnt lgkmcnt(0)")
    finish()
    a("L_vpub:")
    a("s_waitcnt lgkmcnt(0)")
    a("v_readfirstlane_b32 s48, v6")
    a("s_cmp_eq_u32 s48, 1")
    a("s_cbranch_scc1 L_vsum")
    lds_wait_ge(F_CB, "s48", 1, 6, sleep=0)
    a(f"ds_read_b128 {q(ACA)}, v10")
    a("s_waitcnt lgkmcnt(0)")
    a("L_vsum:")
    for r in range(4):
        a(f"v_fma_f32 v{ACC+r}, v11, v{ACC+r}, v{ACA+r}")
    a(f"v_cvt_pk_bf16_f32 v{ACC}, v{ACC}, v{ACC+1}"); a(f"v_cvt_pk_bf16_f32 v{ACC+1}, v{ACC+2}, v{ACC+3}")
    a(f"v_min_u32 v{ACC}, -2, v{ACC}"); a(f"v_min_u32 v{ACC+1}, -2, v{ACC+1}")
    a(f"buffer_store_dwordx2 {q(ACC,2)}, v7, s[40:43], s61 offen {stfl}")
    if late == 2:
        a("v_mov_b32 v9, 1")
        a(f"ds_write_b32 v14, v9 offset:{F_PUB-M0_}")
        a("s_waitcnt lgkmcnt(0)")
    stamp(7)
    finish()

    a("L_pace:")
    lds_wait_ge(F_FILL, "s58", "s56", 12, sleep=8, precheck=True)
    a("s_add_u32 s56, s56, s57")
    a("s_setpc_b64 s[54:55]")

    a("L_helper:")
    call_setup("L_pace", False)
    a("s_mov_b32 s58, 0")
    a("s_sub_u32 s62, s3, 4")
    a("s_and_b32 s48, s2, 7"); a("s_mul_i32 s48, s48, 7"); a("s_lshr_b32 s49, s2, 3"); a("s_add_u32 s59, s48, s49")
    if not noffn:
        a(f"s_cmp_ge_u32 s2, {NF}")
        a("s_cbranch_scc1 L_noffn")
        if not late or nlate < 7:
            a("; ---- waves 4..7 of FFN workgroups: A fragments of gate/up (32 hidden columns, 7 k-steps) and down (8 tiles)")
            a("s_cmp_ge_u32 s62, 2")
            a("s_cselect_b32 s44, s18, s16"); a("s_cselect_b32 s45, s19, s17")
            a("s_and_b32 s45, s45, 0xffff"); a("s_mov_b32 s46, 1605632"); a("s_mov_b32 s47, 0x20000")
            a("v_lshrrev_b32 v7, 2, v0"); a("v_and_b32 v8, 7, v7"); a("v_lshrrev_b32 v6, 3, v7"); a("v_lshl_add_u32 v6, v8, 2, v6")
            a("v_mul_u32_u24 v6, 3584, v6"); a("v_and_b32 v8, 3, v0"); a("v_lshl_add_u32 v6, v8, 4, v6")
            a("s_and_b32 s48, s62, 1"); a(f"s_mul_i32 s50, s48, {7*32*3584}"); a("s_lshl_b32 s49, s59, 6"); a("s_add_u32 s50, s50, s49")
            a("s_lshl_b32 s51, s62, 11"); a(f"s_add_u32 s51, s51, {L_STG}")
            a("v_lshrrev_b32 v9, 2, v1"); a("v_lshl_add_u32 v10, v2, 3, v9"); a("v_lshlrev_b32 v10, 6, v10")
            a("v_and_b32 v11, 3, v1"); a("v_lshl_add_u32 v10, v11, 3, v10"); a("v_add_u32 v10, s51, v10")
            a(f"s_mov_b32 s56, {gt0}"); a(f"s_mov_b32 s57, {gdt}")

            def stage(step2, step_next):
                call()
                a("s_mov_b32 m0, s51"); a("s_nop 0")
                a("buffer_load_dwordx4 v6, s[44:47], s50 offen nt lds")
                if not gpair:
                    call()
                a("s_add_u32 m0, s51, 1024"); a(f"s_add_u32 s50, s50, {step2}")
                a("buffer_load_dwordx4 v6, s[44:47], s50 offen nt lds")
                a(f"s_add_u32 s50, s50, {step_next}")
                a("s_waitcnt vmcnt(0)")
            for f in range(7 - (nlate if late else 0)):
                stage(2*3584, 30*3584)
                for ft in range(2):
                    a(f"ds_read_b64_tr_b16 {q(FF+8*f+4*ft,2)}, v10 offset:{ft*32}")
                    a(f"ds_read_b64_tr_b16 {q(FF+8*f+4*ft+2,2)}, v10 offset:{ft*32+256}")
                a("s_waitcnt lgkmcnt(0)")
            srd(44, 20, 1605632)
            a("v_mul_u32_u24 v6, 896, v7"); a("v_lshl_add_u32 v6, v8, 4, v6")
            a("s_mul_i32 s50, s59, 28672"); a("s_lshl_b32 s49, s62, 8"); a("s_add_u32 s50, s50, s49")
            a("v_lshl_add_u32 v10, v2, 2, v9"); a("v_lshlrev_b32 v10, 6, v10"); a("v_lshl_add_u32 v10, v11, 3, v10"); a("v_add_u32 v10, s51, v10")
            for pr in range(0 if late else 4):
                stage(16*896, 64 - 16*896 + (1 << 32))
                for sub in range(2):
                    a(f"ds_read_b64_tr_b16 {q(QA+8*pr+4*sub,2)}, v10 offset:{sub*32}")
                    a(f"ds_read_b64_tr_b16 {q(QA+8*pr+4*sub+2,2)}, v10 offset:{sub*32+1024}")
                a("s_waitcnt lgkmcnt(0)")
        a("s_branch L_ffn")
        a("L_noffn:")
    else:
        a(f"s_cmp_lt_u32 s2, {NF}")
        a("s_cbranch_scc1 L_ffn")
    a(f"s_sub_u32 s59, s2, {R0LO}")
    a("s_cmp_lt_u32 s59, 64")
    a("s_cbranch_scc0 L_r1")
    srd(36, 12, 3670016)
    a("v_mul_u32_u24 v4, 7168, v2"); a("v_lshl_add_u32 v4, v1, 3, v4")
    a("s_lshl_b32 s47, s62, 8"); a("s_cmp_eq_u32 s62, 3"); a("s_cselect_b32 s47, 704, s47")
    a("s_mul_i32 s48, s59, 57344"); a("s_add_u32 s48, s48, s47")
    a("v_add_u32 v4, s48, v4")
    a(f"s_mov_b32 s56, {wt0}"); a(f"s_mov_b32 s57, {wdt}")
    for k in range(16):
        call()
        wo_load(k)
    a("v_lshlrev_b32 v5, 7, v1"); a("v_lshl_add_u32 v5, v2, 4, v5")
    a("s_lshl_b32 s44, s59, 11"); a(f"s_add_u32 s44, s44, {W_OX}"); a("s_add_u32 s45, s44, 64")
    a(f"v_mul_u32_u24 v7, {64*1792}, v2"); a("v_lshl_add_u32 v7, v1, 4, v7")
    a("s_mul_i32 s46, s59, 1792"); a("s_lshl_b32 s48, s47, 1"); a("s_add_u32 s46, s46, s48")
    a("s_cmp_ge_u32 s62, 2"); a("s_cselect_b32 s38, 0x00ff00ff, -1"); a("s_mov_b32 s39, s38")
    a("s_mov_b32 s48, 0x05040100"); a("s_mov_b32 s49, 0x07060302")
    a("s_waitcnt vmcnt(0)")
    for ks in range(2):
        src = WL + ks*32
        for t in range(8):
            for d in range(4):
                a(f"v_perm_b32 v{wfrag(ks,t)+d}, v{src+(2*d+1)*4+(t>>1)}, v{src+(2*d)*4+(t>>1)}, s{48+(t&1)}")
    if dry0:
        a("s_mov_b32 s42, 0"); a("s_mov_b64 vcc, -1")
        a("s_branch L_r0body")
        a("L_r0real:")
        a(f"s_mov_b32 s42, {WS_BYTES}"); a("s_mov_b64 vcc, 0"); a("s_mov_b64 exec, -1")
    lds_wait_ge(F_FOK, "s48", 1, 6, sleep=16)
    end_wait(tpoll)
    poll_quads(YA, 5, ["s44", "s45"], 6, pdep=pd[0])
    stamp(3)
    a("L_r0body:")
    for t in range(8):
        for ks in range(2):
            a(f"v_mfma_f32_16x16x32_bf16 {q(T2+4*t)}, {q(YA+4*ks)}, {q(wfrag(ks,t))}, {q(T2+4*t) if ks else 0}")
        if t >= 4:
            u = t - 4
            a(f"v_pk_add_f32 {q(T2+4*u,2)}, {q(T2+4*u,2)}, {q(T2+4*u+2,2)}")
            a(f"v_add_f32 v{SB+u}, v{T2+4*u}, v{T2+4*u+1}")
    a("s_nop 0")
    a(f"buffer_store_dwordx4 {q(SB)}, v7, s[40:43], s46 offen {stfl}")
    for u in range(4, 8):
        if u == 7:
            a("s_nop 0")
        a(f"v_pk_add_f32 {q(T2+4*u,2)}, {q(T2+4*u,2)}, {q(T2+4*u+2,2)}")
        a(f"v_add_f32 v{SB+u}, v{T2+4*u}, v{T2+4*u+1}")
    a("s_mov_b64 exec, s[38:39]")
    a(f"buffer_store_dwordx4 {q(SB+4)}, v7, s[40:43], s46 offen offset:256 {stfl}")
    if dry0:
        a("s_cbranch_vccnz L_r0real")
    a("s_mov_b64 exec, -1")
    stamp(4)
    if diag:
        a("s_waitcnt vmcnt(0)")
        stamp(5)
    finish()

    def count_check():
        a("; all workgroups have emptied their hand-off words once d_debug[0] reaches 256")
        a("s_load_dword s48, s[24:25], 0") if 'l' not in tst else a("s_mov_b32 s48, 256")
        a("s_waitcnt lgkmcnt(0)")
        bound_init(1 << 17)
        a("L_cntpoll:")
        a(f"s_cmp_ge_u32 s48, {256 if 'a' not in tst else 0}")
        a("s_cbranch_scc1 L_cntok")
        a("s_sleep 64")
        a("s_mov_b32 s48, 0")
        a("s_atomic_add s48, s[24:25], 0 glc")
        a("s_waitcnt lgkmcnt(0)")
        bound_loop("L_cntpoll")
        a("L_cntok:")
        a("s_cmp_lg_u32 s2, 0")
        a("s_cbranch_scc1 L_noep")
        a("v_mov_b32 v6, s62"); a(f"s_mov_b32 s48, {W_EP}")
        a("s_mov_b64 exec, 1")
        a("buffer_store_dword v6, v15, s[40:43], s48 offen sc1")
        a("s_mov_b64 exec, -1")
        a("L_noep:")

    a("L_h4:")
    a("; sum the 14 partials, exchange the q quarters of the four workgroups of this head through tagged granules")
    a("v_and_b32 v8, 31, v0"); a("v_lshlrev_b32 v8, 3, v8")
    a("v_mul_u32_u24 v9, 1792, v3"); a("v_add_u32 v9, v9, v8"); a(f"v_add_u32 v9, {L_QP}, v9")
    a("s_lshl_b32 s56, s31, 10"); a(f"s_add_u32 s56, s56, {W_QX}"); a("s_lshl_b32 s57, s29, 8"); a("s_add_u32 s57, s57, s56")
    a("s_add_u32 s62, s62, 1")
    a("v_lshlrev_b32 v5, 4, v0")
    a("v_lshlrev_b32 v11, 3, v0"); a(f"v_add_u32 v11, {L_QB}, v11")
    lds_wait_ge(F_QCNT, "s48", 7, 6, sleep=0)
    for p in range(7):
        a(f"ds_read_b64 {q(T+2*p,2)}, v9 offset:{p*256}")
    for p in range(1, 7):
        a(f"s_waitcnt lgkmcnt({6-p})")
        a(f"v_pk_add_f32 {q(T,2)}, {q(T,2)}, {q(T+2*p,2)}")
    a(f"v_mov_b32 v{T+2}, v{T}"); a(f"v_mov_b32 v{T+3}, v{T+1}"); a("s_nop 1")
    a(f"v_permlane32_swap_b32 v{T}, v{T+2}"); a(f"v_permlane32_swap_b32 v{T+1}, v{T+3}")
    a(f"v_pk_add_f32 {q(T,2)}, {q(T,2)}, {q(T+2,2)}")
    a("v_mov_b32 v7, s62")
    a(f"v_cvt_pk_bf16_f32 v6, v{T}, v{T+1}")
    a("s_mov_b32 exec_hi, 0")
    a("buffer_store_dwordx2 v[6:7], v8, s[40:43], s57 offen sc1")
    a("s_mov_b32 exec_hi, -1")
    bound_init(1 << 17)
    a("L_qpoll:")
    a(f"buffer_load_dwordx4 {q(T)}, v5, s[40:43], s56 offen sc1")
    a("s_waitcnt vmcnt(0)")
    a(f"v_cmp_ne_u32 vcc, s62, v{T+1}"); a(f"v_cmp_ne_u32 s[48:49], s62, v{T+3}")
    a("s_or_b64 vcc, vcc, s[48:49]")
    a("s_cbranch_scc0 L_qok") if 'q' not in tst else a("s_branch L_qok")
    a("s_sleep 2")
    bound_loop("L_qpoll")
    a("L_qok:")
    a(f"v_mov_b32 v{T+1}, v{T+2}")
    a(f"ds_write_b64 v11, {q(T,2)}")
    a("v_mov_b32 v6, 1")
    a("s_waitcnt lgkmcnt(0)")
    a(f"ds_write_b32 v14, v6 offset:{F_QOK-M0_}")
    if use_fb and fbm == 'ls':
        a("; progress words of the eight members of this workgroup's balancing group (one per die-sized stride of ids)")
        a("s_lshr_b32 s48, s2, 3"); a("s_and_b32 s49, s2, 7"); a(f"s_mul_i32 s50, s49, {fbmix}"); a("s_add_u32 s48, s48, s50")
        a(f"v_mul_u32_u24 v6, {fbmix}, v0"); a("v_sub_u32 v6, s48, v6"); a("v_and_b32 v6, 31, v6"); a("v_lshl_add_u32 v6, v6, 3, v0")
        a(f"v_mul_u32_u24 v{FF}, {fbstr}, v6")
        a(f"s_mul_i32 s94, s2, {fbstr}"); a(f"s_add_u32 s94, s94, {W_FB}"); a(f"s_mov_b32 s95, {W_FB}")
    elif use_fb:
        ng = 256 // fbg
        a("s_lshr_b32 s48, s2, 3"); a("s_and_b32 s49, s2, 7"); a(f"s_mul_i32 s50, s49, {fbmix}"); a("s_add_u32 s48, s48, s50")
        a(f"s_and_b32 s48, s48, {ng-1}"); a("s_lshl_b32 s48, s48, 12"); a(f"s_add_u32 s48, s48, {W_FB}")
        a("s_add_u32 s94, s26, s48"); a("s_addc_u32 s95, s27, 0")
        a(f"s_lshr_b32 s50, s2, {3 + ng.bit_length() - 1}"); a("s_or_b32 s49, s49, s50")
        a("s_cbranch_scc1 L_nolead")
        a("v_lshlrev_b32 v6, 8, v0")
        a("s_mov_b64 exec, 0xffff")
        a("buffer_store_dword v15, v6, s[40:43], s48 offen sc1")
        a("s_mov_b64 exec, -1")
        a("L_nolead:")
    a(f"s_mov_b32 s93, {didx(depth)}")
    if r0dep:
        a(f"s_sub_u32 s48, s2, {R0LO}"); a("s_cmp_lt_u32 s48, 64"); a(f"s_cselect_b32 s93, {didx(r0dep)}, s93")
    if r2dep:
        a(f"s_cmp_lt_u32 s2, {NF}"); a(f"s_cselect_b32 s93, {didx(r2dep)}, s93")
    lds_wait_ge(F_CLR, "s48", 7, 6, sleep=2)
    set_depth("s93")
    if atomt:
        a(f"s_and_b32 s49, s2, {atomt - 1}"); a(f"s_add_u32 s49, s49, {max(clrt, 16)}")
        lds_wait_ge(F_FILL, "s48", "s49", 6, sleep=8)
    if 'a' not in tst and not patom:
        a("s_mov_b32 s48, 1")
        a("s_atomic_add s48, s[24:25], 0")
        a("s_waitcnt lgkmcnt(0)")
    sched = [t for t, _ in fbr]
    if use_fb:
        call_setup("L_fb", True)
    if vpre:
        a("; first touch of this workgroup's V pages through the scalar path, ahead of the stream")
        a("s_lshl_b32 s48, s31, 22"); a("s_lshl_b32 s49, s29, 20"); a("s_add_u32 s48, s48, s49")
        a("s_add_u32 s96, s8, s48"); a("s_addc_u32 s97, s9, 0")
        lds_wait_ge(F_FILL, "s48", vpre, 6, sleep=8)
        a("s_load_dword s48, s[96:97], 0")
        a("s_waitcnt lgkmcnt(0)")
    for t in [t for t in sched if t < 128]:
        fb_call(t)
    a("v_lshlrev_b32 v9, 3, v0"); a(f"v_add_u32 v9, {L_ML}, v9")
    lds_wait_ge(F_MLCNT, "s48", 2, 6, sleep=8)
    a("s_mov_b64 exec, 3")
    a("ds_read_b64 v[6:7], v9")
    a("s_lshl_b32 s48, s31, 2"); a("s_add_u32 s48, s48, s29"); a("s_lshl_b32 s48, s48, 5"); a(f"s_add_u32 s48, s48, {W_ML}")
    a("s_waitcnt lgkmcnt(0)")
    a(f"v_mov_b32 v{YA}, v6"); a(f"v_mov_b32 v{YA+1}, s62"); a(f"v_mov_b32 v{YA+2}, v7"); a(f"v_mov_b32 v{YA+3}, s62")
    None if 'm' in tst else a(f"buffer_store_dwordx4 {q(YA)}, v5, s[40:43], s48 offen sc1")
    a("s_mov_b64 exec, -1")
    if not patom:
        count_check()
    for t in [t for t in sched if 128 <= t <= mlt]:
        fb_call(t)
    lds_wait_ge(F_FILL, "s48", mlt, 6, sleep=8)
    a("v_and_b32 v8, 7, v0"); a("v_lshlrev_b32 v9, 4, v8")
    a("s_lshl_b32 s61, s31, 7"); a(f"s_add_u32 s61, s61, {W_ML}")
    bound_init(1 << 17)
    a("L_mlpoll:")
    if 'm' in tst:
        a("s_branch L_mlgot")
    a(f"buffer_load_dwordx4 {q(YA+4)}, v9, s[40:43], s61 offen sc1")
    a("s_waitcnt vmcnt(0)")
    a(f"v_cmp_ne_u32 vcc, s62, v{YA+5}"); a(f"v_cmp_ne_u32 s[48:49], s62, v{YA+7}")
    a("s_or_b64 vcc, vcc, s[48:49]")
    a("s_cbranch_scc0 L_mlgot")
    a("s_sleep 24")
    bound_loop("L_mlpoll")
    a("L_mlgot:")
    a(f"v_mov_b32 v10, v{YA+4}")
    for d in ("row_ror:4", "row_ror:2", "row_ror:1"):
        a("s_nop 1")
        a(f"v_max_f32_dpp v10, v10, v10 {d} row_mask:0xf bank_mask:0xf")
    a(f"v_sub_f32 v6, v{YA+4}, v10"); a(f"v_mul_f32 v6, {LOG2E_16:#x}, v6"); a("v_exp_f32 v6, v6"); a("s_nop 0")
    a(f"v_mul_f32 v7, v6, v{YA+6}")
    for d in ("row_ror:4", "row_ror:2", "row_ror:1"):
        a("s_nop 1")
        a(f"v_add_f32_dpp v7, v7, v7 {d} row_mask:0xf bank_mask:0xf")
    a("v_rcp_f32 v7, v7"); a("v_lshrrev_b32 v9, 1, v0"); a("v_and_b32 v8, 1, v0")
    a("v_mul_f32 v6, v6, v7")
    a("v_lshlrev_b32 v8, 2, v8"); a(f"v_add_u32 v8, {L_F}, v8")
    a("v_cmp_eq_u32 vcc, s29, v9")
    a("s_mov_b64 exec, vcc")
    a("ds_write_b32 v8, v6")
    a("s_mov_b64 exec, -1")
    if patom:
        a("; the four workgroups of this pair published after emptying their hand-off words: quarter 0 counts them")
        a("s_cmp_lg_u32 s29, 0"); a("s_cbranch_scc1 L_noadd")
        a("s_mov_b32 s48, 4"); a("s_atomic_add s48, s[24:25], 0"); a("s_waitcnt lgkmcnt(0)")
        a("L_noadd:")
        for t in [t for t in sched if mlt < t <= chkt]:
            fb_call(t)
        lds_wait_ge(F_FILL, "s48", chkt, 6, sleep=8)
        count_check()
    a("v_mov_b32 v6, 1")
    a("s_waitcnt lgkmcnt(0)")
    a(f"ds_write_b32 v14, v6 offset:{F_FOK-M0_}")
    for t in [t for t in sched if t > (chkt if patom else mlt)]:
        fb_call(t)
    if endt:
        lds_wait_ge(F_FILL, "s48", endt, 6, sleep=2)
        set_depth(didx(endd))
    a("s_branch L_done")
    if use_fb:
        a("; the arrival rank of this workgroup at tile s50 within its group selects the loader depth")
        a("L_fb:")
        lds_wait_ge(F_FILL, "s48", "s50", 6, sleep=fbsl)
        if fbm == 'ls':
            a("s_lshl_b32 s49, s62, 10"); a("s_add_u32 s49, s49, s50"); a("v_mov_b32 v7, s49")
            a("s_mov_b64 exec, 0xff")
            a(f"buffer_load_dword v6, v{FF}, s[40:43], s95 offen sc1")
            a("s_mov_b64 exec, 1")
            a("buffer_store_dword v7, v15, s[40:43], s94 offen sc1")
            a("s_mov_b64 exec, 0xff")
            a("s_waitcnt vmcnt(1)")
            a("v_subrev_u32 v6, s49, v6"); a("v_cmp_gt_u32 vcc, 0x100, v6")
            a("s_mov_b64 exec, -1")
            a("s_bcnt1_i32_b64 s48, vcc")
        elif fbm == 'none':
            a("s_mov_b32 s48, 3")
        else:
            a("s_mov_b32 s48, 1")
            a("s_atomic_add s48, s[94:95], 0 glc")
            a("s_waitcnt lgkmcnt(0)")
        if fbg > 8:
            a(f"s_lshr_b32 s48, s48, {(fbg // 8).bit_length() - 1}")
        if r2b:
            a(f"s_cmp_lt_u32 s2, {NF}"); a(f"s_cselect_b32 s49, {r2b}, 0"); a("s_add_u32 s48, s48, s49")
        a("s_min_u32 s48, s48, 7"); a("s_lshl_b32 s48, s48, 2"); a("s_lshr_b32 s93, s51, s48"); a("s_and_b32 s93, s93, 15")
        if lad:
            a("s_lshr_b32 s49, s92, s48"); a("s_and_b32 s49, s49, 15"); a("s_add_u32 s91, s91, s49"); a("s_sub_u32 s91, s91, 8")
            a("s_max_i32 s91, s91, 1"); a(f"s_min_i32 s91, s91, {len(lad)}")
            a("s_add_u32 s93, s93, s91"); a("s_sub_u32 s93, s93, 8")
            a("s_max_i32 s93, s93, 1"); a(f"s_min_i32 s93, s93, {len(lad)}")
        a("v_mov_b32 v6, s93")
        a(f"ds_write_b32 v14, v6 offset:{F_DEP-M0_}")
        if fbm != 'ls':
            a("s_add_u32 s94, s94, 256"); a("s_addc_u32 s95, s95, 0")
        a("s_setpc_b64 s[54:55]")

    a("L_ffn:")

    def late_frags():
        a("; the ring is drained: gate/up/down rows of this workgroup stream into it while the hand-offs are under way")
        a("s_cmp_ge_u32 s62, 2")
        a("s_cselect_b32 s32, s18, s16"); a("s_cselect_b32 s33, s19, s17")
        a("s_and_b32 s33, s33, 0xffff"); a("s_mov_b32 s34, 1605632"); a("s_mov_b32 s35, 0x20000")
        srd(36, 20, 1605632)
        a(f"v_lshrrev_b32 v{SB}, 2, v0"); a(f"v_and_b32 v{SB+1}, 7, v{SB}"); a(f"v_lshrrev_b32 v{SB+2}, 3, v{SB}"); a(f"v_lshl_add_u32 v{SB+2}, v{SB+1}, 2, v{SB+2}")
        a(f"v_mul_u32_u24 v{SB+2}, 3584, v{SB+2}"); a(f"v_and_b32 v{SB+1}, 3, v0"); a(f"v_lshl_add_u32 v{SB+2}, v{SB+1}, 4, v{SB+2}")
        if wide:
            a(f"v_lshrrev_b32 v{SB+3}, 3, v0"); a(f"v_mul_u32_u24 v{SB+3}, 896, v{SB+3}"); a(f"v_and_b32 v{SB+1}, 7, v0"); a(f"v_lshl_add_u32 v{SB+3}, v{SB+1}, 4, v{SB+3}")
        else:
            a(f"v_mul_u32_u24 v{SB+3}, 896, v{SB}"); a(f"v_lshl_add_u32 v{SB+3}, v{SB+1}, 4, v{SB+3}")
        a("s_mul_i32 s51, s62, 20480")
        a(f"v_lshrrev_b32 v{SB+4}, 2, v1"); a(f"v_and_b32 v{SB+5}, 3, v1"); a(f"v_lshlrev_b32 v{SB+5}, 3, v{SB+5}")
        a(f"v_lshl_add_u32 v{SB+6}, v2, 3, v{SB+4}"); a(f"v_lshl_add_u32 v{SB+6}, v{SB+6}, 6, v{SB+5}"); a(f"v_add_u32 v{SB+6}, s51, v{SB+6}")
        a(f"v_lshl_add_u32 v{SB+7}, v2, 2, v{SB+4}"); a(f"v_lshl_add_u32 v{SB+7}, v{SB+7}, {7 if wide else 6}, v{SB+5}")
        a("s_lshl_b32 s49, s62, 11"); a(f"s_add_u32 s60, s49, {L_STG}"); a(f"v_add_u32 v{SB+4}, s60, v{SB+7}"); a(f"v_add_u32 v{SB+7}, s51, v{SB+7}")
        a("s_and_b32 s48, s62, 1"); a(f"s_mul_i32 s92, s48, {7*32*3584}"); a("s_lshl_b32 s49, s59, 6"); a("s_add_u32 s92, s92, s49")
        a("s_mul_i32 s93, s59, 28672"); a("s_lshl_b32 s49, s62, 8"); a("s_add_u32 s93, s93, s49")
        if late == 1:
            end_wait(NT)
        elif late == 2:
            lds_wait_ge(F_PUB, "s48", 1, 6, sleep=2)
        else:
            lds_wait_ge(F_CONS, "s48", late, 6, sleep=2)
            lds_wait_ge(F_CONS + 4, "s48", late, 6, sleep=2)
        for f in range(7 - nlate, 7):
            for hh in range(2):
                a(f"s_add_u32 m0, s51, {(f - (7 - nlate if wide else 0))*2048 + hh*1024}"); a(f"s_add_u32 s48, s92, {(f*32 + 2*hh)*3584}")
                a(f"buffer_load_dwordx4 v{SB+2}, s[32:35], s48 offen nt lds")
        if wide:
            assert nlate <= 6
            for k in range(8):
                a(f"s_add_u32 m0, s51, {12288 + k*1024}"); a(f"s_add_u32 s48, s93, {(k >> 2)*128 + (k & 3)*8*896}")
                a(f"buffer_load_dwordx4 v{SB+3}, s[36:39], s48 offen nt lds")
        for pr in range(0 if wide else 4):
            for hh in range(2):
                if pr < 3:
                    a(f"s_add_u32 m0, s51, {14336 + pr*2048 + hh*1024}")
                else:
                    a(f"s_add_u32 m0, s60, {hh*1024}")
                a(f"s_add_u32 s48, s93, {pr*64 + hh*16*896}")
                a(f"buffer_load_dwordx4 v{SB+3}, s[36:39], s48 offen nt lds")
        for f in range(7 - nlate, 7):
            a(f"s_waitcnt vmcnt({20 - 2*f})")
            for ft in range(2):
                a(f"ds_read_b64_tr_b16 {q(FF+8*f+4*ft,2)}, v{SB+6} offset:{(f - (7 - nlate if wide else 0))*2048 + ft*32}")
                a(f"ds_read_b64_tr_b16 {q(FF+8*f+4*ft+2,2)}, v{SB+6} offset:{(f - (7 - nlate if wide else 0))*2048 + ft*32 + 256}")
            if f % 2:
                a("s_waitcnt lgkmcnt(4)")
        for pr in range(4 if wide else 0):
            if pr % 2 == 0:
                a(f"s_waitcnt vmcnt({4 - 2*pr})")
            for sub in range(2):
                o = 12288 + (pr >> 1)*4096 + (pr & 1)*64 + sub*32
                a(f"ds_read_b64_tr_b16 {q(QA+8*pr+4*sub,2)}, v{SB+7} offset:{o}")
                a(f"ds_read_b64_tr_b16 {q(QA+8*pr+4*sub+2,2)}, v{SB+7} offset:{o + 2048}")
            a("s_waitcnt lgkmcnt(4)")
        for pr in range(0 if wide else 4):
            a(f"s_waitcnt vmcnt({6 - 2*pr})")
            for sub in range(2):
                va, o = (SB + 7, 14336 + pr*2048) if pr < 3 else (SB + 4, 0)
                a(f"ds_read_b64_tr_b16 {q(QA+8*pr+4*sub,2)}, v{va} offset:{o + sub*32}")
                a(f"ds_read_b64_tr_b16 {q(QA+8*pr+4*sub+2,2)}, v{va} offset:{o + sub*32 + 1024}")
            a("s_waitcnt lgkmcnt(4)")
        a("s_waitcnt lgkmcnt(0)")

    def flag(pos):
        if g3 == pos:
            a("s_cmp_lg_u32 s62, 3"); a("s_cbranch_scc1 L_nofl")
            a("s_mov_b64 exec, 1")
            a(f"buffer_store_dword v4, v15, s[40:43], s61 offen {stfl}")
            a("s_mov_b64 exec, -1")
            a("L_nofl:")
    a("v_lshlrev_b32 v5, 5, v0")
    a(f"s_and_b32 s48, s2, {nrep-1}"); a("s_mul_i32 s48, s48, 7168"); a("s_mul_i32 s49, s62, 1792"); a("s_add_u32 s48, s48, s49")
    a(f"s_add_u32 s56, s48, {W_HB}"); a("s_add_u32 s57, s56, 16")
    X = T2
    a("v_lshlrev_b32 v8, 4, v0"); a("s_mul_i32 s48, s62, 960"); a(f"s_add_u32 s48, s48, {L_XN2}"); a("v_add_u32 v8, s48, v8")
    a("v_and_b32 v9, 3, v1"); a("v_mul_u32_u24 v10, 960, v9"); a("v_lshl_add_u32 v10, v2, 4, v10")
    a("s_and_b32 s48, s62, 1"); a("s_mul_i32 s48, s48, 448"); a(f"s_add_u32 s48, s48, {L_XN2}"); a("v_add_u32 v10, s48, v10")
    a("v_lshlrev_b32 v11, 6, v9"); a("v_lshl_add_u32 v11, v2, 4, v11"); a(f"v_add_u32 v11, {L_GU}, v11")
    a("s_lshl_b32 s48, s62, 9"); a("v_add_u32 v12, s48, v11")
    a(f"v_mul_u32_u24 v13, {14*7168}, v9"); a("v_bfe_u32 v6, v1, 2, 1"); a("v_lshl_add_u32 v13, v6, 6, v13"); a("v_lshl_add_u32 v13, v2, 4, v13")
    a("v_cmp_eq_u32 s[46:47], 0, v6"); a("v_mov_b32 v7, v13"); a("v_mov_b32 v4, s91")
    a("s_lshl_b32 s58, s59, 7"); a(f"s_mul_i32 s48, s62, {4*7168}"); a("s_add_u32 s58, s58, s48"); a(f"s_add_u32 s58, s58, {W_OP}")
    a("s_mov_b32 s44, -1"); a("s_mov_b32 s45, 0x00ffffff")
    if dry:
        a("; one pass over the code below with stores disabled and barriers skipped loads it into the instruction cache")
        a("s_mov_b32 s42, 0"); a("s_mov_b64 vcc, -1"); a("s_mov_b32 s61, 0")
        a("s_branch L_ffnbody")
        a("L_ffnreal:")
        a(f"s_mov_b32 s42, {WS_BYTES}"); a("s_mov_b64 vcc, 0"); a("s_mov_b64 exec, -1")
        a("v_mov_b32 v13, v7")
    lds_wait_ge(F_FOK, "s48", 1, 6, sleep=16)
    if late:
        late_frags()
        stamp(6)
    else:
        end_wait(NT)
    if g2:
        a(f"v_mul_u32_u24 v9, {4*1792}, v0")
        a(f"s_mul_i32 s61, s62, {64*1792}"); a("s_and_b32 s48, s2, 3"); a("s_mul_i32 s48, s48, 1792"); a("s_add_u32 s61, s61, s48")
        a("s_lshr_b32 s48, s2, 2"); a("s_lshl_b32 s48, s48, 7"); a("s_add_u32 s61, s61, s48")
        gate(9, "s61", 16, g2, 6)
    a("s_lshl_b32 s61, s2, 7"); a(f"s_add_u32 s61, s61, {W_FL}")
    poll_quads(X, 5, ["s56", "s57"], 6, execs=["s[44:45]"]*2, both=b2, pdep=pd[2])
    stamp(3)
    a("L_ffnbody:")
    layernorm(X, T, YA, fast=fastln)
    a("s_mov_b32 exec_hi, 0x00ffffff")
    a(f"ds_write_b128 v8, {q(YA)}")
    a("s_mov_b32 exec_hi, -1")
    a("s_waitcnt lgkmcnt(0)")
    if dry:
        a("s_cbranch_vccnz L_nb1x")
    a("s_barrier")
    a("L_nb1x:")
    for f in range(7):
        a(f"ds_read_b128 {q(T+4*f)}, v10 offset:{f*64}")
    flag(1)
    for f in range(7):
        a(f"s_waitcnt lgkmcnt({6-f})")
        a(f"v_mfma_f32_16x16x32_bf16 {q(ACC)}, {q(FF+8*f)}, {q(T+4*f)}, {q(ACC) if f else 0}")
        a(f"v_mfma_f32_16x16x32_bf16 {q(ACA)}, {q(FF+8*f+4)}, {q(T+4*f)}, {q(ACA) if f else 0}")
    flag(2)
    a("s_nop 6")
    a(f"ds_write_b128 v12, {q(ACC)}")
    a(f"ds_write_b128 v12, {q(ACA)} offset:256")
    a("s_waitcnt lgkmcnt(0)")
    if dry:
        a("s_cbranch_vccnz L_nb2x")
    a("s_barrier")
    a("L_nb2x:")
    G0 = T
    for ft in range(2):
        for p in range(4):
            a(f"ds_read_b128 {q(G0+16*ft+4*p)}, v11 offset:{p*512+ft*256}")
    flag(3)
    for ft in range(2):
        B = G0 + 16*ft
        a(f"s_waitcnt lgkmcnt({6-4*ft})")
        a(f"v_pk_add_f32 {q(B,2)}, {q(B,2)}, {q(B+4,2)}"); a(f"v_pk_add_f32 {q(B+2,2)}, {q(B+2,2)}, {q(B+6,2)}")
        a(f"s_waitcnt lgkmcnt({4-4*ft})")
        a(f"v_pk_add_f32 {q(B+8,2)}, {q(B+8,2)}, {q(B+12,2)}"); a(f"v_pk_add_f32 {q(B+10,2)}, {q(B+10,2)}, {q(B+14,2)}")
        for r in range(4):
            a(f"v_cvt_pk_bf16_f32 v{B+4+r}, v{B+r}, v{B+8+r}")
        for r in range(4):
            a(f"v_lshlrev_b32 v{B+r}, 16, v{B+4+r}"); a(f"v_and_b32 v{B+4+r}, 0xffff0000, v{B+4+r}")
        a(f"v_pk_mul_f32 {q(B,2)}, {q(B,2)}, {q(B+4,2)}"); a(f"v_pk_mul_f32 {q(B+2,2)}, {q(B+2,2)}, {q(B+6,2)}")
        a(f"v_cvt_pk_bf16_f32 v{YA+2*ft}, v{B}, v{B+1}"); a(f"v_cvt_pk_bf16_f32 v{YA+2*ft+1}, v{B+2}, v{B+3}")
    flag(4)
    for d in range(4):
        a(f"v_cndmask_b32 v{YA+4+d}, 0, v{YA+d}, s[46:47]")
    for d in range(4):
        a(f"v_cndmask_b32 v{YA+8+d}, v{YA+d}, 0, s[46:47]")
    for pr in range(4):
        a(f"v_mfma_f32_16x16x32_bf16 {q(T+4*pr)}, {q(QA+8*pr)}, {q(YA+4)}, 0")
        if pr == 0:
            a("s_nop 0")
    for pr in range(4):
        a(f"v_mfma_f32_16x16x32_bf16 {q(T+4*pr)}, {q(QA+8*pr+4)}, {q(YA+8)}, {q(T+4*pr)}")
    a("s_mov_b32 exec_lo, 0x00ff00ff"); a("s_mov_b32 exec_hi, 0x00ff00ff")
    a("s_cmp_eq_u32 s62, 3")
    a("s_nop 1")
    for pr in range(4):
        if pr == 2:
            a("s_cbranch_scc1 L_opdone")
        a(f"buffer_store_dwordx4 {q(T+4*pr)}, v13, s[40:43], s58 offen {stfl}")
        if pr < 3:
            a("v_add_u32 v13, 7168, v13")
    a("L_opdone:")
    if dry:
        a("s_cbranch_vccnz L_ffnreal")
    a("s_mov_b64 exec, -1")
    stamp(4)
    if diag:
        a("s_waitcnt vmcnt(0)")
        stamp(5)
    a("s_branch L_done")

    a("L_r1:")
    a(f"s_sub_u32 s48, s2, {R1LO}")
    a("s_cmp_lt_u32 s48, 56")
    a("s_cbranch_scc0 L_done")
    a("s_mul_i32 s58, s48, 4682"); a("s_lshr_b32 s58, s58, 16"); a("s_mul_i32 s49, s58, 14"); a("s_sub_u32 s59, s48, s49")
    a("s_lshl_b32 s56, s48, 7")
    a("v_lshrrev_b32 v5, 3, v0"); a("v_and_b32 v6, 7, v0"); a("v_lshlrev_b32 v9, 4, v6")
    a("v_mul_u32_u24 v7, 1792, v5"); a("v_add_u32 v7, v7, v9")
    a("v_lshl_add_u32 v8, v5, 7, v9")
    a("v_lshl_add_u32 v10, v2, 3, v6"); a("v_lshlrev_b32 v10, 4, v10"); a("s_lshl_b32 s49, s62, 2"); a(f"s_add_u32 s49, s49, {L_RB}"); a("v_add_u32 v10, s49, v10")
    a("v_and_b32 v4, 31, v0"); a("v_lshlrev_b32 v9, 4, v4"); a(f"v_add_u32 v9, {L_RB}, v9")
    a("v_lshrrev_b32 v12, 3, v4"); a("v_lshl_add_u32 v12, v6, 2, v12"); a("v_lshlrev_b32 v12, 1, v12")
    a("s_lshr_b32 s61, s56, 1")
    a("buffer_load_ushort v11, v12, s[32:35], s61 offen")
    a("v_mul_u32_u24 v13, 7168, v3"); a("v_lshl_add_u32 v13, v4, 2, v13")
    a(f"s_mul_i32 s57, s62, {2*7168}"); a("s_add_u32 s57, s57, s56"); a(f"s_add_u32 s57, s57, {W_HB}")
    a(f"s_mul_i32 s44, s58, {64*1792}"); a("s_lshl_b32 s49, s59, 7"); a("s_add_u32 s44, s44, s49")
    a(f"s_mul_i32 s49, s62, {16*1792}"); a("s_add_u32 s44, s44, s49"); a(f"s_add_u32 s45, s44, {8*1792}")
    a("s_mul_i32 s46, s48, 7168"); a(f"s_mul_i32 s49, s62, {14*128}"); a("s_add_u32 s46, s46, s49"); a(f"s_add_u32 s46, s46, {W_OP}"); a("s_add_u32 s47, s46, 1024")
    a("s_lshl_b32 s60, s48, 7"); a(f"s_add_u32 s60, s60, {W_FL}")
    a("s_mov_b32 s36, -1"); a("s_mov_b32 s37, 0xffff")
    for r in range(4):
        a(f"v_mov_b32 v{T+4+r}, 0")
    a("s_waitcnt vmcnt(0)")
    a("v_lshlrev_b32 v11, 16, v11")
    srd(32, 22, 3584)
    if dry1:
        a("s_mov_b32 s42, 0"); a("s_mov_b32 s34, 0"); a("s_mov_b64 vcc, -1"); a("v_mov_b32 v5, v11")
        a("s_branch L_r1body")
        a("L_r1real:")
        a(f"s_mov_b32 s42, {WS_BYTES}"); a("s_mov_b32 s34, 3584"); a("s_mov_b64 vcc, 0"); a("s_mov_b64 exec, -1"); a("v_mov_b32 v11, v5")
    lds_wait_ge(F_FOK, "s48", 1, 6, sleep=16)
    end_wait(NT)
    if g1:
        a("v_mul_u32_u24 v4, 1792, v0")
        gate(4, "s44", g1n, g1, 6)
    poll_quads(T2, 7, ["s44", "s45"], 6, both=first2, pdep=pd[1])
    stamp(3)

    def sum2(R, off):
        a(f"v_pk_add_f32 {q(YA,2)}, {q(R,2)}, {q(R+4,2)}"); a(f"v_pk_add_f32 {q(YA+2,2)}, {q(R+2,2)}, {q(R+6,2)}")
        a("s_nop 1")
        a(f"v_permlane16_swap_b32 v{YA}, v{YA+1}")
        a(f"v_permlane16_swap_b32 v{YA+2}, v{YA+3}")
        a(f"v_add_f32 v{YA}, v{YA}, v{YA+1}")
        a(f"v_add_f32 v{YA+2}, v{YA+2}, v{YA+3}")
        a("s_nop 1")
        a(f"v_permlane32_swap_b32 v{YA}, v{YA+2}")
        a(f"v_add_f32 v{YA}, v{YA}, v{YA+2}")
        a("s_nop 1")
        a(f"v_add_f32_dpp v{YA}, v{YA}, v{YA} row_ror:8 row_mask:0xf bank_mask:0xf")
        a(f"ds_write_b32 v10, v{YA} offset:{off}")
        a("s_waitcnt lgkmcnt(0)")
        if dry1:
            a(f"s_cbranch_vccnz L_rb{off}")
        a("s_barrier")
        a(f"L_rb{off}:")
        a(f"ds_read_b128 {q(YA)}, v9 offset:{off}")
        a("s_waitcnt lgkmcnt(0)")
        a(f"v_pk_add_f32 {q(YA,2)}, {q(YA,2)}, {q(YA+2,2)}")
        a(f"v_add_f32 v{YA}, v{YA}, v{YA+1}")
        bf16r(YA, YA)
        a(f"v_add_f32 v11, v11, v{YA}")
    a("L_r1body:")
    sum2(T2, 0)
    bf16r(11, 11)
    a(f"buffer_store_dword v11, v13, s[40:43], s57 offen {stfl}")
    stamp(4)
    if dry1:
        a("s_cbranch_vccnz L_r3body")
    if g3:
        gate(15, "s60", 1, 1, 6, tag="s91")
    poll_quads(T, 8, ["s46", "s47"], 6, execs=["-1", "s[36:37]"], both=b3, pdep=pd[3])
    stamp(5)
    a("L_r3body:")
    sum2(T, 512)
    a("v_cvt_pk_bf16_f32 v11, v11, v11")
    a("s_lshl_b32 s48, s62, 3"); a("s_lshl_b32 exec_lo, 0xff, s48"); a("s_mov_b32 exec_hi, 0")
    a(f"buffer_store_short v11, v12, s[32:35], s61 offen {outfl}")
    if dry1:
        a("s_cbranch_vccnz L_r1real")
    a("s_mov_b64 exec, -1")
    stamp(6)
    a("L_done:")
    if padto:
        a("s_cmp_lg_u32 s2, 248"); a("s_cbranch_scc1 L_nopad"); a("s_cmp_lg_u32 s3, 7"); a("s_cbranch_scc1 L_nopad")
        a(f"s_add_u32 s98, s98, {padto*100}")
        a("L_pad:"); a("s_sleep 4"); a("s_memrealtime s[96:97]"); a("s_waitcnt lgkmcnt(0)"); a("s_cmp_lt_u32 s96, s98"); a("s_cbranch_scc1 L_pad")
        a("L_nopad:")
    finish()

    if not ldfirst:
        emit_loader()

    if diag:
        a("L_stamps:")
        a("v_mov_b32 v4, 0")
        for k in range(8):
            a(f"v_writelane_b32 v4, s{64+2*k}, {k}")
        a("s_getreg_b32 s48, hwreg(HW_REG_XCC_ID, 0, 4)")
        a("v_writelane_b32 v4, s48, 8")
        a("v_writelane_b32 v4, s63, 9")
        a("v_lshlrev_b32 v5, 2, v0")
        a("s_lshl_b32 s48, s2, 3"); a("s_add_u32 s48, s48, s3"); a("s_lshl_b32 s48, s48, 6"); a(f"s_add_u32 s48, s48, {W_ST}")
        a("s_mov_b64 exec, 0xffff")
        a("buffer_store_dword v4, v5, s[40:43], s48 offen")
    a("L_exit:")
    a("s_endpgm")
    a('.section .rodata,"a"')
    a(".p2align 6")
    a(f".amdhsa_kernel {KNAME}")
    a("  .amdhsa_next_free_vgpr 240")
    a("  .amdhsa_next_free_sgpr 100")
    a("  .amdhsa_accum_offset 240")
    a("  .amdhsa_group_segment_fixed_size 0")
    a("  .amdhsa_kernarg_size 96")
    a("  .amdhsa_user_sgpr_count 2")
    a("  .amdhsa_user_sgpr_kernarg_segment_ptr 1")
    a("  .amdhsa_system_sgpr_workgroup_id_x 1")
    a("  .amdhsa_float_denorm_mode_32 3")
    a(".end_amdhsa_kernel")
    out = []
    for x in L:
        if x is None:
            continue
        if al:
            for pref, e in al.items():
                if x.startswith(pref) and x.endswith(":") and x != "L_ld0:" and x != "L_ldrain:":
                    out.append(f".p2align {e}")
        if x == "L_worker:" and shift:
            out += ["    s_nop 0"] * shift
        if x.endswith(":") or x.startswith((";", ".")) or x.startswith("  ."):
            out.append(x)
        else:
            out.append("    " + x)
    return "\n".join(out) + "\n"


if __name__ == "__main__":
    kw = eval("dict(%s)" % (sys.argv[2] if len(sys.argv) > 2 else ""))
    open(sys.argv[1], "w").write(gen(**kw))
```

```python
import sys
KNAME = "sequential_preLN__mha_block_cached__glu_gated_bilinear__decode_kernel"

HEADER = """; Kernarg layout for this problem (96 bytes, ptrs only, base s[0:1]):
;
; hand-offs: workgroups 56-119 project 64 head dims of all batches through wo, workgroups 120-175 reduce the
; Hand-offs go through d_ws with agent-scope stores/loads; a word is valid once it differs from the all-ones
; pattern written earlier in the same launch, or once it carries this launch's tag."""

M0_ = 131072
F_FILL, F_CONS, F_QCNT, F_MLCNT, F_FOK, F_QOK, F_DEP, F_CB, F_CLR, F_PUB = (M0_ + o for o in (0, 4, 12, 16, 20, 24, 28, 32, 36, 40))
L_ML, L_F = M0_ + 64, M0_ + 80
L_XN = M0_ + 128
L_QP = M0_ + 1024
L_QB = M0_ + 4608
L_PB = M0_ + 5120
L_CB = M0_ + 9216
L_RB = M0_ + 10240
L_XN2 = M0_ + 14080
L_GU = M0_ + 17920
L_STG = M0_ + 19968
LDS_BYTES = M0_ + 28160
W_YP = 0
W_OP = 0x70000
W_OX = 0xD2000
W_HB = 0xF2000
W_ML = 0x100000
W_QX = 0x110000
W_EP = 0x120000
W_FL = 0x128000
W_FB = 0x130000
W_ST = 0x280000
WS_BYTES = 0x300000
SEL, SB, ACC, ACA, YA, QA, T, WL, FF = 16, 24, 32, 36, 40, 56, 88, 120, 184
T2 = WL + 32
LOG2E_16 = 0x3db8aa3b
INV448 = 0x3b124925
EPS = 0x3727c5ac
NF, R0LO, R1LO = 56, 56, 120


def gen(depth=22, fbd=(18, 20, 24, 27, 32), fbt=(32, 96, 160, 192, 224), fbg=8, fbs=(144, 200, 232), fbmix=4,
        r2dep=0, wt0=32, wdt=1, gt0=24, gdt=1, nrep=8, pstag=5, psleep=0, barpos=7, krot=0,
        diag=False, spin_bound=True, nowo=False, noffn=False, mlt=144, boost=None, tpoll=255, r3sleep=0, g1=0, g2=0, g3=4, b3=False, b2=True, gsl=0, pdep=1, tst='', vpre=0, ramp=6, rampd=22, qb=20, late=2, nlate=4, r2b=0, wide=True, sync='t', mmax=24, pmax=24, gap=0, xs=None, dpos=4, nbr=0, lsl=0, skip=0, msl=0, grp=1, doff=0, lpad=0, sites=(), endwait=False, lstamps=False, al=None, shift=0, outfl='', rsh=0, rmask=127, xl=7, perm=None, rsrc='w', padto=0, direct=251, dry0=False, dry1=False, trig='cb', g1n=16, gpair=False, pd=(2, 2, 1, 2), fastln=False, dry=True, patom=True, chkt=192, fbsl=4, csl=1, ldfirst=True, dummy=6, fbm='at', fbstr=256, lad=None, pi=None, r0dep=0, stt=((4, 224), (5, 240), (6, 248), (7, 192)), fbr=None, endt=0, endd=40, clrt=0, atomt=0, slowthr=0, slowsl=0, first2=False, stfl='sc1', ldfl='sc1', pret=False):
    if fbr is None:
        lv = sorted([depth] + list(fbd))
        ths = [th*8//256 for th in fbt]
        tab = tuple(lv[sum(r >= t for t in ths)] if fbd else depth for r in range(8))
        fbr = [(t, tab) for t in (fbs if fbd else ())]
    if lad:
        fbr = [(t, tuple(lad)) for t, _, _ in pi]
    lo = 0 if boost is None else 1
    depths = [depth] if boost is None else ([boost, depth] if not lad else [boost])
    for _, tab in fbr:
        for d in tab:
            if d not in depths[lo:]:
                depths.append(d)
    for d in ([endd] if endt else []) + [x for x in (r2dep, r0dep) if x]:
        if d not in depths[lo:]:
            depths.append(d)
    didx = lambda d: depths.index(d, lo)
    use_fb = bool(fbr)
    NT = 254 if direct else 256
    tpoll = min(tpoll, NT - 1)
    L = []
    a = L.append
    uid = [0]

    def fb_call(t):
        tab = dict(fbr)[t]
        if lad:
            _, P, I = [x for x in pi if x[0] == t][0]
            a(f"s_mov_b32 s50, {t}"); a(f"s_mov_b32 s51, {sum((d + 8) << (4*r) for r, d in enumerate(P)):#x}")
            a(f"s_mov_b32 s92, {sum((d + 8) << (4*r) for r, d in enumerate(I)):#x}")
            a("s_swappc_b64 s[54:55], s[52:53]")
            return
        a(f"s_mov_b32 s50, {t}"); a(f"s_mov_b32 s51, {sum(didx(d) << (4*r) for r, d in enumerate(tab)):#x}")
        a("s_swappc_b64 s[54:55], s[52:53]")

    def lab(p):
        uid[0] += 1
        return f"L_{p}{uid[0]}"

    def q(r, n=4):
        return f"v[{r}:{r+n-1}]"

    def srd(r, p, nbytes):
        a(f"s_mov_b32 s{r}, s{p}")
        a(f"s_and_b32 s{r+1}, s{p+1}, 0xffff")
        a(f"s_mov_b32 s{r+2}, {nbytes}")
        a(f"s_mov_b32 s{r+3}, 0x20000")

    site = [0]

    def stamp(k):
        site[0] += 1
        if not diag and (sites == 'all' or site[0] in sites):
            a(f"; site {site[0]}")
            a(f"s_memrealtime s[{64+2*k}:{65+2*k}]")
            a("s_waitcnt lgkmcnt(0)")
        if diag:
            a(f"s_memrealtime s[{64+2*k}:{65+2*k}]")
            a("s_waitcnt lgkmcnt(0)")

    def finish():
        if endwait and not diag:
            a("s_waitcnt vmcnt(0)")
        a("s_branch L_stamps" if diag else "s_endpgm")

    def bound_init(n=1 << 20):
        if spin_bound:
            a(f"s_mov_b32 s63, {n}")

    def bound_loop(target):
        if spin_bound:
            a("s_sub_u32 s63, s63, 1")
            a(f"s_cbranch_scc0 {target}")
        else:
            a(f"s_branch {target}")

    def lds_wait_ge(off, sdst, cmp_operand, vt, sleep=1, precheck=False, vaddr=14):
        p, go = lab("poll"), lab("go")
        if precheck:
            a(f"s_cmp_ge_u32 {sdst}, {cmp_operand}")
            a(f"s_cbranch_scc1 {go}")
        bound_init()
        a(f"{p}:")
        a(f"ds_read_b32 v{vt}, v{vaddr} offset:{off - M0_}")
        a("s_waitcnt lgkmcnt(0)")
        a(f"v_readfirstlane_b32 {sdst}, v{vt}")
        a(f"s_cmp_ge_u32 {sdst}, {cmp_operand}")
        a(f"s_cbranch_scc1 {go}")
        if sleep:
            a(f"s_sleep {sleep}")
        bound_loop(p)
        a(f"{go}:")

    def call_setup(target, fwd):
        l0 = lab("pc")
        a("s_getpc_b64 s[52:53]")
        a(f"{l0}:")
        if fwd:
            a(f"s_add_u32 s52, s52, {target}-{l0}"); a("s_addc_u32 s53, s53, 0")
        else:
            a(f"s_sub_u32 s52, s52, {l0}-{target}"); a("s_subb_u32 s53, s53, 0")

    def call():
        a("s_swappc_b64 s[54:55], s[52:53]")

    def call_woperm():
        l0, l1 = lab("wr"), lab("wr")
        a("s_getpc_b64 s[54:55]")
        a(f"{l0}:")
        a(f"s_add_u32 s54, s54, {l1}-{l0}"); a("s_addc_u32 s55, s55, 0")
        a("s_branch L_woperm")
        a(f"{l1}:")

    DPPS = [("row_ror:8", 0xf), ("row_ror:4", 0xf), ("row_ror:2", 0xf), ("row_ror:1", 0xf),
            ("row_bcast:15", 0xa), ("row_bcast:31", 0xc)]

    def wave_red(op, v, sdst):
        for d, m in DPPS:
            a("s_nop 1")
            a(f"{op}_dpp v{v}, v{v}, v{v} {d} row_mask:{m:#x} bank_mask:0xf")
        a("s_nop 0")
        a(f"v_readlane_b32 {sdst}, v{v}, 63")
        a("s_nop 1")

    def bf16r(dst, src):
        a(f"v_cvt_pk_bf16_f32 v{dst}, v{src}, v{src}")
        a(f"v_and_b32 v{dst}, 0xffff0000, v{dst}")

    def layernorm(X, t, out, fast=False):
        D, s1, s2, u = t, t + 8, t + 10, t + 12
        a(f"v_readfirstlane_b32 s48, v{X}")
        a(f"v_mov_b32 v{s1}, 0"); a(f"v_mov_b32 v{s2}, 0")
        a("s_mov_b32 exec_hi, 0x00ffffff")
        for e in range(0, 8, 2):
            a(f"v_pk_add_f32 {q(D+e,2)}, {q(X+e,2)}, s[48:49] op_sel_hi:[1,0] neg_lo:[0,1] neg_hi:[0,1]")
        a(f"v_pk_add_f32 {q(u,2)}, {q(D,2)}, {q(D+2,2)}")
        a(f"v_pk_mul_f32 {q(s2,2)}, {q(D,2)}, {q(D,2)}")
        a(f"v_pk_add_f32 {q(s1,2)}, {q(D+4,2)}, {q(D+6,2)}")
        a(f"v_pk_fma_f32 {q(s2,2)}, {q(D+2,2)}, {q(D+2,2)}, {q(s2,2)}")
        a(f"v_pk_add_f32 {q(s1,2)}, {q(s1,2)}, {q(u,2)}")
        a(f"v_pk_fma_f32 {q(s2,2)}, {q(D+4,2)}, {q(D+4,2)}, {q(s2,2)}")
        a(f"v_add_f32 v{s1}, v{s1}, v{s1+1}")
        a(f"v_pk_fma_f32 {q(s2,2)}, {q(D+6,2)}, {q(D+6,2)}, {q(s2,2)}")
        a(f"s_mov_b32 s49, {INV448:#x}")
        a(f"v_add_f32 v{s2}, v{s2}, v{s2+1}")
        a("s_mov_b32 exec_hi, -1")
        for d, m in DPPS:
            a("s_nop 0")
            a(f"v_add_f32_dpp v{s1}, v{s1}, v{s1} {d} row_mask:{m:#x} bank_mask:0xf")
            a(f"v_add_f32_dpp v{s2}, v{s2}, v{s2} {d} row_mask:{m:#x} bank_mask:0xf")
        a(f"v_mov_b32 v{u}, s49")
        a(f"v_readlane_b32 s50, v{s1}, 63")
        a(f"v_readlane_b32 s51, v{s2}, 63")
        a("s_nop 0")
        a(f"v_mul_f32 v{s1}, s50, v{u}")
        a(f"v_mul_f32 v{s2}, s51, v{u}")
        a(f"v_add_f32 v{u}, s48, v{s1}")
        a(f"v_fma_f32 v{s2}, -v{s1}, v{s1}, v{s2}")
        if fast:
            a(f"v_max_f32 v{s2}, 0, v{s2}")
            a(f"v_pk_add_f32 {q(D,2)}, {q(X,2)}, {q(u,2)} op_sel_hi:[1,0] neg_lo:[0,1] neg_hi:[0,1]")
            a(f"v_add_f32 v{s2}, {EPS:#x}, v{s2}")
            a(f"v_pk_add_f32 {q(D+2,2)}, {q(X+2,2)}, {q(u,2)} op_sel_hi:[1,0] neg_lo:[0,1] neg_hi:[0,1]")
            a(f"v_rsq_f32 v{s2}, v{s2}")
            a(f"v_pk_add_f32 {q(D+4,2)}, {q(X+4,2)}, {q(u,2)} op_sel_hi:[1,0] neg_lo:[0,1] neg_hi:[0,1]")
            a(f"v_pk_add_f32 {q(D+6,2)}, {q(X+6,2)}, {q(u,2)} op_sel_hi:[1,0] neg_lo:[0,1] neg_hi:[0,1]")
            for e in range(0, 8, 2):
                a(f"v_pk_mul_f32 {q(D+e,2)}, {q(D+e,2)}, {q(s2,2)} op_sel_hi:[1,0]")
            for d in range(4):
                a(f"v_cvt_pk_bf16_f32 v{out+d}, v{D+2*d}, v{D+2*d+1}")
            return
        a(f"v_cvt_pk_bf16_f32 v{u}, v{u}, v{u}")
        a(f"v_max_f32 v{s2}, 0, v{s2}")
        a(f"v_and_b32 v{u}, 0xffff0000, v{u}")
        a(f"v_cvt_pk_bf16_f32 v{s2}, v{s2}, v{s2}")
        a(f"v_pk_add_f32 {q(D,2)}, {q(X,2)}, {q(u,2)} op_sel_hi:[1,0] neg_lo:[0,1] neg_hi:[0,1]")
        a(f"v_and_b32 v{s2}, 0xffff0000, v{s2}")
        a(f"v_pk_add_f32 {q(D+2,2)}, {q(X+2,2)}, {q(u,2)} op_sel_hi:[1,0] neg_lo:[0,1] neg_hi:[0,1]")
        a(f"v_add_f32 v{s2}, {EPS:#x}, v{s2}")
        a(f"v_pk_add_f32 {q(D+4,2)}, {q(X+4,2)}, {q(u,2)} op_sel_hi:[1,0] neg_lo:[0,1] neg_hi:[0,1]")
        a(f"v_cvt_pk_bf16_f32 v{s2}, v{s2}, v{s2}")
        a(f"v_pk_add_f32 {q(D+6,2)}, {q(X+6,2)}, {q(u,2)} op_sel_hi:[1,0] neg_lo:[0,1] neg_hi:[0,1]")
        a(f"v_and_b32 v{s2}, 0xffff0000, v{s2}")
        a(f"v_cvt_pk_bf16_f32 v{out}, v{D}, v{D+1}")
        a(f"v_sqrt_f32 v{s2}, v{s2}")
        a(f"v_cvt_pk_bf16_f32 v{out+1}, v{D+2}, v{D+3}")
        a(f"v_cvt_pk_bf16_f32 v{s2}, v{s2}, v{s2}")
        a(f"v_cvt_pk_bf16_f32 v{out+2}, v{D+4}, v{D+5}")
        a(f"v_and_b32 v{s2}, 0xffff0000, v{s2}")
        a(f"v_cvt_pk_bf16_f32 v{out+3}, v{D+6}, v{D+7}")
        a(f"v_rcp_f32 v{s2}, v{s2}")
        for d in range(4):
            a(f"v_lshlrev_b32 v{D+2*d}, 16, v{out+d}"); a(f"v_and_b32 v{D+2*d+1}, 0xffff0000, v{out+d}")
        for e in range(0, 8, 2):
            a(f"v_pk_mul_f32 {q(D+e,2)}, {q(D+e,2)}, {q(s2,2)} op_sel_hi:[1,0]")
        for d in range(4):
            a(f"v_cvt_pk_bf16_f32 v{out+d}, v{D+2*d}, v{D+2*d+1}")

    def build_a(dst, psrc, n):
        for w in range(4):
            a(f"v_perm_b32 v{dst+w}, v{psrc + (n >> 1)}, v{psrc + (n >> 1)}, v{SEL + (n & 1)*4 + w}")

    def xreduce(V):
        a("s_nop 1")
        a(f"v_permlane16_swap_b32 v{V}, v{V+1}")
        a(f"v_permlane16_swap_b32 v{V+2}, v{V+3}")
        a(f"v_add_f32 v{V}, v{V}, v{V+1}")
        a(f"v_add_f32 v{V+2}, v{V+2}, v{V+3}")
        a("s_nop 1")
        a(f"v_permlane32_swap_b32 v{V}, v{V+2}")
        a(f"v_add_f32 v{V}, v{V}, v{V+2}")
        a("s_nop 1")
        a(f"v_add_f32_dpp v{V}, v{V}, v{V} row_ror:8 row_mask:0xf bank_mask:0xf")
        a("s_nop 1")
        a(f"v_add_f32_dpp v{V}, v{V}, v{V} row_ror:4 row_mask:0xf bank_mask:0xf")

    def poll_quads(R, voff, soffs, vt, execs=None, both=False, pdep=1):
        n = len(soffs)
        execs = execs or ["-1"] * n

        def batch(masked):
            for g in range(n):
                if masked:
                    a(f"s_or_b64 exec, s[{80+2*g}:{81+2*g}], 1")
                elif g == 0 or execs[g] != execs[g-1]:
                    a(f"s_mov_b64 exec, {execs[g]}")
                a(f"buffer_load_dwordx4 {q(R+4*g)}, v{voff}, s[40:43], {soffs[g]} offen {ldfl}")

        def check(extra, go):
            for g in range(n):
                if g == 0 or execs[g] != execs[g-1]:
                    a(f"s_mov_b64 exec, {execs[g]}")
                a(f"s_waitcnt vmcnt({extra + n-1-g})")
                a(f"v_max3_u32 v{vt}, v{R+4*g}, v{R+4*g+1}, v{R+4*g+2}")
                a(f"v_max_u32 v{vt}, v{vt}, v{R+4*g+3}")
                a(f"v_cmp_eq_u32 s[{80+2*g}:{81+2*g}], -1, v{vt}")
            a("s_or_b64 s[50:51], s[80:81], s[82:83]")
            for g in range(2, n):
                a(f"s_or_b64 s[50:51], s[50:51], s[{80+2*g}:{81+2*g}]")
            a(f"s_cbranch_scc0 {go}")
        p, go = lab("gp"), lab("gg")
        batch(False)
        if both:
            for _ in range(pdep - 1):
                a(f"s_sleep {pstag}")
                batch(False)
        else:
            check(0, go)
            batch(True)
            for _ in range(pdep - 1):
                a(f"s_sleep {pstag}")
                batch(True)
        bound_init(1 << 17)
        a(f"{p}:")
        check((pdep - 1) * n, go)
        if slowsl:
            sk = lab("fs")
            a("s_bcnt1_i32_b64 s48, s[50:51]"); a(f"s_cmp_le_u32 s48, {slowthr}"); a(f"s_cbranch_scc1 {sk}")
            a(f"s_sleep {slowsl}")
            a(f"{sk}:")
        if psleep:
            a(f"s_sleep {psleep}")
        batch(True)
        bound_loop(p)
        a(f"{go}:")
        a("s_mov_b64 exec, -1")

    def gate(voff, soff, nl, need, vt, tag=None):
        p, go = lab("wp"), lab("wg")
        bound_init(1 << 17)
        a(f"s_mov_b64 exec, {hex((1 << nl) - 1)}")
        a(f"{p}:")
        a(f"buffer_load_dword v{vt}, v{voff}, s[40:43], {soff} offen {ldfl}")
        a("s_waitcnt vmcnt(0)")
        a(f"v_cmp_ne_u32 s[50:51], -1, v{vt}" if tag is None else f"v_cmp_eq_u32 s[50:51], {tag}, v{vt}")
        a("s_bcnt1_i32_b64 s48, s[50:51]")
        a(f"s_cmp_ge_u32 s48, {need}")
        a(f"s_cbranch_scc1 {go}")
        if gsl:
            a(f"s_sleep {gsl}")
        bound_loop(p)
        a(f"{go}:")
        a("s_mov_b64 exec, -1")

    def end_wait(t):
        if trig == 'cb':
            lds_wait_ge(F_CB, "s48", 1, 6, sleep=4)
        else:
            lds_wait_ge(F_FILL, "s48", t, 6, sleep=4)

    def set_depth(src):
        a(f"v_mov_b32 v6, {src}")
        a(f"ds_write_b32 v14, v6 offset:{F_DEP-M0_}")

    def wo_load(k):
        ks, e = k >> 3, k & 7
        if nowo:
            return
        if (e & 3) == 0:
            a(f"s_mov_b32 s48, {(ks*32 + (e & 4))*896}")
        a(f"buffer_load_dwordx2 {q(WL+4*k,2)}, v4, s[36:39], s48 offen offset:{(e & 3)*896} nt")
        a(f"buffer_load_dwordx2 {q(WL+4*k+2,2)}, v4, s[36:39], s48 offen offset:{(e & 3)*896 + 128} nt")

    def wfrag(ks, t):
        return (T if ks == 0 else WL) + 4*t

    a(HEADER)
    a(f"; @launch grid=(256,1,1) block=(512,1,1) lds={LDS_BYTES}")
    a('.amdgcn_target "amdgcn-amd-amdhsa--gfx950"')
    a(".text")
    a(f".globl {KNAME}")
    a(".p2align 8")
    a(f".type {KNAME},@function")
    a(f"{KNAME}:")
    a("s_cmp_ge_u32 s2, 256")
    a("s_cbranch_scc1 L_exit")
    a("s_load_dwordx16 s[4:19], s[0:1], 0")
    a("s_load_dwordx8 s[20:27], s[0:1], 64")
    if diag:
        for k in range(16):
            a(f"s_mov_b32 s{64+k}, 0")
        a("s_memrealtime s[64:65]")
    if padto:
        a("s_memrealtime s[98:99]")
    a("v_lshrrev_b32 v1, 6, v0")
    a("v_and_b32 v0, 63, v0")
    a("v_readfirstlane_b32 s3, v1")
    if perm:
        a("s_mov_b32 s48, 0")
        for i, pb in enumerate(perm):
            a(f"s_bfe_u32 s49, s2, {(1 << 16) | i}"); a(f"s_lshl_b32 s49, s49, {pb}"); a("s_or_b32 s48, s48, s49")
        a("s_and_b32 s29, s48, 3"); a("s_lshr_b32 s28, s48, 2"); a("s_and_b32 s28, s28, 15"); a("s_lshr_b32 s30, s48, 6")
    elif xl == 2:
        a("s_and_b32 s28, s2, 7"); a("s_lshr_b32 s48, s2, 3"); a("s_and_b32 s49, s48, 1"); a("s_lshl_b32 s49, s49, 3")
        a("s_add_u32 s28, s28, s49")
        a("s_lshr_b32 s29, s48, 1"); a("s_and_b32 s29, s29, 3"); a("s_lshr_b32 s30, s48, 3")
    elif xl == 7:
        a("s_and_b32 s48, s2, 5"); a("s_lshl_b32 s48, s48, 1"); a("s_lshr_b32 s49, s2, 1"); a("s_and_b32 s49, s49, 5"); a("s_or_b32 s48, s48, s49")
        a("s_and_b32 s29, s48, 3"); a("s_and_b32 s49, s2, 0x30"); a("s_or_b32 s28, s48, s49"); a("s_lshr_b32 s28, s28, 2"); a("s_lshr_b32 s30, s2, 6")
    elif xl == 0:
        a("s_and_b32 s29, s2, 3"); a("s_lshr_b32 s28, s2, 2"); a("s_and_b32 s28, s28, 15"); a("s_lshr_b32 s30, s2, 6")
    elif xl == 4:
        a("s_and_b32 s28, s2, 15"); a("s_lshr_b32 s30, s2, 4"); a("s_and_b32 s30, s30, 3"); a("s_lshr_b32 s29, s2, 6")
    elif xl == 6:
        a("s_and_b32 s29, s2, 3"); a("s_lshr_b32 s48, s2, 2"); a("s_and_b32 s49, s48, 1"); a("s_lshl_b32 s49, s49, 3")
        a("s_lshr_b32 s30, s2, 3"); a("s_and_b32 s30, s30, 3"); a("s_lshr_b32 s28, s2, 5"); a("s_add_u32 s28, s28, s49")
    a("s_lshl_b32 s31, s30, 4"); a("s_add_u32 s31, s31, s28")
    a("v_and_b32 v1, 15, v0")
    a("v_lshrrev_b32 v2, 4, v0")
    a("v_lshrrev_b32 v3, 5, v0")
    def emit_loader():
        a("L_loader:")
        a("s_setprio 3")
        a("v_and_b32 v4, 31, v0"); a("v_xor_b32 v4, v4, v3"); a("v_lshlrev_b32 v4, 4, v4"); a("v_lshl_add_u32 v8, v3, 9, v4")
        for k in range(1, 8):
            a(f"v_xor_b32 v{8+k}, {k << 5}, v8")
        a("s_lshl_b32 s59, s31, 22"); a(f"s_lshl_b32 s49, s29, {qb}"); a("s_add_u32 s59, s59, s49")
        a("s_mov_b32 s56, 0"); a("s_mov_b32 s58, 0"); a("s_mov_b32 m0, 0")
        if krot:
            a("; both streams start at a workgroup-dependent tile and wrap around")
            a(f"s_lshr_b32 s60, s2, {rsh}"); a(f"s_mul_i32 s60, s60, {krot}"); a(f"s_and_b32 s60, s60, {rmask}"); a("s_lshl_b32 s60, s60, 13")
        else:
            a("s_mov_b32 s60, 0")
        a("s_mov_b32 s57, s60")
        a(f"s_mov_b32 s34, {(4 << 20) - (3 << qb)}"); a("s_mov_b32 s35, 0x20000")
        a(f"v_mov_b32 v24, {M0_}"); a(f"v_mov_b32 v17, {F_CONS + 4*((ramp or 1) & 1)}")
        if ramp:
            a("s_mov_b32 s50, 0")
        for r in range(4):
            a(f"v_mov_b32 v{20+r}, 0")
        a("ds_write_b128 v24, v[20:23]"); a("ds_write_b128 v24, v[20:23] offset:16"); a("ds_write_b128 v24, v[20:23] offset:32")
        a("s_waitcnt lgkmcnt(0)")
        if 'e' in tst:
            stamp(4)
        a("s_add_u32 s32, s6, s59"); a("s_addc_u32 s33, s7, 0"); a("s_and_b32 s33, s33, 0xffff")
        if diag:
            srd(40, 26, WS_BYTES)
        if ramp:
            a("; the first tiles fill the window back to back")
            a("L_lramp:")
            for k in range(8):
                if k == 4:
                    a("s_add_u32 m0, s56, 4096"); a("s_add_u32 s57, s57, 4096")
                a(f"s_waitcnt vmcnt({rampd-1})")
                a(f"buffer_load_dwordx4 v{8+k}, s[32:35], s57 offen offset:{(k&3)*1024} nt lds")
                if k == barpos:
                    a("s_cmp_lg_u32 s58, 0"); a("s_cbranch_scc1 L_lnb"); a("s_barrier"); a("L_lnb:")
            a("s_branch L_lnext")
        for di, dd in enumerate(depths):
            dd += doff
            waits = list(range(0, 8, grp))
            val = {k: (k - (dd - grp)) // 8 for k in waits}
            prev = {k: (val[k - grp] if k else val[waits[-1]] - 1) for k in waits}
            kpub = [k for k in waits if val[k] > prev[k]][0]
            lag = -val[kpub]
            a(f"L_ld{di}:")
            for k in range(8):
                if k == 4:
                    a("s_add_u32 m0, s56, 4096"); a("s_add_u32 s57, s57, 4096")
                    if msl:
                        a(f"s_sleep {msl}")
                if k == kpub:
                    a(f"s_sub_u32 s49, s58, {lag}"); a("s_max_i32 s49, s49, 0"); a("v_mov_b32 v19, s49")
                if k % grp == 0:
                    a(f"s_waitcnt vmcnt({dd-grp})")
                elif k == 4:
                    a("s_nop 0")
                a(f"buffer_load_dwordx4 v{8+k}, s[32:35], s57 offen offset:{(k&3)*1024} nt lds")
                if k == kpub:
                    a("ds_write_b32 v24, v19")
                if k == kpub and 'p' in sync and dd <= pmax:
                    a("s_waitcnt lgkmcnt(0)")
                if k == 6 and 't' not in sync:
                    a("ds_read_b32 v18, v17")
                if k == 6 and 'm' not in sync:
                    a(f"ds_read_b32 v25, v24 offset:{F_DEP-M0_}")
                if k == dpos - 1 and 'm' in sync:
                    a(f"ds_read_b32 v25, v24 offset:{F_DEP-M0_}")
                if k == (dpos - 1 if dd <= mmax else 7) and 'm' in sync:
                    a("s_waitcnt lgkmcnt(0)"); a("v_readfirstlane_b32 s50, v25")
                if xs:
                    for (dmax, kk, nn) in xs:
                        if dd <= dmax and k == kk:
                            a(f"s_nop {nn}")
                if gap:
                    a(f"s_nop {gap-1}")
                if di == 0 and k == barpos and not ramp:
                    sk = lab("nb")
                    a("s_cmp_lg_u32 s58, 0"); a(f"s_cbranch_scc1 {sk}")
                    if 'e' in tst:
                        stamp(5)
                    a("s_barrier")
                    if 'e' in tst:
                        a("s_waitcnt vmcnt(7)"); stamp(6)
                    a(f"{sk}:")
            if di + 1 < len(depths):
                a("s_branch L_lnext")
        a("L_lnext:")
        if qb == 20:
            a("s_add_u32 s57, s57, 4096"); a("s_and_b32 s57, s57, 0xfffff")
        else:
            a(f"s_add_u32 s57, s57, 4096"); a(f"s_and_b32 s48, s57, {(1 << qb) - 1}"); a(f"s_cselect_b32 s48, 0, {3 << qb}"); a("s_add_u32 s57, s57, s48")
        a("s_add_u32 s56, s56, 8192"); a("s_and_b32 s56, s56, 0x1ffff")
        a("s_add_u32 s58, s58, 1")
        if diag or lstamps:
            for kk, tt in stt:
                sk = lab("st")
                a(f"s_cmp_lg_u32 s58, {tt}"); a(f"s_cbranch_scc1 {sk}"); stamp(kk); a(f"{sk}:")
        for _ in range(lpad):
            a("s_nop 0")
        for _ in range(nbr):
            sk = lab("jb"); a(f"s_branch {sk}"); a(f"{sk}:")
        if lsl:
            a(f"s_sleep {lsl}")
        if skip:
            sk = lab("jb"); a(f"s_branch {sk}")
            for _ in range(skip):
                a("s_nop 0")
            a(f"{sk}:")
        a("s_cmp_lg_u32 s58, 128")
        a("s_cbranch_scc1 L_lnosw")
        a("s_add_u32 s32, s8, s59"); a("s_addc_u32 s33, s9, 0"); a("s_and_b32 s33, s33, 0xffff"); a("s_mov_b32 s57, s60")
        for k in range(8):
            a(f"v_lshlrev_b32 v{8+k}, 4, v0")
        stamp(1)
        a("L_lnosw:")
        a(f"s_cmp_ge_u32 s58, {NT}")
        a("s_cbranch_scc1 L_ldrain")
        if ramp:
            a("s_mov_b32 m0, s56")
            a(f"s_cmp_lt_u32 s58, {ramp}"); a("s_cbranch_scc1 L_lramp")
        a("s_lshr_b32 s49, s58, 1"); a("s_sub_u32 s49, s49, 7")
        p, go = lab("fp"), lab("fg")
        if 't' not in sync or 'm' not in sync:
            a("s_waitcnt lgkmcnt(0)")
        if 'm' not in sync:
            a("v_readfirstlane_b32 s50, v25")
        if 't' not in sync:
            a("v_readfirstlane_b32 s48, v18")
            a("s_cmp_ge_i32 s48, s49")
            a(f"s_cbranch_scc1 {go}")
        bound_init()
        a(f"{p}:")
        a("ds_read_b32 v18, v17"); a("s_waitcnt lgkmcnt(0)"); a("v_readfirstlane_b32 s48, v18")
        a("s_cmp_ge_i32 s48, s49")
        a(f"s_cbranch_scc1 {go}")
        a("s_sleep 1")
        bound_loop(p)
        a(f"{go}:")
        a("v_xor_b32 v17, 12, v17")
        a("s_mov_b32 m0, s56")
        for di in range(1, len(depths)):
            a(f"s_cmp_eq_u32 s50, {di}"); a(f"s_cbranch_scc1 L_ld{di}")
        a("s_branch L_ld0")
        a("L_ldrain:")
        stamp(2)
        for c in range(NT - (max(depths) + doff + 6) // 8, NT + 1):
            a(f"v_mov_b32 v19, {c}")
            a(f"s_waitcnt vmcnt({8*(NT-c)})")
            a("ds_write_b32 v24, v19")
        a("s_waitcnt lgkmcnt(0)")
        stamp(3)
        finish()


    if ldfirst:
        a("s_cmp_lg_u32 s3, 0")
        a("s_cbranch_scc1 L_worker")
        emit_loader()
        a("L_worker:")
    else:
        a("s_cmp_eq_u32 s3, 0")
        a("s_cbranch_scc1 L_loader")

    a("s_sub_u32 s60, s3, 1")
    a("v_lshlrev_b32 v5, 4, v0")
    a("s_mul_i32 s48, s30, 896")
    a("v_add_u32 v5, s48, v5")
    a("v_mov_b32 v6, 0x7fffff00")
    a("v_cmp_gt_u32 vcc, 56, v0")
    a("v_and_b32 v4, 7, v0")
    a("v_lshlrev_b32 v4, 4, v4")
    a("v_cndmask_b32 v5, v6, v5, vcc")
    a("v_lshrrev_b32 v13, 3, v0")
    a("v_lshl_add_u32 v4, v13, 16, v4")
    a("s_lshl_b32 s48, s60, 19"); a("s_lshl_b32 s49, s28, 9"); a("s_add_u32 s48, s48, s49")
    a("s_lshl_b32 s49, s29, 7"); a("s_add_u32 s48, s48, s49")
    a("v_add_u32 v4, s48, v4")
    a("s_waitcnt lgkmcnt(0)")
    srd(32, 4, 3584)
    srd(36, 10, 3670016)
    a(f"buffer_load_dwordx4 {q(YA)}, v5, s[32:35], 0 offen")
    a(f"s_add_u32 s48, s26, {W_EP}"); a("s_addc_u32 s49, s27, 0")
    a("s_load_dword s62, s[48:49], 0")
    a("v_mov_b32 v15, 0")
    a("s_barrier")
    a("s_mov_b32 s50, 0")
    for n in range(8):
        a(f"buffer_load_dwordx4 {q(QA+4*n)}, v4, s[36:39], s50 offen nt") if 'w' not in tst else a(f"buffer_load_dword v{QA+4*n}, v15, s[32:35], 0 offen")
        if n < 7:
            a("s_add_u32 s50, s50, 8192")
    srd(40, 26, WS_BYTES)
    for r in range(4):
        a(f"v_mov_b32 v{ACA+r}, -1")
    a("s_lshl_b32 s48, s2, 2"); a("s_add_u32 s48, s48, s3"); a("s_sub_u32 s48, s48, 4"); a("s_lshl_b32 s48, s48, 10")
    a("s_cmp_ge_u32 s3, 4"); a(f"s_cselect_b32 s48, s48, {WS_BYTES}")
    a("v_lshlrev_b32 v6, 4, v0")
    a(f"buffer_store_dwordx4 {q(ACA)}, v6, s[40:43], s48 offen sc1")
    a("v_and_b32 v6, 1, v1"); a("v_cmp_eq_u32 vcc, 1, v6")
    a("v_mov_b32 v7, 0x0c0c0100"); a("v_mov_b32 v8, 0x01000c0c"); a("v_mov_b32 v9, 0x0c0c0302"); a("v_mov_b32 v10, 0x03020c0c")
    a("v_cndmask_b32 v7, v7, v8, vcc"); a("v_cndmask_b32 v9, v9, v10, vcc")
    a("v_bfe_u32 v6, v1, 1, 2"); a("v_mov_b32 v10, 0x0c0c0c0c")
    for w in range(4):
        a(f"v_cmp_eq_u32 vcc, {w}, v6"); a("s_nop 1")
        a(f"v_cndmask_b32 v{SEL+w}, v10, v7, vcc"); a(f"v_cndmask_b32 v{SEL+4+w}, v10, v9, vcc")
    a("v_mov_b32 v15, 0")
    a(f"v_mov_b32 v14, {M0_}")
    a(f"v_lshlrev_b32 v8, 4, v0"); a(f"v_add_u32 v8, {L_XN}, v8")
    a("s_lshl_b32 s48, s60, 7"); a(f"s_add_u32 s48, s48, {L_XN}")
    a("v_lshl_add_u32 v9, v13, 4, s48")
    a("v_lshrrev_b32 v6, 1, v2"); a("v_lshlrev_b32 v6, 8, v6"); a("v_and_b32 v7, 7, v1"); a("v_lshl_add_u32 v6, v7, 5, v6")
    a("v_and_b32 v7, 1, v2"); a("v_lshl_add_u32 v6, v7, 4, v6")
    a("s_lshl_b32 s48, s60, 9"); a(f"s_add_u32 s48, s48, {L_QP}")
    a("v_add_u32 v6, s48, v6")
    a("v_mov_b32 v7, 1")
    a("s_waitcnt vmcnt(9)")
    for d in range(4):
        a(f"v_lshlrev_b32 v{T+2*d}, 16, v{YA+d}"); a(f"v_and_b32 v{T+2*d+1}, 0xffff0000, v{YA+d}")
    layernorm(T, T + 8, YA)
    a("s_mov_b32 exec_hi, 0x00ffffff")
    a(f"ds_write_b128 v8, {q(YA)}")
    a("s_mov_b32 exec_hi, -1")
    a("s_waitcnt lgkmcnt(0)")
    a(f"ds_read_b128 {q(YA)}, v9")
    stamp(1)
    a("s_waitcnt lgkmcnt(0)")
    for n in range(8):
        build_a(T + 4*n, YA, n)
    for n in range(8):
        a(f"s_waitcnt vmcnt({8-n})")
        a(f"v_mfma_f32_16x16x32_bf16 {q(ACC)}, {q(T+4*n)}, {q(QA+4*n)}, {q(ACC) if n else 0}")
    a("s_mov_b32 exec_lo, 0x00ff00ff"); a("s_mov_b32 exec_hi, 0xff00ff00")
    a("s_nop 5")
    a(f"ds_write_b128 v6, {q(ACC)}")
    a("s_waitcnt lgkmcnt(0)")
    a("s_mov_b64 exec, 1")
    a(f"ds_add_u32 v14, v7 offset:{F_QCNT-M0_}")
    a("s_waitcnt vmcnt(0)")
    a(f"ds_add_u32 v14, v7 offset:{F_CLR-M0_}")
    a("s_add_u32 s91, s62, 1")
    a("s_mov_b64 exec, -1")
    stamp(2)
    a("s_cmp_eq_u32 s3, 3")
    a("s_cbranch_scc1 L_h4")
    a("s_cmp_gt_u32 s3, 3")
    a("s_cbranch_scc1 L_helper")

    a("v_and_b32 v6, 1, v2"); a("v_lshrrev_b32 v8, 3, v1"); a("v_cmp_eq_u32 vcc, v6, v8"); a("s_nop 1")
    for w in range(8):
        a(f"v_cndmask_b32 v{SEL+w}, v10, v{SEL+w}, vcc")
    a("v_and_b32 v6, 3, v1"); a("v_xor_b32 v6, v6, v2"); a("v_and_b32 v7, 12, v1"); a("v_or_b32 v6, v6, v7")
    for m in range(4):
        a(f"v_xor_b32 v7, {m*4}, v6"); a("v_lshlrev_b32 v7, 4, v7"); a(f"v_lshl_add_u32 v{8+m}, v1, 9, v7")
    a("v_and_b32 v6, 1, v1"); a("v_lshlrev_b32 v6, 4, v6"); a("v_and_b32 v7, 14, v1"); a("v_add_u32 v12, v6, v7")
    a("s_lshl_b32 s48, s60, 5"); a(f"s_add_u32 s61, s48, {L_PB}")
    a("v_add_u32 v12, s61, v12")
    a("s_lshl_b32 s48, s60, 2"); a(f"s_add_u32 s48, s48, {F_CONS}"); a("v_mov_b32 v13, s48")
    a("s_lshl_b32 s56, s60, 13")
    a("s_add_u32 s57, s60, 1")
    a("s_mov_b32 s58, 0")
    a("v_mov_b32 v5, 0")
    a(f"v_lshlrev_b32 v7, 4, v2"); a(f"v_add_u32 v7, {L_QB}, v7")
    lds_wait_ge(F_QOK, "s48", 1, 6)
    for ks in range(8):
        a(f"ds_read_b128 {q(QA+4*ks)}, v7 offset:{ks*64}")
    stamp(3)
    a("L_kloop:")
    for m in range(4):
        a(f"v_add_u32 v{SB+m}, s56, v{8+m}")
    a("v_add_u32 v5, 1, v5")
    lds_wait_ge(F_FILL, "s58", "s57", 6, precheck=True, sleep=csl)
    for ks in range(8):
        a(f"ds_read_b128 {q(T+4*ks)}, v{SB+(ks&3)} offset:{(ks>>2)*256}")
    for ks in range(8):
        a(f"s_waitcnt lgkmcnt({7-ks})")
        a(f"v_mfma_f32_16x16x32_bf16 {q(ACC)}, {q(QA+4*ks)}, {q(T+4*ks)}, {q(ACC) if ks else 0}")
    a("ds_write_b32 v13, v5")
    a("s_add_u32 s56, s56, 16384"); a("s_and_b32 s56, s56, 0x1ffff")
    a("s_add_u32 s57, s57, 2")
    a("s_nop 4")
    a(f"v_cvt_pk_bf16_f32 v6, v{ACC}, v{ACC}")
    a("ds_write_b16 v12, v6")
    a("v_add_u32 v12, 64, v12")
    a("s_cmp_lt_u32 s57, 129")
    a("s_cbranch_scc1 L_kloop")
    stamp(4)
    a("v_lshl_add_u32 v12, v0, 6, s61")
    a("s_waitcnt lgkmcnt(0)")
    a(f"ds_read_b128 {q(YA)}, v12"); a(f"ds_read_b128 {q(YA+4)}, v12 offset:16")
    a("s_waitcnt lgkmcnt(0)")
    for d in range(8):
        a(f"v_lshlrev_b32 v{T+2*d}, 16, v{YA+d}"); a(f"v_and_b32 v{T+2*d+1}, 0xffff0000, v{YA+d}")
    a(f"v_max3_f32 v6, v{T}, v{T+1}, v{T+2}")
    for d in range(3, 15, 2):
        a(f"v_max3_f32 v6, v6, v{T+d}, v{T+d+1}")
    a(f"v_max_f32 v6, v6, v{T+15}")
    wave_red("v_max_f32", 6, "s48")
    a(f"s_mov_b32 s49, {LOG2E_16:#x}")
    for d in range(16):
        a(f"v_subrev_f32 v{T+d}, s48, v{T+d}")
    for d in range(16):
        a(f"v_mul_f32 v{T+d}, s49, v{T+d}")
    for d in range(16):
        a(f"v_exp_f32 v{T+d}, v{T+d}")
    a("s_nop 0")
    for d in range(8):
        a(f"v_cvt_pk_bf16_f32 v{YA+d}, v{T+2*d}, v{T+2*d+1}")
    a(f"ds_write_b128 v12, {q(YA)}"); a(f"ds_write_b128 v12, {q(YA+4)} offset:16")
    for st in (8, 4, 2, 1):
        for d in range(st):
            a(f"v_add_f32 v{T+d}, v{T+d}, v{T+d+st}")
    wave_red("v_add_f32", T, "s49")
    a("v_mov_b32 v6, s48"); a("v_mov_b32 v7, s49")
    a("s_lshl_b32 s48, s60, 3"); a(f"s_add_u32 s48, s48, {L_ML}"); a("v_mov_b32 v8, s48"); a("v_mov_b32 v9, 1")
    a("s_mov_b64 exec, 1")
    a("ds_write_b64 v8, v[6:7]")
    a("s_waitcnt lgkmcnt(0)")
    a(f"ds_add_u32 v14, v9 offset:{F_MLCNT-M0_}")
    a("s_mov_b64 exec, -1")
    a("v_lshlrev_b32 v8, 4, v0")
    a("v_lshl_add_u32 v12, v3, 4, s61")
    a(f"v_add_u32 v10, {L_CB}, v8")
    for r in range(4):
        a(f"v_mov_b32 v{ACC+r}, 0")
    a("s_mov_b32 s59, 225")
    stamp(5)
    a("L_vloop:")
    a(f"ds_read_b128 {q(YA)}, v12")
    a("v_add_u32 v9, s56, v8")
    a("v_add_u32 v12, 64, v12")
    a("v_add_u32 v5, 1, v5")
    a("s_waitcnt lgkmcnt(0)")
    for n in range(8):
        build_a(QA + 4*n, YA, n)
    lds_wait_ge(F_FILL, "s58", "s57", 6, precheck=True, sleep=csl)
    for n in range(8):
        a(f"ds_read_b128 {q(T+4*n)}, v9 offset:{n*1024}")
    a(f"ds_read_b32 v6, v14 offset:{F_CB-M0_}")
    a(f"ds_read_b128 {q(ACA)}, v10")
    for n in range(8):
        a(f"s_waitcnt lgkmcnt({9-n})")
        a(f"v_mfma_f32_16x16x32_bf16 {q(ACC)}, {q(QA+4*n)}, {q(T+4*n)}, {q(ACC)}")
    a("ds_write_b32 v13, v5")
    a("s_add_u32 s56, s56, 16384"); a("s_and_b32 s56, s56, 0x1ffff")
    a("s_add_u32 s57, s57, 2")
    a("s_cmp_lt_u32 s57, s59")
    a("s_cbranch_scc1 L_vloop")
    a("s_cmp_gt_u32 s59, 253")
    a("s_cbranch_scc1 L_vdone")
    if direct:
        a("s_cmp_gt_u32 s59, 240")
        a("s_cbranch_scc1 L_vdir")
    lds_wait_ge(F_FOK, "s48", 1, 6)
    a("s_lshl_b32 s48, s60, 2"); a(f"s_add_u32 s48, s48, {L_F}"); a("v_mov_b32 v11, s48")
    a("ds_read_b32 v11, v11")
    a("v_lshrrev_b32 v6, 3, v1"); a("v_lshl_add_u32 v6, v3, 1, v6"); a("v_lshlrev_b32 v7, 11, v6")
    a("v_and_b32 v6, 7, v1"); a("v_lshl_add_u32 v7, v6, 4, v7"); a("v_and_b32 v6, 1, v2"); a("v_lshl_add_u32 v7, v6, 3, v7")
    a("s_lshl_b32 s48, s28, 13"); a("s_lshl_b32 s49, s30, 2"); a("s_add_u32 s49, s49, s29"); a("s_lshl_b32 s49, s49, 7")
    a("s_add_u32 s48, s48, s49"); a(f"s_add_u32 s61, s48, {W_OX}")
    if direct:
        a("s_lshl_b32 s48, s31, 22"); a(f"s_lshl_b32 s49, s29, {qb}"); a("s_add_u32 s48, s48, s49")
        a("s_add_u32 s36, s8, s48"); a("s_addc_u32 s37, s9, 0"); a("s_and_b32 s37, s37, 0xffff")
        a(f"s_mov_b32 s38, {(4 << 20) - (3 << qb)}"); a("s_mov_b32 s39, 0x20000")
        a(f"s_mov_b32 s59, {direct}")
        a("s_branch L_vloop")
        a("L_vdir:")
        lds_wait_ge(F_FILL, "s58", "s57", 6, precheck=True, sleep=csl)
        toff = lambda t: ((t >> (qb - 13)) << (qb + 2)) | ((t & ((1 << (qb - 13)) - 1)) << 13)
        a(f"s_mul_i32 s48, s60, {toff(127) - toff(126)}"); a(f"s_add_u32 s48, s48, {toff(126)}")
        for n in range(8):
            if n == 4:
                a("s_add_u32 s48, s48, 4096")
            a(f"buffer_load_dwordx4 {q(WL+4*n)}, v8, s[36:39], s48 offen offset:{(n&3)*1024} nt")
        a("s_mov_b32 s59, 255")
    else:
        a("s_mov_b32 s59, 257")
    a("s_branch L_vloop")
    a("L_vdone:")
    if direct:
        a(f"ds_read_b128 {q(YA)}, v12")
        a("s_waitcnt lgkmcnt(0)")
        for n in range(8):
            build_a(QA + 4*n, YA, n)
        for n in range(8):
            a(f"s_waitcnt vmcnt({7-n})")
            if n == 5:
                a(f"ds_read_b32 v6, v14 offset:{F_CB-M0_}")
                a(f"ds_read_b128 {q(ACA)}, v10")
            a(f"v_mfma_f32_16x16x32_bf16 {q(ACC)}, {q(QA+4*n)}, {q(WL+4*n)}, {q(ACC)}")
        stamp(6)
        a("s_nop 5")
    if not direct:
        stamp(6)
    a("s_cmp_eq_u32 s60, 0")
    a("s_cbranch_scc0 L_vpub")
    for r in range(4):
        a(f"v_mul_f32 v{ACC+r}, v11, v{ACC+r}")
    a("v_mov_b32 v9, 1")
    a(f"ds_write_b128 v10, {q(ACC)}")
    a("s_waitcnt lgkmcnt(0)")
    a(f"ds_write_b32 v14, v9 offset:{F_CB-M0_}")
    a("s_waitcnt lgkmcnt(0)")
    finish()
    a("L_vpub:")
    a("s_waitcnt lgkmcnt(0)")
    a("v_readfirstlane_b32 s48, v6")
    a("s_cmp_eq_u32 s48, 1")
    a("s_cbranch_scc1 L_vsum")
    lds_wait_ge(F_CB, "s48", 1, 6, sleep=0)
    a(f"ds_read_b128 {q(ACA)}, v10")
    a("s_waitcnt lgkmcnt(0)")
    a("L_vsum:")
    for r in range(4):
        a(f"v_fma_f32 v{ACC+r}, v11, v{ACC+r}, v{ACA+r}")
    a(f"v_cvt_pk_bf16_f32 v{ACC}, v{ACC}, v{ACC+1}"); a(f"v_cvt_pk_bf16_f32 v{ACC+1}, v{ACC+2}, v{ACC+3}")
    a(f"v_min_u32 v{ACC}, -2, v{ACC}"); a(f"v_min_u32 v{ACC+1}, -2, v{ACC+1}")
    a(f"buffer_store_dwordx2 {q(ACC,2)}, v7, s[40:43], s61 offen {stfl}")
    if late == 2:
        a("v_mov_b32 v9, 1")
        a(f"ds_write_b32 v14, v9 offset:{F_PUB-M0_}")
        a("s_waitcnt lgkmcnt(0)")
    stamp(7)
    finish()

    a("L_pace:")
    lds_wait_ge(F_FILL, "s58", "s56", 12, sleep=8, precheck=True)
    a("s_add_u32 s56, s56, s57")
    a("s_setpc_b64 s[54:55]")

    a("L_helper:")
    call_setup("L_pace", False)
    a("s_mov_b32 s58, 0")
    a("s_sub_u32 s62, s3, 4")
    a("s_and_b32 s48, s2, 7"); a("s_mul_i32 s48, s48, 7"); a("s_lshr_b32 s49, s2, 3"); a("s_add_u32 s59, s48, s49")
    if not noffn:
        a(f"s_cmp_ge_u32 s2, {NF}")
        a("s_cbranch_scc1 L_noffn")
        if not late or nlate < 7:
            a("; ---- waves 4..7 of FFN workgroups: A fragments of gate/up (32 hidden columns, 7 k-steps) and down (8 tiles)")
            a("s_cmp_ge_u32 s62, 2")
            a("s_cselect_b32 s44, s18, s16"); a("s_cselect_b32 s45, s19, s17")
            a("s_and_b32 s45, s45, 0xffff"); a("s_mov_b32 s46, 1605632"); a("s_mov_b32 s47, 0x20000")
            a("v_lshrrev_b32 v7, 2, v0"); a("v_and_b32 v8, 7, v7"); a("v_lshrrev_b32 v6, 3, v7"); a("v_lshl_add_u32 v6, v8, 2, v6")
            a("v_mul_u32_u24 v6, 3584, v6"); a("v_and_b32 v8, 3, v0"); a("v_lshl_add_u32 v6, v8, 4, v6")
            a("s_and_b32 s48, s62, 1"); a(f"s_mul_i32 s50, s48, {7*32*3584}"); a("s_lshl_b32 s49, s59, 6"); a("s_add_u32 s50, s50, s49")
            a("s_lshl_b32 s51, s62, 11"); a(f"s_add_u32 s51, s51, {L_STG}")
            a("v_lshrrev_b32 v9, 2, v1"); a("v_lshl_add_u32 v10, v2, 3, v9"); a("v_lshlrev_b32 v10, 6, v10")
            a("v_and_b32 v11, 3, v1"); a("v_lshl_add_u32 v10, v11, 3, v10"); a("v_add_u32 v10, s51, v10")
            a(f"s_mov_b32 s56, {gt0}"); a(f"s_mov_b32 s57, {gdt}")

            def stage(step2, step_next):
                call()
                a("s_mov_b32 m0, s51"); a("s_nop 0")
                a("buffer_load_dwordx4 v6, s[44:47], s50 offen nt lds")
                if not gpair:
                    call()
                a("s_add_u32 m0, s51, 1024"); a(f"s_add_u32 s50, s50, {step2}")
                a("buffer_load_dwordx4 v6, s[44:47], s50 offen nt lds")
                a(f"s_add_u32 s50, s50, {step_next}")
                a("s_waitcnt vmcnt(0)")
            for f in range(7 - (nlate if late else 0)):
                stage(2*3584, 30*3584)
                for ft in range(2):
                    a(f"ds_read_b64_tr_b16 {q(FF+8*f+4*ft,2)}, v10 offset:{ft*32}")
                    a(f"ds_read_b64_tr_b16 {q(FF+8*f+4*ft+2,2)}, v10 offset:{ft*32+256}")
                a("s_waitcnt lgkmcnt(0)")
            srd(44, 20, 1605632)
            a("v_mul_u32_u24 v6, 896, v7"); a("v_lshl_add_u32 v6, v8, 4, v6")
            a("s_mul_i32 s50, s59, 28672"); a("s_lshl_b32 s49, s62, 8"); a("s_add_u32 s50, s50, s49")
            a("v_lshl_add_u32 v10, v2, 2, v9"); a("v_lshlrev_b32 v10, 6, v10"); a("v_lshl_add_u32 v10, v11, 3, v10"); a("v_add_u32 v10, s51, v10")
            for pr in range(0 if late else 4):
                stage(16*896, 64 - 16*896 + (1 << 32))
                for sub in range(2):
                    a(f"ds_read_b64_tr_b16 {q(QA+8*pr+4*sub,2)}, v10 offset:{sub*32}")
                    a(f"ds_read_b64_tr_b16 {q(QA+8*pr+4*sub+2,2)}, v10 offset:{sub*32+1024}")
                a("s_waitcnt lgkmcnt(0)")
        a("s_branch L_ffn")
        a("L_noffn:")
    else:
        a(f"s_cmp_lt_u32 s2, {NF}")
        a("s_cbranch_scc1 L_ffn")
    a(f"s_sub_u32 s59, s2, {R0LO}")
    a("s_cmp_lt_u32 s59, 64")
    a("s_cbranch_scc0 L_r1")
    srd(36, 12, 3670016)
    a("v_mul_u32_u24 v4, 7168, v2"); a("v_lshl_add_u32 v4, v1, 3, v4")
    a("s_lshl_b32 s47, s62, 8"); a("s_cmp_eq_u32 s62, 3"); a("s_cselect_b32 s47, 704, s47")
    a("s_mul_i32 s48, s59, 57344"); a("s_add_u32 s48, s48, s47")
    a("v_add_u32 v4, s48, v4")
    a(f"s_mov_b32 s56, {wt0}"); a(f"s_mov_b32 s57, {wdt}")
    for k in range(16):
        call()
        wo_load(k)
    a("v_lshlrev_b32 v5, 7, v1"); a("v_lshl_add_u32 v5, v2, 4, v5")
    a("s_lshl_b32 s44, s59, 11"); a(f"s_add_u32 s44, s44, {W_OX}"); a("s_add_u32 s45, s44, 64")
    a(f"v_mul_u32_u24 v7, {64*1792}, v2"); a("v_lshl_add_u32 v7, v1, 4, v7")
    a("s_mul_i32 s46, s59, 1792"); a("s_lshl_b32 s48, s47, 1"); a("s_add_u32 s46, s46, s48")
    a("s_cmp_ge_u32 s62, 2"); a("s_cselect_b32 s38, 0x00ff00ff, -1"); a("s_mov_b32 s39, s38")
    a("s_mov_b32 s48, 0x05040100"); a("s_mov_b32 s49, 0x07060302")
    a("s_waitcnt vmcnt(0)")
    for ks in range(2):
        src = WL + ks*32
        for t in range(8):
            for d in range(4):
                a(f"v_perm_b32 v{wfrag(ks,t)+d}, v{src+(2*d+1)*4+(t>>1)}, v{src+(2*d)*4+(t>>1)}, s{48+(t&1)}")
    if dry0:
        a("s_mov_b32 s42, 0"); a("s_mov_b64 vcc, -1")
        a("s_branch L_r0body")
        a("L_r0real:")
        a(f"s_mov_b32 s42, {WS_BYTES}"); a("s_mov_b64 vcc, 0"); a("s_mov_b64 exec, -1")
    lds_wait_ge(F_FOK, "s48", 1, 6, sleep=16)
    end_wait(tpoll)
    poll_quads(YA, 5, ["s44", "s45"], 6, pdep=pd[0])
    stamp(3)
    a("L_r0body:")
    for t in range(8):
        for ks in range(2):
            a(f"v_mfma_f32_16x16x32_bf16 {q(T2+4*t)}, {q(YA+4*ks)}, {q(wfrag(ks,t))}, {q(T2+4*t) if ks else 0}")
        if t >= 4:
            u = t - 4
            a(f"v_pk_add_f32 {q(T2+4*u,2)}, {q(T2+4*u,2)}, {q(T2+4*u+2,2)}")
            a(f"v_add_f32 v{SB+u}, v{T2+4*u}, v{T2+4*u+1}")
    a("s_nop 0")
    a(f"buffer_store_dwordx4 {q(SB)}, v7, s[40:43], s46 offen {stfl}")
    for u in range(4, 8):
        if u == 7:
            a("s_nop 0")
        a(f"v_pk_add_f32 {q(T2+4*u,2)}, {q(T2+4*u,2)}, {q(T2+4*u+2,2)}")
        a(f"v_add_f32 v{SB+u}, v{T2+4*u}, v{T2+4*u+1}")
    a("s_mov_b64 exec, s[38:39]")
    a(f"buffer_store_dwordx4 {q(SB+4)}, v7, s[40:43], s46 offen offset:256 {stfl}")
    if dry0:
        a("s_cbranch_vccnz L_r0real")
    a("s_mov_b64 exec, -1")
    stamp(4)
    if diag:
        a("s_waitcnt vmcnt(0)")
        stamp(5)
    finish()

    def count_check():
        a("; all workgroups have emptied their hand-off words once d_debug[0] reaches 256")
        a("s_load_dword s48, s[24:25], 0") if 'l' not in tst else a("s_mov_b32 s48, 256")
        a("s_waitcnt lgkmcnt(0)")
        bound_init(1 << 17)
        a("L_cntpoll:")
        a(f"s_cmp_ge_u32 s48, {256 if 'a' not in tst else 0}")
        a("s_cbranch_scc1 L_cntok")
        a("s_sleep 64")
        a("s_mov_b32 s48, 0")
        a("s_atomic_add s48, s[24:25], 0 glc")
        a("s_waitcnt lgkmcnt(0)")
        bound_loop("L_cntpoll")
        a("L_cntok:")
        a("s_cmp_lg_u32 s2, 0")
        a("s_cbranch_scc1 L_noep")
        a("v_mov_b32 v6, s62"); a(f"s_mov_b32 s48, {W_EP}")
        a("s_mov_b64 exec, 1")
        a("buffer_store_dword v6, v15, s[40:43], s48 offen sc1")
        a("s_mov_b64 exec, -1")
        a("L_noep:")

    a("L_h4:")
    a("; sum the 14 partials, exchange the q quarters of the four workgroups of this head through tagged granules")
    a("v_and_b32 v8, 31, v0"); a("v_lshlrev_b32 v8, 3, v8")
    a("v_mul_u32_u24 v9, 1792, v3"); a("v_add_u32 v9, v9, v8"); a(f"v_add_u32 v9, {L_QP}, v9")
    a("s_lshl_b32 s56, s31, 10"); a(f"s_add_u32 s56, s56, {W_QX}"); a("s_lshl_b32 s57, s29, 8"); a("s_add_u32 s57, s57, s56")
    a("s_add_u32 s62, s62, 1")
    a("v_lshlrev_b32 v5, 4, v0")
    a("v_lshlrev_b32 v11, 3, v0"); a(f"v_add_u32 v11, {L_QB}, v11")
    lds_wait_ge(F_QCNT, "s48", 7, 6, sleep=0)
    for p in range(7):
        a(f"ds_read_b64 {q(T+2*p,2)}, v9 offset:{p*256}")
    for p in range(1, 7):
        a(f"s_waitcnt lgkmcnt({6-p})")
        a(f"v_pk_add_f32 {q(T,2)}, {q(T,2)}, {q(T+2*p,2)}")
    a(f"v_mov_b32 v{T+2}, v{T}"); a(f"v_mov_b32 v{T+3}, v{T+1}"); a("s_nop 1")
    a(f"v_permlane32_swap_b32 v{T}, v{T+2}"); a(f"v_permlane32_swap_b32 v{T+1}, v{T+3}")
    a(f"v_pk_add_f32 {q(T,2)}, {q(T,2)}, {q(T+2,2)}")
    a("v_mov_b32 v7, s62")
    a(f"v_cvt_pk_bf16_f32 v6, v{T}, v{T+1}")
    a("s_mov_b32 exec_hi, 0")
    a("buffer_store_dwordx2 v[6:7], v8, s[40:43], s57 offen sc1")
    a("s_mov_b32 exec_hi, -1")
    bound_init(1 << 17)
    a("L_qpoll:")
    a(f"buffer_load_dwordx4 {q(T)}, v5, s[40:43], s56 offen sc1")
    a("s_waitcnt vmcnt(0)")
    a(f"v_cmp_ne_u32 vcc, s62, v{T+1}"); a(f"v_cmp_ne_u32 s[48:49], s62, v{T+3}")
    a("s_or_b64 vcc, vcc, s[48:49]")
    a("s_cbranch_scc0 L_qok") if 'q' not in tst else a("s_branch L_qok")
    a("s_sleep 2")
    bound_loop("L_qpoll")
    a("L_qok:")
    a(f"v_mov_b32 v{T+1}, v{T+2}")
    a(f"ds_write_b64 v11, {q(T,2)}")
    a("v_mov_b32 v6, 1")
    a("s_waitcnt lgkmcnt(0)")
    a(f"ds_write_b32 v14, v6 offset:{F_QOK-M0_}")
    if use_fb and fbm == 'ls':
        a("; progress words of the eight members of this workgroup's balancing group (one per die-sized stride of ids)")
        a("s_lshr_b32 s48, s2, 3"); a("s_and_b32 s49, s2, 7"); a(f"s_mul_i32 s50, s49, {fbmix}"); a("s_add_u32 s48, s48, s50")
        a(f"v_mul_u32_u24 v6, {fbmix}, v0"); a("v_sub_u32 v6, s48, v6"); a("v_and_b32 v6, 31, v6"); a("v_lshl_add_u32 v6, v6, 3, v0")
        a(f"v_mul_u32_u24 v{FF}, {fbstr}, v6")
        a(f"s_mul_i32 s94, s2, {fbstr}"); a(f"s_add_u32 s94, s94, {W_FB}"); a(f"s_mov_b32 s95, {W_FB}")
    elif use_fb:
        ng = 256 // fbg
        a("s_lshr_b32 s48, s2, 3"); a("s_and_b32 s49, s2, 7"); a(f"s_mul_i32 s50, s49, {fbmix}"); a("s_add_u32 s48, s48, s50")
        a(f"s_and_b32 s48, s48, {ng-1}"); a("s_lshl_b32 s48, s48, 12"); a(f"s_add_u32 s48, s48, {W_FB}")
        a("s_add_u32 s94, s26, s48"); a("s_addc_u32 s95, s27, 0")
        a(f"s_lshr_b32 s50, s2, {3 + ng.bit_length() - 1}"); a("s_or_b32 s49, s49, s50")
        a("s_cbranch_scc1 L_nolead")
        a("v_lshlrev_b32 v6, 8, v0")
        a("s_mov_b64 exec, 0xffff")
        a("buffer_store_dword v15, v6, s[40:43], s48 offen sc1")
        a("s_mov_b64 exec, -1")
        a("L_nolead:")
    if boost is not None or r2dep or r0dep:
        a(f"s_mov_b32 s93, {didx(depth)}")
    if r0dep:
        a(f"s_sub_u32 s48, s2, {R0LO}"); a("s_cmp_lt_u32 s48, 64"); a(f"s_cselect_b32 s93, {didx(r0dep)}, s93")
    if r2dep:
        a(f"s_cmp_lt_u32 s2, {NF}"); a(f"s_cselect_b32 s93, {didx(r2dep)}, s93")
    lds_wait_ge(F_CLR, "s48", 7, 6, sleep=2)
    if boost is not None or r2dep or r0dep:
        set_depth("s93")
    if atomt:
        a(f"s_and_b32 s49, s2, {atomt - 1}"); a(f"s_add_u32 s49, s49, {max(clrt, 16)}")
        lds_wait_ge(F_FILL, "s48", "s49", 6, sleep=8)
    if 'a' not in tst and not patom:
        a("s_mov_b32 s48, 1")
        a("s_atomic_add s48, s[24:25], 0")
        a("s_waitcnt lgkmcnt(0)")
    sched = [t for t, _ in fbr]
    if use_fb:
        call_setup("L_fb", True)
    if vpre:
        a("; first touch of this workgroup's V pages through the scalar path, ahead of the stream")
        a("s_lshl_b32 s48, s31, 22"); a("s_lshl_b32 s49, s29, 20"); a("s_add_u32 s48, s48, s49")
        a("s_add_u32 s96, s8, s48"); a("s_addc_u32 s97, s9, 0")
        lds_wait_ge(F_FILL, "s48", vpre, 6, sleep=8)
        a("s_load_dword s48, s[96:97], 0")
        a("s_waitcnt lgkmcnt(0)")
    for t in [t for t in sched if t < 128]:
        fb_call(t)
    a("v_lshlrev_b32 v9, 3, v0"); a(f"v_add_u32 v9, {L_ML}, v9")
    lds_wait_ge(F_MLCNT, "s48", 2, 6, sleep=8)
    a("s_mov_b64 exec, 3")
    a("ds_read_b64 v[6:7], v9")
    a("s_lshl_b32 s48, s31, 2"); a("s_add_u32 s48, s48, s29"); a("s_lshl_b32 s48, s48, 5"); a(f"s_add_u32 s48, s48, {W_ML}")
    a("s_waitcnt lgkmcnt(0)")
    a(f"v_mov_b32 v{YA}, v6"); a(f"v_mov_b32 v{YA+1}, s62"); a(f"v_mov_b32 v{YA+2}, v7"); a(f"v_mov_b32 v{YA+3}, s62")
    None if 'm' in tst else a(f"buffer_store_dwordx4 {q(YA)}, v5, s[40:43], s48 offen sc1")
    a("s_mov_b64 exec, -1")
    if not patom:
        count_check()
    for t in [t for t in sched if 128 <= t <= mlt]:
        fb_call(t)
    lds_wait_ge(F_FILL, "s48", mlt, 6, sleep=8)
    a("v_and_b32 v8, 7, v0"); a("v_lshlrev_b32 v9, 4, v8")
    a("s_lshl_b32 s61, s31, 7"); a(f"s_add_u32 s61, s61, {W_ML}")
    bound_init(1 << 17)
    a("L_mlpoll:")
    if 'm' in tst:
        a("s_branch L_mlgot")
    a(f"buffer_load_dwordx4 {q(YA+4)}, v9, s[40:43], s61 offen sc1")
    a("s_waitcnt vmcnt(0)")
    a(f"v_cmp_ne_u32 vcc, s62, v{YA+5}"); a(f"v_cmp_ne_u32 s[48:49], s62, v{YA+7}")
    a("s_or_b64 vcc, vcc, s[48:49]")
    a("s_cbranch_scc0 L_mlgot")
    a("s_sleep 24")
    bound_loop("L_mlpoll")
    a("L_mlgot:")
    a(f"v_mov_b32 v10, v{YA+4}")
    for d in ("row_ror:4", "row_ror:2", "row_ror:1"):
        a("s_nop 1")
        a(f"v_max_f32_dpp v10, v10, v10 {d} row_mask:0xf bank_mask:0xf")
    a(f"v_sub_f32 v6, v{YA+4}, v10"); a(f"v_mul_f32 v6, {LOG2E_16:#x}, v6"); a("v_exp_f32 v6, v6"); a("s_nop 0")
    a(f"v_mul_f32 v7, v6, v{YA+6}")
    for d in ("row_ror:4", "row_ror:2", "row_ror:1"):
        a("s_nop 1")
        a(f"v_add_f32_dpp v7, v7, v7 {d} row_mask:0xf bank_mask:0xf")
    a("v_rcp_f32 v7, v7"); a("v_lshrrev_b32 v9, 1, v0"); a("v_and_b32 v8, 1, v0")
    a("v_mul_f32 v6, v6, v7")
    a("v_lshlrev_b32 v8, 2, v8"); a(f"v_add_u32 v8, {L_F}, v8")
    a("v_cmp_eq_u32 vcc, s29, v9")
    a("s_mov_b64 exec, vcc")
    a("ds_write_b32 v8, v6")
    a("s_mov_b64 exec, -1")
    if patom:
        a("; the four workgroups of this pair published after emptying their hand-off words: quarter 0 counts them")
        a("s_cmp_lg_u32 s29, 0"); a("s_cbranch_scc1 L_noadd")
        a("s_mov_b32 s48, 4"); a("s_atomic_add s48, s[24:25], 0"); a("s_waitcnt lgkmcnt(0)")
        a("L_noadd:")
        for t in [t for t in sched if mlt < t <= chkt]:
            fb_call(t)
        lds_wait_ge(F_FILL, "s48", chkt, 6, sleep=8)
        count_check()
    a("v_mov_b32 v6, 1")
    a("s_waitcnt lgkmcnt(0)")
    a(f"ds_write_b32 v14, v6 offset:{F_FOK-M0_}")
    for t in [t for t in sched if t > (chkt if patom else mlt)]:
        fb_call(t)
    if endt:
        lds_wait_ge(F_FILL, "s48", endt, 6, sleep=2)
        set_depth(didx(endd))
    a("s_branch L_done")
    if use_fb:
        a("; the arrival rank of this workgroup at tile s50 within its group selects the loader depth")
        a("L_fb:")
        lds_wait_ge(F_FILL, "s48", "s50", 6, sleep=fbsl)
        if fbm == 'ls':
            a("s_lshl_b32 s49, s62, 10"); a("s_add_u32 s49, s49, s50"); a("v_mov_b32 v7, s49")
            a("s_mov_b64 exec, 0xff")
            a(f"buffer_load_dword v6, v{FF}, s[40:43], s95 offen sc1")
            a("s_mov_b64 exec, 1")
            a("buffer_store_dword v7, v15, s[40:43], s94 offen sc1")
            a("s_mov_b64 exec, 0xff")
            a("s_waitcnt vmcnt(1)")
            a("v_subrev_u32 v6, s49, v6"); a("v_cmp_gt_u32 vcc, 0x100, v6")
            a("s_mov_b64 exec, -1")
            a("s_bcnt1_i32_b64 s48, vcc")
        elif fbm == 'none':
            a("s_mov_b32 s48, 3")
        else:
            a("s_mov_b32 s48, 1")
            a("s_atomic_add s48, s[94:95], 0 glc")
            a("s_waitcnt lgkmcnt(0)")
        if fbg > 8:
            a(f"s_lshr_b32 s48, s48, {(fbg // 8).bit_length() - 1}")
        if r2b:
            a(f"s_cmp_lt_u32 s2, {NF}"); a(f"s_cselect_b32 s49, {r2b}, 0"); a("s_add_u32 s48, s48, s49")
        a("s_min_u32 s48, s48, 7"); a("s_lshl_b32 s48, s48, 2"); a("s_lshr_b32 s93, s51, s48"); a("s_and_b32 s93, s93, 15")
        if lad:
            a("s_lshr_b32 s49, s92, s48"); a("s_and_b32 s49, s49, 15"); a("s_add_u32 s91, s91, s49"); a("s_sub_u32 s91, s91, 8")
            a("s_max_i32 s91, s91, 1"); a(f"s_min_i32 s91, s91, {len(lad)}")
            a("s_add_u32 s93, s93, s91"); a("s_sub_u32 s93, s93, 8")
            a("s_max_i32 s93, s93, 1"); a(f"s_min_i32 s93, s93, {len(lad)}")
        a("v_mov_b32 v6, s93")
        a(f"ds_write_b32 v14, v6 offset:{F_DEP-M0_}")
        if fbm != 'ls':
            a("s_add_u32 s94, s94, 256"); a("s_addc_u32 s95, s95, 0")
        a("s_setpc_b64 s[54:55]")

    a("L_ffn:")

    def late_frags():
        a("; the ring is drained: gate/up/down rows of this workgroup stream into it while the hand-offs are under way")
        a("s_cmp_ge_u32 s62, 2")
        a("s_cselect_b32 s32, s18, s16"); a("s_cselect_b32 s33, s19, s17")
        a("s_and_b32 s33, s33, 0xffff"); a("s_mov_b32 s34, 1605632"); a("s_mov_b32 s35, 0x20000")
        srd(36, 20, 1605632)
        a(f"v_lshrrev_b32 v{SB}, 2, v0"); a(f"v_and_b32 v{SB+1}, 7, v{SB}"); a(f"v_lshrrev_b32 v{SB+2}, 3, v{SB}"); a(f"v_lshl_add_u32 v{SB+2}, v{SB+1}, 2, v{SB+2}")
        a(f"v_mul_u32_u24 v{SB+2}, 3584, v{SB+2}"); a(f"v_and_b32 v{SB+1}, 3, v0"); a(f"v_lshl_add_u32 v{SB+2}, v{SB+1}, 4, v{SB+2}")
        if wide:
            a(f"v_lshrrev_b32 v{SB+3}, 3, v0"); a(f"v_mul_u32_u24 v{SB+3}, 896, v{SB+3}"); a(f"v_and_b32 v{SB+1}, 7, v0"); a(f"v_lshl_add_u32 v{SB+3}, v{SB+1}, 4, v{SB+3}")
        else:
            a(f"v_mul_u32_u24 v{SB+3}, 896, v{SB}"); a(f"v_lshl_add_u32 v{SB+3}, v{SB+1}, 4, v{SB+3}")
        a("s_mul_i32 s51, s62, 20480")
        a(f"v_lshrrev_b32 v{SB+4}, 2, v1"); a(f"v_and_b32 v{SB+5}, 3, v1"); a(f"v_lshlrev_b32 v{SB+5}, 3, v{SB+5}")
        a(f"v_lshl_add_u32 v{SB+6}, v2, 3, v{SB+4}"); a(f"v_lshl_add_u32 v{SB+6}, v{SB+6}, 6, v{SB+5}"); a(f"v_add_u32 v{SB+6}, s51, v{SB+6}")
        a(f"v_lshl_add_u32 v{SB+7}, v2, 2, v{SB+4}"); a(f"v_lshl_add_u32 v{SB+7}, v{SB+7}, {7 if wide else 6}, v{SB+5}")
        a("s_lshl_b32 s49, s62, 11"); a(f"s_add_u32 s60, s49, {L_STG}"); a(f"v_add_u32 v{SB+4}, s60, v{SB+7}"); a(f"v_add_u32 v{SB+7}, s51, v{SB+7}")
        a("s_and_b32 s48, s62, 1"); a(f"s_mul_i32 s92, s48, {7*32*3584}"); a("s_lshl_b32 s49, s59, 6"); a("s_add_u32 s92, s92, s49")
        a("s_mul_i32 s93, s59, 28672"); a("s_lshl_b32 s49, s62, 8"); a("s_add_u32 s93, s93, s49")
        if late == 1:
            end_wait(NT)
        elif late == 2:
            lds_wait_ge(F_PUB, "s48", 1, 6, sleep=2)
        else:
            lds_wait_ge(F_CONS, "s48", late, 6, sleep=2)
            lds_wait_ge(F_CONS + 4, "s48", late, 6, sleep=2)
        for f in range(7 - nlate, 7):
            for hh in range(2):
                a(f"s_add_u32 m0, s51, {(f - (7 - nlate if wide else 0))*2048 + hh*1024}"); a(f"s_add_u32 s48, s92, {(f*32 + 2*hh)*3584}")
                a(f"buffer_load_dwordx4 v{SB+2}, s[32:35], s48 offen nt lds")
        if wide:
            assert nlate <= 6
            for k in range(8):
                a(f"s_add_u32 m0, s51, {12288 + k*1024}"); a(f"s_add_u32 s48, s93, {(k >> 2)*128 + (k & 3)*8*896}")
                a(f"buffer_load_dwordx4 v{SB+3}, s[36:39], s48 offen nt lds")
        for pr in range(0 if wide else 4):
            for hh in range(2):
                if pr < 3:
                    a(f"s_add_u32 m0, s51, {14336 + pr*2048 + hh*1024}")
                else:
                    a(f"s_add_u32 m0, s60, {hh*1024}")
                a(f"s_add_u32 s48, s93, {pr*64 + hh*16*896}")
                a(f"buffer_load_dwordx4 v{SB+3}, s[36:39], s48 offen nt lds")
        for f in range(7 - nlate, 7):
            a(f"s_waitcnt vmcnt({20 - 2*f})")
            for ft in range(2):
                a(f"ds_read_b64_tr_b16 {q(FF+8*f+4*ft,2)}, v{SB+6} offset:{(f - (7 - nlate if wide else 0))*2048 + ft*32}")
                a(f"ds_read_b64_tr_b16 {q(FF+8*f+4*ft+2,2)}, v{SB+6} offset:{(f - (7 - nlate if wide else 0))*2048 + ft*32 + 256}")
            if f % 2:
                a("s_waitcnt lgkmcnt(4)")
        for pr in range(4 if wide else 0):
            if pr % 2 == 0:
                a(f"s_waitcnt vmcnt({4 - 2*pr})")
            for sub in range(2):
                o = 12288 + (pr >> 1)*4096 + (pr & 1)*64 + sub*32
                a(f"ds_read_b64_tr_b16 {q(QA+8*pr+4*sub,2)}, v{SB+7} offset:{o}")
                a(f"ds_read_b64_tr_b16 {q(QA+8*pr+4*sub+2,2)}, v{SB+7} offset:{o + 2048}")
            a("s_waitcnt lgkmcnt(4)")
        for pr in range(0 if wide else 4):
            a(f"s_waitcnt vmcnt({6 - 2*pr})")
            for sub in range(2):
                va, o = (SB + 7, 14336 + pr*2048) if pr < 3 else (SB + 4, 0)
                a(f"ds_read_b64_tr_b16 {q(QA+8*pr+4*sub,2)}, v{va} offset:{o + sub*32}")
                a(f"ds_read_b64_tr_b16 {q(QA+8*pr+4*sub+2,2)}, v{va} offset:{o + sub*32 + 1024}")
            a("s_waitcnt lgkmcnt(4)")
        a("s_waitcnt lgkmcnt(0)")

    def flag(pos):
        if g3 == pos:
            a("s_cmp_lg_u32 s62, 3"); a("s_cbranch_scc1 L_nofl")
            a("s_mov_b64 exec, 1")
            a(f"buffer_store_dword v4, v15, s[40:43], s61 offen {stfl}")
            a("s_mov_b64 exec, -1")
            a("L_nofl:")
    a("v_lshlrev_b32 v5, 5, v0")
    a(f"s_and_b32 s48, s2, {nrep-1}"); a("s_mul_i32 s48, s48, 7168"); a("s_mul_i32 s49, s62, 1792"); a("s_add_u32 s48, s48, s49")
    a(f"s_add_u32 s56, s48, {W_HB}"); a("s_add_u32 s57, s56, 16")
    X = T2
    a("v_lshlrev_b32 v8, 4, v0"); a("s_mul_i32 s48, s62, 960"); a(f"s_add_u32 s48, s48, {L_XN2}"); a("v_add_u32 v8, s48, v8")
    a("v_and_b32 v9, 3, v1"); a("v_mul_u32_u24 v10, 960, v9"); a("v_lshl_add_u32 v10, v2, 4, v10")
    a("s_and_b32 s48, s62, 1"); a("s_mul_i32 s48, s48, 448"); a(f"s_add_u32 s48, s48, {L_XN2}"); a("v_add_u32 v10, s48, v10")
    a("v_lshlrev_b32 v11, 6, v9"); a("v_lshl_add_u32 v11, v2, 4, v11"); a(f"v_add_u32 v11, {L_GU}, v11")
    a("s_lshl_b32 s48, s62, 9"); a("v_add_u32 v12, s48, v11")
    a(f"v_mul_u32_u24 v13, {14*7168}, v9"); a("v_bfe_u32 v6, v1, 2, 1"); a("v_lshl_add_u32 v13, v6, 6, v13"); a("v_lshl_add_u32 v13, v2, 4, v13")
    a("v_cmp_eq_u32 s[46:47], 0, v6"); a("v_mov_b32 v7, v13"); a("v_mov_b32 v4, s91")
    a("s_lshl_b32 s58, s59, 7"); a(f"s_mul_i32 s48, s62, {4*7168}"); a("s_add_u32 s58, s58, s48"); a(f"s_add_u32 s58, s58, {W_OP}")
    a("s_mov_b32 s44, -1"); a("s_mov_b32 s45, 0x00ffffff")
    if dry:
        a("; one pass over the code below with stores disabled and barriers skipped loads it into the instruction cache")
        a("s_mov_b32 s42, 0"); a("s_mov_b64 vcc, -1"); a("s_mov_b32 s61, 0")
        a("s_branch L_ffnbody")
        a("L_ffnreal:")
        a(f"s_mov_b32 s42, {WS_BYTES}"); a("s_mov_b64 vcc, 0"); a("s_mov_b64 exec, -1")
        a("v_mov_b32 v13, v7")
    lds_wait_ge(F_FOK, "s48", 1, 6, sleep=16)
    if late:
        late_frags()
        stamp(6)
    else:
        end_wait(NT)
    if g2:
        a(f"v_mul_u32_u24 v9, {4*1792}, v0")
        a(f"s_mul_i32 s61, s62, {64*1792}"); a("s_and_b32 s48, s2, 3"); a("s_mul_i32 s48, s48, 1792"); a("s_add_u32 s61, s61, s48")
        a("s_lshr_b32 s48, s2, 2"); a("s_lshl_b32 s48, s48, 7"); a("s_add_u32 s61, s61, s48")
        gate(9, "s61", 16, g2, 6)
    a("s_lshl_b32 s61, s2, 7"); a(f"s_add_u32 s61, s61, {W_FL}")
    poll_quads(X, 5, ["s56", "s57"], 6, execs=["s[44:45]"]*2, both=b2, pdep=pd[2])
    stamp(3)
    a("L_ffnbody:")
    layernorm(X, T, YA, fast=fastln)
    a("s_mov_b32 exec_hi, 0x00ffffff")
    a(f"ds_write_b128 v8, {q(YA)}")
    a("s_mov_b32 exec_hi, -1")
    a("s_waitcnt lgkmcnt(0)")
    if dry:
        a("s_cbranch_vccnz L_nb1x")
    a("s_barrier")
    a("L_nb1x:")
    for f in range(7):
        a(f"ds_read_b128 {q(T+4*f)}, v10 offset:{f*64}")
    flag(1)
    for f in range(7):
        a(f"s_waitcnt lgkmcnt({6-f})")
        a(f"v_mfma_f32_16x16x32_bf16 {q(ACC)}, {q(FF+8*f)}, {q(T+4*f)}, {q(ACC) if f else 0}")
        a(f"v_mfma_f32_16x16x32_bf16 {q(ACA)}, {q(FF+8*f+4)}, {q(T+4*f)}, {q(ACA) if f else 0}")
    flag(2)
    a("s_nop 6")
    a(f"ds_write_b128 v12, {q(ACC)}")
    a(f"ds_write_b128 v12, {q(ACA)} offset:256")
    a("s_waitcnt lgkmcnt(0)")
    if dry:
        a("s_cbranch_vccnz L_nb2x")
    a("s_barrier")
    a("L_nb2x:")
    G0 = T
    for ft in range(2):
        for p in range(4):
            a(f"ds_read_b128 {q(G0+16*ft+4*p)}, v11 offset:{p*512+ft*256}")
    flag(3)
    for ft in range(2):
        B = G0 + 16*ft
        a(f"s_waitcnt lgkmcnt({6-4*ft})")
        a(f"v_pk_add_f32 {q(B,2)}, {q(B,2)}, {q(B+4,2)}"); a(f"v_pk_add_f32 {q(B+2,2)}, {q(B+2,2)}, {q(B+6,2)}")
        a(f"s_waitcnt lgkmcnt({4-4*ft})")
        a(f"v_pk_add_f32 {q(B+8,2)}, {q(B+8,2)}, {q(B+12,2)}"); a(f"v_pk_add_f32 {q(B+10,2)}, {q(B+10,2)}, {q(B+14,2)}")
        for r in range(4):
            a(f"v_cvt_pk_bf16_f32 v{B+4+r}, v{B+r}, v{B+8+r}")
        for r in range(4):
            a(f"v_lshlrev_b32 v{B+r}, 16, v{B+4+r}"); a(f"v_and_b32 v{B+4+r}, 0xffff0000, v{B+4+r}")
        a(f"v_pk_mul_f32 {q(B,2)}, {q(B,2)}, {q(B+4,2)}"); a(f"v_pk_mul_f32 {q(B+2,2)}, {q(B+2,2)}, {q(B+6,2)}")
        a(f"v_cvt_pk_bf16_f32 v{YA+2*ft}, v{B}, v{B+1}"); a(f"v_cvt_pk_bf16_f32 v{YA+2*ft+1}, v{B+2}, v{B+3}")
    flag(4)
    for d in range(4):
        a(f"v_cndmask_b32 v{YA+4+d}, 0, v{YA+d}, s[46:47]")
    for d in range(4):
        a(f"v_cndmask_b32 v{YA+8+d}, v{YA+d}, 0, s[46:47]")
    for pr in range(4):
        a(f"v_mfma_f32_16x16x32_bf16 {q(T+4*pr)}, {q(QA+8*pr)}, {q(YA+4)}, 0")
        if pr == 0:
            a("s_nop 0")
    for pr in range(4):
        a(f"v_mfma_f32_16x16x32_bf16 {q(T+4*pr)}, {q(QA+8*pr+4)}, {q(YA+8)}, {q(T+4*pr)}")
    a("s_mov_b32 exec_lo, 0x00ff00ff"); a("s_mov_b32 exec_hi, 0x00ff00ff")
    a("s_cmp_eq_u32 s62, 3")
    a("s_nop 1")
    for pr in range(4):
        if pr == 2:
            a("s_cbranch_scc1 L_opdone")
        a(f"buffer_store_dwordx4 {q(T+4*pr)}, v13, s[40:43], s58 offen {stfl}")
        if pr < 3:
            a("v_add_u32 v13, 7168, v13")
    a("L_opdone:")
    if dry:
        a("s_cbranch_vccnz L_ffnreal")
    a("s_mov_b64 exec, -1")
    stamp(4)
    if diag:
        a("s_waitcnt vmcnt(0)")
        stamp(5)
    a("s_branch L_done")

    a("L_r1:")
    a(f"s_sub_u32 s48, s2, {R1LO}")
    a("s_cmp_lt_u32 s48, 56")
    a("s_cbranch_scc0 L_done")
    a("s_mul_i32 s58, s48, 4682"); a("s_lshr_b32 s58, s58, 16"); a("s_mul_i32 s49, s58, 14"); a("s_sub_u32 s59, s48, s49")
    a("s_lshl_b32 s56, s48, 7")
    a("v_lshrrev_b32 v5, 3, v0"); a("v_and_b32 v6, 7, v0"); a("v_lshlrev_b32 v9, 4, v6")
    a("v_mul_u32_u24 v7, 1792, v5"); a("v_add_u32 v7, v7, v9")
    a("v_lshl_add_u32 v8, v5, 7, v9")
    a("v_lshl_add_u32 v10, v2, 3, v6"); a("v_lshlrev_b32 v10, 4, v10"); a("s_lshl_b32 s49, s62, 2"); a(f"s_add_u32 s49, s49, {L_RB}"); a("v_add_u32 v10, s49, v10")
    a("v_and_b32 v4, 31, v0"); a("v_lshlrev_b32 v9, 4, v4"); a(f"v_add_u32 v9, {L_RB}, v9")
    a("v_lshrrev_b32 v12, 3, v4"); a("v_lshl_add_u32 v12, v6, 2, v12"); a("v_lshlrev_b32 v12, 1, v12")
    a("s_lshr_b32 s61, s56, 1")
    a("buffer_load_ushort v11, v12, s[32:35], s61 offen")
    a("v_mul_u32_u24 v13, 7168, v3"); a("v_lshl_add_u32 v13, v4, 2, v13")
    a(f"s_mul_i32 s57, s62, {2*7168}"); a("s_add_u32 s57, s57, s56"); a(f"s_add_u32 s57, s57, {W_HB}")
    a(f"s_mul_i32 s44, s58, {64*1792}"); a("s_lshl_b32 s49, s59, 7"); a("s_add_u32 s44, s44, s49")
    a(f"s_mul_i32 s49, s62, {16*1792}"); a("s_add_u32 s44, s44, s49"); a(f"s_add_u32 s45, s44, {8*1792}")
    a("s_mul_i32 s46, s48, 7168"); a(f"s_mul_i32 s49, s62, {14*128}"); a("s_add_u32 s46, s46, s49"); a(f"s_add_u32 s46, s46, {W_OP}"); a("s_add_u32 s47, s46, 1024")
    a("s_lshl_b32 s60, s48, 7"); a(f"s_add_u32 s60, s60, {W_FL}")
    a("s_mov_b32 s36, -1"); a("s_mov_b32 s37, 0xffff")
    for r in range(4):
        a(f"v_mov_b32 v{T+4+r}, 0")
    a("s_waitcnt vmcnt(0)")
    a("v_lshlrev_b32 v11, 16, v11")
    srd(32, 22, 3584)
    if dry1:
        a("s_mov_b32 s42, 0"); a("s_mov_b32 s34, 0"); a("s_mov_b64 vcc, -1"); a("v_mov_b32 v5, v11")
        a("s_branch L_r1body")
        a("L_r1real:")
        a(f"s_mov_b32 s42, {WS_BYTES}"); a("s_mov_b32 s34, 3584"); a("s_mov_b64 vcc, 0"); a("s_mov_b64 exec, -1"); a("v_mov_b32 v11, v5")
    lds_wait_ge(F_FOK, "s48", 1, 6, sleep=16)
    end_wait(NT)
    if g1:
        a("v_mul_u32_u24 v4, 1792, v0")
        gate(4, "s44", g1n, g1, 6)
    poll_quads(T2, 7, ["s44", "s45"], 6, both=first2, pdep=pd[1])
    stamp(3)

    def sum2(R, off):
        a(f"v_pk_add_f32 {q(YA,2)}, {q(R,2)}, {q(R+4,2)}"); a(f"v_pk_add_f32 {q(YA+2,2)}, {q(R+2,2)}, {q(R+6,2)}")
        a("s_nop 1")
        a(f"v_permlane16_swap_b32 v{YA}, v{YA+1}")
        a(f"v_permlane16_swap_b32 v{YA+2}, v{YA+3}")
        a(f"v_add_f32 v{YA}, v{YA}, v{YA+1}")
        a(f"v_add_f32 v{YA+2}, v{YA+2}, v{YA+3}")
        a("s_nop 1")
        a(f"v_permlane32_swap_b32 v{YA}, v{YA+2}")
        a(f"v_add_f32 v{YA}, v{YA}, v{YA+2}")
        a("s_nop 1")
        a(f"v_add_f32_dpp v{YA}, v{YA}, v{YA} row_ror:8 row_mask:0xf bank_mask:0xf")
        a(f"ds_write_b32 v10, v{YA} offset:{off}")
        a("s_waitcnt lgkmcnt(0)")
        if dry1:
            a(f"s_cbranch_vccnz L_rb{off}")
        a("s_barrier")
        a(f"L_rb{off}:")
        a(f"ds_read_b128 {q(YA)}, v9 offset:{off}")
        a("s_waitcnt lgkmcnt(0)")
        a(f"v_pk_add_f32 {q(YA,2)}, {q(YA,2)}, {q(YA+2,2)}")
        a(f"v_add_f32 v{YA}, v{YA}, v{YA+1}")
        bf16r(YA, YA)
        a(f"v_add_f32 v11, v11, v{YA}")
    a("L_r1body:")
    sum2(T2, 0)
    bf16r(11, 11)
    a(f"buffer_store_dword v11, v13, s[40:43], s57 offen {stfl}")
    stamp(4)
    if dry1:
        a("s_cbranch_vccnz L_r3body")
    if g3:
        gate(15, "s60", 1, 1, 6, tag="s91")
    poll_quads(T, 8, ["s46", "s47"], 6, execs=["-1", "s[36:37]"], both=b3, pdep=pd[3])
    stamp(5)
    a("L_r3body:")
    sum2(T, 512)
    a("v_cvt_pk_bf16_f32 v11, v11, v11")
    a("s_lshl_b32 s48, s62, 3"); a("s_lshl_b32 exec_lo, 0xff, s48"); a("s_mov_b32 exec_hi, 0")
    a(f"buffer_store_short v11, v12, s[32:35], s61 offen {outfl}")
    if dry1:
        a("s_cbranch_vccnz L_r1real")
    a("s_mov_b64 exec, -1")
    stamp(6)
    a("L_done:")
    if padto:
        a("s_cmp_lg_u32 s2, 248"); a("s_cbranch_scc1 L_nopad"); a("s_cmp_lg_u32 s3, 7"); a("s_cbranch_scc1 L_nopad")
        a(f"s_add_u32 s98, s98, {padto*100}")
        a("L_pad:"); a("s_sleep 4"); a("s_memrealtime s[96:97]"); a("s_waitcnt lgkmcnt(0)"); a("s_cmp_lt_u32 s96, s98"); a("s_cbranch_scc1 L_pad")
        a("L_nopad:")
    finish()

    if not ldfirst:
        emit_loader()

    if diag:
        a("L_stamps:")
        a("v_mov_b32 v4, 0")
        for k in range(8):
            a(f"v_writelane_b32 v4, s{64+2*k}, {k}")
        a("s_getreg_b32 s48, hwreg(HW_REG_XCC_ID, 0, 4)")
        a("v_writelane_b32 v4, s48, 8")
        a("v_writelane_b32 v4, s63, 9")
        a("v_lshlrev_b32 v5, 2, v0")
        a("s_lshl_b32 s48, s2, 3"); a("s_add_u32 s48, s48, s3"); a("s_lshl_b32 s48, s48, 6"); a(f"s_add_u32 s48, s48, {W_ST}")
        a("s_mov_b64 exec, 0xffff")
        a("buffer_store_dword v4, v5, s[40:43], s48 offen")
    a("L_exit:")
    a("s_endpgm")
    a('.section .rodata,"a"')
    a(".p2align 6")
    a(f".amdhsa_kernel {KNAME}")
    a("  .amdhsa_next_free_vgpr 240")
    a("  .amdhsa_next_free_sgpr 100")
    a("  .amdhsa_accum_offset 240")
    a("  .amdhsa_group_segment_fixed_size 0")
    a("  .amdhsa_kernarg_size 96")
    a("  .amdhsa_user_sgpr_count 2")
    a("  .amdhsa_user_sgpr_kernarg_segment_ptr 1")
    a("  .amdhsa_system_sgpr_workgroup_id_x 1")
    a("  .amdhsa_float_denorm_mode_32 3")
    a(".end_amdhsa_kernel")
    out = []
    for x in L:
        if x is None:
            continue
        if al:
            for pref, e in al.items():
                if x.startswith(pref) and x.endswith(":") and x != "L_ld0:" and x != "L_ldrain:":
                    out.append(f".p2align {e}")
        if x == "L_worker:" and shift:
            out += ["    s_nop 0"] * shift
        if x.endswith(":") or x.startswith((";", ".")) or x.startswith("  ."):
            out.append(x)
        else:
            out.append("    " + x)
    return "\n".join(out) + "\n"


if __name__ == "__main__":
    kw = eval("dict(%s)" % (sys.argv[2] if len(sys.argv) > 2 else ""))
    open(sys.argv[1], "w").write(gen(**kw))
```

```python
import sys
KNAME = "sequential_preLN__mha_block_cached__glu_gated_bilinear__decode_kernel"

HEADER = """; Kernarg layout for this problem (96 bytes, ptrs only, base s[0:1]):
;
; hand-offs: workgroups 56-119 project 64 head dims of all batches through wo, workgroups 120-175 reduce the
; Hand-offs go through d_ws with agent-scope stores/loads; a word is valid once it differs from the all-ones
; pattern written earlier in the same launch, or once it carries this launch's tag."""

M0_ = 131072
F_FILL, F_CONS, F_QCNT, F_MLCNT, F_FOK, F_QOK, F_DEP, F_CB, F_CLR, F_PUB = (M0_ + o for o in (0, 4, 12, 16, 20, 24, 28, 32, 36, 40))
L_ML, L_F = M0_ + 64, M0_ + 80
L_XN = M0_ + 128
L_QP = M0_ + 1024
L_QB = M0_ + 4608
L_PB = M0_ + 5120
L_CB = M0_ + 9216
L_RB = M0_ + 10240
L_XN2 = M0_ + 14080
L_GU = M0_ + 17920
L_STG = M0_ + 19968
LDS_BYTES = M0_ + 28160
W_YP = 0
W_OP = 0x70000
W_OX = 0xD2000
W_HB = 0xF2000
W_ML = 0x100000
W_QX = 0x110000
W_EP = 0x120000
W_FL = 0x128000
W_FB = 0x130000
W_ST = 0x280000
WS_BYTES = 0x300000
SEL, SB, ACC, ACA, YA, QA, T, WL, FF = 16, 24, 32, 36, 40, 56, 88, 120, 184
T2 = WL + 32
LOG2E_16 = 0x3db8aa3b
INV448 = 0x3b124925
EPS = 0x3727c5ac
NF, R0LO, R1LO = 56, 56, 120


def gen(depth=22, fbd=(18, 20, 24, 27, 32), fbt=(32, 96, 160, 192, 224), fbg=8, fbs=(144, 200, 232), fbmix=4,
        r2dep=0, wt0=32, wdt=1, gt0=24, gdt=1, nrep=8, pstag=5, psleep=0, barpos=7, krot=0,
        diag=False, spin_bound=True, nowo=False, noffn=False, mlt=144, boost=None, tpoll=255, r3sleep=0, g1=0, g2=0, g3=4, b3=False, b2=True, gsl=0, pdep=1, tst='', vpre=0, tmax=99, ramp=6, rampd=22, qb=20, late=2, nlate=4, r2b=0, wide=True, sync='tm', mmax=20, pmax=24, gap=0, xs=None, dpos=4, nbr=0, lsl=0, skip=0, msl=0, grp=1, doff=0, lpad=0, sites=(), endwait=False, lstamps=False, al=None, shift=0, outfl='', rsh=0, rmask=127, xl=7, perm=None, rsrc='w', padto=0, direct=251, dry0=False, dry1=False, trig='cb', g1n=16, gpair=False, pd=(2, 2, 1, 2), fastln=False, dry=True, patom=True, chkt=192, fbsl=4, csl=1, ldfirst=True, dummy=6, fbm='at', fbstr=256, lad=None, pi=None, r0dep=0, stt=((4, 224), (5, 240), (6, 248), (7, 192)), fbr=None, endt=0, endd=40, clrt=0, atomt=0, slowthr=0, slowsl=0, first2=False, stfl='sc1', ldfl='sc1', pret=False):
    if fbr is None:
        lv = sorted([depth] + list(fbd))
        ths = [th*8//256 for th in fbt]
        tab = tuple(lv[sum(r >= t for t in ths)] if fbd else depth for r in range(8))
        fbr = [(t, tab) for t in (fbs if fbd else ())]
    if lad:
        fbr = [(t, tuple(lad)) for t, _, _ in pi]
    lo = 0 if boost is None else 1
    depths = [depth] if boost is None else ([boost, depth] if not lad else [boost])
    for _, tab in fbr:
        for d in tab:
            if d not in depths[lo:]:
                depths.append(d)
    for d in ([endd] if endt else []) + [x for x in (r2dep, r0dep) if x]:
        if d not in depths[lo:]:
            depths.append(d)
    didx = lambda d: depths.index(d, lo)
    use_fb = bool(fbr)
    NT = 254 if direct else 256
    tpoll = min(tpoll, NT - 1)
    L = []
    a = L.append
    uid = [0]

    def fb_call(t):
        tab = dict(fbr)[t]
        if lad:
            _, P, I = [x for x in pi if x[0] == t][0]
            a(f"s_mov_b32 s50, {t}"); a(f"s_mov_b32 s51, {sum((d + 8) << (4*r) for r, d in enumerate(P)):#x}")
            a(f"s_mov_b32 s92, {sum((d + 8) << (4*r) for r, d in enumerate(I)):#x}")
            a("s_swappc_b64 s[54:55], s[52:53]")
            return
        a(f"s_mov_b32 s50, {t}"); a(f"s_mov_b32 s51, {sum(didx(d) << (4*r) for r, d in enumerate(tab)):#x}")
        a("s_swappc_b64 s[54:55], s[52:53]")

    def lab(p):
        uid[0] += 1
        return f"L_{p}{uid[0]}"

    def q(r, n=4):
        return f"v[{r}:{r+n-1}]"

    def srd(r, p, nbytes):
        a(f"s_mov_b32 s{r}, s{p}")
        a(f"s_and_b32 s{r+1}, s{p+1}, 0xffff")
        a(f"s_mov_b32 s{r+2}, {nbytes}")
        a(f"s_mov_b32 s{r+3}, 0x20000")

    site = [0]

    def stamp(k):
        site[0] += 1
        if not diag and (sites == 'all' or site[0] in sites):
            a(f"; site {site[0]}")
            a(f"s_memrealtime s[{64+2*k}:{65+2*k}]")
            a("s_waitcnt lgkmcnt(0)")
        if diag:
            a(f"s_memrealtime s[{64+2*k}:{65+2*k}]")
            a("s_waitcnt lgkmcnt(0)")

    def finish():
        if endwait and not diag:
            a("s_waitcnt vmcnt(0)")
        a("s_branch L_stamps" if diag else "s_endpgm")

    def bound_init(n=1 << 20):
        if spin_bound:
            a(f"s_mov_b32 s63, {n}")

    def bound_loop(target):
        if spin_bound:
            a("s_sub_u32 s63, s63, 1")
            a(f"s_cbranch_scc0 {target}")
        else:
            a(f"s_branch {target}")

    def lds_wait_ge(off, sdst, cmp_operand, vt, sleep=1, precheck=False, vaddr=14):
        p, go = lab("poll"), lab("go")
        if precheck:
            a(f"s_cmp_ge_u32 {sdst}, {cmp_operand}")
            a(f"s_cbranch_scc1 {go}")
        bound_init()
        a(f"{p}:")
        a(f"ds_read_b32 v{vt}, v{vaddr} offset:{off - M0_}")
        a("s_waitcnt lgkmcnt(0)")
        a(f"v_readfirstlane_b32 {sdst}, v{vt}")
        a(f"s_cmp_ge_u32 {sdst}, {cmp_operand}")
        a(f"s_cbranch_scc1 {go}")
        if sleep:
            a(f"s_sleep {sleep}")
        bound_loop(p)
        a(f"{go}:")

    def call_setup(target, fwd):
        l0 = lab("pc")
        a("s_getpc_b64 s[52:53]")
        a(f"{l0}:")
        if fwd:
            a(f"s_add_u32 s52, s52, {target}-{l0}"); a("s_addc_u32 s53, s53, 0")
        else:
            a(f"s_sub_u32 s52, s52, {l0}-{target}"); a("s_subb_u32 s53, s53, 0")

    def call():
        a("s_swappc_b64 s[54:55], s[52:53]")

    def call_woperm():
        l0, l1 = lab("wr"), lab("wr")
        a("s_getpc_b64 s[54:55]")
        a(f"{l0}:")
        a(f"s_add_u32 s54, s54, {l1}-{l0}"); a("s_addc_u32 s55, s55, 0")
        a("s_branch L_woperm")
        a(f"{l1}:")

    DPPS = [("row_ror:8", 0xf), ("row_ror:4", 0xf), ("row_ror:2", 0xf), ("row_ror:1", 0xf),
            ("row_bcast:15", 0xa), ("row_bcast:31", 0xc)]

    def wave_red(op, v, sdst):
        for d, m in DPPS:
            a("s_nop 1")
            a(f"{op}_dpp v{v}, v{v}, v{v} {d} row_mask:{m:#x} bank_mask:0xf")
        a("s_nop 0")
        a(f"v_readlane_b32 {sdst}, v{v}, 63")
        a("s_nop 1")

    def bf16r(dst, src):
        a(f"v_cvt_pk_bf16_f32 v{dst}, v{src}, v{src}")
        a(f"v_and_b32 v{dst}, 0xffff0000, v{dst}")

    def layernorm(X, t, out, fast=False):
        D, s1, s2, u = t, t + 8, t + 10, t + 12
        a(f"v_readfirstlane_b32 s48, v{X}")
        a(f"v_mov_b32 v{s1}, 0"); a(f"v_mov_b32 v{s2}, 0")
        a("s_mov_b32 exec_hi, 0x00ffffff")
        for e in range(0, 8, 2):
            a(f"v_pk_add_f32 {q(D+e,2)}, {q(X+e,2)}, s[48:49] op_sel_hi:[1,0] neg_lo:[0,1] neg_hi:[0,1]")
        a(f"v_pk_add_f32 {q(u,2)}, {q(D,2)}, {q(D+2,2)}")
        a(f"v_pk_mul_f32 {q(s2,2)}, {q(D,2)}, {q(D,2)}")
        a(f"v_pk_add_f32 {q(s1,2)}, {q(D+4,2)}, {q(D+6,2)}")
        a(f"v_pk_fma_f32 {q(s2,2)}, {q(D+2,2)}, {q(D+2,2)}, {q(s2,2)}")
        a(f"v_pk_add_f32 {q(s1,2)}, {q(s1,2)}, {q(u,2)}")
        a(f"v_pk_fma_f32 {q(s2,2)}, {q(D+4,2)}, {q(D+4,2)}, {q(s2,2)}")
        a(f"v_add_f32 v{s1}, v{s1}, v{s1+1}")
        a(f"v_pk_fma_f32 {q(s2,2)}, {q(D+6,2)}, {q(D+6,2)}, {q(s2,2)}")
        a(f"s_mov_b32 s49, {INV448:#x}")
        a(f"v_add_f32 v{s2}, v{s2}, v{s2+1}")
        a("s_mov_b32 exec_hi, -1")
        for d, m in DPPS:
            a("s_nop 0")
            a(f"v_add_f32_dpp v{s1}, v{s1}, v{s1} {d} row_mask:{m:#x} bank_mask:0xf")
            a(f"v_add_f32_dpp v{s2}, v{s2}, v{s2} {d} row_mask:{m:#x} bank_mask:0xf")
        a(f"v_mov_b32 v{u}, s49")
        a(f"v_readlane_b32 s50, v{s1}, 63")
        a(f"v_readlane_b32 s51, v{s2}, 63")
        a("s_nop 0")
        a(f"v_mul_f32 v{s1}, s50, v{u}")
        a(f"v_mul_f32 v{s2}, s51, v{u}")
        a(f"v_add_f32 v{u}, s48, v{s1}")
        a(f"v_fma_f32 v{s2}, -v{s1}, v{s1}, v{s2}")
        if fast:
            a(f"v_max_f32 v{s2}, 0, v{s2}")
            a(f"v_pk_add_f32 {q(D,2)}, {q(X,2)}, {q(u,2)} op_sel_hi:[1,0] neg_lo:[0,1] neg_hi:[0,1]")
            a(f"v_add_f32 v{s2}, {EPS:#x}, v{s2}")
            a(f"v_pk_add_f32 {q(D+2,2)}, {q(X+2,2)}, {q(u,2)} op_sel_hi:[1,0] neg_lo:[0,1] neg_hi:[0,1]")
            a(f"v_rsq_f32 v{s2}, v{s2}")
            a(f"v_pk_add_f32 {q(D+4,2)}, {q(X+4,2)}, {q(u,2)} op_sel_hi:[1,0] neg_lo:[0,1] neg_hi:[0,1]")
            a(f"v_pk_add_f32 {q(D+6,2)}, {q(X+6,2)}, {q(u,2)} op_sel_hi:[1,0] neg_lo:[0,1] neg_hi:[0,1]")
            for e in range(0, 8, 2):
                a(f"v_pk_mul_f32 {q(D+e,2)}, {q(D+e,2)}, {q(s2,2)} op_sel_hi:[1,0]")
            for d in range(4):
                a(f"v_cvt_pk_bf16_f32 v{out+d}, v{D+2*d}, v{D+2*d+1}")
            return
        a(f"v_cvt_pk_bf16_f32 v{u}, v{u}, v{u}")
        a(f"v_max_f32 v{s2}, 0, v{s2}")
        a(f"v_and_b32 v{u}, 0xffff0000, v{u}")
        a(f"v_cvt_pk_bf16_f32 v{s2}, v{s2}, v{s2}")
        a(f"v_pk_add_f32 {q(D,2)}, {q(X,2)}, {q(u,2)} op_sel_hi:[1,0] neg_lo:[0,1] neg_hi:[0,1]")
        a(f"v_and_b32 v{s2}, 0xffff0000, v{s2}")
        a(f"v_pk_add_f32 {q(D+2,2)}, {q(X+2,2)}, {q(u,2)} op_sel_hi:[1,0] neg_lo:[0,1] neg_hi:[0,1]")
        a(f"v_add_f32 v{s2}, {EPS:#x}, v{s2}")
        a(f"v_pk_add_f32 {q(D+4,2)}, {q(X+4,2)}, {q(u,2)} op_sel_hi:[1,0] neg_lo:[0,1] neg_hi:[0,1]")
        a(f"v_cvt_pk_bf16_f32 v{s2}, v{s2}, v{s2}")
        a(f"v_pk_add_f32 {q(D+6,2)}, {q(X+6,2)}, {q(u,2)} op_sel_hi:[1,0] neg_lo:[0,1] neg_hi:[0,1]")
        a(f"v_and_b32 v{s2}, 0xffff0000, v{s2}")
        a(f"v_cvt_pk_bf16_f32 v{out}, v{D}, v{D+1}")
        a(f"v_sqrt_f32 v{s2}, v{s2}")
        a(f"v_cvt_pk_bf16_f32 v{out+1}, v{D+2}, v{D+3}")
        a(f"v_cvt_pk_bf16_f32 v{s2}, v{s2}, v{s2}")
        a(f"v_cvt_pk_bf16_f32 v{out+2}, v{D+4}, v{D+5}")
        a(f"v_and_b32 v{s2}, 0xffff0000, v{s2}")
        a(f"v_cvt_pk_bf16_f32 v{out+3}, v{D+6}, v{D+7}")
        a(f"v_rcp_f32 v{s2}, v{s2}")
        for d in range(4):
            a(f"v_lshlrev_b32 v{D+2*d}, 16, v{out+d}"); a(f"v_and_b32 v{D+2*d+1}, 0xffff0000, v{out+d}")
        for e in range(0, 8, 2):
            a(f"v_pk_mul_f32 {q(D+e,2)}, {q(D+e,2)}, {q(s2,2)} op_sel_hi:[1,0]")
        for d in range(4):
            a(f"v_cvt_pk_bf16_f32 v{out+d}, v{D+2*d}, v{D+2*d+1}")

    def build_a(dst, psrc, n):
        for w in range(4):
            a(f"v_perm_b32 v{dst+w}, v{psrc + (n >> 1)}, v{psrc + (n >> 1)}, v{SEL + (n & 1)*4 + w}")

    def xreduce(V):
        a("s_nop 1")
        a(f"v_permlane16_swap_b32 v{V}, v{V+1}")
        a(f"v_permlane16_swap_b32 v{V+2}, v{V+3}")
        a(f"v_add_f32 v{V}, v{V}, v{V+1}")
        a(f"v_add_f32 v{V+2}, v{V+2}, v{V+3}")
        a("s_nop 1")
        a(f"v_permlane32_swap_b32 v{V}, v{V+2}")
        a(f"v_add_f32 v{V}, v{V}, v{V+2}")
        a("s_nop 1")
        a(f"v_add_f32_dpp v{V}, v{V}, v{V} row_ror:8 row_mask:0xf bank_mask:0xf")
        a("s_nop 1")
        a(f"v_add_f32_dpp v{V}, v{V}, v{V} row_ror:4 row_mask:0xf bank_mask:0xf")

    def poll_quads(R, voff, soffs, vt, execs=None, both=False, pdep=1):
        n = len(soffs)
        execs = execs or ["-1"] * n

        def batch(masked):
            for g in range(n):
                if masked:
                    a(f"s_or_b64 exec, s[{80+2*g}:{81+2*g}], 1")
                elif g == 0 or execs[g] != execs[g-1]:
                    a(f"s_mov_b64 exec, {execs[g]}")
                a(f"buffer_load_dwordx4 {q(R+4*g)}, v{voff}, s[40:43], {soffs[g]} offen {ldfl}")

        def check(extra, go):
            for g in range(n):
                if g == 0 or execs[g] != execs[g-1]:
                    a(f"s_mov_b64 exec, {execs[g]}")
                a(f"s_waitcnt vmcnt({extra + n-1-g})")
                a(f"v_max3_u32 v{vt}, v{R+4*g}, v{R+4*g+1}, v{R+4*g+2}")
                a(f"v_max_u32 v{vt}, v{vt}, v{R+4*g+3}")
                a(f"v_cmp_eq_u32 s[{80+2*g}:{81+2*g}], -1, v{vt}")
            a("s_or_b64 s[50:51], s[80:81], s[82:83]")
            for g in range(2, n):
                a(f"s_or_b64 s[50:51], s[50:51], s[{80+2*g}:{81+2*g}]")
            a(f"s_cbranch_scc0 {go}")
        p, go = lab("gp"), lab("gg")
        batch(False)
        if both:
            for _ in range(pdep - 1):
                a(f"s_sleep {pstag}")
                batch(False)
        else:
            check(0, go)
            batch(True)
            for _ in range(pdep - 1):
                a(f"s_sleep {pstag}")
                batch(True)
        bound_init(1 << 17)
        a(f"{p}:")
        check((pdep - 1) * n, go)
        if slowsl:
            sk = lab("fs")
            a("s_bcnt1_i32_b64 s48, s[50:51]"); a(f"s_cmp_le_u32 s48, {slowthr}"); a(f"s_cbranch_scc1 {sk}")
            a(f"s_sleep {slowsl}")
            a(f"{sk}:")
        if psleep:
            a(f"s_sleep {psleep}")
        batch(True)
        bound_loop(p)
        a(f"{go}:")
        a("s_mov_b64 exec, -1")

    def gate(voff, soff, nl, need, vt, tag=None):
        p, go = lab("wp"), lab("wg")
        bound_init(1 << 17)
        a(f"s_mov_b64 exec, {hex((1 << nl) - 1)}")
        a(f"{p}:")
        a(f"buffer_load_dword v{vt}, v{voff}, s[40:43], {soff} offen {ldfl}")
        a("s_waitcnt vmcnt(0)")
        a(f"v_cmp_ne_u32 s[50:51], -1, v{vt}" if tag is None else f"v_cmp_eq_u32 s[50:51], {tag}, v{vt}")
        a("s_bcnt1_i32_b64 s48, s[50:51]")
        a(f"s_cmp_ge_u32 s48, {need}")
        a(f"s_cbranch_scc1 {go}")
        if gsl:
            a(f"s_sleep {gsl}")
        bound_loop(p)
        a(f"{go}:")
        a("s_mov_b64 exec, -1")

    def end_wait(t):
        if trig == 'cb':
            lds_wait_ge(F_CB, "s48", 1, 6, sleep=4)
        else:
            lds_wait_ge(F_FILL, "s48", t, 6, sleep=4)

    def set_depth(src):
        a(f"v_mov_b32 v6, {src}")
        a(f"ds_write_b32 v14, v6 offset:{F_DEP-M0_}")

    def wo_load(k):
        ks, e = k >> 3, k & 7
        if nowo:
            return
        if (e & 3) == 0:
            a(f"s_mov_b32 s48, {(ks*32 + (e & 4))*896}")
        a(f"buffer_load_dwordx2 {q(WL+4*k,2)}, v4, s[36:39], s48 offen offset:{(e & 3)*896} nt")
        a(f"buffer_load_dwordx2 {q(WL+4*k+2,2)}, v4, s[36:39], s48 offen offset:{(e & 3)*896 + 128} nt")

    def wfrag(ks, t):
        return (T if ks == 0 else WL) + 4*t

    a(HEADER)
    a(f"; @launch grid=(256,1,1) block=(512,1,1) lds={LDS_BYTES}")
    a('.amdgcn_target "amdgcn-amd-amdhsa--gfx950"')
    a(".text")
    a(f".globl {KNAME}")
    a(".p2align 8")
    a(f".type {KNAME},@function")
    a(f"{KNAME}:")
    a("s_cmp_ge_u32 s2, 256")
    a("s_cbranch_scc1 L_exit")
    a("s_load_dwordx16 s[4:19], s[0:1], 0")
    a("s_load_dwordx8 s[20:27], s[0:1], 64")
    if diag:
        for k in range(16):
            a(f"s_mov_b32 s{64+k}, 0")
        a("s_memrealtime s[64:65]")
    if padto:
        a("s_memrealtime s[98:99]")
    a("v_lshrrev_b32 v1, 6, v0")
    a("v_and_b32 v0, 63, v0")
    a("v_readfirstlane_b32 s3, v1")
    if perm:
        a("s_mov_b32 s48, 0")
        for i, pb in enumerate(perm):
            a(f"s_bfe_u32 s49, s2, {(1 << 16) | i}"); a(f"s_lshl_b32 s49, s49, {pb}"); a("s_or_b32 s48, s48, s49")
        a("s_and_b32 s29, s48, 3"); a("s_lshr_b32 s28, s48, 2"); a("s_and_b32 s28, s28, 15"); a("s_lshr_b32 s30, s48, 6")
    elif xl == 2:
        a("s_and_b32 s28, s2, 7"); a("s_lshr_b32 s48, s2, 3"); a("s_and_b32 s49, s48, 1"); a("s_lshl_b32 s49, s49, 3")
        a("s_add_u32 s28, s28, s49")
        a("s_lshr_b32 s29, s48, 1"); a("s_and_b32 s29, s29, 3"); a("s_lshr_b32 s30, s48, 3")
    elif xl == 7:
        a("s_and_b32 s48, s2, 5"); a("s_lshl_b32 s48, s48, 1"); a("s_lshr_b32 s49, s2, 1"); a("s_and_b32 s49, s49, 5"); a("s_or_b32 s48, s48, s49")
        a("s_and_b32 s29, s48, 3"); a("s_and_b32 s49, s2, 0x30"); a("s_or_b32 s28, s48, s49"); a("s_lshr_b32 s28, s28, 2"); a("s_lshr_b32 s30, s2, 6")
    elif xl == 0:
        a("s_and_b32 s29, s2, 3"); a("s_lshr_b32 s28, s2, 2"); a("s_and_b32 s28, s28, 15"); a("s_lshr_b32 s30, s2, 6")
    elif xl == 4:
        a("s_and_b32 s28, s2, 15"); a("s_lshr_b32 s30, s2, 4"); a("s_and_b32 s30, s30, 3"); a("s_lshr_b32 s29, s2, 6")
    elif xl == 6:
        a("s_and_b32 s29, s2, 3"); a("s_lshr_b32 s48, s2, 2"); a("s_and_b32 s49, s48, 1"); a("s_lshl_b32 s49, s49, 3")
        a("s_lshr_b32 s30, s2, 3"); a("s_and_b32 s30, s30, 3"); a("s_lshr_b32 s28, s2, 5"); a("s_add_u32 s28, s28, s49")
    a("s_lshl_b32 s31, s30, 4"); a("s_add_u32 s31, s31, s28")
    a("v_and_b32 v1, 15, v0")
    a("v_lshrrev_b32 v2, 4, v0")
    a("v_lshrrev_b32 v3, 5, v0")
    def emit_loader():
        a("L_loader:")
        a("s_setprio 3")
        a("v_and_b32 v4, 31, v0"); a("v_xor_b32 v4, v4, v3"); a("v_lshlrev_b32 v4, 4, v4"); a("v_lshl_add_u32 v8, v3, 9, v4")
        for k in range(1, 8):
            a(f"v_xor_b32 v{8+k}, {k << 5}, v8")
        a("s_lshl_b32 s59, s31, 22"); a(f"s_lshl_b32 s49, s29, {qb}"); a("s_add_u32 s59, s59, s49")
        a("s_mov_b32 s56, 0"); a("s_mov_b32 s58, 0"); a("s_mov_b32 m0, 0")
        if krot:
            a("; both streams start at a workgroup-dependent tile and wrap around")
            a(f"s_lshr_b32 s60, s2, {rsh}"); a(f"s_mul_i32 s60, s60, {krot}"); a(f"s_and_b32 s60, s60, {rmask}"); a("s_lshl_b32 s60, s60, 13")
        else:
            a("s_mov_b32 s60, 0")
        a("s_mov_b32 s57, s60")
        a(f"s_mov_b32 s34, {(4 << 20) - (3 << qb)}"); a("s_mov_b32 s35, 0x20000")
        a(f"v_mov_b32 v24, {M0_}"); a(f"v_mov_b32 v17, {F_CONS + 4*((ramp or 1) & 1)}")
        if ramp:
            a("s_mov_b32 s50, 0")
        if tmax < 99:
            a("s_mov_b32 s51, -99")
        for r in range(4):
            a(f"v_mov_b32 v{20+r}, 0")
        a("ds_write_b128 v24, v[20:23]"); a("ds_write_b128 v24, v[20:23] offset:16"); a("ds_write_b128 v24, v[20:23] offset:32")
        a("s_waitcnt lgkmcnt(0)")
        if 'e' in tst:
            stamp(4)
        a("s_add_u32 s32, s6, s59"); a("s_addc_u32 s33, s7, 0"); a("s_and_b32 s33, s33, 0xffff")
        if diag:
            srd(40, 26, WS_BYTES)
        if ramp:
            a("; the first tiles fill the window back to back")
            a("L_lramp:")
            for k in range(8):
                if k == 4:
                    a("s_add_u32 m0, s56, 4096"); a("s_add_u32 s57, s57, 4096")
                a(f"s_waitcnt vmcnt({rampd-1})")
                a(f"buffer_load_dwordx4 v{8+k}, s[32:35], s57 offen offset:{(k&3)*1024} nt lds")
                if k == barpos:
                    a("s_cmp_lg_u32 s58, 0"); a("s_cbranch_scc1 L_lnb"); a("s_barrier"); a("L_lnb:")
            a("s_branch L_lnext")
        for di, dd in enumerate(depths):
            dd += doff
            waits = list(range(0, 8, grp))
            val = {k: (k - (dd - grp)) // 8 for k in waits}
            prev = {k: (val[k - grp] if k else val[waits[-1]] - 1) for k in waits}
            kpub = [k for k in waits if val[k] > prev[k]][0]
            lag = -val[kpub]
            a(f"L_ld{di}:")
            for k in range(8):
                if k == 4:
                    a("s_add_u32 m0, s56, 4096"); a("s_add_u32 s57, s57, 4096")
                    if msl:
                        a(f"s_sleep {msl}")
                if k == kpub:
                    a(f"s_sub_u32 s49, s58, {lag}"); a("s_max_i32 s49, s49, 0"); a("v_mov_b32 v19, s49")
                if k % grp == 0:
                    a(f"s_waitcnt vmcnt({dd-grp})")
                elif k == 4:
                    a("s_nop 0")
                a(f"buffer_load_dwordx4 v{8+k}, s[32:35], s57 offen offset:{(k&3)*1024} nt lds")
                if k == kpub:
                    a("ds_write_b32 v24, v19")
                if k == kpub and 'p' in sync and dd <= pmax:
                    a("s_waitcnt lgkmcnt(0)")
                if k == 6 and ('t' not in sync or dd > tmax):
                    a("ds_read_b32 v18, v17")
                if k == 7 and 't' in sync and dd > tmax:
                    a("s_waitcnt lgkmcnt(0)"); a("v_readfirstlane_b32 s51, v18")
                if k == 6 and 'm' not in sync:
                    a(f"ds_read_b32 v25, v24 offset:{F_DEP-M0_}")
                if k == dpos - 1 and 'm' in sync:
                    a(f"ds_read_b32 v25, v24 offset:{F_DEP-M0_}")
                if k == (dpos - 1 if dd <= mmax else 7) and 'm' in sync:
                    a("s_waitcnt lgkmcnt(0)"); a("v_readfirstlane_b32 s50, v25")
                if xs:
                    for (dmax, kk, nn) in xs:
                        if dd <= dmax and k == kk:
                            a(f"s_nop {nn}")
                if gap:
                    a(f"s_nop {gap-1}")
                if di == 0 and k == barpos and not ramp:
                    sk = lab("nb")
                    a("s_cmp_lg_u32 s58, 0"); a(f"s_cbranch_scc1 {sk}")
                    if 'e' in tst:
                        stamp(5)
                    a("s_barrier")
                    if 'e' in tst:
                        a("s_waitcnt vmcnt(7)"); stamp(6)
                    a(f"{sk}:")
            if di + 1 < len(depths):
                a("s_branch L_lnext")
        a("L_lnext:")
        if qb == 20:
            a("s_add_u32 s57, s57, 4096"); a("s_and_b32 s57, s57, 0xfffff")
        else:
            a(f"s_add_u32 s57, s57, 4096"); a(f"s_and_b32 s48, s57, {(1 << qb) - 1}"); a(f"s_cselect_b32 s48, 0, {3 << qb}"); a("s_add_u32 s57, s57, s48")
        a("s_add_u32 s56, s56, 8192"); a("s_and_b32 s56, s56, 0x1ffff")
        a("s_add_u32 s58, s58, 1")
        if diag or lstamps:
            for kk, tt in stt:
                sk = lab("st")
                a(f"s_cmp_lg_u32 s58, {tt}"); a(f"s_cbranch_scc1 {sk}"); stamp(kk); a(f"{sk}:")
        for _ in range(lpad):
            a("s_nop 0")
        for _ in range(nbr):
            sk = lab("jb"); a(f"s_branch {sk}"); a(f"{sk}:")
        if lsl:
            a(f"s_sleep {lsl}")
        if skip:
            sk = lab("jb"); a(f"s_branch {sk}")
            for _ in range(skip):
                a("s_nop 0")
            a(f"{sk}:")
        a("s_cmp_lg_u32 s58, 128")
        a("s_cbranch_scc1 L_lnosw")
        a("s_add_u32 s32, s8, s59"); a("s_addc_u32 s33, s9, 0"); a("s_and_b32 s33, s33, 0xffff"); a("s_mov_b32 s57, s60")
        for k in range(8):
            a(f"v_lshlrev_b32 v{8+k}, 4, v0")
        stamp(1)
        a("L_lnosw:")
        a(f"s_cmp_ge_u32 s58, {NT}")
        a("s_cbranch_scc1 L_ldrain")
        if ramp:
            a("s_mov_b32 m0, s56")
            a(f"s_cmp_lt_u32 s58, {ramp}"); a("s_cbranch_scc1 L_lramp")
        a("s_lshr_b32 s49, s58, 1"); a("s_sub_u32 s49, s49, 7")
        p, go = lab("fp"), lab("fg")
        if 't' not in sync or 'm' not in sync:
            a("s_waitcnt lgkmcnt(0)")
        if 'm' not in sync:
            a("v_readfirstlane_b32 s50, v25")
        if 't' in sync and tmax < 99:
            a("s_cmp_ge_i32 s51, s49"); a("s_mov_b32 s51, -99")
            a(f"s_cbranch_scc1 {go}")
        if 't' not in sync:
            a("v_readfirstlane_b32 s48, v18")
            a("s_cmp_ge_i32 s48, s49")
            a(f"s_cbranch_scc1 {go}")
        bound_init()
        a(f"{p}:")
        a("ds_read_b32 v18, v17"); a("s_waitcnt lgkmcnt(0)"); a("v_readfirstlane_b32 s48, v18")
        a("s_cmp_ge_i32 s48, s49")
        a(f"s_cbranch_scc1 {go}")
        a("s_sleep 1")
        bound_loop(p)
        a(f"{go}:")
        a("v_xor_b32 v17, 12, v17")
        a("s_mov_b32 m0, s56")
        for di in range(1, len(depths)):
            a(f"s_cmp_eq_u32 s50, {di}"); a(f"s_cbranch_scc1 L_ld{di}")
        a("s_branch L_ld0")
        a("L_ldrain:")
        stamp(2)
        for c in range(NT - (max(depths) + doff + 6) // 8, NT + 1):
            a(f"v_mov_b32 v19, {c}")
            a(f"s_waitcnt vmcnt({8*(NT-c)})")
            a("ds_write_b32 v24, v19")
        a("s_waitcnt lgkmcnt(0)")
        stamp(3)
        finish()


    if ldfirst:
        a("s_cmp_lg_u32 s3, 0")
        a("s_cbranch_scc1 L_worker")
        emit_loader()
        a("L_worker:")
    else:
        a("s_cmp_eq_u32 s3, 0")
        a("s_cbranch_scc1 L_loader")

    a("s_sub_u32 s60, s3, 1")
    a("v_lshlrev_b32 v5, 4, v0")
    a("s_mul_i32 s48, s30, 896")
    a("v_add_u32 v5, s48, v5")
    a("v_mov_b32 v6, 0x7fffff00")
    a("v_cmp_gt_u32 vcc, 56, v0")
    a("v_and_b32 v4, 7, v0")
    a("v_lshlrev_b32 v4, 4, v4")
    a("v_cndmask_b32 v5, v6, v5, vcc")
    a("v_lshrrev_b32 v13, 3, v0")
    a("v_lshl_add_u32 v4, v13, 16, v4")
    a("s_lshl_b32 s48, s60, 19"); a("s_lshl_b32 s49, s28, 9"); a("s_add_u32 s48, s48, s49")
    a("s_lshl_b32 s49, s29, 7"); a("s_add_u32 s48, s48, s49")
    a("v_add_u32 v4, s48, v4")
    a("s_waitcnt lgkmcnt(0)")
    srd(32, 4, 3584)
    srd(36, 10, 3670016)
    a(f"buffer_load_dwordx4 {q(YA)}, v5, s[32:35], 0 offen")
    a(f"s_add_u32 s48, s26, {W_EP}"); a("s_addc_u32 s49, s27, 0")
    a("s_load_dword s62, s[48:49], 0")
    a("v_mov_b32 v15, 0")
    a("s_barrier")
    a("s_mov_b32 s50, 0")
    for n in range(8):
        a(f"buffer_load_dwordx4 {q(QA+4*n)}, v4, s[36:39], s50 offen nt") if 'w' not in tst else a(f"buffer_load_dword v{QA+4*n}, v15, s[32:35], 0 offen")
        if n < 7:
            a("s_add_u32 s50, s50, 8192")
    srd(40, 26, WS_BYTES)
    for r in range(4):
        a(f"v_mov_b32 v{ACA+r}, -1")
    a("s_lshl_b32 s48, s2, 2"); a("s_add_u32 s48, s48, s3"); a("s_sub_u32 s48, s48, 4"); a("s_lshl_b32 s48, s48, 10")
    a("s_cmp_ge_u32 s3, 4"); a(f"s_cselect_b32 s48, s48, {WS_BYTES}")
    a("v_lshlrev_b32 v6, 4, v0")
    a(f"buffer_store_dwordx4 {q(ACA)}, v6, s[40:43], s48 offen sc1")
    a("v_and_b32 v6, 1, v1"); a("v_cmp_eq_u32 vcc, 1, v6")
    a("v_mov_b32 v7, 0x0c0c0100"); a("v_mov_b32 v8, 0x01000c0c"); a("v_mov_b32 v9, 0x0c0c0302"); a("v_mov_b32 v10, 0x03020c0c")
    a("v_cndmask_b32 v7, v7, v8, vcc"); a("v_cndmask_b32 v9, v9, v10, vcc")
    a("v_bfe_u32 v6, v1, 1, 2"); a("v_mov_b32 v10, 0x0c0c0c0c")
    for w in range(4):
        a(f"v_cmp_eq_u32 vcc, {w}, v6"); a("s_nop 1")
        a(f"v_cndmask_b32 v{SEL+w}, v10, v7, vcc"); a(f"v_cndmask_b32 v{SEL+4+w}, v10, v9, vcc")
    a("v_mov_b32 v15, 0")
    a(f"v_mov_b32 v14, {M0_}")
    a(f"v_lshlrev_b32 v8, 4, v0"); a(f"v_add_u32 v8, {L_XN}, v8")
    a("s_lshl_b32 s48, s60, 7"); a(f"s_add_u32 s48, s48, {L_XN}")
    a("v_lshl_add_u32 v9, v13, 4, s48")
    a("v_lshrrev_b32 v6, 1, v2"); a("v_lshlrev_b32 v6, 8, v6"); a("v_and_b32 v7, 7, v1"); a("v_lshl_add_u32 v6, v7, 5, v6")
    a("v_and_b32 v7, 1, v2"); a("v_lshl_add_u32 v6, v7, 4, v6")
    a("s_lshl_b32 s48, s60, 9"); a(f"s_add_u32 s48, s48, {L_QP}")
    a("v_add_u32 v6, s48, v6")
    a("v_mov_b32 v7, 1")
    a("s_waitcnt vmcnt(9)")
    for d in range(4):
        a(f"v_lshlrev_b32 v{T+2*d}, 16, v{YA+d}"); a(f"v_and_b32 v{T+2*d+1}, 0xffff0000, v{YA+d}")
    layernorm(T, T + 8, YA)
    a("s_mov_b32 exec_hi, 0x00ffffff")
    a(f"ds_write_b128 v8, {q(YA)}")
    a("s_mov_b32 exec_hi, -1")
    a("s_waitcnt lgkmcnt(0)")
    a(f"ds_read_b128 {q(YA)}, v9")
    stamp(1)
    a("s_waitcnt lgkmcnt(0)")
    for n in range(8):
        build_a(T + 4*n, YA, n)
    for n in range(8):
        a(f"s_waitcnt vmcnt({8-n})")
        a(f"v_mfma_f32_16x16x32_bf16 {q(ACC)}, {q(T+4*n)}, {q(QA+4*n)}, {q(ACC) if n else 0}")
    a("s_mov_b32 exec_lo, 0x00ff00ff"); a("s_mov_b32 exec_hi, 0xff00ff00")
    a("s_nop 5")
    a(f"ds_write_b128 v6, {q(ACC)}")
    a("s_waitcnt lgkmcnt(0)")
    a("s_mov_b64 exec, 1")
    a(f"ds_add_u32 v14, v7 offset:{F_QCNT-M0_}")
    a("s_waitcnt vmcnt(0)")
    a(f"ds_add_u32 v14, v7 offset:{F_CLR-M0_}")
    a("s_add_u32 s91, s62, 1")
    a("s_mov_b64 exec, -1")
    stamp(2)
    a("s_cmp_eq_u32 s3, 3")
    a("s_cbranch_scc1 L_h4")
    a("s_cmp_gt_u32 s3, 3")
    a("s_cbranch_scc1 L_helper")

    a("v_and_b32 v6, 1, v2"); a("v_lshrrev_b32 v8, 3, v1"); a("v_cmp_eq_u32 vcc, v6, v8"); a("s_nop 1")
    for w in range(8):
        a(f"v_cndmask_b32 v{SEL+w}, v10, v{SEL+w}, vcc")
    a("v_and_b32 v6, 3, v1"); a("v_xor_b32 v6, v6, v2"); a("v_and_b32 v7, 12, v1"); a("v_or_b32 v6, v6, v7")
    for m in range(4):
        a(f"v_xor_b32 v7, {m*4}, v6"); a("v_lshlrev_b32 v7, 4, v7"); a(f"v_lshl_add_u32 v{8+m}, v1, 9, v7")
    a("v_and_b32 v6, 1, v1"); a("v_lshlrev_b32 v6, 4, v6"); a("v_and_b32 v7, 14, v1"); a("v_add_u32 v12, v6, v7")
    a("s_lshl_b32 s48, s60, 5"); a(f"s_add_u32 s61, s48, {L_PB}")
    a("v_add_u32 v12, s61, v12")
    a("s_lshl_b32 s48, s60, 2"); a(f"s_add_u32 s48, s48, {F_CONS}"); a("v_mov_b32 v13, s48")
    a("s_lshl_b32 s56, s60, 13")
    a("s_add_u32 s57, s60, 1")
    a("s_mov_b32 s58, 0")
    a("v_mov_b32 v5, 0")
    a(f"v_lshlrev_b32 v7, 4, v2"); a(f"v_add_u32 v7, {L_QB}, v7")
    lds_wait_ge(F_QOK, "s48", 1, 6)
    for ks in range(8):
        a(f"ds_read_b128 {q(QA+4*ks)}, v7 offset:{ks*64}")
    stamp(3)
    a("L_kloop:")
    for m in range(4):
        a(f"v_add_u32 v{SB+m}, s56, v{8+m}")
    a("v_add_u32 v5, 1, v5")
    lds_wait_ge(F_FILL, "s58", "s57", 6, precheck=True, sleep=csl)
    for ks in range(8):
        a(f"ds_read_b128 {q(T+4*ks)}, v{SB+(ks&3)} offset:{(ks>>2)*256}")
    for ks in range(8):
        a(f"s_waitcnt lgkmcnt({7-ks})")
        a(f"v_mfma_f32_16x16x32_bf16 {q(ACC)}, {q(QA+4*ks)}, {q(T+4*ks)}, {q(ACC) if ks else 0}")
    a("ds_write_b32 v13, v5")
    a("s_add_u32 s56, s56, 16384"); a("s_and_b32 s56, s56, 0x1ffff")
    a("s_add_u32 s57, s57, 2")
    a("s_nop 4")
    a(f"v_cvt_pk_bf16_f32 v6, v{ACC}, v{ACC}")
    a("ds_write_b16 v12, v6")
    a("v_add_u32 v12, 64, v12")
    a("s_cmp_lt_u32 s57, 129")
    a("s_cbranch_scc1 L_kloop")
    stamp(4)
    a("v_lshl_add_u32 v12, v0, 6, s61")
    a("s_waitcnt lgkmcnt(0)")
    a(f"ds_read_b128 {q(YA)}, v12"); a(f"ds_read_b128 {q(YA+4)}, v12 offset:16")
    a("s_waitcnt lgkmcnt(0)")
    for d in range(8):
        a(f"v_lshlrev_b32 v{T+2*d}, 16, v{YA+d}"); a(f"v_and_b32 v{T+2*d+1}, 0xffff0000, v{YA+d}")
    a(f"v_max3_f32 v6, v{T}, v{T+1}, v{T+2}")
    for d in range(3, 15, 2):
        a(f"v_max3_f32 v6, v6, v{T+d}, v{T+d+1}")
    a(f"v_max_f32 v6, v6, v{T+15}")
    wave_red("v_max_f32", 6, "s48")
    a(f"s_mov_b32 s49, {LOG2E_16:#x}")
    for d in range(16):
        a(f"v_subrev_f32 v{T+d}, s48, v{T+d}")
    for d in range(16):
        a(f"v_mul_f32 v{T+d}, s49, v{T+d}")
    for d in range(16):
        a(f"v_exp_f32 v{T+d}, v{T+d}")
    a("s_nop 0")
    for d in range(8):
        a(f"v_cvt_pk_bf16_f32 v{YA+d}, v{T+2*d}, v{T+2*d+1}")
    a(f"ds_write_b128 v12, {q(YA)}"); a(f"ds_write_b128 v12, {q(YA+4)} offset:16")
    for st in (8, 4, 2, 1):
        for d in range(st):
            a(f"v_add_f32 v{T+d}, v{T+d}, v{T+d+st}")
    wave_red("v_add_f32", T, "s49")
    a("v_mov_b32 v6, s48"); a("v_mov_b32 v7, s49")
    a("s_lshl_b32 s48, s60, 3"); a(f"s_add_u32 s48, s48, {L_ML}"); a("v_mov_b32 v8, s48"); a("v_mov_b32 v9, 1")
    a("s_mov_b64 exec, 1")
    a("ds_write_b64 v8, v[6:7]")
    a("s_waitcnt lgkmcnt(0)")
    a(f"ds_add_u32 v14, v9 offset:{F_MLCNT-M0_}")
    a("s_mov_b64 exec, -1")
    a("v_lshlrev_b32 v8, 4, v0")
    a("v_lshl_add_u32 v12, v3, 4, s61")
    a(f"v_add_u32 v10, {L_CB}, v8")
    for r in range(4):
        a(f"v_mov_b32 v{ACC+r}, 0")
    a("s_mov_b32 s59, 225")
    stamp(5)
    a("L_vloop:")
    a(f"ds_read_b128 {q(YA)}, v12")
    a("v_add_u32 v9, s56, v8")
    a("v_add_u32 v12, 64, v12")
    a("v_add_u32 v5, 1, v5")
    a("s_waitcnt lgkmcnt(0)")
    for n in range(8):
        build_a(QA + 4*n, YA, n)
    lds_wait_ge(F_FILL, "s58", "s57", 6, precheck=True, sleep=csl)
    for n in range(8):
        a(f"ds_read_b128 {q(T+4*n)}, v9 offset:{n*1024}")
    a(f"ds_read_b32 v6, v14 offset:{F_CB-M0_}")
    a(f"ds_read_b128 {q(ACA)}, v10")
    for n in range(8):
        a(f"s_waitcnt lgkmcnt({9-n})")
        a(f"v_mfma_f32_16x16x32_bf16 {q(ACC)}, {q(QA+4*n)}, {q(T+4*n)}, {q(ACC)}")
    a("ds_write_b32 v13, v5")
    a("s_add_u32 s56, s56, 16384"); a("s_and_b32 s56, s56, 0x1ffff")
    a("s_add_u32 s57, s57, 2")
    a("s_cmp_lt_u32 s57, s59")
    a("s_cbranch_scc1 L_vloop")
    a("s_cmp_gt_u32 s59, 253")
    a("s_cbranch_scc1 L_vdone")
    if direct:
        a("s_cmp_gt_u32 s59, 240")
        a("s_cbranch_scc1 L_vdir")
    lds_wait_ge(F_FOK, "s48", 1, 6)
    a("s_lshl_b32 s48, s60, 2"); a(f"s_add_u32 s48, s48, {L_F}"); a("v_mov_b32 v11, s48")
    a("ds_read_b32 v11, v11")
    a("v_lshrrev_b32 v6, 3, v1"); a("v_lshl_add_u32 v6, v3, 1, v6"); a("v_lshlrev_b32 v7, 11, v6")
    a("v_and_b32 v6, 7, v1"); a("v_lshl_add_u32 v7, v6, 4, v7"); a("v_and_b32 v6, 1, v2"); a("v_lshl_add_u32 v7, v6, 3, v7")
    a("s_lshl_b32 s48, s28, 13"); a("s_lshl_b32 s49, s30, 2"); a("s_add_u32 s49, s49, s29"); a("s_lshl_b32 s49, s49, 7")
    a("s_add_u32 s48, s48, s49"); a(f"s_add_u32 s61, s48, {W_OX}")
    if direct:
        a("s_lshl_b32 s48, s31, 22"); a(f"s_lshl_b32 s49, s29, {qb}"); a("s_add_u32 s48, s48, s49")
        a("s_add_u32 s36, s8, s48"); a("s_addc_u32 s37, s9, 0"); a("s_and_b32 s37, s37, 0xffff")
        a(f"s_mov_b32 s38, {(4 << 20) - (3 << qb)}"); a("s_mov_b32 s39, 0x20000")
        a(f"s_mov_b32 s59, {direct}")
        a("s_branch L_vloop")
        a("L_vdir:")
        lds_wait_ge(F_FILL, "s58", "s57", 6, precheck=True, sleep=csl)
        toff = lambda t: ((t >> (qb - 13)) << (qb + 2)) | ((t & ((1 << (qb - 13)) - 1)) << 13)
        a(f"s_mul_i32 s48, s60, {toff(127) - toff(126)}"); a(f"s_add_u32 s48, s48, {toff(126)}")
        for n in range(8):
            if n == 4:
                a("s_add_u32 s48, s48, 4096")
            a(f"buffer_load_dwordx4 {q(WL+4*n)}, v8, s[36:39], s48 offen offset:{(n&3)*1024} nt")
        a("s_mov_b32 s59, 255")
    else:
        a("s_mov_b32 s59, 257")
    a("s_branch L_vloop")
    a("L_vdone:")
    if direct:
        a(f"ds_read_b128 {q(YA)}, v12")
        a("s_waitcnt lgkmcnt(0)")
        for n in range(8):
            build_a(QA + 4*n, YA, n)
        for n in range(8):
            a(f"s_waitcnt vmcnt({7-n})")
            if n == 5:
                a(f"ds_read_b32 v6, v14 offset:{F_CB-M0_}")
                a(f"ds_read_b128 {q(ACA)}, v10")
            a(f"v_mfma_f32_16x16x32_bf16 {q(ACC)}, {q(QA+4*n)}, {q(WL+4*n)}, {q(ACC)}")
        stamp(6)
        a("s_nop 5")
    if not direct:
        stamp(6)
    a("s_cmp_eq_u32 s60, 0")
    a("s_cbranch_scc0 L_vpub")
    for r in range(4):
        a(f"v_mul_f32 v{ACC+r}, v11, v{ACC+r}")
    a("v_mov_b32 v9, 1")
    a(f"ds_write_b128 v10, {q(ACC)}")
    a("s_waitcnt lgkmcnt(0)")
    a(f"ds_write_b32 v14, v9 offset:{F_CB-M0_}")
    a("s_waitcnt lgkmcnt(0)")
    finish()
    a("L_vpub:")
    a("s_waitcnt lgkmcnt(0)")
    a("v_readfirstlane_b32 s48, v6")
    a("s_cmp_eq_u32 s48, 1")
    a("s_cbranch_scc1 L_vsum")
    lds_wait_ge(F_CB, "s48", 1, 6, sleep=0)
    a(f"ds_read_b128 {q(ACA)}, v10")
    a("s_waitcnt lgkmcnt(0)")
    a("L_vsum:")
    for r in range(4):
        a(f"v_fma_f32 v{ACC+r}, v11, v{ACC+r}, v{ACA+r}")
    a(f"v_cvt_pk_bf16_f32 v{ACC}, v{ACC}, v{ACC+1}"); a(f"v_cvt_pk_bf16_f32 v{ACC+1}, v{ACC+2}, v{ACC+3}")
    a(f"v_min_u32 v{ACC}, -2, v{ACC}"); a(f"v_min_u32 v{ACC+1}, -2, v{ACC+1}")
    a(f"buffer_store_dwordx2 {q(ACC,2)}, v7, s[40:43], s61 offen {stfl}")
    if late == 2:
        a("v_mov_b32 v9, 1")
        a(f"ds_write_b32 v14, v9 offset:{F_PUB-M0_}")
        a("s_waitcnt lgkmcnt(0)")
    stamp(7)
    finish()

    a("L_pace:")
    lds_wait_ge(F_FILL, "s58", "s56", 12, sleep=8, precheck=True)
    a("s_add_u32 s56, s56, s57")
    a("s_setpc_b64 s[54:55]")

    a("L_helper:")
    call_setup("L_pace", False)
    a("s_mov_b32 s58, 0")
    a("s_sub_u32 s62, s3, 4")
    a("s_and_b32 s48, s2, 7"); a("s_mul_i32 s48, s48, 7"); a("s_lshr_b32 s49, s2, 3"); a("s_add_u32 s59, s48, s49")
    if not noffn:
        a(f"s_cmp_ge_u32 s2, {NF}")
        a("s_cbranch_scc1 L_noffn")
        if not late or nlate < 7:
            a("; ---- waves 4..7 of FFN workgroups: A fragments of gate/up (32 hidden columns, 7 k-steps) and down (8 tiles)")
            a("s_cmp_ge_u32 s62, 2")
            a("s_cselect_b32 s44, s18, s16"); a("s_cselect_b32 s45, s19, s17")
            a("s_and_b32 s45, s45, 0xffff"); a("s_mov_b32 s46, 1605632"); a("s_mov_b32 s47, 0x20000")
            a("v_lshrrev_b32 v7, 2, v0"); a("v_and_b32 v8, 7, v7"); a("v_lshrrev_b32 v6, 3, v7"); a("v_lshl_add_u32 v6, v8, 2, v6")
            a("v_mul_u32_u24 v6, 3584, v6"); a("v_and_b32 v8, 3, v0"); a("v_lshl_add_u32 v6, v8, 4, v6")
            a("s_and_b32 s48, s62, 1"); a(f"s_mul_i32 s50, s48, {7*32*3584}"); a("s_lshl_b32 s49, s59, 6"); a("s_add_u32 s50, s50, s49")
            a("s_lshl_b32 s51, s62, 11"); a(f"s_add_u32 s51, s51, {L_STG}")
            a("v_lshrrev_b32 v9, 2, v1"); a("v_lshl_add_u32 v10, v2, 3, v9"); a("v_lshlrev_b32 v10, 6, v10")
            a("v_and_b32 v11, 3, v1"); a("v_lshl_add_u32 v10, v11, 3, v10"); a("v_add_u32 v10, s51, v10")
            a(f"s_mov_b32 s56, {gt0}"); a(f"s_mov_b32 s57, {gdt}")

            def stage(step2, step_next):
                call()
                a("s_mov_b32 m0, s51"); a("s_nop 0")
                a("buffer_load_dwordx4 v6, s[44:47], s50 offen nt lds")
                if not gpair:
                    call()
                a("s_add_u32 m0, s51, 1024"); a(f"s_add_u32 s50, s50, {step2}")
                a("buffer_load_dwordx4 v6, s[44:47], s50 offen nt lds")
                a(f"s_add_u32 s50, s50, {step_next}")
                a("s_waitcnt vmcnt(0)")
            for f in range(7 - (nlate if late else 0)):
                stage(2*3584, 30*3584)
                for ft in range(2):
                    a(f"ds_read_b64_tr_b16 {q(FF+8*f+4*ft,2)}, v10 offset:{ft*32}")
                    a(f"ds_read_b64_tr_b16 {q(FF+8*f+4*ft+2,2)}, v10 offset:{ft*32+256}")
                a("s_waitcnt lgkmcnt(0)")
            srd(44, 20, 1605632)
            a("v_mul_u32_u24 v6, 896, v7"); a("v_lshl_add_u32 v6, v8, 4, v6")
            a("s_mul_i32 s50, s59, 28672"); a("s_lshl_b32 s49, s62, 8"); a("s_add_u32 s50, s50, s49")
            a("v_lshl_add_u32 v10, v2, 2, v9"); a("v_lshlrev_b32 v10, 6, v10"); a("v_lshl_add_u32 v10, v11, 3, v10"); a("v_add_u32 v10, s51, v10")
            for pr in range(0 if late else 4):
                stage(16*896, 64 - 16*896 + (1 << 32))
                for sub in range(2):
                    a(f"ds_read_b64_tr_b16 {q(QA+8*pr+4*sub,2)}, v10 offset:{sub*32}")
                    a(f"ds_read_b64_tr_b16 {q(QA+8*pr+4*sub+2,2)}, v10 offset:{sub*32+1024}")
                a("s_waitcnt lgkmcnt(0)")
        a("s_branch L_ffn")
        a("L_noffn:")
    else:
        a(f"s_cmp_lt_u32 s2, {NF}")
        a("s_cbranch_scc1 L_ffn")
    a(f"s_sub_u32 s59, s2, {R0LO}")
    a("s_cmp_lt_u32 s59, 64")
    a("s_cbranch_scc0 L_r1")
    srd(36, 12, 3670016)
    a("v_mul_u32_u24 v4, 7168, v2"); a("v_lshl_add_u32 v4, v1, 3, v4")
    a("s_lshl_b32 s47, s62, 8"); a("s_cmp_eq_u32 s62, 3"); a("s_cselect_b32 s47, 704, s47")
    a("s_mul_i32 s48, s59, 57344"); a("s_add_u32 s48, s48, s47")
    a("v_add_u32 v4, s48, v4")
    a(f"s_mov_b32 s56, {wt0}"); a(f"s_mov_b32 s57, {wdt}")
    for k in range(16):
        call()
        wo_load(k)
    a("v_lshlrev_b32 v5, 7, v1"); a("v_lshl_add_u32 v5, v2, 4, v5")
    a("s_lshl_b32 s44, s59, 11"); a(f"s_add_u32 s44, s44, {W_OX}"); a("s_add_u32 s45, s44, 64")
    a(f"v_mul_u32_u24 v7, {64*1792}, v2"); a("v_lshl_add_u32 v7, v1, 4, v7")
    a("s_mul_i32 s46, s59, 1792"); a("s_lshl_b32 s48, s47, 1"); a("s_add_u32 s46, s46, s48")
    a("s_cmp_ge_u32 s62, 2"); a("s_cselect_b32 s38, 0x00ff00ff, -1"); a("s_mov_b32 s39, s38")
    a("s_mov_b32 s48, 0x05040100"); a("s_mov_b32 s49, 0x07060302")
    a("s_waitcnt vmcnt(0)")
    for ks in range(2):
        src = WL + ks*32
        for t in range(8):
            for d in range(4):
                a(f"v_perm_b32 v{wfrag(ks,t)+d}, v{src+(2*d+1)*4+(t>>1)}, v{src+(2*d)*4+(t>>1)}, s{48+(t&1)}")
    if dry0:
        a("s_mov_b32 s42, 0"); a("s_mov_b64 vcc, -1")
        a("s_branch L_r0body")
        a("L_r0real:")
        a(f"s_mov_b32 s42, {WS_BYTES}"); a("s_mov_b64 vcc, 0"); a("s_mov_b64 exec, -1")
    lds_wait_ge(F_FOK, "s48", 1, 6, sleep=16)
    end_wait(tpoll)
    poll_quads(YA, 5, ["s44", "s45"], 6, pdep=pd[0])
    stamp(3)
    a("L_r0body:")
    for t in range(8):
        for ks in range(2):
            a(f"v_mfma_f32_16x16x32_bf16 {q(T2+4*t)}, {q(YA+4*ks)}, {q(wfrag(ks,t))}, {q(T2+4*t) if ks else 0}")
        if t >= 4:
            u = t - 4
            a(f"v_pk_add_f32 {q(T2+4*u,2)}, {q(T2+4*u,2)}, {q(T2+4*u+2,2)}")
            a(f"v_add_f32 v{SB+u}, v{T2+4*u}, v{T2+4*u+1}")
    a("s_nop 0")
    a(f"buffer_store_dwordx4 {q(SB)}, v7, s[40:43], s46 offen {stfl}")
    for u in range(4, 8):
        if u == 7:
            a("s_nop 0")
        a(f"v_pk_add_f32 {q(T2+4*u,2)}, {q(T2+4*u,2)}, {q(T2+4*u+2,2)}")
        a(f"v_add_f32 v{SB+u}, v{T2+4*u}, v{T2+4*u+1}")
    a("s_mov_b64 exec, s[38:39]")
    a(f"buffer_store_dwordx4 {q(SB+4)}, v7, s[40:43], s46 offen offset:256 {stfl}")
    if dry0:
        a("s_cbranch_vccnz L_r0real")
    a("s_mov_b64 exec, -1")
    stamp(4)
    if diag:
        a("s_waitcnt vmcnt(0)")
        stamp(5)
    finish()

    def count_check():
        a("; all workgroups have emptied their hand-off words once d_debug[0] reaches 256")
        a("s_load_dword s48, s[24:25], 0") if 'l' not in tst else a("s_mov_b32 s48, 256")
        a("s_waitcnt lgkmcnt(0)")
        bound_init(1 << 17)
        a("L_cntpoll:")
        a(f"s_cmp_ge_u32 s48, {256 if 'a' not in tst else 0}")
        a("s_cbranch_scc1 L_cntok")
        a("s_sleep 64")
        a("s_mov_b32 s48, 0")
        a("s_atomic_add s48, s[24:25], 0 glc")
        a("s_waitcnt lgkmcnt(0)")
        bound_loop("L_cntpoll")
        a("L_cntok:")
        a("s_cmp_lg_u32 s2, 0")
        a("s_cbranch_scc1 L_noep")
        a("v_mov_b32 v6, s62"); a(f"s_mov_b32 s48, {W_EP}")
        a("s_mov_b64 exec, 1")
        a("buffer_store_dword v6, v15, s[40:43], s48 offen sc1")
        a("s_mov_b64 exec, -1")
        a("L_noep:")

    a("L_h4:")
    a("; sum the 14 partials, exchange the q quarters of the four workgroups of this head through tagged granules")
    a("v_and_b32 v8, 31, v0"); a("v_lshlrev_b32 v8, 3, v8")
    a("v_mul_u32_u24 v9, 1792, v3"); a("v_add_u32 v9, v9, v8"); a(f"v_add_u32 v9, {L_QP}, v9")
    a("s_lshl_b32 s56, s31, 10"); a(f"s_add_u32 s56, s56, {W_QX}"); a("s_lshl_b32 s57, s29, 8"); a("s_add_u32 s57, s57, s56")
    a("s_add_u32 s62, s62, 1")
    a("v_lshlrev_b32 v5, 4, v0")
    a("v_lshlrev_b32 v11, 3, v0"); a(f"v_add_u32 v11, {L_QB}, v11")
    lds_wait_ge(F_QCNT, "s48", 7, 6, sleep=0)
    for p in range(7):
        a(f"ds_read_b64 {q(T+2*p,2)}, v9 offset:{p*256}")
    for p in range(1, 7):
        a(f"s_waitcnt lgkmcnt({6-p})")
        a(f"v_pk_add_f32 {q(T,2)}, {q(T,2)}, {q(T+2*p,2)}")
    a(f"v_mov_b32 v{T+2}, v{T}"); a(f"v_mov_b32 v{T+3}, v{T+1}"); a("s_nop 1")
    a(f"v_permlane32_swap_b32 v{T}, v{T+2}"); a(f"v_permlane32_swap_b32 v{T+1}, v{T+3}")
    a(f"v_pk_add_f32 {q(T,2)}, {q(T,2)}, {q(T+2,2)}")
    a("v_mov_b32 v7, s62")
    a(f"v_cvt_pk_bf16_f32 v6, v{T}, v{T+1}")
    a("s_mov_b32 exec_hi, 0")
    a("buffer_store_dwordx2 v[6:7], v8, s[40:43], s57 offen sc1")
    a("s_mov_b32 exec_hi, -1")
    bound_init(1 << 17)
    a("L_qpoll:")
    a(f"buffer_load_dwordx4 {q(T)}, v5, s[40:43], s56 offen sc1")
    a("s_waitcnt vmcnt(0)")
    a(f"v_cmp_ne_u32 vcc, s62, v{T+1}"); a(f"v_cmp_ne_u32 s[48:49], s62, v{T+3}")
    a("s_or_b64 vcc, vcc, s[48:49]")
    a("s_cbranch_scc0 L_qok") if 'q' not in tst else a("s_branch L_qok")
    a("s_sleep 2")
    bound_loop("L_qpoll")
    a("L_qok:")
    a(f"v_mov_b32 v{T+1}, v{T+2}")
    a(f"ds_write_b64 v11, {q(T,2)}")
    a("v_mov_b32 v6, 1")
    a("s_waitcnt lgkmcnt(0)")
    a(f"ds_write_b32 v14, v6 offset:{F_QOK-M0_}")
    if use_fb and fbm == 'ls':
        a("; progress words of the eight members of this workgroup's balancing group (one per die-sized stride of ids)")
        a("s_lshr_b32 s48, s2, 3"); a("s_and_b32 s49, s2, 7"); a(f"s_mul_i32 s50, s49, {fbmix}"); a("s_add_u32 s48, s48, s50")
        a(f"v_mul_u32_u24 v6, {fbmix}, v0"); a("v_sub_u32 v6, s48, v6"); a("v_and_b32 v6, 31, v6"); a("v_lshl_add_u32 v6, v6, 3, v0")
        a(f"v_mul_u32_u24 v{FF}, {fbstr}, v6")
        a(f"s_mul_i32 s94, s2, {fbstr}"); a(f"s_add_u32 s94, s94, {W_FB}"); a(f"s_mov_b32 s95, {W_FB}")
    elif use_fb:
        ng = 256 // fbg
        a("s_lshr_b32 s48, s2, 3"); a("s_and_b32 s49, s2, 7"); a(f"s_mul_i32 s50, s49, {fbmix}"); a("s_add_u32 s48, s48, s50")
        a(f"s_and_b32 s48, s48, {ng-1}"); a("s_lshl_b32 s48, s48, 12"); a(f"s_add_u32 s48, s48, {W_FB}")
        a("s_add_u32 s94, s26, s48"); a("s_addc_u32 s95, s27, 0")
        a(f"s_lshr_b32 s50, s2, {3 + ng.bit_length() - 1}"); a("s_or_b32 s49, s49, s50")
        a("s_cbranch_scc1 L_nolead")
        a("v_lshlrev_b32 v6, 8, v0")
        a("s_mov_b64 exec, 0xffff")
        a("buffer_store_dword v15, v6, s[40:43], s48 offen sc1")
        a("s_mov_b64 exec, -1")
        a("L_nolead:")
    if boost is not None or r2dep or r0dep:
        a(f"s_mov_b32 s93, {didx(depth)}")
    if r0dep:
        a(f"s_sub_u32 s48, s2, {R0LO}"); a("s_cmp_lt_u32 s48, 64"); a(f"s_cselect_b32 s93, {didx(r0dep)}, s93")
    if r2dep:
        a(f"s_cmp_lt_u32 s2, {NF}"); a(f"s_cselect_b32 s93, {didx(r2dep)}, s93")
    lds_wait_ge(F_CLR, "s48", 7, 6, sleep=2)
    if boost is not None or r2dep or r0dep:
        set_depth("s93")
    if atomt:
        a(f"s_and_b32 s49, s2, {atomt - 1}"); a(f"s_add_u32 s49, s49, {max(clrt, 16)}")
        lds_wait_ge(F_FILL, "s48", "s49", 6, sleep=8)
    if 'a' not in tst and not patom:
        a("s_mov_b32 s48, 1")
        a("s_atomic_add s48, s[24:25], 0")
        a("s_waitcnt lgkmcnt(0)")
    sched = [t for t, _ in fbr]
    if use_fb:
        call_setup("L_fb", True)
    if vpre:
        a("; first touch of this workgroup's V pages through the scalar path, ahead of the stream")
        a("s_lshl_b32 s48, s31, 22"); a("s_lshl_b32 s49, s29, 20"); a("s_add_u32 s48, s48, s49")
        a("s_add_u32 s96, s8, s48"); a("s_addc_u32 s97, s9, 0")
        lds_wait_ge(F_FILL, "s48", vpre, 6, sleep=8)
        a("s_load_dword s48, s[96:97], 0")
        a("s_waitcnt lgkmcnt(0)")
    for t in [t for t in sched if t < 128]:
        fb_call(t)
    a("v_lshlrev_b32 v9, 3, v0"); a(f"v_add_u32 v9, {L_ML}, v9")
    lds_wait_ge(F_MLCNT, "s48", 2, 6, sleep=8)
    a("s_mov_b64 exec, 3")
    a("ds_read_b64 v[6:7], v9")
    a("s_lshl_b32 s48, s31, 2"); a("s_add_u32 s48, s48, s29"); a("s_lshl_b32 s48, s48, 5"); a(f"s_add_u32 s48, s48, {W_ML}")
    a("s_waitcnt lgkmcnt(0)")
    a(f"v_mov_b32 v{YA}, v6"); a(f"v_mov_b32 v{YA+1}, s62"); a(f"v_mov_b32 v{YA+2}, v7"); a(f"v_mov_b32 v{YA+3}, s62")
    None if 'm' in tst else a(f"buffer_store_dwordx4 {q(YA)}, v5, s[40:43], s48 offen sc1")
    a("s_mov_b64 exec, -1")
    if not patom:
        count_check()
    for t in [t for t in sched if 128 <= t <= mlt]:
        fb_call(t)
    lds_wait_ge(F_FILL, "s48", mlt, 6, sleep=8)
    a("v_and_b32 v8, 7, v0"); a("v_lshlrev_b32 v9, 4, v8")
    a("s_lshl_b32 s61, s31, 7"); a(f"s_add_u32 s61, s61, {W_ML}")
    bound_init(1 << 17)
    a("L_mlpoll:")
    if 'm' in tst:
        a("s_branch L_mlgot")
    a(f"buffer_load_dwordx4 {q(YA+4)}, v9, s[40:43], s61 offen sc1")
    a("s_waitcnt vmcnt(0)")
    a(f"v_cmp_ne_u32 vcc, s62, v{YA+5}"); a(f"v_cmp_ne_u32 s[48:49], s62, v{YA+7}")
    a("s_or_b64 vcc, vcc, s[48:49]")
    a("s_cbranch_scc0 L_mlgot")
    a("s_sleep 24")
    bound_loop("L_mlpoll")
    a("L_mlgot:")
    a(f"v_mov_b32 v10, v{YA+4}")
    for d in ("row_ror:4", "row_ror:2", "row_ror:1"):
        a("s_nop 1")
        a(f"v_max_f32_dpp v10, v10, v10 {d} row_mask:0xf bank_mask:0xf")
    a(f"v_sub_f32 v6, v{YA+4}, v10"); a(f"v_mul_f32 v6, {LOG2E_16:#x}, v6"); a("v_exp_f32 v6, v6"); a("s_nop 0")
    a(f"v_mul_f32 v7, v6, v{YA+6}")
    for d in ("row_ror:4", "row_ror:2", "row_ror:1"):
        a("s_nop 1")
        a(f"v_add_f32_dpp v7, v7, v7 {d} row_mask:0xf bank_mask:0xf")
    a("v_rcp_f32 v7, v7"); a("v_lshrrev_b32 v9, 1, v0"); a("v_and_b32 v8, 1, v0")
    a("v_mul_f32 v6, v6, v7")
    a("v_lshlrev_b32 v8, 2, v8"); a(f"v_add_u32 v8, {L_F}, v8")
    a("v_cmp_eq_u32 vcc, s29, v9")
    a("s_mov_b64 exec, vcc")
    a("ds_write_b32 v8, v6")
    a("s_mov_b64 exec, -1")
    if patom:
        a("; the four workgroups of this pair published after emptying their hand-off words: quarter 0 counts them")
        a("s_cmp_lg_u32 s29, 0"); a("s_cbranch_scc1 L_noadd")
        a("s_mov_b32 s48, 4"); a("s_atomic_add s48, s[24:25], 0"); a("s_waitcnt lgkmcnt(0)")
        a("L_noadd:")
        for t in [t for t in sched if mlt < t <= chkt]:
            fb_call(t)
        lds_wait_ge(F_FILL, "s48", chkt, 6, sleep=8)
        count_check()
    a("v_mov_b32 v6, 1")
    a("s_waitcnt lgkmcnt(0)")
    a(f"ds_write_b32 v14, v6 offset:{F_FOK-M0_}")
    for t in [t for t in sched if t > (chkt if patom else mlt)]:
        fb_call(t)
    if endt:
        lds_wait_ge(F_FILL, "s48", endt, 6, sleep=2)
        set_depth(didx(endd))
    a("s_branch L_done")
    if use_fb:
        a("; the arrival rank of this workgroup at tile s50 within its group selects the loader depth")
        a("L_fb:")
        lds_wait_ge(F_FILL, "s48", "s50", 6, sleep=fbsl)
        if fbm == 'ls':
            a("s_lshl_b32 s49, s62, 10"); a("s_add_u32 s49, s49, s50"); a("v_mov_b32 v7, s49")
            a("s_mov_b64 exec, 0xff")
            a(f"buffer_load_dword v6, v{FF}, s[40:43], s95 offen sc1")
            a("s_mov_b64 exec, 1")
            a("buffer_store_dword v7, v15, s[40:43], s94 offen sc1")
            a("s_mov_b64 exec, 0xff")
            a("s_waitcnt vmcnt(1)")
            a("v_subrev_u32 v6, s49, v6"); a("v_cmp_gt_u32 vcc, 0x100, v6")
            a("s_mov_b64 exec, -1")
            a("s_bcnt1_i32_b64 s48, vcc")
        elif fbm == 'none':
            a("s_mov_b32 s48, 3")
        else:
            a("s_mov_b32 s48, 1")
            a("s_atomic_add s48, s[94:95], 0 glc")
            a("s_waitcnt lgkmcnt(0)")
        if fbg > 8:
            a(f"s_lshr_b32 s48, s48, {(fbg // 8).bit_length() - 1}")
        if r2b:
            a(f"s_cmp_lt_u32 s2, {NF}"); a(f"s_cselect_b32 s49, {r2b}, 0"); a("s_add_u32 s48, s48, s49")
        a("s_min_u32 s48, s48, 7"); a("s_lshl_b32 s48, s48, 2"); a("s_lshr_b32 s93, s51, s48"); a("s_and_b32 s93, s93, 15")
        if lad:
            a("s_lshr_b32 s49, s92, s48"); a("s_and_b32 s49, s49, 15"); a("s_add_u32 s91, s91, s49"); a("s_sub_u32 s91, s91, 8")
            a("s_max_i32 s91, s91, 1"); a(f"s_min_i32 s91, s91, {len(lad)}")
            a("s_add_u32 s93, s93, s91"); a("s_sub_u32 s93, s93, 8")
            a("s_max_i32 s93, s93, 1"); a(f"s_min_i32 s93, s93, {len(lad)}")
        a("v_mov_b32 v6, s93")
        a(f"ds_write_b32 v14, v6 offset:{F_DEP-M0_}")
        if fbm != 'ls':
            a("s_add_u32 s94, s94, 256"); a("s_addc_u32 s95, s95, 0")
        a("s_setpc_b64 s[54:55]")

    a("L_ffn:")

    def late_frags():
        a("; the ring is drained: gate/up/down rows of this workgroup stream into it while the hand-offs are under way")
        a("s_cmp_ge_u32 s62, 2")
        a("s_cselect_b32 s32, s18, s16"); a("s_cselect_b32 s33, s19, s17")
        a("s_and_b32 s33, s33, 0xffff"); a("s_mov_b32 s34, 1605632"); a("s_mov_b32 s35, 0x20000")
        srd(36, 20, 1605632)
        a(f"v_lshrrev_b32 v{SB}, 2, v0"); a(f"v_and_b32 v{SB+1}, 7, v{SB}"); a(f"v_lshrrev_b32 v{SB+2}, 3, v{SB}"); a(f"v_lshl_add_u32 v{SB+2}, v{SB+1}, 2, v{SB+2}")
        a(f"v_mul_u32_u24 v{SB+2}, 3584, v{SB+2}"); a(f"v_and_b32 v{SB+1}, 3, v0"); a(f"v_lshl_add_u32 v{SB+2}, v{SB+1}, 4, v{SB+2}")
        if wide:
            a(f"v_lshrrev_b32 v{SB+3}, 3, v0"); a(f"v_mul_u32_u24 v{SB+3}, 896, v{SB+3}"); a(f"v_and_b32 v{SB+1}, 7, v0"); a(f"v_lshl_add_u32 v{SB+3}, v{SB+1}, 4, v{SB+3}")
        else:
            a(f"v_mul_u32_u24 v{SB+3}, 896, v{SB}"); a(f"v_lshl_add_u32 v{SB+3}, v{SB+1}, 4, v{SB+3}")
        a("s_mul_i32 s51, s62, 20480")
        a(f"v_lshrrev_b32 v{SB+4}, 2, v1"); a(f"v_and_b32 v{SB+5}, 3, v1"); a(f"v_lshlrev_b32 v{SB+5}, 3, v{SB+5}")
        a(f"v_lshl_add_u32 v{SB+6}, v2, 3, v{SB+4}"); a(f"v_lshl_add_u32 v{SB+6}, v{SB+6}, 6, v{SB+5}"); a(f"v_add_u32 v{SB+6}, s51, v{SB+6}")
        a(f"v_lshl_add_u32 v{SB+7}, v2, 2, v{SB+4}"); a(f"v_lshl_add_u32 v{SB+7}, v{SB+7}, {7 if wide else 6}, v{SB+5}")
        a("s_lshl_b32 s49, s62, 11"); a(f"s_add_u32 s60, s49, {L_STG}"); a(f"v_add_u32 v{SB+4}, s60, v{SB+7}"); a(f"v_add_u32 v{SB+7}, s51, v{SB+7}")
        a("s_and_b32 s48, s62, 1"); a(f"s_mul_i32 s92, s48, {7*32*3584}"); a("s_lshl_b32 s49, s59, 6"); a("s_add_u32 s92, s92, s49")
        a("s_mul_i32 s93, s59, 28672"); a("s_lshl_b32 s49, s62, 8"); a("s_add_u32 s93, s93, s49")
        if late == 1:
            end_wait(NT)
        elif late == 2:
            lds_wait_ge(F_PUB, "s48", 1, 6, sleep=2)
        else:
            lds_wait_ge(F_CONS, "s48", late, 6, sleep=2)
            lds_wait_ge(F_CONS + 4, "s48", late, 6, sleep=2)
        for f in range(7 - nlate, 7):
            for hh in range(2):
                a(f"s_add_u32 m0, s51, {(f - (7 - nlate if wide else 0))*2048 + hh*1024}"); a(f"s_add_u32 s48, s92, {(f*32 + 2*hh)*3584}")
                a(f"buffer_load_dwordx4 v{SB+2}, s[32:35], s48 offen nt lds")
        if wide:
            assert nlate <= 6
            for k in range(8):
                a(f"s_add_u32 m0, s51, {12288 + k*1024}"); a(f"s_add_u32 s48, s93, {(k >> 2)*128 + (k & 3)*8*896}")
                a(f"buffer_load_dwordx4 v{SB+3}, s[36:39], s48 offen nt lds")
        for pr in range(0 if wide else 4):
            for hh in range(2):
                if pr < 3:
                    a(f"s_add_u32 m0, s51, {14336 + pr*2048 + hh*1024}")
                else:
                    a(f"s_add_u32 m0, s60, {hh*1024}")
                a(f"s_add_u32 s48, s93, {pr*64 + hh*16*896}")
                a(f"buffer_load_dwordx4 v{SB+3}, s[36:39], s48 offen nt lds")
        for f in range(7 - nlate, 7):
            a(f"s_waitcnt vmcnt({20 - 2*f})")
            for ft in range(2):
                a(f"ds_read_b64_tr_b16 {q(FF+8*f+4*ft,2)}, v{SB+6} offset:{(f - (7 - nlate if wide else 0))*2048 + ft*32}")
                a(f"ds_read_b64_tr_b16 {q(FF+8*f+4*ft+2,2)}, v{SB+6} offset:{(f - (7 - nlate if wide else 0))*2048 + ft*32 + 256}")
            if f % 2:
                a("s_waitcnt lgkmcnt(4)")
        for pr in range(4 if wide else 0):
            if pr % 2 == 0:
                a(f"s_waitcnt vmcnt({4 - 2*pr})")
            for sub in range(2):
                o = 12288 + (pr >> 1)*4096 + (pr & 1)*64 + sub*32
                a(f"ds_read_b64_tr_b16 {q(QA+8*pr+4*sub,2)}, v{SB+7} offset:{o}")
                a(f"ds_read_b64_tr_b16 {q(QA+8*pr+4*sub+2,2)}, v{SB+7} offset:{o + 2048}")
            a("s_waitcnt lgkmcnt(4)")
        for pr in range(0 if wide else 4):
            a(f"s_waitcnt vmcnt({6 - 2*pr})")
            for sub in range(2):
                va, o = (SB + 7, 14336 + pr*2048) if pr < 3 else (SB + 4, 0)
                a(f"ds_read_b64_tr_b16 {q(QA+8*pr+4*sub,2)}, v{va} offset:{o + sub*32}")
                a(f"ds_read_b64_tr_b16 {q(QA+8*pr+4*sub+2,2)}, v{va} offset:{o + sub*32 + 1024}")
            a("s_waitcnt lgkmcnt(4)")
        a("s_waitcnt lgkmcnt(0)")

    def flag(pos):
        if g3 == pos:
            a("s_cmp_lg_u32 s62, 3"); a("s_cbranch_scc1 L_nofl")
            a("s_mov_b64 exec, 1")
            a(f"buffer_store_dword v4, v15, s[40:43], s61 offen {stfl}")
            a("s_mov_b64 exec, -1")
            a("L_nofl:")
    a("v_lshlrev_b32 v5, 5, v0")
    a(f"s_and_b32 s48, s2, {nrep-1}"); a("s_mul_i32 s48, s48, 7168"); a("s_mul_i32 s49, s62, 1792"); a("s_add_u32 s48, s48, s49")
    a(f"s_add_u32 s56, s48, {W_HB}"); a("s_add_u32 s57, s56, 16")
    X = T2
    a("v_lshlrev_b32 v8, 4, v0"); a("s_mul_i32 s48, s62, 960"); a(f"s_add_u32 s48, s48, {L_XN2}"); a("v_add_u32 v8, s48, v8")
    a("v_and_b32 v9, 3, v1"); a("v_mul_u32_u24 v10, 960, v9"); a("v_lshl_add_u32 v10, v2, 4, v10")
    a("s_and_b32 s48, s62, 1"); a("s_mul_i32 s48, s48, 448"); a(f"s_add_u32 s48, s48, {L_XN2}"); a("v_add_u32 v10, s48, v10")
    a("v_lshlrev_b32 v11, 6, v9"); a("v_lshl_add_u32 v11, v2, 4, v11"); a(f"v_add_u32 v11, {L_GU}, v11")
    a("s_lshl_b32 s48, s62, 9"); a("v_add_u32 v12, s48, v11")
    a(f"v_mul_u32_u24 v13, {14*7168}, v9"); a("v_bfe_u32 v6, v1, 2, 1"); a("v_lshl_add_u32 v13, v6, 6, v13"); a("v_lshl_add_u32 v13, v2, 4, v13")
    a("v_cmp_eq_u32 s[46:47], 0, v6"); a("v_mov_b32 v7, v13"); a("v_mov_b32 v4, s91")
    a("s_lshl_b32 s58, s59, 7"); a(f"s_mul_i32 s48, s62, {4*7168}"); a("s_add_u32 s58, s58, s48"); a(f"s_add_u32 s58, s58, {W_OP}")
    a("s_mov_b32 s44, -1"); a("s_mov_b32 s45, 0x00ffffff")
    if dry:
        a("; one pass over the code below with stores disabled and barriers skipped loads it into the instruction cache")
        a("s_mov_b32 s42, 0"); a("s_mov_b64 vcc, -1"); a("s_mov_b32 s61, 0")
        a("s_branch L_ffnbody")
        a("L_ffnreal:")
        a(f"s_mov_b32 s42, {WS_BYTES}"); a("s_mov_b64 vcc, 0"); a("s_mov_b64 exec, -1")
        a("v_mov_b32 v13, v7")
    lds_wait_ge(F_FOK, "s48", 1, 6, sleep=16)
    if late:
        late_frags()
        stamp(6)
    else:
        end_wait(NT)
    if g2:
        a(f"v_mul_u32_u24 v9, {4*1792}, v0")
        a(f"s_mul_i32 s61, s62, {64*1792}"); a("s_and_b32 s48, s2, 3"); a("s_mul_i32 s48, s48, 1792"); a("s_add_u32 s61, s61, s48")
        a("s_lshr_b32 s48, s2, 2"); a("s_lshl_b32 s48, s48, 7"); a("s_add_u32 s61, s61, s48")
        gate(9, "s61", 16, g2, 6)
    a("s_lshl_b32 s61, s2, 7"); a(f"s_add_u32 s61, s61, {W_FL}")
    poll_quads(X, 5, ["s56", "s57"], 6, execs=["s[44:45]"]*2, both=b2, pdep=pd[2])
    stamp(3)
    a("L_ffnbody:")
    layernorm(X, T, YA, fast=fastln)
    a("s_mov_b32 exec_hi, 0x00ffffff")
    a(f"ds_write_b128 v8, {q(YA)}")
    a("s_mov_b32 exec_hi, -1")
    a("s_waitcnt lgkmcnt(0)")
    if dry:
        a("s_cbranch_vccnz L_nb1x")
    a("s_barrier")
    a("L_nb1x:")
    for f in range(7):
        a(f"ds_read_b128 {q(T+4*f)}, v10 offset:{f*64}")
    flag(1)
    for f in range(7):
        a(f"s_waitcnt lgkmcnt({6-f})")
        a(f"v_mfma_f32_16x16x32_bf16 {q(ACC)}, {q(FF+8*f)}, {q(T+4*f)}, {q(ACC) if f else 0}")
        a(f"v_mfma_f32_16x16x32_bf16 {q(ACA)}, {q(FF+8*f+4)}, {q(T+4*f)}, {q(ACA) if f else 0}")
    flag(2)
    a("s_nop 6")
    a(f"ds_write_b128 v12, {q(ACC)}")
    a(f"ds_write_b128 v12, {q(ACA)} offset:256")
    a("s_waitcnt lgkmcnt(0)")
    if dry:
        a("s_cbranch_vccnz L_nb2x")
    a("s_barrier")
    a("L_nb2x:")
    G0 = T
    for ft in range(2):
        for p in range(4):
            a(f"ds_read_b128 {q(G0+16*ft+4*p)}, v11 offset:{p*512+ft*256}")
    flag(3)
    for ft in range(2):
        B = G0 + 16*ft
        a(f"s_waitcnt lgkmcnt({6-4*ft})")
        a(f"v_pk_add_f32 {q(B,2)}, {q(B,2)}, {q(B+4,2)}"); a(f"v_pk_add_f32 {q(B+2,2)}, {q(B+2,2)}, {q(B+6,2)}")
        a(f"s_waitcnt lgkmcnt({4-4*ft})")
        a(f"v_pk_add_f32 {q(B+8,2)}, {q(B+8,2)}, {q(B+12,2)}"); a(f"v_pk_add_f32 {q(B+10,2)}, {q(B+10,2)}, {q(B+14,2)}")
        for r in range(4):
            a(f"v_cvt_pk_bf16_f32 v{B+4+r}, v{B+r}, v{B+8+r}")
        for r in range(4):
            a(f"v_lshlrev_b32 v{B+r}, 16, v{B+4+r}"); a(f"v_and_b32 v{B+4+r}, 0xffff0000, v{B+4+r}")
        a(f"v_pk_mul_f32 {q(B,2)}, {q(B,2)}, {q(B+4,2)}"); a(f"v_pk_mul_f32 {q(B+2,2)}, {q(B+2,2)}, {q(B+6,2)}")
        a(f"v_cvt_pk_bf16_f32 v{YA+2*ft}, v{B}, v{B+1}"); a(f"v_cvt_pk_bf16_f32 v{YA+2*ft+1}, v{B+2}, v{B+3}")
    flag(4)
    for d in range(4):
        a(f"v_cndmask_b32 v{YA+4+d}, 0, v{YA+d}, s[46:47]")
    for d in range(4):
        a(f"v_cndmask_b32 v{YA+8+d}, v{YA+d}, 0, s[46:47]")
    for pr in range(4):
        a(f"v_mfma_f32_16x16x32_bf16 {q(T+4*pr)}, {q(QA+8*pr)}, {q(YA+4)}, 0")
        if pr == 0:
            a("s_nop 0")
    for pr in range(4):
        a(f"v_mfma_f32_16x16x32_bf16 {q(T+4*pr)}, {q(QA+8*pr+4)}, {q(YA+8)}, {q(T+4*pr)}")
    a("s_mov_b32 exec_lo, 0x00ff00ff"); a("s_mov_b32 exec_hi, 0x00ff00ff")
    a("s_cmp_eq_u32 s62, 3")
    a("s_nop 1")
    for pr in range(4):
        if pr == 2:
            a("s_cbranch_scc1 L_opdone")
        a(f"buffer_store_dwordx4 {q(T+4*pr)}, v13, s[40:43], s58 offen {stfl}")
        if pr < 3:
            a("v_add_u32 v13, 7168, v13")
    a("L_opdone:")
    if dry:
        a("s_cbranch_vccnz L_ffnreal")
    a("s_mov_b64 exec, -1")
    stamp(4)
    if diag:
        a("s_waitcnt vmcnt(0)")
        stamp(5)
    a("s_branch L_done")

    a("L_r1:")
    a(f"s_sub_u32 s48, s2, {R1LO}")
    a("s_cmp_lt_u32 s48, 56")
    a("s_cbranch_scc0 L_done")
    a("s_mul_i32 s58, s48, 4682"); a("s_lshr_b32 s58, s58, 16"); a("s_mul_i32 s49, s58, 14"); a("s_sub_u32 s59, s48, s49")
    a("s_lshl_b32 s56, s48, 7")
    a("v_lshrrev_b32 v5, 3, v0"); a("v_and_b32 v6, 7, v0"); a("v_lshlrev_b32 v9, 4, v6")
    a("v_mul_u32_u24 v7, 1792, v5"); a("v_add_u32 v7, v7, v9")
    a("v_lshl_add_u32 v8, v5, 7, v9")
    a("v_lshl_add_u32 v10, v2, 3, v6"); a("v_lshlrev_b32 v10, 4, v10"); a("s_lshl_b32 s49, s62, 2"); a(f"s_add_u32 s49, s49, {L_RB}"); a("v_add_u32 v10, s49, v10")
    a("v_and_b32 v4, 31, v0"); a("v_lshlrev_b32 v9, 4, v4"); a(f"v_add_u32 v9, {L_RB}, v9")
    a("v_lshrrev_b32 v12, 3, v4"); a("v_lshl_add_u32 v12, v6, 2, v12"); a("v_lshlrev_b32 v12, 1, v12")
    a("s_lshr_b32 s61, s56, 1")
    a("buffer_load_ushort v11, v12, s[32:35], s61 offen")
    a("v_mul_u32_u24 v13, 7168, v3"); a("v_lshl_add_u32 v13, v4, 2, v13")
    a(f"s_mul_i32 s57, s62, {2*7168}"); a("s_add_u32 s57, s57, s56"); a(f"s_add_u32 s57, s57, {W_HB}")
    a(f"s_mul_i32 s44, s58, {64*1792}"); a("s_lshl_b32 s49, s59, 7"); a("s_add_u32 s44, s44, s49")
    a(f"s_mul_i32 s49, s62, {16*1792}"); a("s_add_u32 s44, s44, s49"); a(f"s_add_u32 s45, s44, {8*1792}")
    a("s_mul_i32 s46, s48, 7168"); a(f"s_mul_i32 s49, s62, {14*128}"); a("s_add_u32 s46, s46, s49"); a(f"s_add_u32 s46, s46, {W_OP}"); a("s_add_u32 s47, s46, 1024")
    a("s_lshl_b32 s60, s48, 7"); a(f"s_add_u32 s60, s60, {W_FL}")
    a("s_mov_b32 s36, -1"); a("s_mov_b32 s37, 0xffff")
    for r in range(4):
        a(f"v_mov_b32 v{T+4+r}, 0")
    a("s_waitcnt vmcnt(0)")
    a("v_lshlrev_b32 v11, 16, v11")
    srd(32, 22, 3584)
    if dry1:
        a("s_mov_b32 s42, 0"); a("s_mov_b32 s34, 0"); a("s_mov_b64 vcc, -1"); a("v_mov_b32 v5, v11")
        a("s_branch L_r1body")
        a("L_r1real:")
        a(f"s_mov_b32 s42, {WS_BYTES}"); a("s_mov_b32 s34, 3584"); a("s_mov_b64 vcc, 0"); a("s_mov_b64 exec, -1"); a("v_mov_b32 v11, v5")
    lds_wait_ge(F_FOK, "s48", 1, 6, sleep=16)
    end_wait(NT)
    if g1:
        a("v_mul_u32_u24 v4, 1792, v0")
        gate(4, "s44", g1n, g1, 6)
    poll_quads(T2, 7, ["s44", "s45"], 6, both=first2, pdep=pd[1])
    stamp(3)

    def sum2(R, off):
        a(f"v_pk_add_f32 {q(YA,2)}, {q(R,2)}, {q(R+4,2)}"); a(f"v_pk_add_f32 {q(YA+2,2)}, {q(R+2,2)}, {q(R+6,2)}")
        a("s_nop 1")
        a(f"v_permlane16_swap_b32 v{YA}, v{YA+1}")
        a(f"v_permlane16_swap_b32 v{YA+2}, v{YA+3}")
        a(f"v_add_f32 v{YA}, v{YA}, v{YA+1}")
        a(f"v_add_f32 v{YA+2}, v{YA+2}, v{YA+3}")
        a("s_nop 1")
        a(f"v_permlane32_swap_b32 v{YA}, v{YA+2}")
        a(f"v_add_f32 v{YA}, v{YA}, v{YA+2}")
        a("s_nop 1")
        a(f"v_add_f32_dpp v{YA}, v{YA}, v{YA} row_ror:8 row_mask:0xf bank_mask:0xf")
        a(f"ds_write_b32 v10, v{YA} offset:{off}")
        a("s_waitcnt lgkmcnt(0)")
        if dry1:
            a(f"s_cbranch_vccnz L_rb{off}")
        a("s_barrier")
        a(f"L_rb{off}:")
        a(f"ds_read_b128 {q(YA)}, v9 offset:{off}")
        a("s_waitcnt lgkmcnt(0)")
        a(f"v_pk_add_f32 {q(YA,2)}, {q(YA,2)}, {q(YA+2,2)}")
        a(f"v_add_f32 v{YA}, v{YA}, v{YA+1}")
        bf16r(YA, YA)
        a(f"v_add_f32 v11, v11, v{YA}")
    a("L_r1body:")
    sum2(T2, 0)
    bf16r(11, 11)
    a(f"buffer_store_dword v11, v13, s[40:43], s57 offen {stfl}")
    stamp(4)
    if dry1:
        a("s_cbranch_vccnz L_r3body")
    if g3:
        gate(15, "s60", 1, 1, 6, tag="s91")
    poll_quads(T, 8, ["s46", "s47"], 6, execs=["-1", "s[36:37]"], both=b3, pdep=pd[3])
    stamp(5)
    a("L_r3body:")
    sum2(T, 512)
    a("v_cvt_pk_bf16_f32 v11, v11, v11")
    a("s_lshl_b32 s48, s62, 3"); a("s_lshl_b32 exec_lo, 0xff, s48"); a("s_mov_b32 exec_hi, 0")
    a(f"buffer_store_short v11, v12, s[32:35], s61 offen {outfl}")
    if dry1:
        a("s_cbranch_vccnz L_r1real")
    a("s_mov_b64 exec, -1")
    stamp(6)
    a("L_done:")
    if padto:
        a("s_cmp_lg_u32 s2, 248"); a("s_cbranch_scc1 L_nopad"); a("s_cmp_lg_u32 s3, 7"); a("s_cbranch_scc1 L_nopad")
        a(f"s_add_u32 s98, s98, {padto*100}")
        a("L_pad:"); a("s_sleep 4"); a("s_memrealtime s[96:97]"); a("s_waitcnt lgkmcnt(0)"); a("s_cmp_lt_u32 s96, s98"); a("s_cbranch_scc1 L_pad")
        a("L_nopad:")
    finish()

    if not ldfirst:
        emit_loader()

    if diag:
        a("L_stamps:")
        a("v_mov_b32 v4, 0")
        for k in range(8):
            a(f"v_writelane_b32 v4, s{64+2*k}, {k}")
        a("s_getreg_b32 s48, hwreg(HW_REG_XCC_ID, 0, 4)")
        a("v_writelane_b32 v4, s48, 8")
        a("v_writelane_b32 v4, s63, 9")
        a("v_lshlrev_b32 v5, 2, v0")
        a("s_lshl_b32 s48, s2, 3"); a("s_add_u32 s48, s48, s3"); a("s_lshl_b32 s48, s48, 6"); a(f"s_add_u32 s48, s48, {W_ST}")
        a("s_mov_b64 exec, 0xffff")
        a("buffer_store_dword v4, v5, s[40:43], s48 offen")
    a("L_exit:")
    a("s_endpgm")
    a('.section .rodata,"a"')
    a(".p2align 6")
    a(f".amdhsa_kernel {KNAME}")
    a("  .amdhsa_next_free_vgpr 240")
    a("  .amdhsa_next_free_sgpr 100")
    a("  .amdhsa_accum_offset 240")
    a("  .amdhsa_group_segment_fixed_size 0")
    a("  .amdhsa_kernarg_size 96")
    a("  .amdhsa_user_sgpr_count 2")
    a("  .amdhsa_user_sgpr_kernarg_segment_ptr 1")
    a("  .amdhsa_system_sgpr_workgroup_id_x 1")
    a("  .amdhsa_float_denorm_mode_32 3")
    a(".end_amdhsa_kernel")
    out = []
    for x in L:
        if x is None:
            continue
        if al:
            for pref, e in al.items():
                if x.startswith(pref) and x.endswith(":") and x != "L_ld0:" and x != "L_ldrain:":
                    out.append(f".p2align {e}")
        if x == "L_worker:" and shift:
            out += ["    s_nop 0"] * shift
        if x.endswith(":") or x.startswith((";", ".")) or x.startswith("  ."):
            out.append(x)
        else:
            out.append("    " + x)
    return "\n".join(out) + "\n"


if __name__ == "__main__":
    kw = eval("dict(%s)" % (sys.argv[2] if len(sys.argv) > 2 else ""))
    open(sys.argv[1], "w").write(gen(**kw))
```

```python
import sys
KNAME = "sequential_preLN__mha_block_cached__glu_gated_bilinear__decode_kernel"

HEADER = """; Kernarg layout for this problem (96 bytes, ptrs only, base s[0:1]):
;
; hand-offs: workgroups 56-119 project 64 head dims of all batches through wo, workgroups 120-175 reduce the
; Hand-offs go through d_ws with agent-scope stores/loads; a word is valid once it differs from the all-ones
; pattern written earlier in the same launch, or once it carries this launch's tag."""

M0_ = 131072
F_FILL, F_CONS, F_QCNT, F_MLCNT, F_FOK, F_QOK, F_DEP, F_CB, F_CLR, F_PUB = (M0_ + o for o in (0, 4, 12, 16, 20, 24, 28, 32, 36, 40))
L_ML, L_F = M0_ + 64, M0_ + 80
L_XN = M0_ + 128
L_QP = M0_ + 1024
L_QB = M0_ + 4608
L_PB = M0_ + 5120
L_CB = M0_ + 9216
L_RB = M0_ + 10240
L_XN2 = M0_ + 14080
L_GU = M0_ + 17920
L_STG = M0_ + 19968
LDS_BYTES = M0_ + 28160
W_YP = 0
W_OP = 0x70000
W_OX = 0xD2000
W_HB = 0xF2000
W_ML = 0x100000
W_QX = 0x110000
W_EP = 0x120000
W_FL = 0x128000
W_FB = 0x130000
W_ST = 0x280000
WS_BYTES = 0x300000
SEL, SB, ACC, ACA, YA, QA, T, WL, FF = 16, 24, 32, 36, 40, 56, 88, 120, 184
T2 = WL + 32
LOG2E_16 = 0x3db8aa3b
INV448 = 0x3b124925
EPS = 0x3727c5ac
NF, R0LO, R1LO = 56, 56, 120


def gen(depth=22, fbd=(18, 20, 24, 27, 32), fbt=(32, 96, 160, 192, 224), fbg=8, fbs=(160, 200, 224, 242), fbmix=4,
        r2dep=0, wt0=32, wdt=1, gt0=24, gdt=1, nrep=8, pstag=5, psleep=0, barpos=7, krot=0,
        diag=False, spin_bound=True, nowo=False, noffn=False, mlt=144, boost=None, tpoll=255, r3sleep=0, g1=0, g2=0, g3=4, b3=False, b2=True, gsl=0, pdep=1, tst='', vpre=0, l2pf=0, tmax=99, ramp=6, rampd=22, qb=20, late=2, nlate=4, r2b=0, wide=True, sync='tm', mmax=20, pmax=24, gap=0, xs=None, dpos=4, nbr=0, lsl=0, skip=0, msl=0, grp=1, doff=0, lpad=0, sites=(), endwait=False, lstamps=False, al=None, shift=0, outfl='', rsh=0, rmask=127, xl=7, perm=None, rsrc='w', padto=0, direct=251, dry0=False, dry1=False, trig='cb', g1n=16, gpair=False, pd=(2, 2, 1, 2), fastln=False, dry=True, patom=True, chkt=192, fbsl=4, csl=1, ldfirst=True, dummy=6, fbm='at', fbstr=256, lad=None, pi=None, r0dep=0, stt=((4, 224), (5, 240), (6, 248), (7, 192)), fbr=None, endt=0, endd=40, clrt=0, atomt=0, slowthr=0, slowsl=0, first2=False, stfl='sc1', ldfl='sc1', pret=False):
    if fbr is None:
        lv = sorted([depth] + list(fbd))
        ths = [th*8//256 for th in fbt]
        tab = tuple(lv[sum(r >= t for t in ths)] if fbd else depth for r in range(8))
        fbr = [(t, tab) for t in (fbs if fbd else ())]
    if lad:
        fbr = [(t, tuple(lad)) for t, _, _ in pi]
    lo = 0 if boost is None else 1
    depths = [depth] if boost is None else ([boost, depth] if not lad else [boost])
    for _, tab in fbr:
        for d in tab:
            if d not in depths[lo:]:
                depths.append(d)
    for d in ([endd] if endt else []) + [x for x in (r2dep, r0dep) if x]:
        if d not in depths[lo:]:
            depths.append(d)
    didx = lambda d: depths.index(d, lo)
    use_fb = bool(fbr)
    NT = 254 if direct else 256
    tpoll = min(tpoll, NT - 1)
    L = []
    a = L.append
    uid = [0]

    def fb_call(t):
        tab = dict(fbr)[t]
        if lad:
            _, P, I = [x for x in pi if x[0] == t][0]
            a(f"s_mov_b32 s50, {t}"); a(f"s_mov_b32 s51, {sum((d + 8) << (4*r) for r, d in enumerate(P)):#x}")
            a(f"s_mov_b32 s92, {sum((d + 8) << (4*r) for r, d in enumerate(I)):#x}")
            a("s_swappc_b64 s[54:55], s[52:53]")
            return
        a(f"s_mov_b32 s50, {t}"); a(f"s_mov_b32 s51, {sum(didx(d) << (4*r) for r, d in enumerate(tab)):#x}")
        a("s_swappc_b64 s[54:55], s[52:53]")

    def lab(p):
        uid[0] += 1
        return f"L_{p}{uid[0]}"

    def q(r, n=4):
        return f"v[{r}:{r+n-1}]"

    def srd(r, p, nbytes):
        a(f"s_mov_b32 s{r}, s{p}")
        a(f"s_and_b32 s{r+1}, s{p+1}, 0xffff")
        a(f"s_mov_b32 s{r+2}, {nbytes}")
        a(f"s_mov_b32 s{r+3}, 0x20000")

    site = [0]

    def stamp(k):
        site[0] += 1
        if not diag and (sites == 'all' or site[0] in sites):
            a(f"; site {site[0]}")
            a(f"s_memrealtime s[{64+2*k}:{65+2*k}]")
            a("s_waitcnt lgkmcnt(0)")
        if diag:
            a(f"s_memrealtime s[{64+2*k}:{65+2*k}]")
            a("s_waitcnt lgkmcnt(0)")

    def finish():
        if endwait and not diag:
            a("s_waitcnt vmcnt(0)")
        a("s_branch L_stamps" if diag else "s_endpgm")

    def bound_init(n=1 << 20):
        if spin_bound:
            a(f"s_mov_b32 s63, {n}")

    def bound_loop(target):
        if spin_bound:
            a("s_sub_u32 s63, s63, 1")
            a(f"s_cbranch_scc0 {target}")
        else:
            a(f"s_branch {target}")

    def lds_wait_ge(off, sdst, cmp_operand, vt, sleep=1, precheck=False, vaddr=14):
        p, go = lab("poll"), lab("go")
        if precheck:
            a(f"s_cmp_ge_u32 {sdst}, {cmp_operand}")
            a(f"s_cbranch_scc1 {go}")
        bound_init()
        a(f"{p}:")
        a(f"ds_read_b32 v{vt}, v{vaddr} offset:{off - M0_}")
        a("s_waitcnt lgkmcnt(0)")
        a(f"v_readfirstlane_b32 {sdst}, v{vt}")
        a(f"s_cmp_ge_u32 {sdst}, {cmp_operand}")
        a(f"s_cbranch_scc1 {go}")
        if sleep:
            a(f"s_sleep {sleep}")
        bound_loop(p)
        a(f"{go}:")

    def call_setup(target, fwd):
        l0 = lab("pc")
        a("s_getpc_b64 s[52:53]")
        a(f"{l0}:")
        if fwd:
            a(f"s_add_u32 s52, s52, {target}-{l0}"); a("s_addc_u32 s53, s53, 0")
        else:
            a(f"s_sub_u32 s52, s52, {l0}-{target}"); a("s_subb_u32 s53, s53, 0")

    def call():
        a("s_swappc_b64 s[54:55], s[52:53]")

    def call_woperm():
        l0, l1 = lab("wr"), lab("wr")
        a("s_getpc_b64 s[54:55]")
        a(f"{l0}:")
        a(f"s_add_u32 s54, s54, {l1}-{l0}"); a("s_addc_u32 s55, s55, 0")
        a("s_branch L_woperm")
        a(f"{l1}:")

    DPPS = [("row_ror:8", 0xf), ("row_ror:4", 0xf), ("row_ror:2", 0xf), ("row_ror:1", 0xf),
            ("row_bcast:15", 0xa), ("row_bcast:31", 0xc)]

    def wave_red(op, v, sdst):
        for d, m in DPPS:
            a("s_nop 1")
            a(f"{op}_dpp v{v}, v{v}, v{v} {d} row_mask:{m:#x} bank_mask:0xf")
        a("s_nop 0")
        a(f"v_readlane_b32 {sdst}, v{v}, 63")
        a("s_nop 1")

    def bf16r(dst, src):
        a(f"v_cvt_pk_bf16_f32 v{dst}, v{src}, v{src}")
        a(f"v_and_b32 v{dst}, 0xffff0000, v{dst}")

    def layernorm(X, t, out, fast=False):
        D, s1, s2, u = t, t + 8, t + 10, t + 12
        a(f"v_readfirstlane_b32 s48, v{X}")
        a(f"v_mov_b32 v{s1}, 0"); a(f"v_mov_b32 v{s2}, 0")
        a("s_mov_b32 exec_hi, 0x00ffffff")
        for e in range(0, 8, 2):
            a(f"v_pk_add_f32 {q(D+e,2)}, {q(X+e,2)}, s[48:49] op_sel_hi:[1,0] neg_lo:[0,1] neg_hi:[0,1]")
        a(f"v_pk_add_f32 {q(u,2)}, {q(D,2)}, {q(D+2,2)}")
        a(f"v_pk_mul_f32 {q(s2,2)}, {q(D,2)}, {q(D,2)}")
        a(f"v_pk_add_f32 {q(s1,2)}, {q(D+4,2)}, {q(D+6,2)}")
        a(f"v_pk_fma_f32 {q(s2,2)}, {q(D+2,2)}, {q(D+2,2)}, {q(s2,2)}")
        a(f"v_pk_add_f32 {q(s1,2)}, {q(s1,2)}, {q(u,2)}")
        a(f"v_pk_fma_f32 {q(s2,2)}, {q(D+4,2)}, {q(D+4,2)}, {q(s2,2)}")
        a(f"v_add_f32 v{s1}, v{s1}, v{s1+1}")
        a(f"v_pk_fma_f32 {q(s2,2)}, {q(D+6,2)}, {q(D+6,2)}, {q(s2,2)}")
        a(f"s_mov_b32 s49, {INV448:#x}")
        a(f"v_add_f32 v{s2}, v{s2}, v{s2+1}")
        a("s_mov_b32 exec_hi, -1")
        for d, m in DPPS:
            a("s_nop 0")
            a(f"v_add_f32_dpp v{s1}, v{s1}, v{s1} {d} row_mask:{m:#x} bank_mask:0xf")
            a(f"v_add_f32_dpp v{s2}, v{s2}, v{s2} {d} row_mask:{m:#x} bank_mask:0xf")
        a(f"v_mov_b32 v{u}, s49")
        a(f"v_readlane_b32 s50, v{s1}, 63")
        a(f"v_readlane_b32 s51, v{s2}, 63")
        a("s_nop 0")
        a(f"v_mul_f32 v{s1}, s50, v{u}")
        a(f"v_mul_f32 v{s2}, s51, v{u}")
        a(f"v_add_f32 v{u}, s48, v{s1}")
        a(f"v_fma_f32 v{s2}, -v{s1}, v{s1}, v{s2}")
        if fast:
            a(f"v_max_f32 v{s2}, 0, v{s2}")
            a(f"v_pk_add_f32 {q(D,2)}, {q(X,2)}, {q(u,2)} op_sel_hi:[1,0] neg_lo:[0,1] neg_hi:[0,1]")
            a(f"v_add_f32 v{s2}, {EPS:#x}, v{s2}")
            a(f"v_pk_add_f32 {q(D+2,2)}, {q(X+2,2)}, {q(u,2)} op_sel_hi:[1,0] neg_lo:[0,1] neg_hi:[0,1]")
            a(f"v_rsq_f32 v{s2}, v{s2}")
            a(f"v_pk_add_f32 {q(D+4,2)}, {q(X+4,2)}, {q(u,2)} op_sel_hi:[1,0] neg_lo:[0,1] neg_hi:[0,1]")
            a(f"v_pk_add_f32 {q(D+6,2)}, {q(X+6,2)}, {q(u,2)} op_sel_hi:[1,0] neg_lo:[0,1] neg_hi:[0,1]")
            for e in range(0, 8, 2):
                a(f"v_pk_mul_f32 {q(D+e,2)}, {q(D+e,2)}, {q(s2,2)} op_sel_hi:[1,0]")
            for d in range(4):
                a(f"v_cvt_pk_bf16_f32 v{out+d}, v{D+2*d}, v{D+2*d+1}")
            return
        a(f"v_cvt_pk_bf16_f32 v{u}, v{u}, v{u}")
        a(f"v_max_f32 v{s2}, 0, v{s2}")
        a(f"v_and_b32 v{u}, 0xffff0000, v{u}")
        a(f"v_cvt_pk_bf16_f32 v{s2}, v{s2}, v{s2}")
        a(f"v_pk_add_f32 {q(D,2)}, {q(X,2)}, {q(u,2)} op_sel_hi:[1,0] neg_lo:[0,1] neg_hi:[0,1]")
        a(f"v_and_b32 v{s2}, 0xffff0000, v{s2}")
        a(f"v_pk_add_f32 {q(D+2,2)}, {q(X+2,2)}, {q(u,2)} op_sel_hi:[1,0] neg_lo:[0,1] neg_hi:[0,1]")
        a(f"v_add_f32 v{s2}, {EPS:#x}, v{s2}")
        a(f"v_pk_add_f32 {q(D+4,2)}, {q(X+4,2)}, {q(u,2)} op_sel_hi:[1,0] neg_lo:[0,1] neg_hi:[0,1]")
        a(f"v_cvt_pk_bf16_f32 v{s2}, v{s2}, v{s2}")
        a(f"v_pk_add_f32 {q(D+6,2)}, {q(X+6,2)}, {q(u,2)} op_sel_hi:[1,0] neg_lo:[0,1] neg_hi:[0,1]")
        a(f"v_and_b32 v{s2}, 0xffff0000, v{s2}")
        a(f"v_cvt_pk_bf16_f32 v{out}, v{D}, v{D+1}")
        a(f"v_sqrt_f32 v{s2}, v{s2}")
        a(f"v_cvt_pk_bf16_f32 v{out+1}, v{D+2}, v{D+3}")
        a(f"v_cvt_pk_bf16_f32 v{s2}, v{s2}, v{s2}")
        a(f"v_cvt_pk_bf16_f32 v{out+2}, v{D+4}, v{D+5}")
        a(f"v_and_b32 v{s2}, 0xffff0000, v{s2}")
        a(f"v_cvt_pk_bf16_f32 v{out+3}, v{D+6}, v{D+7}")
        a(f"v_rcp_f32 v{s2}, v{s2}")
        for d in range(4):
            a(f"v_lshlrev_b32 v{D+2*d}, 16, v{out+d}"); a(f"v_and_b32 v{D+2*d+1}, 0xffff0000, v{out+d}")
        for e in range(0, 8, 2):
            a(f"v_pk_mul_f32 {q(D+e,2)}, {q(D+e,2)}, {q(s2,2)} op_sel_hi:[1,0]")
        for d in range(4):
            a(f"v_cvt_pk_bf16_f32 v{out+d}, v{D+2*d}, v{D+2*d+1}")

    def build_a(dst, psrc, n):
        for w in range(4):
            a(f"v_perm_b32 v{dst+w}, v{psrc + (n >> 1)}, v{psrc + (n >> 1)}, v{SEL + (n & 1)*4 + w}")

    def xreduce(V):
        a("s_nop 1")
        a(f"v_permlane16_swap_b32 v{V}, v{V+1}")
        a(f"v_permlane16_swap_b32 v{V+2}, v{V+3}")
        a(f"v_add_f32 v{V}, v{V}, v{V+1}")
        a(f"v_add_f32 v{V+2}, v{V+2}, v{V+3}")
        a("s_nop 1")
        a(f"v_permlane32_swap_b32 v{V}, v{V+2}")
        a(f"v_add_f32 v{V}, v{V}, v{V+2}")
        a("s_nop 1")
        a(f"v_add_f32_dpp v{V}, v{V}, v{V} row_ror:8 row_mask:0xf bank_mask:0xf")
        a("s_nop 1")
        a(f"v_add_f32_dpp v{V}, v{V}, v{V} row_ror:4 row_mask:0xf bank_mask:0xf")

    def poll_quads(R, voff, soffs, vt, execs=None, both=False, pdep=1):
        n = len(soffs)
        execs = execs or ["-1"] * n

        def batch(masked):
            for g in range(n):
                if masked:
                    a(f"s_or_b64 exec, s[{80+2*g}:{81+2*g}], 1")
                elif g == 0 or execs[g] != execs[g-1]:
                    a(f"s_mov_b64 exec, {execs[g]}")
                a(f"buffer_load_dwordx4 {q(R+4*g)}, v{voff}, s[40:43], {soffs[g]} offen {ldfl}")

        def check(extra, go):
            for g in range(n):
                if g == 0 or execs[g] != execs[g-1]:
                    a(f"s_mov_b64 exec, {execs[g]}")
                a(f"s_waitcnt vmcnt({extra + n-1-g})")
                a(f"v_max3_u32 v{vt}, v{R+4*g}, v{R+4*g+1}, v{R+4*g+2}")
                a(f"v_max_u32 v{vt}, v{vt}, v{R+4*g+3}")
                a(f"v_cmp_eq_u32 s[{80+2*g}:{81+2*g}], -1, v{vt}")
            a("s_or_b64 s[50:51], s[80:81], s[82:83]")
            for g in range(2, n):
                a(f"s_or_b64 s[50:51], s[50:51], s[{80+2*g}:{81+2*g}]")
            a(f"s_cbranch_scc0 {go}")
        p, go = lab("gp"), lab("gg")
        batch(False)
        if both:
            for _ in range(pdep - 1):
                a(f"s_sleep {pstag}")
                batch(False)
        else:
            check(0, go)
            batch(True)
            for _ in range(pdep - 1):
                a(f"s_sleep {pstag}")
                batch(True)
        bound_init(1 << 17)
        a(f"{p}:")
        check((pdep - 1) * n, go)
        if slowsl:
            sk = lab("fs")
            a("s_bcnt1_i32_b64 s48, s[50:51]"); a(f"s_cmp_le_u32 s48, {slowthr}"); a(f"s_cbranch_scc1 {sk}")
            a(f"s_sleep {slowsl}")
            a(f"{sk}:")
        if psleep:
            a(f"s_sleep {psleep}")
        batch(True)
        bound_loop(p)
        a(f"{go}:")
        a("s_mov_b64 exec, -1")

    def gate(voff, soff, nl, need, vt, tag=None):
        p, go = lab("wp"), lab("wg")
        bound_init(1 << 17)
        a(f"s_mov_b64 exec, {hex((1 << nl) - 1)}")
        a(f"{p}:")
        a(f"buffer_load_dword v{vt}, v{voff}, s[40:43], {soff} offen {ldfl}")
        a("s_waitcnt vmcnt(0)")
        a(f"v_cmp_ne_u32 s[50:51], -1, v{vt}" if tag is None else f"v_cmp_eq_u32 s[50:51], {tag}, v{vt}")
        a("s_bcnt1_i32_b64 s48, s[50:51]")
        a(f"s_cmp_ge_u32 s48, {need}")
        a(f"s_cbranch_scc1 {go}")
        if gsl:
            a(f"s_sleep {gsl}")
        bound_loop(p)
        a(f"{go}:")
        a("s_mov_b64 exec, -1")

    def end_wait(t):
        if trig == 'cb':
            lds_wait_ge(F_CB, "s48", 1, 6, sleep=4)
        else:
            lds_wait_ge(F_FILL, "s48", t, 6, sleep=4)

    def set_depth(src):
        a(f"v_mov_b32 v6, {src}")
        a(f"ds_write_b32 v14, v6 offset:{F_DEP-M0_}")

    def wo_load(k):
        ks, e = k >> 3, k & 7
        if nowo:
            return
        if (e & 3) == 0:
            a(f"s_mov_b32 s48, {(ks*32 + (e & 4))*896}")
        a(f"buffer_load_dwordx2 {q(WL+4*k,2)}, v4, s[36:39], s48 offen offset:{(e & 3)*896} nt")
        a(f"buffer_load_dwordx2 {q(WL+4*k+2,2)}, v4, s[36:39], s48 offen offset:{(e & 3)*896 + 128} nt")

    def wfrag(ks, t):
        return (T if ks == 0 else WL) + 4*t

    a(HEADER)
    a(f"; @launch grid=(256,1,1) block=(512,1,1) lds={LDS_BYTES}")
    a('.amdgcn_target "amdgcn-amd-amdhsa--gfx950"')
    a(".text")
    a(f".globl {KNAME}")
    a(".p2align 8")
    a(f".type {KNAME},@function")
    a(f"{KNAME}:")
    a("s_cmp_ge_u32 s2, 256")
    a("s_cbranch_scc1 L_exit")
    a("s_load_dwordx16 s[4:19], s[0:1], 0")
    a("s_load_dwordx8 s[20:27], s[0:1], 64")
    if diag:
        for k in range(16):
            a(f"s_mov_b32 s{64+k}, 0")
        a("s_memrealtime s[64:65]")
    if padto:
        a("s_memrealtime s[98:99]")
    a("v_lshrrev_b32 v1, 6, v0")
    a("v_and_b32 v0, 63, v0")
    a("v_readfirstlane_b32 s3, v1")
    if perm:
        a("s_mov_b32 s48, 0")
        for i, pb in enumerate(perm):
            a(f"s_bfe_u32 s49, s2, {(1 << 16) | i}"); a(f"s_lshl_b32 s49, s49, {pb}"); a("s_or_b32 s48, s48, s49")
        a("s_and_b32 s29, s48, 3"); a("s_lshr_b32 s28, s48, 2"); a("s_and_b32 s28, s28, 15"); a("s_lshr_b32 s30, s48, 6")
    elif xl == 2:
        a("s_and_b32 s28, s2, 7"); a("s_lshr_b32 s48, s2, 3"); a("s_and_b32 s49, s48, 1"); a("s_lshl_b32 s49, s49, 3")
        a("s_add_u32 s28, s28, s49")
        a("s_lshr_b32 s29, s48, 1"); a("s_and_b32 s29, s29, 3"); a("s_lshr_b32 s30, s48, 3")
    elif xl == 7:
        a("s_and_b32 s48, s2, 5"); a("s_lshl_b32 s48, s48, 1"); a("s_lshr_b32 s49, s2, 1"); a("s_and_b32 s49, s49, 5"); a("s_or_b32 s48, s48, s49")
        a("s_and_b32 s29, s48, 3"); a("s_and_b32 s49, s2, 0x30"); a("s_or_b32 s28, s48, s49"); a("s_lshr_b32 s28, s28, 2"); a("s_lshr_b32 s30, s2, 6")
    elif xl == 0:
        a("s_and_b32 s29, s2, 3"); a("s_lshr_b32 s28, s2, 2"); a("s_and_b32 s28, s28, 15"); a("s_lshr_b32 s30, s2, 6")
    elif xl == 4:
        a("s_and_b32 s28, s2, 15"); a("s_lshr_b32 s30, s2, 4"); a("s_and_b32 s30, s30, 3"); a("s_lshr_b32 s29, s2, 6")
    elif xl == 6:
        a("s_and_b32 s29, s2, 3"); a("s_lshr_b32 s48, s2, 2"); a("s_and_b32 s49, s48, 1"); a("s_lshl_b32 s49, s49, 3")
        a("s_lshr_b32 s30, s2, 3"); a("s_and_b32 s30, s30, 3"); a("s_lshr_b32 s28, s2, 5"); a("s_add_u32 s28, s28, s49")
    a("s_lshl_b32 s31, s30, 4"); a("s_add_u32 s31, s31, s28")
    a("v_and_b32 v1, 15, v0")
    a("v_lshrrev_b32 v2, 4, v0")
    a("v_lshrrev_b32 v3, 5, v0")
    def emit_loader():
        a("L_loader:")
        a("s_setprio 3")
        a("v_and_b32 v4, 31, v0"); a("v_xor_b32 v4, v4, v3"); a("v_lshlrev_b32 v4, 4, v4"); a("v_lshl_add_u32 v8, v3, 9, v4")
        for k in range(1, 8):
            a(f"v_xor_b32 v{8+k}, {k << 5}, v8")
        a("s_lshl_b32 s59, s31, 22"); a(f"s_lshl_b32 s49, s29, {qb}"); a("s_add_u32 s59, s59, s49")
        a("s_mov_b32 s56, 0"); a("s_mov_b32 s58, 0"); a("s_mov_b32 m0, 0")
        if krot:
            a("; both streams start at a workgroup-dependent tile and wrap around")
            a(f"s_lshr_b32 s60, s2, {rsh}"); a(f"s_mul_i32 s60, s60, {krot}"); a(f"s_and_b32 s60, s60, {rmask}"); a("s_lshl_b32 s60, s60, 13")
        else:
            a("s_mov_b32 s60, 0")
        a("s_mov_b32 s57, s60")
        a(f"s_mov_b32 s34, {(4 << 20) - (3 << qb)}"); a("s_mov_b32 s35, 0x20000")
        a(f"v_mov_b32 v24, {M0_}"); a(f"v_mov_b32 v17, {F_CONS + 4*((ramp or 1) & 1)}")
        if ramp:
            a("s_mov_b32 s50, 0")
        if tmax < 99:
            a("s_mov_b32 s51, -99")
        for r in range(4):
            a(f"v_mov_b32 v{20+r}, 0")
        a("ds_write_b128 v24, v[20:23]"); a("ds_write_b128 v24, v[20:23] offset:16"); a("ds_write_b128 v24, v[20:23] offset:32")
        a("s_waitcnt lgkmcnt(0)")
        if 'e' in tst:
            stamp(4)
        a("s_add_u32 s32, s6, s59"); a("s_addc_u32 s33, s7, 0"); a("s_and_b32 s33, s33, 0xffff")
        if diag:
            srd(40, 26, WS_BYTES)
        if ramp:
            a("; the first tiles fill the window back to back")
            a("L_lramp:")
            for k in range(8):
                if k == 4:
                    a("s_add_u32 m0, s56, 4096"); a("s_add_u32 s57, s57, 4096")
                a(f"s_waitcnt vmcnt({rampd-1})")
                a(f"buffer_load_dwordx4 v{8+k}, s[32:35], s57 offen offset:{(k&3)*1024} nt lds")
                if k == barpos:
                    a("s_cmp_lg_u32 s58, 0"); a("s_cbranch_scc1 L_lnb"); a("s_barrier"); a("L_lnb:")
            a("s_branch L_lnext")
        for di, dd in enumerate(depths):
            dd += doff
            waits = list(range(0, 8, grp))
            val = {k: (k - (dd - grp)) // 8 for k in waits}
            prev = {k: (val[k - grp] if k else val[waits[-1]] - 1) for k in waits}
            kpub = [k for k in waits if val[k] > prev[k]][0]
            lag = -val[kpub]
            a(f"L_ld{di}:")
            for k in range(8):
                if k == 4:
                    a("s_add_u32 m0, s56, 4096"); a("s_add_u32 s57, s57, 4096")
                    if msl:
                        a(f"s_sleep {msl}")
                if k == kpub:
                    a(f"s_sub_u32 s49, s58, {lag}"); a("s_max_i32 s49, s49, 0"); a("v_mov_b32 v19, s49")
                if k % grp == 0:
                    a(f"s_waitcnt vmcnt({dd-grp})")
                elif k == 4:
                    a("s_nop 0")
                a(f"buffer_load_dwordx4 v{8+k}, s[32:35], s57 offen offset:{(k&3)*1024} nt lds")
                if k == kpub:
                    a("ds_write_b32 v24, v19")
                if k == kpub and 'p' in sync and dd <= pmax:
                    a("s_waitcnt lgkmcnt(0)")
                if k == 6 and ('t' not in sync or dd > tmax):
                    a("ds_read_b32 v18, v17")
                if k == 7 and 't' in sync and dd > tmax:
                    a("s_waitcnt lgkmcnt(0)"); a("v_readfirstlane_b32 s51, v18")
                if k == 6 and 'm' not in sync:
                    a(f"ds_read_b32 v25, v24 offset:{F_DEP-M0_}")
                if k == dpos - 1 and 'm' in sync:
                    a(f"ds_read_b32 v25, v24 offset:{F_DEP-M0_}")
                if k == (dpos - 1 if dd <= mmax else 7) and 'm' in sync:
                    a("s_waitcnt lgkmcnt(0)"); a("v_readfirstlane_b32 s50, v25")
                if xs:
                    for (dmax, kk, nn) in xs:
                        if dd <= dmax and k == kk:
                            a(f"s_nop {nn}")
                if gap:
                    a(f"s_nop {gap-1}")
                if di == 0 and k == barpos and not ramp:
                    sk = lab("nb")
                    a("s_cmp_lg_u32 s58, 0"); a(f"s_cbranch_scc1 {sk}")
                    if 'e' in tst:
                        stamp(5)
                    a("s_barrier")
                    if 'e' in tst:
                        a("s_waitcnt vmcnt(7)"); stamp(6)
                    a(f"{sk}:")
            if di + 1 < len(depths):
                a("s_branch L_lnext")
        a("L_lnext:")
        if qb == 20:
            a("s_add_u32 s57, s57, 4096"); a("s_and_b32 s57, s57, 0xfffff")
        else:
            a(f"s_add_u32 s57, s57, 4096"); a(f"s_and_b32 s48, s57, {(1 << qb) - 1}"); a(f"s_cselect_b32 s48, 0, {3 << qb}"); a("s_add_u32 s57, s57, s48")
        a("s_add_u32 s56, s56, 8192"); a("s_and_b32 s56, s56, 0x1ffff")
        a("s_add_u32 s58, s58, 1")
        if diag or lstamps:
            for kk, tt in stt:
                sk = lab("st")
                a(f"s_cmp_lg_u32 s58, {tt}"); a(f"s_cbranch_scc1 {sk}"); stamp(kk); a(f"{sk}:")
        for _ in range(lpad):
            a("s_nop 0")
        for _ in range(nbr):
            sk = lab("jb"); a(f"s_branch {sk}"); a(f"{sk}:")
        if lsl:
            a(f"s_sleep {lsl}")
        if skip:
            sk = lab("jb"); a(f"s_branch {sk}")
            for _ in range(skip):
                a("s_nop 0")
            a(f"{sk}:")
        a("s_cmp_lg_u32 s58, 128")
        a("s_cbranch_scc1 L_lnosw")
        a("s_add_u32 s32, s8, s59"); a("s_addc_u32 s33, s9, 0"); a("s_and_b32 s33, s33, 0xffff"); a("s_mov_b32 s57, s60")
        for k in range(8):
            a(f"v_lshlrev_b32 v{8+k}, 4, v0")
        stamp(1)
        a("L_lnosw:")
        a(f"s_cmp_ge_u32 s58, {NT}")
        a("s_cbranch_scc1 L_ldrain")
        if ramp:
            a("s_mov_b32 m0, s56")
            a(f"s_cmp_lt_u32 s58, {ramp}"); a("s_cbranch_scc1 L_lramp")
        a("s_lshr_b32 s49, s58, 1"); a("s_sub_u32 s49, s49, 7")
        p, go = lab("fp"), lab("fg")
        if 't' not in sync or 'm' not in sync:
            a("s_waitcnt lgkmcnt(0)")
        if 'm' not in sync:
            a("v_readfirstlane_b32 s50, v25")
        if 't' in sync and tmax < 99:
            a("s_cmp_ge_i32 s51, s49"); a("s_mov_b32 s51, -99")
            a(f"s_cbranch_scc1 {go}")
        if 't' not in sync:
            a("v_readfirstlane_b32 s48, v18")
            a("s_cmp_ge_i32 s48, s49")
            a(f"s_cbranch_scc1 {go}")
        bound_init()
        a(f"{p}:")
        a("ds_read_b32 v18, v17"); a("s_waitcnt lgkmcnt(0)"); a("v_readfirstlane_b32 s48, v18")
        a("s_cmp_ge_i32 s48, s49")
        a(f"s_cbranch_scc1 {go}")
        a("s_sleep 1")
        bound_loop(p)
        a(f"{go}:")
        a("v_xor_b32 v17, 12, v17")
        a("s_mov_b32 m0, s56")
        for di in range(1, len(depths)):
            a(f"s_cmp_eq_u32 s50, {di}"); a(f"s_cbranch_scc1 L_ld{di}")
        a("s_branch L_ld0")
        a("L_ldrain:")
        stamp(2)
        for c in range(NT - (max(depths) + doff + 6) // 8, NT + 1):
            a(f"v_mov_b32 v19, {c}")
            a(f"s_waitcnt vmcnt({8*(NT-c)})")
            a("ds_write_b32 v24, v19")
        a("s_waitcnt lgkmcnt(0)")
        stamp(3)
        finish()


    if ldfirst:
        a("s_cmp_lg_u32 s3, 0")
        a("s_cbranch_scc1 L_worker")
        emit_loader()
        a("L_worker:")
    else:
        a("s_cmp_eq_u32 s3, 0")
        a("s_cbranch_scc1 L_loader")

    a("s_sub_u32 s60, s3, 1")
    a("v_lshlrev_b32 v5, 4, v0")
    a("s_mul_i32 s48, s30, 896")
    a("v_add_u32 v5, s48, v5")
    a("v_mov_b32 v6, 0x7fffff00")
    a("v_cmp_gt_u32 vcc, 56, v0")
    a("v_and_b32 v4, 7, v0")
    a("v_lshlrev_b32 v4, 4, v4")
    a("v_cndmask_b32 v5, v6, v5, vcc")
    a("v_lshrrev_b32 v13, 3, v0")
    a("v_lshl_add_u32 v4, v13, 16, v4")
    a("s_lshl_b32 s48, s60, 19"); a("s_lshl_b32 s49, s28, 9"); a("s_add_u32 s48, s48, s49")
    a("s_lshl_b32 s49, s29, 7"); a("s_add_u32 s48, s48, s49")
    a("v_add_u32 v4, s48, v4")
    a("s_waitcnt lgkmcnt(0)")
    srd(32, 4, 3584)
    srd(36, 10, 3670016)
    a(f"buffer_load_dwordx4 {q(YA)}, v5, s[32:35], 0 offen")
    a(f"s_add_u32 s48, s26, {W_EP}"); a("s_addc_u32 s49, s27, 0")
    a("s_load_dword s62, s[48:49], 0")
    a("v_mov_b32 v15, 0")
    a("s_barrier")
    a("s_mov_b32 s50, 0")
    for n in range(8):
        a(f"buffer_load_dwordx4 {q(QA+4*n)}, v4, s[36:39], s50 offen nt") if 'w' not in tst else a(f"buffer_load_dword v{QA+4*n}, v15, s[32:35], 0 offen")
        if n < 7:
            a("s_add_u32 s50, s50, 8192")
    srd(40, 26, WS_BYTES)
    for r in range(4):
        a(f"v_mov_b32 v{ACA+r}, -1")
    a("s_lshl_b32 s48, s2, 2"); a("s_add_u32 s48, s48, s3"); a("s_sub_u32 s48, s48, 4"); a("s_lshl_b32 s48, s48, 10")
    a("s_cmp_ge_u32 s3, 4"); a(f"s_cselect_b32 s48, s48, {WS_BYTES}")
    a("v_lshlrev_b32 v6, 4, v0")
    a(f"buffer_store_dwordx4 {q(ACA)}, v6, s[40:43], s48 offen sc1")
    a("v_and_b32 v6, 1, v1"); a("v_cmp_eq_u32 vcc, 1, v6")
    a("v_mov_b32 v7, 0x0c0c0100"); a("v_mov_b32 v8, 0x01000c0c"); a("v_mov_b32 v9, 0x0c0c0302"); a("v_mov_b32 v10, 0x03020c0c")
    a("v_cndmask_b32 v7, v7, v8, vcc"); a("v_cndmask_b32 v9, v9, v10, vcc")
    a("v_bfe_u32 v6, v1, 1, 2"); a("v_mov_b32 v10, 0x0c0c0c0c")
    for w in range(4):
        a(f"v_cmp_eq_u32 vcc, {w}, v6"); a("s_nop 1")
        a(f"v_cndmask_b32 v{SEL+w}, v10, v7, vcc"); a(f"v_cndmask_b32 v{SEL+4+w}, v10, v9, vcc")
    a("v_mov_b32 v15, 0")
    a(f"v_mov_b32 v14, {M0_}")
    a(f"v_lshlrev_b32 v8, 4, v0"); a(f"v_add_u32 v8, {L_XN}, v8")
    a("s_lshl_b32 s48, s60, 7"); a(f"s_add_u32 s48, s48, {L_XN}")
    a("v_lshl_add_u32 v9, v13, 4, s48")
    a("v_lshrrev_b32 v6, 1, v2"); a("v_lshlrev_b32 v6, 8, v6"); a("v_and_b32 v7, 7, v1"); a("v_lshl_add_u32 v6, v7, 5, v6")
    a("v_and_b32 v7, 1, v2"); a("v_lshl_add_u32 v6, v7, 4, v6")
    a("s_lshl_b32 s48, s60, 9"); a(f"s_add_u32 s48, s48, {L_QP}")
    a("v_add_u32 v6, s48, v6")
    a("v_mov_b32 v7, 1")
    a("s_waitcnt vmcnt(9)")
    for d in range(4):
        a(f"v_lshlrev_b32 v{T+2*d}, 16, v{YA+d}"); a(f"v_and_b32 v{T+2*d+1}, 0xffff0000, v{YA+d}")
    layernorm(T, T + 8, YA)
    a("s_mov_b32 exec_hi, 0x00ffffff")
    a(f"ds_write_b128 v8, {q(YA)}")
    a("s_mov_b32 exec_hi, -1")
    a("s_waitcnt lgkmcnt(0)")
    a(f"ds_read_b128 {q(YA)}, v9")
    stamp(1)
    a("s_waitcnt lgkmcnt(0)")
    for n in range(8):
        build_a(T + 4*n, YA, n)
    for n in range(8):
        a(f"s_waitcnt vmcnt({8-n})")
        a(f"v_mfma_f32_16x16x32_bf16 {q(ACC)}, {q(T+4*n)}, {q(QA+4*n)}, {q(ACC) if n else 0}")
    a("s_mov_b32 exec_lo, 0x00ff00ff"); a("s_mov_b32 exec_hi, 0xff00ff00")
    a("s_nop 5")
    a(f"ds_write_b128 v6, {q(ACC)}")
    a("s_waitcnt lgkmcnt(0)")
    a("s_mov_b64 exec, 1")
    a(f"ds_add_u32 v14, v7 offset:{F_QCNT-M0_}")
    a("s_waitcnt vmcnt(0)")
    a(f"ds_add_u32 v14, v7 offset:{F_CLR-M0_}")
    a("s_add_u32 s91, s62, 1")
    a("s_mov_b64 exec, -1")
    stamp(2)
    a("s_cmp_eq_u32 s3, 3")
    a("s_cbranch_scc1 L_h4")
    a("s_cmp_gt_u32 s3, 3")
    a("s_cbranch_scc1 L_helper")

    a("v_and_b32 v6, 1, v2"); a("v_lshrrev_b32 v8, 3, v1"); a("v_cmp_eq_u32 vcc, v6, v8"); a("s_nop 1")
    for w in range(8):
        a(f"v_cndmask_b32 v{SEL+w}, v10, v{SEL+w}, vcc")
    a("v_and_b32 v6, 3, v1"); a("v_xor_b32 v6, v6, v2"); a("v_and_b32 v7, 12, v1"); a("v_or_b32 v6, v6, v7")
    for m in range(4):
        a(f"v_xor_b32 v7, {m*4}, v6"); a("v_lshlrev_b32 v7, 4, v7"); a(f"v_lshl_add_u32 v{8+m}, v1, 9, v7")
    a("v_and_b32 v6, 1, v1"); a("v_lshlrev_b32 v6, 4, v6"); a("v_and_b32 v7, 14, v1"); a("v_add_u32 v12, v6, v7")
    a("s_lshl_b32 s48, s60, 5"); a(f"s_add_u32 s61, s48, {L_PB}")
    a("v_add_u32 v12, s61, v12")
    a("s_lshl_b32 s48, s60, 2"); a(f"s_add_u32 s48, s48, {F_CONS}"); a("v_mov_b32 v13, s48")
    a("s_lshl_b32 s56, s60, 13")
    a("s_add_u32 s57, s60, 1")
    a("s_mov_b32 s58, 0")
    a("v_mov_b32 v5, 0")
    a(f"v_lshlrev_b32 v7, 4, v2"); a(f"v_add_u32 v7, {L_QB}, v7")
    lds_wait_ge(F_QOK, "s48", 1, 6)
    for ks in range(8):
        a(f"ds_read_b128 {q(QA+4*ks)}, v7 offset:{ks*64}")
    stamp(3)
    a("L_kloop:")
    for m in range(4):
        a(f"v_add_u32 v{SB+m}, s56, v{8+m}")
    a("v_add_u32 v5, 1, v5")
    lds_wait_ge(F_FILL, "s58", "s57", 6, precheck=True, sleep=csl)
    for ks in range(8):
        a(f"ds_read_b128 {q(T+4*ks)}, v{SB+(ks&3)} offset:{(ks>>2)*256}")
    for ks in range(8):
        a(f"s_waitcnt lgkmcnt({7-ks})")
        a(f"v_mfma_f32_16x16x32_bf16 {q(ACC)}, {q(QA+4*ks)}, {q(T+4*ks)}, {q(ACC) if ks else 0}")
    a("ds_write_b32 v13, v5")
    a("s_add_u32 s56, s56, 16384"); a("s_and_b32 s56, s56, 0x1ffff")
    a("s_add_u32 s57, s57, 2")
    a("s_nop 4")
    a(f"v_cvt_pk_bf16_f32 v6, v{ACC}, v{ACC}")
    a("ds_write_b16 v12, v6")
    a("v_add_u32 v12, 64, v12")
    a("s_cmp_lt_u32 s57, 129")
    a("s_cbranch_scc1 L_kloop")
    stamp(4)
    a("v_lshl_add_u32 v12, v0, 6, s61")
    a("s_waitcnt lgkmcnt(0)")
    a(f"ds_read_b128 {q(YA)}, v12"); a(f"ds_read_b128 {q(YA+4)}, v12 offset:16")
    a("s_waitcnt lgkmcnt(0)")
    for d in range(8):
        a(f"v_lshlrev_b32 v{T+2*d}, 16, v{YA+d}"); a(f"v_and_b32 v{T+2*d+1}, 0xffff0000, v{YA+d}")
    a(f"v_max3_f32 v6, v{T}, v{T+1}, v{T+2}")
    for d in range(3, 15, 2):
        a(f"v_max3_f32 v6, v6, v{T+d}, v{T+d+1}")
    a(f"v_max_f32 v6, v6, v{T+15}")
    wave_red("v_max_f32", 6, "s48")
    a(f"s_mov_b32 s49, {LOG2E_16:#x}")
    for d in range(16):
        a(f"v_subrev_f32 v{T+d}, s48, v{T+d}")
    for d in range(16):
        a(f"v_mul_f32 v{T+d}, s49, v{T+d}")
    for d in range(16):
        a(f"v_exp_f32 v{T+d}, v{T+d}")
    a("s_nop 0")
    for d in range(8):
        a(f"v_cvt_pk_bf16_f32 v{YA+d}, v{T+2*d}, v{T+2*d+1}")
    a(f"ds_write_b128 v12, {q(YA)}"); a(f"ds_write_b128 v12, {q(YA+4)} offset:16")
    for st in (8, 4, 2, 1):
        for d in range(st):
            a(f"v_add_f32 v{T+d}, v{T+d}, v{T+d+st}")
    wave_red("v_add_f32", T, "s49")
    a("v_mov_b32 v6, s48"); a("v_mov_b32 v7, s49")
    a("s_lshl_b32 s48, s60, 3"); a(f"s_add_u32 s48, s48, {L_ML}"); a("v_mov_b32 v8, s48"); a("v_mov_b32 v9, 1")
    a("s_mov_b64 exec, 1")
    a("ds_write_b64 v8, v[6:7]")
    a("s_waitcnt lgkmcnt(0)")
    a(f"ds_add_u32 v14, v9 offset:{F_MLCNT-M0_}")
    a("s_mov_b64 exec, -1")
    a("v_lshlrev_b32 v8, 4, v0")
    a("v_lshl_add_u32 v12, v3, 4, s61")
    a(f"v_add_u32 v10, {L_CB}, v8")
    for r in range(4):
        a(f"v_mov_b32 v{ACC+r}, 0")
    a("s_mov_b32 s59, 225")
    stamp(5)
    a("L_vloop:")
    a(f"ds_read_b128 {q(YA)}, v12")
    a("v_add_u32 v9, s56, v8")
    a("v_add_u32 v12, 64, v12")
    a("v_add_u32 v5, 1, v5")
    a("s_waitcnt lgkmcnt(0)")
    for n in range(8):
        build_a(QA + 4*n, YA, n)
    lds_wait_ge(F_FILL, "s58", "s57", 6, precheck=True, sleep=csl)
    for n in range(8):
        a(f"ds_read_b128 {q(T+4*n)}, v9 offset:{n*1024}")
    a(f"ds_read_b32 v6, v14 offset:{F_CB-M0_}")
    a(f"ds_read_b128 {q(ACA)}, v10")
    for n in range(8):
        a(f"s_waitcnt lgkmcnt({9-n})")
        a(f"v_mfma_f32_16x16x32_bf16 {q(ACC)}, {q(QA+4*n)}, {q(T+4*n)}, {q(ACC)}")
    a("ds_write_b32 v13, v5")
    a("s_add_u32 s56, s56, 16384"); a("s_and_b32 s56, s56, 0x1ffff")
    a("s_add_u32 s57, s57, 2")
    a("s_cmp_lt_u32 s57, s59")
    a("s_cbranch_scc1 L_vloop")
    a("s_cmp_gt_u32 s59, 253")
    a("s_cbranch_scc1 L_vdone")
    if direct:
        a("s_cmp_gt_u32 s59, 240")
        a("s_cbranch_scc1 L_vdir")
    lds_wait_ge(F_FOK, "s48", 1, 6)
    a("s_lshl_b32 s48, s60, 2"); a(f"s_add_u32 s48, s48, {L_F}"); a("v_mov_b32 v11, s48")
    a("ds_read_b32 v11, v11")
    a("v_lshrrev_b32 v6, 3, v1"); a("v_lshl_add_u32 v6, v3, 1, v6"); a("v_lshlrev_b32 v7, 11, v6")
    a("v_and_b32 v6, 7, v1"); a("v_lshl_add_u32 v7, v6, 4, v7"); a("v_and_b32 v6, 1, v2"); a("v_lshl_add_u32 v7, v6, 3, v7")
    a("s_lshl_b32 s48, s28, 13"); a("s_lshl_b32 s49, s30, 2"); a("s_add_u32 s49, s49, s29"); a("s_lshl_b32 s49, s49, 7")
    a("s_add_u32 s48, s48, s49"); a(f"s_add_u32 s61, s48, {W_OX}")
    if direct:
        a("s_lshl_b32 s48, s31, 22"); a(f"s_lshl_b32 s49, s29, {qb}"); a("s_add_u32 s48, s48, s49")
        a("s_add_u32 s36, s8, s48"); a("s_addc_u32 s37, s9, 0"); a("s_and_b32 s37, s37, 0xffff")
        a(f"s_mov_b32 s38, {(4 << 20) - (3 << qb)}"); a("s_mov_b32 s39, 0x20000")
        a(f"s_mov_b32 s59, {direct}")
        a("s_branch L_vloop")
        a("L_vdir:")
        lds_wait_ge(F_FILL, "s58", "s57", 6, precheck=True, sleep=csl)
        toff = lambda t: ((t >> (qb - 13)) << (qb + 2)) | ((t & ((1 << (qb - 13)) - 1)) << 13)
        a(f"s_mul_i32 s48, s60, {toff(127) - toff(126)}"); a(f"s_add_u32 s48, s48, {toff(126)}")
        for n in range(8):
            if n == 4:
                a("s_add_u32 s48, s48, 4096")
            a(f"buffer_load_dwordx4 {q(WL+4*n)}, v8, s[36:39], s48 offen offset:{(n&3)*1024} nt")
        a("s_mov_b32 s59, 255")
    else:
        a("s_mov_b32 s59, 257")
    a("s_branch L_vloop")
    a("L_vdone:")
    if direct:
        a(f"ds_read_b128 {q(YA)}, v12")
        a("s_waitcnt lgkmcnt(0)")
        for n in range(8):
            build_a(QA + 4*n, YA, n)
        for n in range(8):
            a(f"s_waitcnt vmcnt({7-n})")
            if n == 5:
                a(f"ds_read_b32 v6, v14 offset:{F_CB-M0_}")
                a(f"ds_read_b128 {q(ACA)}, v10")
            a(f"v_mfma_f32_16x16x32_bf16 {q(ACC)}, {q(QA+4*n)}, {q(WL+4*n)}, {q(ACC)}")
        stamp(6)
        a("s_nop 5")
    if not direct:
        stamp(6)
    a("s_cmp_eq_u32 s60, 0")
    a("s_cbranch_scc0 L_vpub")
    for r in range(4):
        a(f"v_mul_f32 v{ACC+r}, v11, v{ACC+r}")
    a("v_mov_b32 v9, 1")
    a(f"ds_write_b128 v10, {q(ACC)}")
    a("s_waitcnt lgkmcnt(0)")
    a(f"ds_write_b32 v14, v9 offset:{F_CB-M0_}")
    a("s_waitcnt lgkmcnt(0)")
    finish()
    a("L_vpub:")
    a("s_waitcnt lgkmcnt(0)")
    a("v_readfirstlane_b32 s48, v6")
    a("s_cmp_eq_u32 s48, 1")
    a("s_cbranch_scc1 L_vsum")
    lds_wait_ge(F_CB, "s48", 1, 6, sleep=0)
    a(f"ds_read_b128 {q(ACA)}, v10")
    a("s_waitcnt lgkmcnt(0)")
    a("L_vsum:")
    for r in range(4):
        a(f"v_fma_f32 v{ACC+r}, v11, v{ACC+r}, v{ACA+r}")
    a(f"v_cvt_pk_bf16_f32 v{ACC}, v{ACC}, v{ACC+1}"); a(f"v_cvt_pk_bf16_f32 v{ACC+1}, v{ACC+2}, v{ACC+3}")
    a(f"v_min_u32 v{ACC}, -2, v{ACC}"); a(f"v_min_u32 v{ACC+1}, -2, v{ACC+1}")
    a(f"buffer_store_dwordx2 {q(ACC,2)}, v7, s[40:43], s61 offen {stfl}")
    if late == 2:
        a("v_mov_b32 v9, 1")
        a(f"ds_write_b32 v14, v9 offset:{F_PUB-M0_}")
        a("s_waitcnt lgkmcnt(0)")
    stamp(7)
    finish()

    a("L_pace:")
    lds_wait_ge(F_FILL, "s58", "s56", 12, sleep=8, precheck=True)
    a("s_add_u32 s56, s56, s57")
    a("s_setpc_b64 s[54:55]")

    a("L_helper:")
    call_setup("L_pace", False)
    a("s_mov_b32 s58, 0")
    a("s_sub_u32 s62, s3, 4")
    a("s_and_b32 s48, s2, 7"); a("s_mul_i32 s48, s48, 7"); a("s_lshr_b32 s49, s2, 3"); a("s_add_u32 s59, s48, s49")
    if not noffn:
        a(f"s_cmp_ge_u32 s2, {NF}")
        a("s_cbranch_scc1 L_noffn")
        if not late or nlate < 7:
            a("; ---- waves 4..7 of FFN workgroups: A fragments of gate/up (32 hidden columns, 7 k-steps) and down (8 tiles)")
            a("s_cmp_ge_u32 s62, 2")
            a("s_cselect_b32 s44, s18, s16"); a("s_cselect_b32 s45, s19, s17")
            a("s_and_b32 s45, s45, 0xffff"); a("s_mov_b32 s46, 1605632"); a("s_mov_b32 s47, 0x20000")
            a("v_lshrrev_b32 v7, 2, v0"); a("v_and_b32 v8, 7, v7"); a("v_lshrrev_b32 v6, 3, v7"); a("v_lshl_add_u32 v6, v8, 2, v6")
            a("v_mul_u32_u24 v6, 3584, v6"); a("v_and_b32 v8, 3, v0"); a("v_lshl_add_u32 v6, v8, 4, v6")
            a("s_and_b32 s48, s62, 1"); a(f"s_mul_i32 s50, s48, {7*32*3584}"); a("s_lshl_b32 s49, s59, 6"); a("s_add_u32 s50, s50, s49")
            a("s_lshl_b32 s51, s62, 11"); a(f"s_add_u32 s51, s51, {L_STG}")
            a("v_lshrrev_b32 v9, 2, v1"); a("v_lshl_add_u32 v10, v2, 3, v9"); a("v_lshlrev_b32 v10, 6, v10")
            a("v_and_b32 v11, 3, v1"); a("v_lshl_add_u32 v10, v11, 3, v10"); a("v_add_u32 v10, s51, v10")
            a(f"s_mov_b32 s56, {gt0}"); a(f"s_mov_b32 s57, {gdt}")

            def stage(step2, step_next):
                call()
                a("s_mov_b32 m0, s51"); a("s_nop 0")
                a("buffer_load_dwordx4 v6, s[44:47], s50 offen nt lds")
                if not gpair:
                    call()
                a("s_add_u32 m0, s51, 1024"); a(f"s_add_u32 s50, s50, {step2}")
                a("buffer_load_dwordx4 v6, s[44:47], s50 offen nt lds")
                a(f"s_add_u32 s50, s50, {step_next}")
                a("s_waitcnt vmcnt(0)")
            for f in range(7 - (nlate if late else 0)):
                stage(2*3584, 30*3584)
                for ft in range(2):
                    a(f"ds_read_b64_tr_b16 {q(FF+8*f+4*ft,2)}, v10 offset:{ft*32}")
                    a(f"ds_read_b64_tr_b16 {q(FF+8*f+4*ft+2,2)}, v10 offset:{ft*32+256}")
                a("s_waitcnt lgkmcnt(0)")
            srd(44, 20, 1605632)
            a("v_mul_u32_u24 v6, 896, v7"); a("v_lshl_add_u32 v6, v8, 4, v6")
            a("s_mul_i32 s50, s59, 28672"); a("s_lshl_b32 s49, s62, 8"); a("s_add_u32 s50, s50, s49")
            a("v_lshl_add_u32 v10, v2, 2, v9"); a("v_lshlrev_b32 v10, 6, v10"); a("v_lshl_add_u32 v10, v11, 3, v10"); a("v_add_u32 v10, s51, v10")
            for pr in range(0 if late else 4):
                stage(16*896, 64 - 16*896 + (1 << 32))
                for sub in range(2):
                    a(f"ds_read_b64_tr_b16 {q(QA+8*pr+4*sub,2)}, v10 offset:{sub*32}")
                    a(f"ds_read_b64_tr_b16 {q(QA+8*pr+4*sub+2,2)}, v10 offset:{sub*32+1024}")
                a("s_waitcnt lgkmcnt(0)")
        a("s_branch L_ffn")
        a("L_noffn:")
    else:
        a(f"s_cmp_lt_u32 s2, {NF}")
        a("s_cbranch_scc1 L_ffn")
    a(f"s_sub_u32 s59, s2, {R0LO}")
    a("s_cmp_lt_u32 s59, 64")
    a("s_cbranch_scc0 L_r1")
    srd(36, 12, 3670016)
    a("v_mul_u32_u24 v4, 7168, v2"); a("v_lshl_add_u32 v4, v1, 3, v4")
    a("s_lshl_b32 s47, s62, 8"); a("s_cmp_eq_u32 s62, 3"); a("s_cselect_b32 s47, 704, s47")
    a("s_mul_i32 s48, s59, 57344"); a("s_add_u32 s48, s48, s47")
    a("v_add_u32 v4, s48, v4")
    a(f"s_mov_b32 s56, {wt0}"); a(f"s_mov_b32 s57, {wdt}")
    for k in range(16):
        call()
        wo_load(k)
    a("v_lshlrev_b32 v5, 7, v1"); a("v_lshl_add_u32 v5, v2, 4, v5")
    a("s_lshl_b32 s44, s59, 11"); a(f"s_add_u32 s44, s44, {W_OX}"); a("s_add_u32 s45, s44, 64")
    a(f"v_mul_u32_u24 v7, {64*1792}, v2"); a("v_lshl_add_u32 v7, v1, 4, v7")
    a("s_mul_i32 s46, s59, 1792"); a("s_lshl_b32 s48, s47, 1"); a("s_add_u32 s46, s46, s48")
    a("s_cmp_ge_u32 s62, 2"); a("s_cselect_b32 s38, 0x00ff00ff, -1"); a("s_mov_b32 s39, s38")
    a("s_mov_b32 s48, 0x05040100"); a("s_mov_b32 s49, 0x07060302")
    a("s_waitcnt vmcnt(0)")
    for ks in range(2):
        src = WL + ks*32
        for t in range(8):
            for d in range(4):
                a(f"v_perm_b32 v{wfrag(ks,t)+d}, v{src+(2*d+1)*4+(t>>1)}, v{src+(2*d)*4+(t>>1)}, s{48+(t&1)}")
    if dry0:
        a("s_mov_b32 s42, 0"); a("s_mov_b64 vcc, -1")
        a("s_branch L_r0body")
        a("L_r0real:")
        a(f"s_mov_b32 s42, {WS_BYTES}"); a("s_mov_b64 vcc, 0"); a("s_mov_b64 exec, -1")
    lds_wait_ge(F_FOK, "s48", 1, 6, sleep=16)
    end_wait(tpoll)
    poll_quads(YA, 5, ["s44", "s45"], 6, pdep=pd[0])
    stamp(3)
    a("L_r0body:")
    for t in range(8):
        for ks in range(2):
            a(f"v_mfma_f32_16x16x32_bf16 {q(T2+4*t)}, {q(YA+4*ks)}, {q(wfrag(ks,t))}, {q(T2+4*t) if ks else 0}")
        if t >= 4:
            u = t - 4
            a(f"v_pk_add_f32 {q(T2+4*u,2)}, {q(T2+4*u,2)}, {q(T2+4*u+2,2)}")
            a(f"v_add_f32 v{SB+u}, v{T2+4*u}, v{T2+4*u+1}")
    a("s_nop 0")
    a(f"buffer_store_dwordx4 {q(SB)}, v7, s[40:43], s46 offen {stfl}")
    for u in range(4, 8):
        if u == 7:
            a("s_nop 0")
        a(f"v_pk_add_f32 {q(T2+4*u,2)}, {q(T2+4*u,2)}, {q(T2+4*u+2,2)}")
        a(f"v_add_f32 v{SB+u}, v{T2+4*u}, v{T2+4*u+1}")
    a("s_mov_b64 exec, s[38:39]")
    a(f"buffer_store_dwordx4 {q(SB+4)}, v7, s[40:43], s46 offen offset:256 {stfl}")
    if dry0:
        a("s_cbranch_vccnz L_r0real")
    a("s_mov_b64 exec, -1")
    stamp(4)
    if diag:
        a("s_waitcnt vmcnt(0)")
        stamp(5)
    finish()

    def count_check():
        a("; all workgroups have emptied their hand-off words once d_debug[0] reaches 256")
        a("s_load_dword s48, s[24:25], 0") if 'l' not in tst else a("s_mov_b32 s48, 256")
        a("s_waitcnt lgkmcnt(0)")
        bound_init(1 << 17)
        a("L_cntpoll:")
        a(f"s_cmp_ge_u32 s48, {256 if 'a' not in tst else 0}")
        a("s_cbranch_scc1 L_cntok")
        a("s_sleep 64")
        a("s_mov_b32 s48, 0")
        a("s_atomic_add s48, s[24:25], 0 glc")
        a("s_waitcnt lgkmcnt(0)")
        bound_loop("L_cntpoll")
        a("L_cntok:")
        a("s_cmp_lg_u32 s2, 0")
        a("s_cbranch_scc1 L_noep")
        a("v_mov_b32 v6, s62"); a(f"s_mov_b32 s48, {W_EP}")
        a("s_mov_b64 exec, 1")
        a("buffer_store_dword v6, v15, s[40:43], s48 offen sc1")
        a("s_mov_b64 exec, -1")
        a("L_noep:")

    a("L_h4:")
    a("; sum the 14 partials, exchange the q quarters of the four workgroups of this head through tagged granules")
    a("v_and_b32 v8, 31, v0"); a("v_lshlrev_b32 v8, 3, v8")
    a("v_mul_u32_u24 v9, 1792, v3"); a("v_add_u32 v9, v9, v8"); a(f"v_add_u32 v9, {L_QP}, v9")
    a("s_lshl_b32 s56, s31, 10"); a(f"s_add_u32 s56, s56, {W_QX}"); a("s_lshl_b32 s57, s29, 8"); a("s_add_u32 s57, s57, s56")
    a("s_add_u32 s62, s62, 1")
    a("v_lshlrev_b32 v5, 4, v0")
    a("v_lshlrev_b32 v11, 3, v0"); a(f"v_add_u32 v11, {L_QB}, v11")
    lds_wait_ge(F_QCNT, "s48", 7, 6, sleep=0)
    for p in range(7):
        a(f"ds_read_b64 {q(T+2*p,2)}, v9 offset:{p*256}")
    for p in range(1, 7):
        a(f"s_waitcnt lgkmcnt({6-p})")
        a(f"v_pk_add_f32 {q(T,2)}, {q(T,2)}, {q(T+2*p,2)}")
    a(f"v_mov_b32 v{T+2}, v{T}"); a(f"v_mov_b32 v{T+3}, v{T+1}"); a("s_nop 1")
    a(f"v_permlane32_swap_b32 v{T}, v{T+2}"); a(f"v_permlane32_swap_b32 v{T+1}, v{T+3}")
    a(f"v_pk_add_f32 {q(T,2)}, {q(T,2)}, {q(T+2,2)}")
    a("v_mov_b32 v7, s62")
    a(f"v_cvt_pk_bf16_f32 v6, v{T}, v{T+1}")
    a("s_mov_b32 exec_hi, 0")
    a("buffer_store_dwordx2 v[6:7], v8, s[40:43], s57 offen sc1")
    a("s_mov_b32 exec_hi, -1")
    bound_init(1 << 17)
    a("L_qpoll:")
    a(f"buffer_load_dwordx4 {q(T)}, v5, s[40:43], s56 offen sc1")
    a("s_waitcnt vmcnt(0)")
    a(f"v_cmp_ne_u32 vcc, s62, v{T+1}"); a(f"v_cmp_ne_u32 s[48:49], s62, v{T+3}")
    a("s_or_b64 vcc, vcc, s[48:49]")
    a("s_cbranch_scc0 L_qok") if 'q' not in tst else a("s_branch L_qok")
    a("s_sleep 2")
    bound_loop("L_qpoll")
    a("L_qok:")
    a(f"v_mov_b32 v{T+1}, v{T+2}")
    a(f"ds_write_b64 v11, {q(T,2)}")
    a("v_mov_b32 v6, 1")
    a("s_waitcnt lgkmcnt(0)")
    a(f"ds_write_b32 v14, v6 offset:{F_QOK-M0_}")
    if use_fb and fbm == 'ls':
        a("; progress words of the eight members of this workgroup's balancing group (one per die-sized stride of ids)")
        a("s_lshr_b32 s48, s2, 3"); a("s_and_b32 s49, s2, 7"); a(f"s_mul_i32 s50, s49, {fbmix}"); a("s_add_u32 s48, s48, s50")
        a(f"v_mul_u32_u24 v6, {fbmix}, v0"); a("v_sub_u32 v6, s48, v6"); a("v_and_b32 v6, 31, v6"); a("v_lshl_add_u32 v6, v6, 3, v0")
        a(f"v_mul_u32_u24 v{FF}, {fbstr}, v6")
        a(f"s_mul_i32 s94, s2, {fbstr}"); a(f"s_add_u32 s94, s94, {W_FB}"); a(f"s_mov_b32 s95, {W_FB}")
    elif use_fb:
        ng = 256 // fbg
        a("s_lshr_b32 s48, s2, 3"); a("s_and_b32 s49, s2, 7"); a(f"s_mul_i32 s50, s49, {fbmix}"); a("s_add_u32 s48, s48, s50")
        a(f"s_and_b32 s48, s48, {ng-1}"); a("s_lshl_b32 s48, s48, 12"); a(f"s_add_u32 s48, s48, {W_FB}")
        a("s_add_u32 s94, s26, s48"); a("s_addc_u32 s95, s27, 0")
        a(f"s_lshr_b32 s50, s2, {3 + ng.bit_length() - 1}"); a("s_or_b32 s49, s49, s50")
        a("s_cbranch_scc1 L_nolead")
        a("v_lshlrev_b32 v6, 8, v0")
        a("s_mov_b64 exec, 0xffff")
        a("buffer_store_dword v15, v6, s[40:43], s48 offen sc1")
        a("s_mov_b64 exec, -1")
        a("L_nolead:")
    if boost is not None or r2dep or r0dep:
        a(f"s_mov_b32 s93, {didx(depth)}")
    if r0dep:
        a(f"s_sub_u32 s48, s2, {R0LO}"); a("s_cmp_lt_u32 s48, 64"); a(f"s_cselect_b32 s93, {didx(r0dep)}, s93")
    if r2dep:
        a(f"s_cmp_lt_u32 s2, {NF}"); a(f"s_cselect_b32 s93, {didx(r2dep)}, s93")
    lds_wait_ge(F_CLR, "s48", 7, 6, sleep=2)
    if boost is not None or r2dep or r0dep:
        set_depth("s93")
    if atomt:
        a(f"s_and_b32 s49, s2, {atomt - 1}"); a(f"s_add_u32 s49, s49, {max(clrt, 16)}")
        lds_wait_ge(F_FILL, "s48", "s49", 6, sleep=8)
    if 'a' not in tst and not patom:
        a("s_mov_b32 s48, 1")
        a("s_atomic_add s48, s[24:25], 0")
        a("s_waitcnt lgkmcnt(0)")
    sched = [t for t, _ in fbr]
    if use_fb:
        call_setup("L_fb", True)
    if vpre:
        a("; first touch of this workgroup's V pages through the scalar path, ahead of the stream")
        a("s_lshl_b32 s48, s31, 22"); a("s_lshl_b32 s49, s29, 20"); a("s_add_u32 s48, s48, s49")
        a("s_add_u32 s96, s8, s48"); a("s_addc_u32 s97, s9, 0")
        lds_wait_ge(F_FILL, "s48", vpre, 6, sleep=8)
        a("s_load_dword s48, s[96:97], 0")
        a("s_waitcnt lgkmcnt(0)")
    for t in [t for t in sched if t < 128]:
        fb_call(t)
    a("v_lshlrev_b32 v9, 3, v0"); a(f"v_add_u32 v9, {L_ML}, v9")
    lds_wait_ge(F_MLCNT, "s48", 2, 6, sleep=8)
    a("s_mov_b64 exec, 3")
    a("ds_read_b64 v[6:7], v9")
    a("s_lshl_b32 s48, s31, 2"); a("s_add_u32 s48, s48, s29"); a("s_lshl_b32 s48, s48, 5"); a(f"s_add_u32 s48, s48, {W_ML}")
    a("s_waitcnt lgkmcnt(0)")
    a(f"v_mov_b32 v{YA}, v6"); a(f"v_mov_b32 v{YA+1}, s62"); a(f"v_mov_b32 v{YA+2}, v7"); a(f"v_mov_b32 v{YA+3}, s62")
    None if 'm' in tst else a(f"buffer_store_dwordx4 {q(YA)}, v5, s[40:43], s48 offen sc1")
    a("s_mov_b64 exec, -1")
    if not patom:
        count_check()
    for t in [t for t in sched if 128 <= t <= mlt]:
        fb_call(t)
    lds_wait_ge(F_FILL, "s48", mlt, 6, sleep=8)
    a("v_and_b32 v8, 7, v0"); a("v_lshlrev_b32 v9, 4, v8")
    a("s_lshl_b32 s61, s31, 7"); a(f"s_add_u32 s61, s61, {W_ML}")
    bound_init(1 << 17)
    a("L_mlpoll:")
    if 'm' in tst:
        a("s_branch L_mlgot")
    a(f"buffer_load_dwordx4 {q(YA+4)}, v9, s[40:43], s61 offen sc1")
    a("s_waitcnt vmcnt(0)")
    a(f"v_cmp_ne_u32 vcc, s62, v{YA+5}"); a(f"v_cmp_ne_u32 s[48:49], s62, v{YA+7}")
    a("s_or_b64 vcc, vcc, s[48:49]")
    a("s_cbranch_scc0 L_mlgot")
    a("s_sleep 24")
    bound_loop("L_mlpoll")
    a("L_mlgot:")
    a(f"v_mov_b32 v10, v{YA+4}")
    for d in ("row_ror:4", "row_ror:2", "row_ror:1"):
        a("s_nop 1")
        a(f"v_max_f32_dpp v10, v10, v10 {d} row_mask:0xf bank_mask:0xf")
    a(f"v_sub_f32 v6, v{YA+4}, v10"); a(f"v_mul_f32 v6, {LOG2E_16:#x}, v6"); a("v_exp_f32 v6, v6"); a("s_nop 0")
    a(f"v_mul_f32 v7, v6, v{YA+6}")
    for d in ("row_ror:4", "row_ror:2", "row_ror:1"):
        a("s_nop 1")
        a(f"v_add_f32_dpp v7, v7, v7 {d} row_mask:0xf bank_mask:0xf")
    a("v_rcp_f32 v7, v7"); a("v_lshrrev_b32 v9, 1, v0"); a("v_and_b32 v8, 1, v0")
    a("v_mul_f32 v6, v6, v7")
    a("v_lshlrev_b32 v8, 2, v8"); a(f"v_add_u32 v8, {L_F}, v8")
    a("v_cmp_eq_u32 vcc, s29, v9")
    a("s_mov_b64 exec, vcc")
    a("ds_write_b32 v8, v6")
    a("s_mov_b64 exec, -1")
    if patom:
        a("; the four workgroups of this pair published after emptying their hand-off words: quarter 0 counts them")
        a("s_cmp_lg_u32 s29, 0"); a("s_cbranch_scc1 L_noadd")
        a("s_mov_b32 s48, 4"); a("s_atomic_add s48, s[24:25], 0"); a("s_waitcnt lgkmcnt(0)")
        a("L_noadd:")
        for t in [t for t in sched if mlt < t <= chkt]:
            fb_call(t)
        lds_wait_ge(F_FILL, "s48", chkt, 6, sleep=8)
        count_check()
    a("v_mov_b32 v6, 1")
    a("s_waitcnt lgkmcnt(0)")
    a(f"ds_write_b32 v14, v6 offset:{F_FOK-M0_}")
    for t in [t for t in sched if t > (chkt if patom else mlt)]:
        fb_call(t)
    if endt:
        lds_wait_ge(F_FILL, "s48", endt, 6, sleep=2)
        set_depth(didx(endd))
    a("s_branch L_done")
    if use_fb:
        a("; the arrival rank of this workgroup at tile s50 within its group selects the loader depth")
        a("L_fb:")
        lds_wait_ge(F_FILL, "s48", "s50", 6, sleep=fbsl)
        if fbm == 'ls':
            a("s_lshl_b32 s49, s62, 10"); a("s_add_u32 s49, s49, s50"); a("v_mov_b32 v7, s49")
            a("s_mov_b64 exec, 0xff")
            a(f"buffer_load_dword v6, v{FF}, s[40:43], s95 offen sc1")
            a("s_mov_b64 exec, 1")
            a("buffer_store_dword v7, v15, s[40:43], s94 offen sc1")
            a("s_mov_b64 exec, 0xff")
            a("s_waitcnt vmcnt(1)")
            a("v_subrev_u32 v6, s49, v6"); a("v_cmp_gt_u32 vcc, 0x100, v6")
            a("s_mov_b64 exec, -1")
            a("s_bcnt1_i32_b64 s48, vcc")
        elif fbm == 'none':
            a("s_mov_b32 s48, 3")
        else:
            a("s_mov_b32 s48, 1")
            a("s_atomic_add s48, s[94:95], 0 glc")
            a("s_waitcnt lgkmcnt(0)")
        if fbg > 8:
            a(f"s_lshr_b32 s48, s48, {(fbg // 8).bit_length() - 1}")
        if r2b:
            a(f"s_cmp_lt_u32 s2, {NF}"); a(f"s_cselect_b32 s49, {r2b}, 0"); a("s_add_u32 s48, s48, s49")
        a("s_min_u32 s48, s48, 7"); a("s_lshl_b32 s48, s48, 2"); a("s_lshr_b32 s93, s51, s48"); a("s_and_b32 s93, s93, 15")
        if lad:
            a("s_lshr_b32 s49, s92, s48"); a("s_and_b32 s49, s49, 15"); a("s_add_u32 s91, s91, s49"); a("s_sub_u32 s91, s91, 8")
            a("s_max_i32 s91, s91, 1"); a(f"s_min_i32 s91, s91, {len(lad)}")
            a("s_add_u32 s93, s93, s91"); a("s_sub_u32 s93, s93, 8")
            a("s_max_i32 s93, s93, 1"); a(f"s_min_i32 s93, s93, {len(lad)}")
        a("v_mov_b32 v6, s93")
        a(f"ds_write_b32 v14, v6 offset:{F_DEP-M0_}")
        if fbm != 'ls':
            a("s_add_u32 s94, s94, 256"); a("s_addc_u32 s95, s95, 0")
        a("s_setpc_b64 s[54:55]")

    a("L_ffn:")

    def late_frags():
        a("; the ring is drained: gate/up/down rows of this workgroup stream into it while the hand-offs are under way")
        a("s_cmp_ge_u32 s62, 2")
        a("s_cselect_b32 s32, s18, s16"); a("s_cselect_b32 s33, s19, s17")
        a("s_and_b32 s33, s33, 0xffff"); a("s_mov_b32 s34, 1605632"); a("s_mov_b32 s35, 0x20000")
        srd(36, 20, 1605632)
        a(f"v_lshrrev_b32 v{SB}, 2, v0"); a(f"v_and_b32 v{SB+1}, 7, v{SB}"); a(f"v_lshrrev_b32 v{SB+2}, 3, v{SB}"); a(f"v_lshl_add_u32 v{SB+2}, v{SB+1}, 2, v{SB+2}")
        a(f"v_mul_u32_u24 v{SB+2}, 3584, v{SB+2}"); a(f"v_and_b32 v{SB+1}, 3, v0"); a(f"v_lshl_add_u32 v{SB+2}, v{SB+1}, 4, v{SB+2}")
        if wide:
            a(f"v_lshrrev_b32 v{SB+3}, 3, v0"); a(f"v_mul_u32_u24 v{SB+3}, 896, v{SB+3}"); a(f"v_and_b32 v{SB+1}, 7, v0"); a(f"v_lshl_add_u32 v{SB+3}, v{SB+1}, 4, v{SB+3}")
        else:
            a(f"v_mul_u32_u24 v{SB+3}, 896, v{SB}"); a(f"v_lshl_add_u32 v{SB+3}, v{SB+1}, 4, v{SB+3}")
        DB = 2048 * max(nlate, 6)
        a(f"s_mul_i32 s51, s62, {DB + 8192}")
        a(f"v_lshrrev_b32 v{SB+4}, 2, v1"); a(f"v_and_b32 v{SB+5}, 3, v1"); a(f"v_lshlrev_b32 v{SB+5}, 3, v{SB+5}")
        a(f"v_lshl_add_u32 v{SB+6}, v2, 3, v{SB+4}"); a(f"v_lshl_add_u32 v{SB+6}, v{SB+6}, 6, v{SB+5}"); a(f"v_add_u32 v{SB+6}, s51, v{SB+6}")
        a(f"v_lshl_add_u32 v{SB+7}, v2, 2, v{SB+4}"); a(f"v_lshl_add_u32 v{SB+7}, v{SB+7}, {7 if wide else 6}, v{SB+5}")
        a("s_lshl_b32 s49, s62, 11"); a(f"s_add_u32 s60, s49, {L_STG}"); a(f"v_add_u32 v{SB+4}, s60, v{SB+7}"); a(f"v_add_u32 v{SB+7}, s51, v{SB+7}")
        a("s_and_b32 s48, s62, 1"); a(f"s_mul_i32 s92, s48, {7*32*3584}"); a("s_lshl_b32 s49, s59, 6"); a("s_add_u32 s92, s92, s49")
        a("s_mul_i32 s93, s59, 28672"); a("s_lshl_b32 s49, s62, 8"); a("s_add_u32 s93, s93, s49")
        if late == 1:
            end_wait(NT)
        elif late == 2:
            lds_wait_ge(F_PUB, "s48", 1, 6, sleep=2)
        else:
            lds_wait_ge(F_CONS, "s48", late, 6, sleep=2)
            lds_wait_ge(F_CONS + 4, "s48", late, 6, sleep=2)
        for f in range(7 - nlate, 7):
            for hh in range(2):
                a(f"s_add_u32 m0, s51, {(f - (7 - nlate if wide else 0))*2048 + hh*1024}"); a(f"s_add_u32 s48, s92, {(f*32 + 2*hh)*3584}")
                a(f"buffer_load_dwordx4 v{SB+2}, s[32:35], s48 offen nt lds")
        if wide:
            for k in range(8):
                a(f"s_add_u32 m0, s51, {DB + k*1024}"); a(f"s_add_u32 s48, s93, {(k >> 2)*128 + (k & 3)*8*896}")
                a(f"buffer_load_dwordx4 v{SB+3}, s[36:39], s48 offen nt lds")
        for pr in range(0 if wide else 4):
            for hh in range(2):
                if pr < 3:
                    a(f"s_add_u32 m0, s51, {14336 + pr*2048 + hh*1024}")
                else:
                    a(f"s_add_u32 m0, s60, {hh*1024}")
                a(f"s_add_u32 s48, s93, {pr*64 + hh*16*896}")
                a(f"buffer_load_dwordx4 v{SB+3}, s[36:39], s48 offen nt lds")
        for f in range(7 - nlate, 7):
            a(f"s_waitcnt vmcnt({20 - 2*f})")
            for ft in range(2):
                a(f"ds_read_b64_tr_b16 {q(FF+8*f+4*ft,2)}, v{SB+6} offset:{(f - (7 - nlate if wide else 0))*2048 + ft*32}")
                a(f"ds_read_b64_tr_b16 {q(FF+8*f+4*ft+2,2)}, v{SB+6} offset:{(f - (7 - nlate if wide else 0))*2048 + ft*32 + 256}")
            if f % 2:
                a("s_waitcnt lgkmcnt(4)")
        for pr in range(4 if wide else 0):
            if pr % 2 == 0:
                a(f"s_waitcnt vmcnt({4 - 2*pr})")
            for sub in range(2):
                o = DB + (pr >> 1)*4096 + (pr & 1)*64 + sub*32
                a(f"ds_read_b64_tr_b16 {q(QA+8*pr+4*sub,2)}, v{SB+7} offset:{o}")
                a(f"ds_read_b64_tr_b16 {q(QA+8*pr+4*sub+2,2)}, v{SB+7} offset:{o + 2048}")
            a("s_waitcnt lgkmcnt(4)")
        for pr in range(0 if wide else 4):
            a(f"s_waitcnt vmcnt({6 - 2*pr})")
            for sub in range(2):
                va, o = (SB + 7, 14336 + pr*2048) if pr < 3 else (SB + 4, 0)
                a(f"ds_read_b64_tr_b16 {q(QA+8*pr+4*sub,2)}, v{va} offset:{o + sub*32}")
                a(f"ds_read_b64_tr_b16 {q(QA+8*pr+4*sub+2,2)}, v{va} offset:{o + sub*32 + 1024}")
            a("s_waitcnt lgkmcnt(4)")
        a("s_waitcnt lgkmcnt(0)")

    def flag(pos):
        if g3 == pos:
            a("s_cmp_lg_u32 s62, 3"); a("s_cbranch_scc1 L_nofl")
            a("s_mov_b64 exec, 1")
            a(f"buffer_store_dword v4, v15, s[40:43], s61 offen {stfl}")
            a("s_mov_b64 exec, -1")
            a("L_nofl:")
    a("v_lshlrev_b32 v5, 5, v0")
    a(f"s_and_b32 s48, s2, {nrep-1}"); a("s_mul_i32 s48, s48, 7168"); a("s_mul_i32 s49, s62, 1792"); a("s_add_u32 s48, s48, s49")
    a(f"s_add_u32 s56, s48, {W_HB}"); a("s_add_u32 s57, s56, 16")
    X = T2
    a("v_lshlrev_b32 v8, 4, v0"); a("s_mul_i32 s48, s62, 960"); a(f"s_add_u32 s48, s48, {L_XN2}"); a("v_add_u32 v8, s48, v8")
    a("v_and_b32 v9, 3, v1"); a("v_mul_u32_u24 v10, 960, v9"); a("v_lshl_add_u32 v10, v2, 4, v10")
    a("s_and_b32 s48, s62, 1"); a("s_mul_i32 s48, s48, 448"); a(f"s_add_u32 s48, s48, {L_XN2}"); a("v_add_u32 v10, s48, v10")
    a("v_lshlrev_b32 v11, 6, v9"); a("v_lshl_add_u32 v11, v2, 4, v11"); a(f"v_add_u32 v11, {L_GU}, v11")
    a("s_lshl_b32 s48, s62, 9"); a("v_add_u32 v12, s48, v11")
    a(f"v_mul_u32_u24 v13, {14*7168}, v9"); a("v_bfe_u32 v6, v1, 2, 1"); a("v_lshl_add_u32 v13, v6, 6, v13"); a("v_lshl_add_u32 v13, v2, 4, v13")
    a("v_cmp_eq_u32 s[46:47], 0, v6"); a("v_mov_b32 v7, v13"); a("v_mov_b32 v4, s91")
    a("s_lshl_b32 s58, s59, 7"); a(f"s_mul_i32 s48, s62, {4*7168}"); a("s_add_u32 s58, s58, s48"); a(f"s_add_u32 s58, s58, {W_OP}")
    a("s_mov_b32 s44, -1"); a("s_mov_b32 s45, 0x00ffffff")
    if dry:
        a("; one pass over the code below with stores disabled and barriers skipped loads it into the instruction cache")
        a("s_mov_b32 s42, 0"); a("s_mov_b64 vcc, -1"); a("s_mov_b32 s61, 0")
        a("s_branch L_ffnbody")
        a("L_ffnreal:")
        a(f"s_mov_b32 s42, {WS_BYTES}"); a("s_mov_b64 vcc, 0"); a("s_mov_b64 exec, -1")
        a("v_mov_b32 v13, v7")
    lds_wait_ge(F_FOK, "s48", 1, 6, sleep=16)
    if late:
        late_frags()
        stamp(6)
    else:
        end_wait(NT)
    if g2:
        a(f"v_mul_u32_u24 v9, {4*1792}, v0")
        a(f"s_mul_i32 s61, s62, {64*1792}"); a("s_and_b32 s48, s2, 3"); a("s_mul_i32 s48, s48, 1792"); a("s_add_u32 s61, s61, s48")
        a("s_lshr_b32 s48, s2, 2"); a("s_lshl_b32 s48, s48, 7"); a("s_add_u32 s61, s61, s48")
        gate(9, "s61", 16, g2, 6)
    a("s_lshl_b32 s61, s2, 7"); a(f"s_add_u32 s61, s61, {W_FL}")
    poll_quads(X, 5, ["s56", "s57"], 6, execs=["s[44:45]"]*2, both=b2, pdep=pd[2])
    stamp(3)
    a("L_ffnbody:")
    layernorm(X, T, YA, fast=fastln)
    a("s_mov_b32 exec_hi, 0x00ffffff")
    a(f"ds_write_b128 v8, {q(YA)}")
    a("s_mov_b32 exec_hi, -1")
    a("s_waitcnt lgkmcnt(0)")
    if dry:
        a("s_cbranch_vccnz L_nb1x")
    a("s_barrier")
    a("L_nb1x:")
    for f in range(7):
        a(f"ds_read_b128 {q(T+4*f)}, v10 offset:{f*64}")
    flag(1)
    for f in range(7):
        a(f"s_waitcnt lgkmcnt({6-f})")
        a(f"v_mfma_f32_16x16x32_bf16 {q(ACC)}, {q(FF+8*f)}, {q(T+4*f)}, {q(ACC) if f else 0}")
        a(f"v_mfma_f32_16x16x32_bf16 {q(ACA)}, {q(FF+8*f+4)}, {q(T+4*f)}, {q(ACA) if f else 0}")
    flag(2)
    a("s_nop 6")
    a(f"ds_write_b128 v12, {q(ACC)}")
    a(f"ds_write_b128 v12, {q(ACA)} offset:256")
    a("s_waitcnt lgkmcnt(0)")
    if dry:
        a("s_cbranch_vccnz L_nb2x")
    a("s_barrier")
    a("L_nb2x:")
    G0 = T
    for ft in range(2):
        for p in range(4):
            a(f"ds_read_b128 {q(G0+16*ft+4*p)}, v11 offset:{p*512+ft*256}")
    flag(3)
    for ft in range(2):
        B = G0 + 16*ft
        a(f"s_waitcnt lgkmcnt({6-4*ft})")
        a(f"v_pk_add_f32 {q(B,2)}, {q(B,2)}, {q(B+4,2)}"); a(f"v_pk_add_f32 {q(B+2,2)}, {q(B+2,2)}, {q(B+6,2)}")
        a(f"s_waitcnt lgkmcnt({4-4*ft})")
        a(f"v_pk_add_f32 {q(B+8,2)}, {q(B+8,2)}, {q(B+12,2)}"); a(f"v_pk_add_f32 {q(B+10,2)}, {q(B+10,2)}, {q(B+14,2)}")
        for r in range(4):
            a(f"v_cvt_pk_bf16_f32 v{B+4+r}, v{B+r}, v{B+8+r}")
        for r in range(4):
            a(f"v_lshlrev_b32 v{B+r}, 16, v{B+4+r}"); a(f"v_and_b32 v{B+4+r}, 0xffff0000, v{B+4+r}")
        a(f"v_pk_mul_f32 {q(B,2)}, {q(B,2)}, {q(B+4,2)}"); a(f"v_pk_mul_f32 {q(B+2,2)}, {q(B+2,2)}, {q(B+6,2)}")
        a(f"v_cvt_pk_bf16_f32 v{YA+2*ft}, v{B}, v{B+1}"); a(f"v_cvt_pk_bf16_f32 v{YA+2*ft+1}, v{B+2}, v{B+3}")
    flag(4)
    for d in range(4):
        a(f"v_cndmask_b32 v{YA+4+d}, 0, v{YA+d}, s[46:47]")
    for d in range(4):
        a(f"v_cndmask_b32 v{YA+8+d}, v{YA+d}, 0, s[46:47]")
    for pr in range(4):
        a(f"v_mfma_f32_16x16x32_bf16 {q(T+4*pr)}, {q(QA+8*pr)}, {q(YA+4)}, 0")
        if pr == 0:
            a("s_nop 0")
    for pr in range(4):
        a(f"v_mfma_f32_16x16x32_bf16 {q(T+4*pr)}, {q(QA+8*pr+4)}, {q(YA+8)}, {q(T+4*pr)}")
    a("s_mov_b32 exec_lo, 0x00ff00ff"); a("s_mov_b32 exec_hi, 0x00ff00ff")
    a("s_cmp_eq_u32 s62, 3")
    a("s_nop 1")
    for pr in range(4):
        if pr == 2:
            a("s_cbranch_scc1 L_opdone")
        a(f"buffer_store_dwordx4 {q(T+4*pr)}, v13, s[40:43], s58 offen {stfl}")
        if pr < 3:
            a("v_add_u32 v13, 7168, v13")
    a("L_opdone:")
    if dry:
        a("s_cbranch_vccnz L_ffnreal")
    a("s_mov_b64 exec, -1")
    stamp(4)
    if diag:
        a("s_waitcnt vmcnt(0)")
        stamp(5)
    a("s_branch L_done")

    if l2pf:
        a("; ---- workgroups 176..255 touch the gate/up lines that the FFN workgroups with the same id modulo 8 read next")
        a("L_pf:")
        a("s_and_b32 s48, s2, 7"); a("s_mul_i32 s48, s48, 448"); a("s_and_b32 s48, s48, 0xffffff80")
        a("v_lshrrev_b32 v5, 3, v0"); a("v_mul_u32_u24 v5, 3584, v5"); a("v_and_b32 v6, 7, v0"); a("v_lshl_add_u32 v5, v6, 6, v5"); a("v_add_u32 v5, s48, v5")
        a("s_sub_u32 s48, s2, 176"); a("s_lshr_b32 s48, s48, 3"); a("s_lshl_b32 s48, s48, 1"); a("s_and_b32 s49, s62, 1"); a("s_add_u32 s48, s48, s49")
        a(f"s_mul_i32 s56, s48, {3*8*3584}")
        a("s_cmp_ge_u32 s62, 2")
        a("s_cselect_b32 s32, s18, s16"); a("s_cselect_b32 s33, s19, s17")
        a("s_and_b32 s33, s33, 0xffff"); a("s_mov_b32 s34, 1605632"); a("s_mov_b32 s35, 0x20000")
        if l2pf == 1:
            lds_wait_ge(F_PUB, "s48", 1, 6, sleep=4)
        else:
            lds_wait_ge(F_FILL, "s48", l2pf, 6, sleep=4)
        for k in range(3):
            a(f"buffer_load_dword v{8+k}, v5, s[32:35], s56 offen nt")
            if k < 2:
                a(f"s_add_u32 s56, s56, {8*3584}")
        finish()
    a("L_r1:")
    a(f"s_sub_u32 s48, s2, {R1LO}")
    a("s_cmp_lt_u32 s48, 56")
    a(f"s_cbranch_scc0 {'L_pf' if l2pf else 'L_done'}")
    a("s_mul_i32 s58, s48, 4682"); a("s_lshr_b32 s58, s58, 16"); a("s_mul_i32 s49, s58, 14"); a("s_sub_u32 s59, s48, s49")
    a("s_lshl_b32 s56, s48, 7")
    a("v_lshrrev_b32 v5, 3, v0"); a("v_and_b32 v6, 7, v0"); a("v_lshlrev_b32 v9, 4, v6")
    a("v_mul_u32_u24 v7, 1792, v5"); a("v_add_u32 v7, v7, v9")
    a("v_lshl_add_u32 v8, v5, 7, v9")
    a("v_lshl_add_u32 v10, v2, 3, v6"); a("v_lshlrev_b32 v10, 4, v10"); a("s_lshl_b32 s49, s62, 2"); a(f"s_add_u32 s49, s49, {L_RB}"); a("v_add_u32 v10, s49, v10")
    a("v_and_b32 v4, 31, v0"); a("v_lshlrev_b32 v9, 4, v4"); a(f"v_add_u32 v9, {L_RB}, v9")
    a("v_lshrrev_b32 v12, 3, v4"); a("v_lshl_add_u32 v12, v6, 2, v12"); a("v_lshlrev_b32 v12, 1, v12")
    a("s_lshr_b32 s61, s56, 1")
    a("buffer_load_ushort v11, v12, s[32:35], s61 offen")
    a("v_mul_u32_u24 v13, 7168, v3"); a("v_lshl_add_u32 v13, v4, 2, v13")
    a(f"s_mul_i32 s57, s62, {2*7168}"); a("s_add_u32 s57, s57, s56"); a(f"s_add_u32 s57, s57, {W_HB}")
    a(f"s_mul_i32 s44, s58, {64*1792}"); a("s_lshl_b32 s49, s59, 7"); a("s_add_u32 s44, s44, s49")
    a(f"s_mul_i32 s49, s62, {16*1792}"); a("s_add_u32 s44, s44, s49"); a(f"s_add_u32 s45, s44, {8*1792}")
    a("s_mul_i32 s46, s48, 7168"); a(f"s_mul_i32 s49, s62, {14*128}"); a("s_add_u32 s46, s46, s49"); a(f"s_add_u32 s46, s46, {W_OP}"); a("s_add_u32 s47, s46, 1024")
    a("s_lshl_b32 s60, s48, 7"); a(f"s_add_u32 s60, s60, {W_FL}")
    a("s_mov_b32 s36, -1"); a("s_mov_b32 s37, 0xffff")
    for r in range(4):
        a(f"v_mov_b32 v{T+4+r}, 0")
    a("s_waitcnt vmcnt(0)")
    a("v_lshlrev_b32 v11, 16, v11")
    srd(32, 22, 3584)
    if dry1:
        a("s_mov_b32 s42, 0"); a("s_mov_b32 s34, 0"); a("s_mov_b64 vcc, -1"); a("v_mov_b32 v5, v11")
        a("s_branch L_r1body")
        a("L_r1real:")
        a(f"s_mov_b32 s42, {WS_BYTES}"); a("s_mov_b32 s34, 3584"); a("s_mov_b64 vcc, 0"); a("s_mov_b64 exec, -1"); a("v_mov_b32 v11, v5")
    lds_wait_ge(F_FOK, "s48", 1, 6, sleep=16)
    end_wait(NT)
    if g1:
        a("v_mul_u32_u24 v4, 1792, v0")
        gate(4, "s44", g1n, g1, 6)
    poll_quads(T2, 7, ["s44", "s45"], 6, both=first2, pdep=pd[1])
    stamp(3)

    def sum2(R, off):
        a(f"v_pk_add_f32 {q(YA,2)}, {q(R,2)}, {q(R+4,2)}"); a(f"v_pk_add_f32 {q(YA+2,2)}, {q(R+2,2)}, {q(R+6,2)}")
        a("s_nop 1")
        a(f"v_permlane16_swap_b32 v{YA}, v{YA+1}")
        a(f"v_permlane16_swap_b32 v{YA+2}, v{YA+3}")
        a(f"v_add_f32 v{YA}, v{YA}, v{YA+1}")
        a(f"v_add_f32 v{YA+2}, v{YA+2}, v{YA+3}")
        a("s_nop 1")
        a(f"v_permlane32_swap_b32 v{YA}, v{YA+2}")
        a(f"v_add_f32 v{YA}, v{YA}, v{YA+2}")
        a("s_nop 1")
        a(f"v_add_f32_dpp v{YA}, v{YA}, v{YA} row_ror:8 row_mask:0xf bank_mask:0xf")
        a(f"ds_write_b32 v10, v{YA} offset:{off}")
        a("s_waitcnt lgkmcnt(0)")
        if dry1:
            a(f"s_cbranch_vccnz L_rb{off}")
        a("s_barrier")
        a(f"L_rb{off}:")
        a(f"ds_read_b128 {q(YA)}, v9 offset:{off}")
        a("s_waitcnt lgkmcnt(0)")
        a(f"v_pk_add_f32 {q(YA,2)}, {q(YA,2)}, {q(YA+2,2)}")
        a(f"v_add_f32 v{YA}, v{YA}, v{YA+1}")
        bf16r(YA, YA)
        a(f"v_add_f32 v11, v11, v{YA}")
    a("L_r1body:")
    sum2(T2, 0)
    bf16r(11, 11)
    a(f"buffer_store_dword v11, v13, s[40:43], s57 offen {stfl}")
    stamp(4)
    if dry1:
        a("s_cbranch_vccnz L_r3body")
    if g3:
        gate(15, "s60", 1, 1, 6, tag="s91")
    poll_quads(T, 8, ["s46", "s47"], 6, execs=["-1", "s[36:37]"], both=b3, pdep=pd[3])
    stamp(5)
    a("L_r3body:")
    sum2(T, 512)
    a("v_cvt_pk_bf16_f32 v11, v11, v11")
    a("s_lshl_b32 s48, s62, 3"); a("s_lshl_b32 exec_lo, 0xff, s48"); a("s_mov_b32 exec_hi, 0")
    a(f"buffer_store_short v11, v12, s[32:35], s61 offen {outfl}")
    if dry1:
        a("s_cbranch_vccnz L_r1real")
    a("s_mov_b64 exec, -1")
    stamp(6)
    a("L_done:")
    if padto:
        a("s_cmp_lg_u32 s2, 248"); a("s_cbranch_scc1 L_nopad"); a("s_cmp_lg_u32 s3, 7"); a("s_cbranch_scc1 L_nopad")
        a(f"s_add_u32 s98, s98, {padto*100}")
        a("L_pad:"); a("s_sleep 4"); a("s_memrealtime s[96:97]"); a("s_waitcnt lgkmcnt(0)"); a("s_cmp_lt_u32 s96, s98"); a("s_cbranch_scc1 L_pad")
        a("L_nopad:")
    finish()

    if not ldfirst:
        emit_loader()

    if diag:
        a("L_stamps:")
        a("v_mov_b32 v4, 0")
        for k in range(8):
            a(f"v_writelane_b32 v4, s{64+2*k}, {k}")
        a("s_getreg_b32 s48, hwreg(HW_REG_XCC_ID, 0, 4)")
        a("v_writelane_b32 v4, s48, 8")
        a("v_writelane_b32 v4, s63, 9")
        a("v_lshlrev_b32 v5, 2, v0")
        a("s_lshl_b32 s48, s2, 3"); a("s_add_u32 s48, s48, s3"); a("s_lshl_b32 s48, s48, 6"); a(f"s_add_u32 s48, s48, {W_ST}")
        a("s_mov_b64 exec, 0xffff")
        a("buffer_store_dword v4, v5, s[40:43], s48 offen")
    a("L_exit:")
    a("s_endpgm")
    a('.section .rodata,"a"')
    a(".p2align 6")
    a(f".amdhsa_kernel {KNAME}")
    a("  .amdhsa_next_free_vgpr 240")
    a("  .amdhsa_next_free_sgpr 100")
    a("  .amdhsa_accum_offset 240")
    a("  .amdhsa_group_segment_fixed_size 0")
    a("  .amdhsa_kernarg_size 96")
    a("  .amdhsa_user_sgpr_count 2")
    a("  .amdhsa_user_sgpr_kernarg_segment_ptr 1")
    a("  .amdhsa_system_sgpr_workgroup_id_x 1")
    a("  .amdhsa_float_denorm_mode_32 3")
    a(".end_amdhsa_kernel")
    out = []
    for x in L:
        if x is None:
            continue
        if al:
            for pref, e in al.items():
                if x.startswith(pref) and x.endswith(":") and x != "L_ld0:" and x != "L_ldrain:":
                    out.append(f".p2align {e}")
        if x == "L_worker:" and shift:
            out += ["    s_nop 0"] * shift
        if x.endswith(":") or x.startswith((";", ".")) or x.startswith("  ."):
            out.append(x)
        else:
            out.append("    " + x)
    return "\n".join(out) + "\n"


if __name__ == "__main__":
    kw = eval("dict(%s)" % (sys.argv[2] if len(sys.argv) > 2 else ""))
    open(sys.argv[1], "w").write(gen(**kw))
```
